```python
import torch

def _softmax(x, axis=-1):
    return torch.softmax(x, dim=axis)
def _gelu(x):
    return torch.nn.functional.gelu(x, approximate="tanh")
def _silu(x):
    return torch.nn.functional.silu(x)
def _sigmoid(x):
    return torch.sigmoid(x)
def _layernorm(x, axis=-1, eps=1e-5):
    m = x.mean(dim=axis, keepdim=True)
    v = x.var(dim=axis, keepdim=True, unbiased=False)
    return (x - m) / torch.sqrt(v + eps)
def _scatter_add(tgt, idx, src, axis=0):
    return tgt.clone().index_add_(axis, idx, src)
def _segment_sum(src, seg, n):
    out = torch.zeros((n,) + src.shape[1:], dtype=src.dtype)
    return out.index_add_(0, seg, src)
def _pad(x, pw):
    flat = tuple(v for pair in reversed(pw) for v in pair)
    return torch.nn.functional.pad(x, flat)

kernel_name = 'standalone__deep_cross_xdeepfm__recsys'

def setup_inputs():

    _w = (lambda a: (lambda t: t.to(torch.bfloat16) if t.is_floating_point() else t)(torch.as_tensor(a)))
    B, F, D, L = 4096, 26, 16, 3
    V = min(1000000, 100000)
    Din = F * D
    return {
        "idx": _w((lambda lo, hi, *s: torch.randint(lo, hi, s))(0, V, B, F).to(torch.int64)),
        "table": _w((lambda *s: torch.randn(*s, dtype=torch.bfloat16) * 0.8)(V, D)),
        "ws_cin": _w((lambda *s: torch.randn(*s, dtype=torch.bfloat16) * 0.2)(L, F, F, F) * (1.0 / F)),
        "w_cin_out": _w((lambda *s: torch.randn(*s, dtype=torch.bfloat16) * 0.2)(L * F) * ((L * F) ** -0.5)),
        "w_dnn1": _w((lambda *s: torch.randn(*s, dtype=torch.bfloat16) * 0.8)(Din, Din) * (Din ** -0.5)),
        "b_dnn1": _w((lambda *s: torch.randn(*s, dtype=torch.bfloat16) * 3.2)(Din) * 0.1),
        "w_dnn2": _w((lambda *s: torch.randn(*s, dtype=torch.bfloat16) * 0.2)(Din) * (Din ** -0.5)),
        "b_out": _w((lambda *s: torch.randn(*s, dtype=torch.bfloat16) * 0.4)(1)),
    }

def reference(idx, table, ws_cin, w_cin_out, w_dnn1, b_dnn1, w_dnn2, b_out):
    x0 = table[idx]
    B = x0.shape[0]
    L = ws_cin.shape[0]
    xk = x0
    pooled = []
    for l in range(L):
        xk = torch.einsum('bid,bjd,hij->bhd', xk, x0, ws_cin[l])
        pooled.append(xk.sum(axis=-1))
    p_plus = torch.stack(pooled, axis=1).reshape(B, -1)
    logit_cin = p_plus @ w_cin_out
    h = x0.reshape(B, -1)
    h = _gelu(h @ w_dnn1 + b_dnn1)
    logit_dnn = h @ w_dnn2
    return logit_cin + logit_dnn + b_out
```

```python
import re

class Asm:
    def __init__(self):
        self.lines = []
    def e(self, s):
        for l in s.split("\n"):
            l = l.strip()
            if l: self.lines.append(l)
    def label(self, n): self.lines.append(n + ":")
    def c(self, s): self.lines.append("; " + s)
    def nop(self, n):
        while n > 0:
            k = min(n, 16); self.lines.append(f"s_nop {k-1}"); n -= k
    def text(self):
        out = []
        for l in self.lines:
            if l.endswith(":") or l.startswith(";"): out.append(l)
            else: out.append("    " + l)
        return "\n".join(out) + "\n"

TRANS = ("v_exp_f32","v_log_f32","v_rcp_f32","v_rsq_f32","v_sqrt_f32","v_sin_f32","v_cos_f32")
def regs_of(tok):
    tok = tok.strip()
    m = re.fullmatch(r"([vsa])(\d+)", tok)
    if m: return {(m.group(1), int(m.group(2)))}
    m = re.fullmatch(r"([vsa])\[(\d+):(\d+)\]", tok)
    if m: return {(m.group(1), i) for i in range(int(m.group(2)), int(m.group(3))+1)}
    if tok == "vcc": return {("s","vcc")}
    if tok in ("vcc_lo","vcc_hi"): return {("s","vcc")}
    if tok == "exec": return {("s","exec")}
    if tok == "m0": return {("s","m0")}
    return set()

def parse(l):
    l = l.split(";")[0].strip()
    if not l or l.endswith(":"): return None
    p = l.split(None, 1)
    op = p[0]
    ops = []
    if len(p) > 1:
        rest = p[1]
        toks = re.split(r",\s*(?![^\[]*\])", rest)
        for t in toks:
            ops.append(t.strip().split()[0] if t.strip() else "")
    return op, ops, l

def classify(op, ops, l):
    base = op.replace("_e32","").replace("_e64","").replace("_dpp","").replace("_sdwa","")
    w=set(); r=set(); kind="other"
    R=[regs_of(o) for o in ops]
    if base.startswith("v_mfma"):
        kind="mfma"; w=R[0]; r=R[1]|R[2]; c=R[3] if len(R)>3 else set()
        passes = 8 if "32x32" in base else 4
        return dict(kind=kind,w=w,r=r|c,c=c,ab=r,passes=passes,op=base)
    if base.startswith("v_cmp"):
        kind="valu"; w=R[0]; r=set().union(*R[1:]) if len(R)>1 else set()
        if "cmpx" in base: w=w|{("s","exec")}
    elif base in ("v_readfirstlane_b32","v_readlane_b32"):
        kind="valu"; w=R[0]; r=set().union(*R[1:])
    elif base.startswith("v_"):
        kind="valu"; w=set(R[0]); r=set().union(*R[1:]) if len(R)>1 else set()
        if base in ("v_fmac_f32","v_dot2c_f32_bf16","v_pk_fmac_f16") or "d16" in base: r=r|w
        if base.startswith("v_add_co") or base.startswith("v_addc_co") or base.startswith("v_sub_co"):
            w=R[0]|R[1]; r=set().union(*R[2:])
        if base=="v_cndmask_b32" and len(ops)==3: r=r|{("s","vcc")}
        if base.startswith("v_permlane") : r=r|w; w=w|R[1]
        if "dpp" in op or "row_" in l or "quad_perm" in l: kind="dpp"
    elif base.startswith("ds_"):
        kind="ds"
        if base.startswith("ds_read") or base.startswith("ds_bpermute") or base.startswith("ds_swizzle"):
            w=R[0]; r=set().union(*R[1:])
            if "d16" in base: r=r|w
        else:
            r=set().union(*R)
    elif base.startswith("buffer_") or base.startswith("global_"):
        kind="vmem"
        lds = l.rstrip().endswith(" lds") or " lds " in l or "load_lds" in base
        if "load" in base and not lds:
            w=R[0]; r=set().union(*R[1:])
            if "d16" in base: r=r|w
        else:
            r=set().union(*R)
        if lds: r=r|{("s","m0")}
        return dict(kind=kind,w=w,r=r,lds=lds,op=base)
    elif base.startswith("s_"):
        kind="salu"
        if base in ("s_nop","s_waitcnt","s_barrier","s_endpgm","s_branch","s_setprio","s_sleep") or base.startswith("s_cbranch"):
            return dict(kind="salu",w=set(),r=set(),op=base, nopn=(int(ops[0])+1 if base=="s_nop" else 1))
        if base.startswith("s_cmp"): r=set().union(*R)
        else:
            w=R[0] if R else set(); r=set().union(*R[1:]) if len(R)>1 else set()
            if "saveexec" in base: w=w|{("s","exec")}
    return dict(kind=kind,w=w,r=r,op=base)

def check_hazards(text, verbose=True):
    ins=[]
    for ln,l in enumerate(text.split("\n"),1):
        p=parse(l)
        if p is None: continue
        if p[0].startswith("."): continue
        d=classify(*p); d["ln"]=ln; d["txt"]=p[2]; ins.append(d)
    probs=[]
    def dist_back(i, maxd):
        s=0
        j=i-1
        while j>=0 and s<maxd:
            yield j, s
            s+= ins[j].get("nopn",1)
            j-=1
    for i,d in enumerate(ins):
        for j,s in dist_back(i, 20):
            p=ins[j]
            vw = {x for x in p["w"] if x[0] in "va"}
            sw = {x for x in p["w"] if x[0]=="s"}
            need=0; why=""
            if p["kind"] in ("valu","dpp"):
                if d["kind"]=="mfma" and (vw & d["r"]): need,why=2,"VALU->MFMA src"
                if d["kind"]=="dpp" and (vw & d["r"]): need,why=max(need,2),"VALU->DPP"
                if d["op"] in ("v_readfirstlane_b32","v_readlane_b32") and (vw & d["r"]): need,why=max(need,1),"VALU->readlane"
                if d["op"].startswith("v_permlane") and (vw & d["r"]): need,why=max(need,2),"VALU->permlane"
                if p["op"] in TRANS and d["kind"] in ("valu","dpp","mfma") and d["op"] not in TRANS and (vw & d["r"]): need,why=max(need,1),"trans->use"
                if sw:
                    if d["kind"]=="vmem" and (sw & d["r"]): need,why=max(need,5),"VALU sgpr->VMEM"
                    if d["kind"] in ("valu","dpp") and (sw & d["r"]): need,why=max(need,2),"VALU sgpr->VALU"
                    if d["kind"]=="salu" and (sw & d["r"]): need,why=max(need,1),"VALU sgpr->SALU(pad)"
                    if ("s","exec") in sw and d["kind"]=="mfma": need,why=max(need,4),"VALU exec->MFMA"
            if p["kind"]=="mfma":
                n = 8 if p["passes"]==4 else 12
                if d["kind"] in ("valu","dpp","ds","vmem") and ((vw & d["r"]) or (vw & d["w"])): need,why=n,"MFMA D->VALU/mem"
                if d["kind"]=="mfma":
                    if vw & d["ab"]: need,why=n,"MFMA D->MFMA A/B"
                    elif (vw & d["c"]) and not (vw==d["c"] and p["passes"]==d["passes"]): need,why=(6 if p["passes"]==4 else 10),"MFMA D->MFMA C overlap"
                if d["kind"] in ("valu","dpp") and (p["c"] & d["w"]) and not (vw & d["w"]): need,why=max(need,(3 if p["passes"]==4 else 7)),"MFMA srcC WAR"
            if p["kind"]=="salu" and ("s","m0") in p["w"] and d["kind"]=="vmem" and d.get("lds"): need,why=max(need,1),"m0->DMA"
            if p["kind"]=="vmem" and p["op"].endswith(("store_dwordx4","store_dwordx3")) and d["kind"] in ("valu","dpp") and (p["r"] & d["w"] & {x for x in p["r"] if x[0]=="v"}): need,why=max(need,2),"store data WAR"
            if s < need:
                probs.append(f"line {d['ln']}: [{d['txt']}] needs {need} states after line {p['ln']} [{p['txt']}] ({why}), has {s}")
    return probs
```

```python
import sys, struct
from asmlib import Asm, check_hazards

KNAME = "standalone__deep_cross_xdeepfm__recsys_kernel"
FS, HS = 1040, 528
F1 = 0; NF1 = 23
F2 = F1 + NF1*FS; NF2 = 26
X0 = F2 + NF2*FS
W1F = X0 + 13312
RED = W1F + 128
RED2 = RED + 128
RING = 65536
W2L = RING
QB = RING + 45056
DUMP = QB + 2048
LDS_BYTES = 163840
assert RED2 + 256 <= RING
BIG = 0x10000000

def f32bits(x): return struct.unpack("<I", struct.pack("<f", x))[0]

def gen(opts):
    a = Asm(); e = a.e
    dbg = opts.get("dbg")
    sW = 22; sT = 23
    SRD_IDX, SRD_TAB, SRD_WS, SRD_WD, SRD_T = 24, 28, 32, 36, 40
    def srd(base, ptr, nbytes):
        e(f"s_mov_b32 s{base}, s{ptr}")
        e(f"s_mov_b32 s{base+1}, s{ptr+1}")
        e(f"s_mov_b32 s{base+2}, {nbytes}")
        e(f"s_mov_b32 s{base+3}, 0x20000")
    vTid, vLane, vL15, vG = 0, 1, 2, 3
    vIdx0, vIdx1, vPar = 4, 5, 6
    t0, t1, t2, t3 = 8, 9, 10, 11
    vTouch, vWs = 12, 13
    t4, t5, t6, t7 = 14, 15, 16, 17
    W1R = 32
    I0, I1 = 64, 68
    SA1 = 72
    SA2 = 18
    DS = [80, 92]
    CV = [104, 110]
    W3R = 116
    WA = 142
    vDump = 24
    vW2o = 144

    a.label(KNAME)
    e("s_cmp_ge_u32 s2, 256")
    e("s_cbranch_scc1 L_end")
    e("s_load_dwordx16 s[4:19], s[0:1], 0")
    e("s_load_dwordx2 s[20:21], s[0:1], 64")
    if dbg: e("s_load_dwordx4 s[96:99], s[0:1], 72")
    e(f"v_lshrrev_b32 v{t4}, 6, v0")
    e(f"v_and_b32 v{vLane}, 63, v0")
    e(f"v_and_b32 v{vL15}, 15, v0")
    e(f"v_readfirstlane_b32 s{sW}, v{t4}")
    e(f"v_bfe_u32 v{vG}, v0, 4, 2")
    for r in (t0, t1, t2, t3): e(f"v_mov_b32 v{r}, 0")
    e(f"v_lshlrev_b32 v{t4}, 4, v0")
    for k in range(7): e(f"ds_write_b128 v{t4}, v[{t0}:{t3}] offset:{k*8192}")
    e(f"v_and_b32 v{t5}, 127, v0")
    e(f"v_lshlrev_b32 v{t5}, 4, v{t5}")
    e(f"v_add_u32 v{t5}, {QB}, v{t5}")
    e(f"ds_write_b128 v{t5}, v[{t0}:{t3}]")
    e(f"v_lshrrev_b32 v{t6}, 1, v{vLane}")
    e(f"v_lshlrev_b32 v{t6}, 2, v{t6}")
    e(f"v_and_b32 v{vPar}, 1, v{vLane}")
    e(f"v_lshlrev_b32 v{vPar}, 4, v{vPar}")
    e(f"v_lshlrev_b32 v{vDump}, 2, v{vLane}")
    e(f"v_add_u32 v{vDump}, {DUMP}, v{vDump}")
    e(f"v_mul_u32_u24 v{t7}, 52, v{vL15}")
    e(f"v_lshl_add_u32 v{t7}, v{vG}, 4, v{t7}")
    e(f"s_lshl_b32 s{sT}, s2, 4")
    e(f"s_lshl_b32 s61, s{sW}, 1")
    e(f"s_add_u32 s{sT}, s{sT}, s61")
    e(f"s_mul_i32 s61, s{sT}, 104")
    e("s_waitcnt lgkmcnt(0)")
    srd(SRD_IDX, 4, 4096*26*4)
    e(f"buffer_load_dword v{vIdx0}, v{t6}, s[{SRD_IDX}:{SRD_IDX+3}], s61 offen")
    e(f"buffer_load_dword v{vIdx1}, v{t6}, s[{SRD_IDX}:{SRD_IDX+3}], s61 offen offset:104")
    srd(SRD_TAB, 6, 3200000)
    srd(SRD_WS, 8, 105456)
    srd(SRD_WD, 12, 346112)
    e("s_load_dwordx8 s[48:55], s[10:11], 104")
    e("s_load_dwordx4 s[56:59], s[10:11], 136")
    e("s_load_dword s60, s[10:11], 152")
    e("s_load_dword s47, s[18:19], 0")
    e("s_lshr_b32 s62, s2, 3")
    e("s_and_b32 s62, s62, 31")
    e(f"v_lshlrev_b32 v{t5}, 7, v{vLane}")
    e(f"s_mov_b32 s{SRD_T}, s12"); e(f"s_mov_b32 s{SRD_T+1}, s13"); e(f"s_mov_b32 s{SRD_T+3}, 0x20000")
    e("s_mul_i32 s63, s62, 10880")
    e("s_add_u32 s64, s63, 10880")
    e("s_min_u32 s64, s64, 346112")
    e(f"s_mov_b32 s{SRD_T+2}, s64")
    e(f"s_cmp_eq_u32 s{sW}, 0"); e("s_cbranch_scc1 L_touch")
    e("s_add_u32 s63, s63, 8192")
    e(f"s_cmp_eq_u32 s{sW}, 1"); e("s_cbranch_scc1 L_touch")
    e(f"s_mov_b32 s{SRD_T}, s8"); e(f"s_mov_b32 s{SRD_T+1}, s9")
    e("s_mul_i32 s63, s62, 3328")
    e("s_add_u32 s64, s63, 3328")
    e("s_min_u32 s64, s64, 105456")
    e(f"s_mov_b32 s{SRD_T+2}, s64")
    e(f"s_cmp_eq_u32 s{sW}, 2"); e("s_cbranch_scc1 L_touch")
    e("s_mov_b32 s63, 0")
    e(f"s_mov_b32 s{SRD_T}, s14"); e(f"s_mov_b32 s{SRD_T+1}, s15"); e(f"s_mov_b32 s{SRD_T+2}, 832")
    e(f"s_cmp_eq_u32 s{sW}, 3"); e("s_cbranch_scc1 L_touch")
    e(f"s_mov_b32 s{SRD_T}, s16"); e(f"s_mov_b32 s{SRD_T+1}, s17")
    e(f"s_cmp_eq_u32 s{sW}, 5"); e("s_cbranch_scc1 L_touch")
    e(f"s_mov_b32 s{SRD_T}, s6"); e(f"s_mov_b32 s{SRD_T+1}, s7"); e(f"s_mov_b32 s{SRD_T+2}, 3200000")
    e(f"v_lshlrev_b32 v{t5}, 16, v{vLane}")
    a.label("L_touch")
    e(f"buffer_load_dword v{vTouch}, v{t5}, s[{SRD_T}:{SRD_T+3}], s63 offen")
    e("s_mov_b32 s68, s10"); e("s_mov_b32 s69, s11"); e("s_mov_b32 s70, 156"); e("s_mov_b32 s71, 0x20000")
    e(f"v_lshlrev_b32 v{t6}, 1, v{vLane}")
    e(f"buffer_load_ushort v{vWs}, v{t6}, s[68:71], 0 offen")
    e(f"s_mul_i32 s63, s{sW}, 1352")
    for k in range(4):
        if k == 3:
            e(f"s_cmp_lt_u32 s{sW}, 2")
            e(f"s_cselect_b32 s63, s63, {BIG}")
        e(f"buffer_load_dwordx4 v[{W1R+8*k}:{W1R+8*k+3}], v{t7}, s[{SRD_WS}:{SRD_WS+3}], s63 offen")
        e(f"buffer_load_dwordx4 v[{W1R+8*k+4}:{W1R+8*k+7}], v{t7}, s[{SRD_WS}:{SRD_WS+3}], s63 offen offset:832")
        if k < 3: e(f"s_add_u32 s63, s63, {8*1352}")
    e(f"v_lshlrev_b32 v{t5}, 2, v0")
    e(f"v_mov_b32 v{t6}, {BIG}")
    e(f"v_cmp_gt_u32 vcc, 338, v0")
    e(f"s_mov_b32 s63, {2*35152}")
    e("s_nop 0")
    e(f"v_cndmask_b32 v{t5}, v{t6}, v{t5}, vcc")
    for hp in range(26):
        e(f"buffer_load_dword v{W3R+hp}, v{t5}, s[{SRD_WS}:{SRD_WS+3}], s63 offen")
        if hp < 25: e(f"s_add_u32 s63, s63, 1352")
    e(f"v_lshrrev_b32 v{t4}, 2, v{vLane}")
    e(f"s_lshl_b32 s63, s{sW}, 4")
    e(f"v_add_u32 v{t4}, s63, v{t4}")
    e(f"v_and_b32 v{t6}, 3, v{vLane}")
    for k in range(6):
        o = vW2o + k
        e(f"v_add_u32 v{t5}, {128*k}, v{t4}")
        e(f"v_mul_u32_u24 v{t7}, 2428, v{t5}")
        e(f"v_lshrrev_b32 v{t7}, 16, v{t7}")
        e(f"v_sub_u32 v{t5}, v{t5}, v{t7}")
        e(f"v_mul_u32_u24 v{t5}, 52, v{t5}")
        e(f"v_lshrrev_b32 v{t7}, 2, v{t7}")
        e(f"v_and_b32 v{t7}, 2, v{t7}")
        e(f"v_xor_b32 v{t7}, v{t7}, v{t6}")
        e(f"v_lshl_add_u32 v{o}, v{t7}, 4, v{t5}")
    e(f"s_lshl_b32 s64, s{sW}, 10")
    e(f"s_add_u32 s64, s64, {W2L}")
    e(f"s_mov_b32 s63, 35152")
    for k in range(6):
        if k == 5:
            e(f"s_cmp_lt_u32 s{sW}, 4")
            e(f"s_cselect_b32 s63, s63, {BIG}")
            e(f"s_add_u32 s65, s64, {k*8192}")
            e(f"s_cmp_lt_u32 s{sW}, 4")
            e(f"s_cselect_b32 m0, s65, {DUMP}")
        else:
            e(f"s_add_u32 m0, s64, {k*8192}")
        e("s_nop 0")
        e(f"buffer_load_dwordx4 v{vW2o+k}, s[{SRD_WS}:{SRD_WS+3}], s63 offen lds")
    for aa, I in ((0, I0), (1, I1)):
        e(f"v_lshlrev_b32 v{t4}, 3, v{vG}")
        e(f"v_sub_u32 v{t4}, v{vL15}, v{t4}")
        if aa: e(f"v_add_u32 v{t4}, 16, v{t4}")
        e(f"v_and_b32 v{t5}, 1, v{t4}")
        e(f"v_lshlrev_b32 v{t5}, 4, v{t5}")
        e(f"v_mov_b32 v{t6}, 0x3f80")
        e(f"v_lshlrev_b32 v{t5}, v{t5}, v{t6}")
        e(f"v_ashrrev_i32 v{t4}, 1, v{t4}")
        for j in range(4): e(f"v_cmp_eq_u32 s[{72+2*j}:{73+2*j}], {j}, v{t4}")
        e("s_nop 1")
        for j in range(4): e(f"v_cndmask_b32 v{I+j}, 0, v{t5}, s[{72+2*j}:{73+2*j}]")
    combos = [(0,0,0),(0,0,1),(1,0,0),(1,0,1),(1,1,0),(1,1,1)]
    e(f"v_and_b32 v{t4}, 1, v{vL15}")
    e(f"v_mul_u32_u24 v{t4}, {HS}, v{t4}")
    e(f"s_lshl_b32 s63, s{sW}, 4")
    e(f"v_add_u32 v{t4}, s63, v{t4}")
    for ci, (aa, bb, pp) in enumerate(combos):
        g, gp, q, off = t5, t6, t7, t0
        e(f"v_lshlrev_b32 v{g}, 1, v{vG}")
        e(f"v_add_u32 v{g}, {8*aa+pp}, v{g}")
        e(f"v_lshrrev_b32 v{gp}, 1, v{vL15}")
        if bb: e(f"v_add_u32 v{gp}, 8, v{gp}")
        e(f"v_mad_u32_u24 v{q}, v{g}, v{g}, v{g}")
        e(f"v_lshrrev_b32 v{q}, 1, v{q}")
        e(f"v_add_u32 v{q}, v{q}, v{gp}")
        e(f"v_and_b32 v{off}, 0x7c, v{q}")
        e(f"v_lshlrev_b32 v{off}, 8, v{off}")
        e(f"v_lshl_add_u32 v{off}, v{q}, 2, v{off}")
        e(f"v_add_u32 v{off}, v{off}, v{t4}")
        e(f"v_cmp_le_u32 s[72:73], v{gp}, v{g}")
        e(f"v_cmp_gt_u32 s[74:75], 13, v{g}")
        e(f"v_cmp_gt_u32 s[76:77], 14, v{g}")
        e(f"v_cmp_gt_u32 s[78:79], 13, v{gp}")
        e(f"v_add_u32 v{t1}, {F2}, v{off}")
        e(f"s_and_b64 s[74:75], s[74:75], s[72:73]")
        e(f"s_and_b64 s[76:77], s[76:77], s[72:73]")
        e(f"s_and_b64 s[76:77], s[76:77], s[78:79]")
        if F1: e(f"v_add_u32 v{off}, {F1}, v{off}")
        e(f"v_cndmask_b32 v{SA1+ci}, v{vDump}, v{off}, s[74:75]")
        e(f"v_cndmask_b32 v{SA2+ci}, v{vDump}, v{t1}, s[76:77]")
    e("s_waitcnt lgkmcnt(0)")
    e("s_barrier")
    NYOUNG = 1 + 1 + 8 + 26 + 6
    e(f"s_waitcnt vmcnt({NYOUNG})")
    e(f"v_lshl_add_u32 v{vIdx0}, v{vIdx0}, 5, v{vPar}")
    e(f"v_lshl_add_u32 v{vIdx1}, v{vIdx1}, 5, v{vPar}")
    e(f"s_mul_i32 s63, s{sW}, 1664")
    e(f"s_add_u32 s63, s63, {X0}")
    e("s_mov_b32 exec_lo, -1"); e("s_mov_b32 exec_hi, 0xfffff")
    e("s_mov_b32 m0, s63")
    e("s_nop 0")
    e(f"buffer_load_dwordx4 v{vIdx0}, s[{SRD_TAB}:{SRD_TAB+3}], 0 offen lds")
    e("s_add_u32 m0, s63, 832")
    e("s_nop 0")
    e(f"buffer_load_dwordx4 v{vIdx1}, s[{SRD_TAB}:{SRD_TAB+3}], 0 offen lds")
    e("s_mov_b64 exec, -1")
    e(f"s_waitcnt vmcnt({26+6+2})")
    e(f"v_lshlrev_b32 v{t5}, 16, v{vWs}")
    e(f"v_cmp_gt_u32 s[72:73], 26, v{vLane}")
    e(f"v_cmp_gt_u32 s[74:75], 32, v{vLane}")
    e(f"v_lshlrev_b32 v{t6}, 2, v{vLane}")
    e(f"v_add_u32 v{t6}, {W1F}, v{t6}")
    e(f"v_cndmask_b32 v{t5}, 0, v{t5}, s[72:73]")
    e(f"v_cndmask_b32 v{t6}, v{vDump}, v{t6}, s[74:75]")
    e(f"ds_write_b32 v{t6}, v{t5}")
    e(f"v_subrev_u32 v{t5}, 26, v{vLane}")
    e(f"v_cmp_gt_u32 s[72:73], 26, v{t5}")
    e(f"v_lshrrev_b32 v{t6}, 3, v{t5}")
    e(f"v_lshlrev_b32 v{t6}, 8, v{t6}")
    e(f"v_and_b32 v{t7}, 7, v{t5}")
    e(f"v_lshl_add_u32 v{t6}, v{t7}, 1, v{t6}")
    e(f"v_add_u32 v{t6}, {QB+1024+160}, v{t6}")
    e(f"v_cndmask_b32 v{t6}, v{vDump}, v{t6}, s[72:73]")
    e(f"ds_write_b16 v{t6}, v{vWs}")

    def s_mfma(D, A0, A1, B0, B1):
        e(f"v_mfma_f32_16x16x32_bf16 v[{D}:{D+3}], v[{A0}:{A0+3}], v[{B0}:{B0+3}], 0")
        e(f"v_mfma_f32_16x16x32_bf16 v[{D+4}:{D+7}], v[{A1}:{A1+3}], v[{B0}:{B0+3}], 0")
        e(f"v_mfma_f32_16x16x32_bf16 v[{D+8}:{D+11}], v[{A1}:{A1+3}], v[{B1}:{B1+3}], 0")
        e(f"v_mfma_f32_16x16x32_bf16 v[{D}:{D+3}], v[{B0}:{B0+3}], v[{A0}:{A0+3}], v[{D}:{D+3}]")
        e(f"v_mfma_f32_16x16x32_bf16 v[{D+4}:{D+7}], v[{B1}:{B1+3}], v[{A0}:{A0+3}], v[{D+4}:{D+7}]")
        e(f"v_mfma_f32_16x16x32_bf16 v[{D+8}:{D+11}], v[{B1}:{B1+3}], v[{A1}:{A1+3}], v[{D+8}:{D+11}]")
    def s_out(D, C, SA, k):
        for ci in range(6):
            e(f"v_cvt_pk_bf16_f32 v{C+ci}, v{D+2*ci}, v{D+2*ci+1}")
        for ci in range(6):
            e(f"ds_write_b32 v{SA+ci}, v{C+ci} offset:{k*128}")
    a.c("S1")
    for k in range(4):
        if k == 3:
            e(f"s_cmp_ge_u32 s{sW}, 2"); e("s_cbranch_scc1 L_s1_skip")
        s_mfma(DS[k & 1], W1R+8*k, W1R+8*k+4, I0, I1)
        if k > 0: s_out(DS[(k-1) & 1], CV[(k-1) & 1], SA1, k-1)
        if k == 3:
            a.nop(8); s_out(DS[1], CV[1], SA1, 3); e("s_branch L_s1_done")
    a.label("L_s1_skip")
    a.nop(2); s_out(DS[0], CV[0], SA1, 2)
    a.label("L_s1_done")

    a.c("Weff")
    e(f"s_waitcnt vmcnt({6+2})")
    e(f"v_mov_b32 v{WA}, 0"); e(f"v_mov_b32 v{WA+1}, 0")
    for hp in range(26):
        sd = 48 + hp//2
        if hp % 2 == 0:
            e(f"s_and_b32 s63, s{sd}, 0xffff"); e(f"s_lshl_b32 s64, s{sd}, 16")
        else:
            e(f"s_lshr_b32 s63, s{sd}, 16"); e(f"s_and_b32 s64, s{sd}, 0xffff0000")
        e(f"v_dot2c_f32_bf16 v{WA}, s63, v{W3R+hp}")
        e(f"v_dot2c_f32_bf16 v{WA+1}, s64, v{W3R+hp}")
    e(f"v_mul_u32_u24 v{t4}, 5042, v0")
    e(f"v_lshrrev_b32 v{t4}, 16, v{t4}")
    e(f"v_mul_u32_u24 v{t5}, 13, v{t4}")
    e(f"v_sub_u32 v{t5}, v0, v{t5}")
    e(f"v_lshlrev_b32 v{t5}, 1, v{t5}")
    e(f"v_lshrrev_b32 v{t6}, 4, v{t5}")
    e(f"v_lshlrev_b32 v{t6}, 10, v{t6}")
    e(f"v_and_b32 v{t5}, 15, v{t5}")
    e(f"v_lshl_add_u32 v{t6}, v{t5}, 4, v{t6}")
    e(f"v_lshrrev_b32 v{t5}, 3, v{t4}")
    e(f"v_lshl_add_u32 v{t6}, v{t5}, 8, v{t6}")
    e(f"v_and_b32 v{t4}, 7, v{t4}")
    e(f"v_lshl_add_u32 v{t6}, v{t4}, 1, v{t6}")
    e(f"v_add_u32 v{t6}, {QB}, v{t6}")
    e(f"v_cmp_gt_u32 vcc, 338, v0")
    e(f"v_cvt_pk_bf16_f32 v{t7}, v{WA}, v{WA+1}")
    e("s_nop 0")
    e(f"v_cndmask_b32 v{t6}, v{vDump}, v{t6}, vcc")
    e(f"ds_write_b16 v{t6}, v{t7}")
    e(f"ds_write_b16_d16_hi v{t6}, v{t7} offset:16")
    e("s_waitcnt vmcnt(2) lgkmcnt(0)")
    e("s_barrier")
    sD = 66
    sDB = 67
    sKO = 80
    vPA, vPB = 150, 151
    e(f"s_and_b32 s{sD}, s{sW}, 3")
    e(f"s_lshl_b32 s{sDB}, s{sD}, 13")
    e(f"s_add_u32 s{sDB}, s{sDB}, {RING}")
    e(f"s_mul_i32 s63, s{sD}, 192"); e("s_add_u32 s63, s63, 64")
    e(f"s_cmp_eq_u32 s{sD}, 0")
    e("s_cselect_b32 s63, 0, s63")
    e("s_cselect_b32 s64, 16, 12")
    e(f"s_mov_b32 s81, s63")
    e(f"s_mov_b32 s82, s64")
    e(f"v_mul_u32_u24 v{t4}, 832, v{vG}")
    e(f"v_add_u32 v{t4}, s63, v{t4}")
    e(f"v_lshlrev_b32 v{t5}, 1, v{vG}")
    e(f"v_xor_b32 v{t5}, v{t5}, v{vL15}")
    e(f"v_xor_b32 v{t6}, 8, v{t5}")
    e(f"v_mov_b32 v{t7}, {BIG}")
    e(f"v_cmp_gt_u32 s[72:73], s64, v{t5}")
    e(f"v_cmp_gt_u32 s[74:75], s64, v{t6}")
    e(f"v_lshl_add_u32 v{t5}, v{t5}, 4, v{t4}")
    e(f"v_lshl_add_u32 v{t6}, v{t6}, 4, v{t4}")
    e(f"v_cndmask_b32 v{vPA}, v{t7}, v{t5}, s[72:73]")
    e(f"v_cndmask_b32 v{vPB}, v{t7}, v{t6}, s[74:75]")
    e(f"s_mov_b32 s{sKO}, 0")
    e(f"s_cmp_lt_u32 s{sW}, 4"); e("s_cbranch_scc1 L_noK0")
    def dma_step(s):
        slot = (s + 2) % 3
        for m in range(8):
            e(f"s_add_u32 m0, s{sDB}, {slot*32768 + m*1024}")
            v = vPA if ((m >> 1) & 1) == 0 else vPB
            if m: e(f"s_add_u32 s{sKO}, s{sKO}, 3328")
            else: e("s_nop 0")
            e(f"buffer_load_dwordx4 v{v}, s[{SRD_WD}:{SRD_WD+3}], s{sKO} offen lds")
        e(f"s_add_u32 s{sKO}, s{sKO}, 3328")
    dma_step(0)
    a.label("L_noK0")

    a.c("S2")
    Q0, Q1 = 64, 68
    e(f"v_lshlrev_b32 v{t4}, 4, v{vLane}")
    e(f"v_add_u32 v{t4}, {QB}, v{t4}")
    e(f"ds_read_b128 v[{Q0}:{Q0+3}], v{t4}")
    e(f"ds_read_b128 v[{Q1}:{Q1+3}], v{t4} offset:1024")
    TA = 48
    e(f"v_lshrrev_b32 v{t5}, 2, v{vL15}")
    e(f"v_lshl_add_u32 v{t5}, v{vG}, 3, v{t5}")
    e(f"v_add_u32 v{t6}, 4, v{t5}")
    e(f"v_min_u32 v{t5}, 25, v{t5}")
    e(f"v_min_u32 v{t6}, 25, v{t6}")
    e(f"v_mul_u32_u24 v{t5}, {27*64}, v{t5}")
    e(f"v_mul_u32_u24 v{t6}, {27*64}, v{t6}")
    e(f"s_lshl_b32 s63, s{sW}, 6")
    e(f"s_add_u32 s63, s63, {W2L}")
    e(f"v_add_u32 v{t5}, s63, v{t5}")
    e(f"v_add_u32 v{t6}, s63, v{t6}")
    e(f"v_bfe_u32 v{t7}, v{vL15}, 1, 1")
    e(f"v_and_b32 v{t0}, 1, v{vG}")
    e(f"v_lshlrev_b32 v{t0}, 1, v{t0}")
    e(f"v_xor_b32 v{t1}, v{t7}, v{t0}")
    e(f"v_xor_b32 v{t2}, 2, v{t1}")
    e(f"v_and_b32 v{t3}, 1, v{vL15}")
    e(f"v_lshlrev_b32 v{t3}, 3, v{t3}")
    e(f"v_lshl_add_u32 v{t1}, v{t1}, 4, v{t3}")
    e(f"v_lshl_add_u32 v{t2}, v{t2}, 4, v{t3}")
    e(f"v_add_u32 v{TA}, v{t5}, v{t1}")
    e(f"v_add_u32 v{TA+1}, v{t6}, v{t1}")
    e(f"v_add_u32 v{TA+2}, v{t5}, v{t2}")
    e(f"v_add_u32 v{TA+3}, v{t6}, v{t2}")
    vM = 52
    e(f"v_cmp_gt_u32 vcc, 10, v{vL15}")
    e("s_nop 1")
    e(f"v_cndmask_b32 v{vM}, 0, -1, vcc")
    PS = [32, 40]
    def p_read(P, k):
        e(f"ds_read_b64_tr_b16 v[{P}:{P+1}], v{TA} offset:{k*512}")
        e(f"ds_read_b64_tr_b16 v[{P+2}:{P+3}], v{TA+1} offset:{k*512}")
        e(f"ds_read_b64_tr_b16 v[{P+4}:{P+5}], v{TA+2} offset:{k*512}")
        e(f"ds_read_b64_tr_b16 v[{P+6}:{P+7}], v{TA+3} offset:{k*512}")
    def p_mask(P):
        for j in range(4): e(f"v_and_b32 v{P+4+j}, v{vM}, v{P+4+j}")
    p_read(PS[0], 0)
    for k in range(4):
        if k == 3:
            e(f"s_cmp_ge_u32 s{sW}, 2"); e("s_cbranch_scc1 L_s2_skip")
        e("s_waitcnt lgkmcnt(0)")
        p_mask(PS[k & 1])
        if k < 3: p_read(PS[(k+1) & 1], k+1)
        else: a.nop(2)
        s_mfma(DS[k & 1], PS[k & 1], PS[k & 1]+4, Q0, Q1)
        if k > 0: s_out(DS[(k-1) & 1], CV[(k-1) & 1], SA2, k-1)
        if k == 3:
            a.nop(8); s_out(DS[1], CV[1], SA2, 3); e("s_branch L_s2_done")
    a.label("L_s2_skip")
    a.nop(2); s_out(DS[0], CV[0], SA2, 2)
    a.label("L_s2_done")
    e(f"s_cmp_lt_u32 s{sW}, 4"); e("s_cbranch_scc1 L_b3c")
    e("s_waitcnt vmcnt(8) lgkmcnt(0)")
    e("s_barrier")
    e("s_branch L_dwave")
    a.label("L_b3c")
    e("s_waitcnt vmcnt(0) lgkmcnt(0)")
    e("s_barrier")
    if dbg == "lds":
        e("s_cmp_eq_u32 s2, 0"); e("s_cbranch_scc0 L_nodump")
        e(f"v_lshlrev_b32 v{t4}, 4, v0")
        for k in range(16):
            e(f"ds_read_b128 v[{t0}:{t3}], v{t4} offset:{k*4096}")
            e("s_waitcnt lgkmcnt(0)")
            e(f"v_add_u32 v{t5}, {k*4096}, v{t4}")
            e(f"global_store_dwordx4 v{t5}, v[{t0}:{t3}], s[98:99]")
            e("s_waitcnt vmcnt(0)")
        a.label("L_nodump")

    a.c("C wave")
    XA, YA, XB, YB = 8, 34, 47, 73
    D1A, D2A, D1B, D2B = 96, 112, 128, 144
    ZB = [[160, 164], [168, 172]]
    AB = [176, 184, 192]
    TM = [200, 201, 202, 203, 204, 205, 206, 207]
    WI = 208
    vXb, vYb, vFa = 224, 225, 226
    for r in list(range(XA, XA+26))+list(range(YA, YA+13))+list(range(XB, XB+26))+list(range(YB, YB+13)):
        pass
    e(f"v_bfe_u32 v{TM[0]}, v{vLane}, 4, 1")
    e(f"s_lshl_b32 s63, s{sW}, 2")
    e(f"v_add_u32 v{TM[0]}, s63, v{TM[0]}")
    e(f"v_mul_u32_u24 v{TM[0]}, 832, v{TM[0]}")
    e(f"v_lshl_add_u32 v{TM[0]}, v{vL15}, 1, v{TM[0]}")
    e(f"v_add_u32 v{vXb}, {X0}, v{TM[0]}")
    e(f"v_lshrrev_b32 v{TM[1]}, 5, v{vLane}")
    e(f"v_lshl_add_u32 v{vYb}, v{TM[1]}, 5, v{vXb}")
    e(f"v_mul_u32_u24 v{TM[2]}, {HS}, v{TM[1]}")
    e(f"v_and_b32 v{TM[3]}, 31, v{vLane}")
    e(f"v_lshl_add_u32 v{vFa}, v{TM[3]}, 4, v{TM[2]}")
    e(f"v_lshlrev_b32 v{TM[1]}, 4, v{TM[1]}")
    e(f"v_add_u32 v{TM[1]}, {W1F}, v{TM[1]}")
    for m in range(4): e(f"ds_read_b128 v[{WI+4*m}:{WI+4*m+3}], v{TM[1]} offset:{m*32}")
    for r in range(XA, YB+13): e(f"v_mov_b32 v{r}, 0")
    for T, (X, Y) in enumerate(((XA, YA), (XB, YB))):
        for f in range(26): e(f"ds_read_u16_d16_hi v{X+f}, v{vXb} offset:{T*1664 + f*32}")
        for g in range(13): e(f"ds_read_u16_d16_hi v{Y+g}, v{vYb} offset:{T*1664 + g*64}")
        e("s_waitcnt lgkmcnt(0)") if T == 0 else None
    def a_read(t):
        b = AB[t % 3]
        n = 0
        if t <= 22: e(f"ds_read_b128 v[{b}:{b+3}], v{vFa} offset:{F1 + t*FS}"); n += 1
        if t <= 25: e(f"ds_read_b128 v[{b+4}:{b+7}], v{vFa} offset:{F2 + t*FS}"); n += 1
        return n
    blocks = [(g, gp) for g in range(14) for gp in range(min(g, 12)+1)]
    assert len(blocks) == 104
    def zgen(t, T):
        X, Y = ((XA, YA), (XB, YB))[T]
        z = ZB[t & 1][T]
        out = []
        for j in range(4):
            g, gp = blocks[4*t + j]
            ta, tb, th = TM[(2*j) % 8 if T == 0 else (2*j) % 8], TM[(2*j+1) % 8], 228 + T
            if g == 13:
                out.append(f"v_cvt_pk_bf16_f32 v{z+j}, v{Y+gp}, 0")
            else:
                y = Y + gp
                if g == gp:
                    out.append(f"v_mul_f32 v{th}, 0.5, v{Y+gp}"); y = th
                out.append(f"v_mul_f32 v{ta}, v{X+2*g}, v{y}")
                out.append(f"v_mul_f32 v{tb}, v{X+2*g+1}, v{y}")
                out.append(f"v_cvt_pk_bf16_f32 v{z+j}, v{ta}, v{tb}")
        return out
    e("s_waitcnt lgkmcnt(0)")
    a_read(0); a_read(1)
    for T in range(2):
        for s in zgen(0, T): e(s)
    cnt = {t: (1 if t > 22 else 2) for t in range(26)}
    for t in range(26):
        younger = cnt[t+1] if t+1 <= 25 else 0
        e(f"s_waitcnt lgkmcnt({younger})")
        if t + 2 <= 25: a_read(t + 2)
        b = AB[t % 3]
        mf = []
        for T, (D1, D2) in enumerate(((D1A, D2A), (D1B, D2B))):
            z = ZB[t & 1][T]
            if t <= 22:
                c = "0" if t == 0 else f"v[{D1}:{D1+15}]"
                mf.append(f"v_mfma_f32_32x32x16_bf16 v[{D1}:{D1+15}], v[{b}:{b+3}], v[{z}:{z+3}], {c}")
            c = f"v[{WI}:{WI+15}]" if t == 0 else f"v[{D2}:{D2+15}]"
            mf.append(f"v_mfma_f32_32x32x16_bf16 v[{D2}:{D2+15}], v[{b+4}:{b+7}], v[{z}:{z+3}], {c}")
        va = (zgen(t+1, 0) + zgen(t+1, 1)) if t < 25 else []
        n = len(mf); per = (len(va) + n - 1)//n if va else 0
        if t == 0: a.nop(2)
        vi = 0
        for i, m in enumerate(mf):
            e(m)
            for s in va[vi:vi+per]: e(s)
            vi += per
    a.nop(16)
    for T, (D1, D2) in enumerate(((D1A, D2A), (D1B, D2B))):
        acc = TM[T]
        e(f"v_mul_f32 v{acc}, v{D1}, v{D2}")
    for r in range(1, 14):
        for T, (D1, D2) in enumerate(((D1A, D2A), (D1B, D2B))):
            e(f"v_fmac_f32 v{TM[T]}, v{D1+r}, v{D2+r}")
    for sh in (8, 4, 2, 1):
        a.nop(2)
        for T in range(2):
            e(f"v_add_f32_dpp v{TM[T]}, v{TM[T]}, v{TM[T]} row_ror:{sh} row_mask:0xf bank_mask:0xf")
    e(f"v_bfe_u32 v{TM[2]}, v{vLane}, 4, 1")
    e(f"v_lshlrev_b32 v{TM[2]}, 3, v{TM[2]}")
    e(f"v_lshrrev_b32 v{TM[3]}, 5, v{vLane}")
    e(f"v_lshl_add_u32 v{TM[2]}, v{TM[3]}, 2, v{TM[2]}")
    e(f"s_lshl_b32 s63, s{sW}, 5")
    e(f"s_add_u32 s63, s63, {RED}")
    e(f"v_add_u32 v{TM[2]}, s63, v{TM[2]}")
    e(f"ds_write_b32 v{TM[2]}, v{TM[0]}")
    e(f"ds_write_b32 v{TM[2]}, v{TM[1]} offset:16")
    e("s_branch L_final")

    a.label("L_dwave")
    a.c("D wave")
    AX = 8
    ACC = 64
    BB = 96
    TRA = 160
    TRA2 = 168
    W2R = 176
    BIAS = 184
    OUT = 192
    GT = 200
    vC0 = 216
    e("s_mov_b32 s68, s14"); e("s_mov_b32 s69, s15"); e("s_mov_b32 s70, 832"); e("s_mov_b32 s71, 0x20000")
    e("s_mov_b32 s72, s16"); e("s_mov_b32 s73, s17"); e("s_mov_b32 s74, 832"); e("s_mov_b32 s75, 0x20000")
    e(f"v_lshlrev_b32 v{GT}, 1, v{vL15}")
    e(f"v_add_u32 v{GT}, s81, v{GT}")
    for tau in range(8):
        e(f"v_mov_b32 v{BIAS+tau}, 0"); e(f"v_mov_b32 v{W2R+tau}, 0")
    e(f"s_cmp_eq_u32 s{sD}, 0"); e(f"s_cselect_b32 s63, 0, {BIG}")
    for tau in range(8):
        so = "0" if tau < 6 else "s63"
        e(f"buffer_load_short_d16_hi v{BIAS+tau}, v{GT}, s[68:71], {so} offen offset:{tau*32}")
        e(f"buffer_load_short_d16_hi v{W2R+tau}, v{GT}, s[72:75], {so} offen offset:{tau*32}")
    dma_step(1); dma_step(2)
    e(f"v_mul_u32_u24 v{GT+1}, 832, v{vL15}")
    e(f"v_lshl_add_u32 v{GT+1}, v{vG}, 4, v{GT+1}")
    e(f"v_add_u32 v{GT+1}, {X0}, v{GT+1}")
    for s in range(13): e(f"ds_read_b128 v[{AX+4*s}:{AX+4*s+3}], v{GT+1} offset:{s*64}")
    e(f"v_lshrrev_b32 v{GT+2}, 2, v{vL15}")
    e(f"v_lshl_add_u32 v{GT+3}, v{vG}, 3, v{GT+2}")
    e(f"v_lshlrev_b32 v{GT+3}, 8, v{GT+3}")
    e(f"v_and_b32 v{GT+4}, 3, v{vL15}")
    e(f"v_lshl_add_u32 v{GT+3}, v{GT+4}, 3, v{GT+3}")
    e(f"v_add_u32 v{GT+3}, s{sDB}, v{GT+3}")
    e(f"v_and_b32 v{GT+4}, 1, v{vG}")
    e(f"v_lshl_add_u32 v{GT+2}, v{GT+4}, 2, v{GT+2}")
    for tau in range(8):
        e(f"v_xor_b32 v{GT+4}, {tau}, v{GT+2}")
        e(f"v_lshl_add_u32 v{TRA+tau}, v{GT+4}, 5, v{GT+3}")
        e(f"v_add_u32 v{TRA2+tau}, 0x10000, v{TRA+tau}")
    e(f"s_waitcnt vmcnt(16)")
    for tau in range(8):
        for r in range(4): e(f"v_mov_b32 v{ACC+4*tau+r}, v{BIAS+tau}")
    e(f"s_cmp_eq_u32 s{sD}, 0")
    e("s_cselect_b32 s83, 1, 0")
    for s in range(13):
        slot = (s + 2) % 3
        nout = 16 if s <= 10 else (8 if s == 11 else 0)
        e(f"s_waitcnt vmcnt({nout})")
        def rd(tau):
            v = (TRA2 if slot == 2 else TRA) + tau
            o = 32768 if slot == 1 else 0
            e(f"ds_read_b64_tr_b16 v[{BB+4*tau}:{BB+4*tau+1}], v{v} offset:{o}")
            e(f"ds_read_b64_tr_b16 v[{BB+4*tau+2}:{BB+4*tau+3}], v{v} offset:{o+1024}")
        for tau in range(6): rd(tau)
        e("s_cmp_eq_u32 s83, 0"); e(f"s_cbranch_scc1 L_d{s}a")
        rd(6); rd(7)
        a.label(f"L_d{s}a")
        e("s_waitcnt lgkmcnt(0)")
        if s + 3 <= 12: dma_step(s + 3)
        for tau in range(6):
            e(f"v_mfma_f32_16x16x32_bf16 v[{ACC+4*tau}:{ACC+4*tau+3}], v[{AX+4*s}:{AX+4*s+3}], v[{BB+4*tau}:{BB+4*tau+3}], v[{ACC+4*tau}:{ACC+4*tau+3}]")
        e("s_cmp_eq_u32 s83, 0"); e(f"s_cbranch_scc1 L_d{s}b")
        for tau in (6, 7):
            e(f"v_mfma_f32_16x16x32_bf16 v[{ACC+4*tau}:{ACC+4*tau+3}], v[{AX+4*s}:{AX+4*s+3}], v[{BB+4*tau}:{BB+4*tau+3}], v[{ACC+4*tau}:{ACC+4*tau+3}]")
        a.label(f"L_d{s}b")
    C0 = -2.0*0.7978845608028654*1.4426950408889634
    C1 = C0*0.044715
    e(f"v_mov_b32 v{vC0}, 0x{f32bits(C0):08x}")
    for r in range(4): e(f"v_mov_b32 v{OUT+r}, 0")
    a.nop(8)
    def gelu(tau):
        x = ACC + 4*tau
        U, E, Yv = GT, GT+4, GT+8
        for r in range(4): e(f"v_mul_f32 v{U+r}, v{x+r}, v{x+r}")
        for r in range(4): e(f"v_fmamk_f32 v{U+r}, v{U+r}, 0x{f32bits(C1):08x}, v{vC0}")
        for r in range(4): e(f"v_mul_f32 v{U+r}, v{x+r}, v{U+r}")
        for r in range(4): e(f"v_exp_f32 v{E+r}, v{U+r}")
        for r in range(4): e(f"v_mul_f32 v{Yv+r}, v{x+r}, v{W2R+tau}")
        for r in range(4): e(f"v_add_f32 v{E+r}, 1.0, v{E+r}")
        for r in range(4): e(f"v_rcp_f32 v{E+r}, v{E+r}")
        e("s_nop 0")
        for r in range(4): e(f"v_fmac_f32 v{OUT+r}, v{Yv+r}, v{E+r}")
    for tau in range(6): gelu(tau)
    e("s_cmp_eq_u32 s83, 0"); e("s_cbranch_scc1 L_dg")
    gelu(6); gelu(7)
    a.label("L_dg")
    for sh in (8, 4, 2, 1):
        a.nop(2)
        for r in range(4):
            e(f"v_add_f32_dpp v{OUT+r}, v{OUT+r}, v{OUT+r} row_ror:{sh} row_mask:0xf bank_mask:0xf")
    e(f"s_lshl_b32 s63, s{sD}, 6")
    e(f"s_add_u32 s63, s63, {RED2}")
    e(f"v_lshlrev_b32 v{GT}, 4, v{vG}")
    e(f"v_add_u32 v{GT}, s63, v{GT}")
    e(f"ds_write_b128 v{GT}, v[{OUT}:{OUT+3}]")

    a.label("L_final")
    e("s_waitcnt lgkmcnt(0)")
    e("s_barrier")
    e(f"s_cmp_eq_u32 s{sW}, 0"); e("s_cbranch_scc0 L_end")
    e(f"v_lshlrev_b32 v8, 3, v{vL15}")
    e(f"v_add_u32 v8, {RED}, v8")
    e(f"v_lshlrev_b32 v9, 2, v{vL15}")
    e(f"v_add_u32 v9, {RED2}, v9")
    e("ds_read_b64 v[10:11], v8")
    for d in range(4): e(f"ds_read_b32 v{12+d}, v9 offset:{d*64}")
    e("s_lshl_b32 s47, s47, 16")
    e("s_mov_b32 s68, s20"); e("s_mov_b32 s69, s21"); e("s_mov_b32 s70, 8192"); e("s_mov_b32 s71, 0x20000")
    e("s_lshl_b32 s63, s2, 5")
    e(f"v_lshlrev_b32 v16, 1, v{vL15}")
    e("s_waitcnt lgkmcnt(0)")
    e("v_add_f32 v10, v10, v11")
    e("v_add_f32 v12, v12, v13")
    e("v_add_f32 v14, v14, v15")
    e("v_add_f32 v12, v12, v14")
    e("v_add_f32 v10, v10, v12")
    e("v_add_f32 v10, s47, v10")
    e("v_cvt_pk_bf16_f32 v10, v10, v10")
    e("s_mov_b64 exec, 0xffff")
    e("buffer_store_short v10, v16, s[68:71], s63 offen")
    a.label("L_end")
    e("s_endpgm")
    return a

HEADER = """; xDeepFM (CIN + DNN) fused kernel for gfx950 -- generated by my own script
; @launch grid=(256,1,1) block=(512,1,1) lds=163840
.amdgcn_target "amdgcn-amd-amdhsa--gfx950"
.text
.globl {k}
.p2align 8
.type {k},@function
"""
FOOTER = """
.section .rodata,"a"
.p2align 6
.amdhsa_kernel {k}
  .amdhsa_next_free_vgpr {nv}
  .amdhsa_next_free_sgpr 102
  .amdhsa_accum_offset {nv}
  .amdhsa_group_segment_fixed_size 0
  .amdhsa_kernarg_size 88
  .amdhsa_user_sgpr_count 2
  .amdhsa_user_sgpr_kernarg_segment_ptr 1
  .amdhsa_system_sgpr_workgroup_id_x 1
.end_amdhsa_kernel
"""
if __name__ == "__main__":
    opts = dict(x.split("=") for x in sys.argv[2:])
    a = gen(opts)
    body = a.text()
    probs = check_hazards(body)
    for p in probs: print("HAZARD:", p, file=sys.stderr)
    open(sys.argv[1], "w").write(HEADER.format(k=KNAME) + body + FOOTER.format(k=KNAME, nv=232))
    print("written", sys.argv[1], "hazards:", len(probs), file=sys.stderr)
```

```python
import sys, struct
from asmlib import Asm, check_hazards

KNAME = "standalone__deep_cross_xdeepfm__recsys_kernel"
FS, HS = 1040, 528
F1 = 0; NF1 = 23
F2 = F1 + NF1*FS; NF2 = 26
X0 = F2 + NF2*FS
W1F = X0 + 13312
RED = W1F + 128
RED2 = RED + 128
RING = 65536
W2L = RING
QB = RING + 45056
DUMP = QB + 2048
LDS_BYTES = 163840
assert RED2 + 256 <= RING
BIG = 0x10000000

def f32bits(x): return struct.unpack("<I", struct.pack("<f", x))[0]

def gen(opts):
    a = Asm(); e = a.e
    dbg = opts.get("dbg")
    sW = 22; sT = 23
    SRD_IDX, SRD_TAB, SRD_WS, SRD_WD, SRD_T = 24, 28, 32, 36, 40
    def srd(base, ptr, nbytes):
        e(f"s_mov_b32 s{base}, s{ptr}")
        e(f"s_mov_b32 s{base+1}, s{ptr+1}")
        e(f"s_mov_b32 s{base+2}, {nbytes}")
        e(f"s_mov_b32 s{base+3}, 0x20000")
    vTid, vLane, vL15, vG = 0, 1, 2, 3
    vIdx0, vIdx1, vPar = 4, 5, 6
    t0, t1, t2, t3 = 8, 9, 10, 11
    vTouch, vWs = 12, 13
    t4, t5, t6, t7 = 14, 15, 16, 17
    W1R = 32
    I0, I1 = 64, 68
    SA1 = 72
    SA2 = 18
    DS = [80, 92]
    CV = [104, 110]
    W3R = 116
    WA = 142
    vDump = 24
    vW2o = 144

    stamp = opts.get("stamp")
    vSt = 231
    nst = [0]
    def st(name):
        if stamp is None: return
        e("s_memtime s[84:85]")
        e("s_waitcnt lgkmcnt(0)")
        if name == "entry":
            e("s_mov_b32 s86, s84"); e(f"v_mov_b32 v{vSt}, 0")
        else:
            e("s_sub_u32 s84, s84, s86")
            e(f"v_writelane_b32 v{vSt}, s84, {STI[name]}")
    STI = dict(karg=0, issued=1, b1=2, idx=3, w1=4, s1=5, weff=6, b2=7, s2=8, b3=9, xld=10, main=11, gelu=12, fin=13)
    a.label(KNAME)
    st("entry")
    e("s_cmp_ge_u32 s2, 256")
    e("s_cbranch_scc1 L_end")
    e("s_load_dwordx16 s[4:19], s[0:1], 0")
    e("s_load_dwordx2 s[20:21], s[0:1], 64")
    if dbg or stamp: e("s_load_dwordx4 s[96:99], s[0:1], 72")
    e(f"v_lshrrev_b32 v{t4}, 6, v0")
    e(f"v_and_b32 v{vLane}, 63, v0")
    e(f"v_and_b32 v{vL15}, 15, v0")
    e(f"v_readfirstlane_b32 s{sW}, v{t4}")
    e(f"v_bfe_u32 v{vG}, v0, 4, 2")
    for r in (t0, t1, t2, t3): e(f"v_mov_b32 v{r}, 0")
    e(f"v_lshlrev_b32 v{t4}, 4, v0")
    for k in range(7): e(f"ds_write_b128 v{t4}, v[{t0}:{t3}] offset:{k*8192}")
    e(f"v_and_b32 v{t5}, 127, v0")
    e(f"v_lshlrev_b32 v{t5}, 4, v{t5}")
    e(f"v_add_u32 v{t5}, {QB}, v{t5}")
    e(f"ds_write_b128 v{t5}, v[{t0}:{t3}]")
    e(f"v_lshrrev_b32 v{t6}, 1, v{vLane}")
    e(f"v_lshlrev_b32 v{t6}, 2, v{t6}")
    e(f"v_and_b32 v{vPar}, 1, v{vLane}")
    e(f"v_lshlrev_b32 v{vPar}, 4, v{vPar}")
    e(f"v_lshlrev_b32 v{vDump}, 2, v{vLane}")
    e(f"v_add_u32 v{vDump}, {DUMP}, v{vDump}")
    e(f"v_mul_u32_u24 v{t7}, 52, v{vL15}")
    e(f"v_lshl_add_u32 v{t7}, v{vG}, 4, v{t7}")
    e(f"s_lshl_b32 s{sT}, s2, 4")
    e(f"s_lshl_b32 s61, s{sW}, 1")
    e(f"s_add_u32 s{sT}, s{sT}, s61")
    e(f"s_mul_i32 s61, s{sT}, 104")
    e("s_waitcnt lgkmcnt(0)")
    st("karg")
    srd(SRD_IDX, 4, 4096*26*4)
    e(f"buffer_load_dword v{vIdx0}, v{t6}, s[{SRD_IDX}:{SRD_IDX+3}], s61 offen")
    e(f"buffer_load_dword v{vIdx1}, v{t6}, s[{SRD_IDX}:{SRD_IDX+3}], s61 offen offset:104")
    srd(SRD_TAB, 6, 3200000)
    srd(SRD_WS, 8, 105456)
    srd(SRD_WD, 12, 346112)
    e("s_load_dwordx8 s[48:55], s[10:11], 104")
    e("s_load_dwordx4 s[56:59], s[10:11], 136")
    e("s_load_dword s60, s[10:11], 152")
    e("s_load_dword s47, s[18:19], 0")
    e("s_lshr_b32 s62, s2, 3")
    e("s_and_b32 s62, s62, 31")
    e(f"v_lshlrev_b32 v{t5}, 7, v{vLane}")
    e(f"s_mov_b32 s{SRD_T}, s12"); e(f"s_mov_b32 s{SRD_T+1}, s13"); e(f"s_mov_b32 s{SRD_T+3}, 0x20000")
    e("s_mul_i32 s63, s62, 10880")
    e("s_add_u32 s64, s63, 10880")
    e("s_min_u32 s64, s64, 346112")
    e(f"s_mov_b32 s{SRD_T+2}, s64")
    e(f"s_cmp_eq_u32 s{sW}, 0"); e("s_cbranch_scc1 L_touch")
    e("s_add_u32 s63, s63, 8192")
    e(f"s_cmp_eq_u32 s{sW}, 1"); e("s_cbranch_scc1 L_touch")
    e(f"s_mov_b32 s{SRD_T}, s8"); e(f"s_mov_b32 s{SRD_T+1}, s9")
    e("s_mul_i32 s63, s62, 3328")
    e("s_add_u32 s64, s63, 3328")
    e("s_min_u32 s64, s64, 105456")
    e(f"s_mov_b32 s{SRD_T+2}, s64")
    e(f"s_cmp_eq_u32 s{sW}, 2"); e("s_cbranch_scc1 L_touch")
    e("s_mov_b32 s63, 0")
    e(f"s_mov_b32 s{SRD_T}, s14"); e(f"s_mov_b32 s{SRD_T+1}, s15"); e(f"s_mov_b32 s{SRD_T+2}, 832")
    e(f"s_cmp_eq_u32 s{sW}, 3"); e("s_cbranch_scc1 L_touch")
    e(f"s_mov_b32 s{SRD_T}, s16"); e(f"s_mov_b32 s{SRD_T+1}, s17")
    e(f"s_cmp_eq_u32 s{sW}, 5"); e("s_cbranch_scc1 L_touch")
    e(f"s_mov_b32 s{SRD_T}, s6"); e(f"s_mov_b32 s{SRD_T+1}, s7"); e(f"s_mov_b32 s{SRD_T+2}, 3200000")
    e(f"v_lshlrev_b32 v{t5}, 16, v{vLane}")
    a.label("L_touch")
    e(f"buffer_load_dword v{vTouch}, v{t5}, s[{SRD_T}:{SRD_T+3}], s63 offen")
    e("s_mov_b32 s68, s10"); e("s_mov_b32 s69, s11"); e("s_mov_b32 s70, 156"); e("s_mov_b32 s71, 0x20000")
    e(f"v_lshlrev_b32 v{t6}, 1, v{vLane}")
    e(f"buffer_load_ushort v{vWs}, v{t6}, s[68:71], 0 offen")
    e(f"s_mul_i32 s63, s{sW}, 1352")
    for k in range(4):
        if k == 3:
            e(f"s_cmp_lt_u32 s{sW}, 2")
            e(f"s_cselect_b32 s63, s63, {BIG}")
        e(f"buffer_load_dwordx4 v[{W1R+8*k}:{W1R+8*k+3}], v{t7}, s[{SRD_WS}:{SRD_WS+3}], s63 offen")
        e(f"buffer_load_dwordx4 v[{W1R+8*k+4}:{W1R+8*k+7}], v{t7}, s[{SRD_WS}:{SRD_WS+3}], s63 offen offset:832")
        if k < 3: e(f"s_add_u32 s63, s63, {8*1352}")
    e(f"v_lshlrev_b32 v{t5}, 2, v0")
    e(f"v_mov_b32 v{t6}, {BIG}")
    e(f"v_cmp_gt_u32 vcc, 338, v0")
    e(f"s_mov_b32 s63, {2*35152}")
    e("s_nop 0")
    e(f"v_cndmask_b32 v{t5}, v{t6}, v{t5}, vcc")
    for hp in range(26):
        e(f"buffer_load_dword v{W3R+hp}, v{t5}, s[{SRD_WS}:{SRD_WS+3}], s63 offen")
        if hp < 25: e(f"s_add_u32 s63, s63, 1352")
    e(f"v_lshrrev_b32 v{t4}, 2, v{vLane}")
    e(f"s_lshl_b32 s63, s{sW}, 4")
    e(f"v_add_u32 v{t4}, s63, v{t4}")
    e(f"v_and_b32 v{t6}, 3, v{vLane}")
    for k in range(6):
        o = vW2o + k
        e(f"v_add_u32 v{t5}, {128*k}, v{t4}")
        e(f"v_mul_u32_u24 v{t7}, 2428, v{t5}")
        e(f"v_lshrrev_b32 v{t7}, 16, v{t7}")
        e(f"v_sub_u32 v{t5}, v{t5}, v{t7}")
        e(f"v_mul_u32_u24 v{t5}, 52, v{t5}")
        e(f"v_lshrrev_b32 v{t7}, 2, v{t7}")
        e(f"v_and_b32 v{t7}, 2, v{t7}")
        e(f"v_xor_b32 v{t7}, v{t7}, v{t6}")
        e(f"v_lshl_add_u32 v{o}, v{t7}, 4, v{t5}")
    e(f"s_lshl_b32 s64, s{sW}, 10")
    e(f"s_add_u32 s64, s64, {W2L}")
    e(f"s_mov_b32 s63, 35152")
    for k in range(6):
        if k == 5:
            e(f"s_cmp_lt_u32 s{sW}, 4")
            e(f"s_cselect_b32 s63, s63, {BIG}")
            e(f"s_add_u32 s65, s64, {k*8192}")
            e(f"s_cmp_lt_u32 s{sW}, 4")
            e(f"s_cselect_b32 m0, s65, {DUMP}")
        else:
            e(f"s_add_u32 m0, s64, {k*8192}")
        e("s_nop 0")
        e(f"buffer_load_dwordx4 v{vW2o+k}, s[{SRD_WS}:{SRD_WS+3}], s63 offen lds")
    st("issued")
    for aa, I in ((0, I0), (1, I1)):
        e(f"v_lshlrev_b32 v{t4}, 3, v{vG}")
        e(f"v_sub_u32 v{t4}, v{vL15}, v{t4}")
        if aa: e(f"v_add_u32 v{t4}, 16, v{t4}")
        e(f"v_and_b32 v{t5}, 1, v{t4}")
        e(f"v_lshlrev_b32 v{t5}, 4, v{t5}")
        e(f"v_mov_b32 v{t6}, 0x3f80")
        e(f"v_lshlrev_b32 v{t5}, v{t5}, v{t6}")
        e(f"v_ashrrev_i32 v{t4}, 1, v{t4}")
        for j in range(4): e(f"v_cmp_eq_u32 s[{72+2*j}:{73+2*j}], {j}, v{t4}")
        e("s_nop 1")
        for j in range(4): e(f"v_cndmask_b32 v{I+j}, 0, v{t5}, s[{72+2*j}:{73+2*j}]")
    combos = [(0,0,0),(0,0,1),(1,0,0),(1,0,1),(1,1,0),(1,1,1)]
    e(f"v_and_b32 v{t4}, 1, v{vL15}")
    e(f"v_mul_u32_u24 v{t4}, {HS}, v{t4}")
    e(f"s_lshl_b32 s63, s{sW}, 4")
    e(f"v_add_u32 v{t4}, s63, v{t4}")
    for ci, (aa, bb, pp) in enumerate(combos):
        g, gp, q, off = t5, t6, t7, t0
        e(f"v_lshlrev_b32 v{g}, 1, v{vG}")
        e(f"v_add_u32 v{g}, {8*aa+pp}, v{g}")
        e(f"v_lshrrev_b32 v{gp}, 1, v{vL15}")
        if bb: e(f"v_add_u32 v{gp}, 8, v{gp}")
        e(f"v_mad_u32_u24 v{q}, v{g}, v{g}, v{g}")
        e(f"v_lshrrev_b32 v{q}, 1, v{q}")
        e(f"v_add_u32 v{q}, v{q}, v{gp}")
        e(f"v_and_b32 v{off}, 0x7c, v{q}")
        e(f"v_lshlrev_b32 v{off}, 8, v{off}")
        e(f"v_lshl_add_u32 v{off}, v{q}, 2, v{off}")
        e(f"v_add_u32 v{off}, v{off}, v{t4}")
        e(f"v_cmp_le_u32 s[72:73], v{gp}, v{g}")
        e(f"v_cmp_gt_u32 s[74:75], 13, v{g}")
        e(f"v_cmp_gt_u32 s[76:77], 14, v{g}")
        e(f"v_cmp_gt_u32 s[78:79], 13, v{gp}")
        e(f"v_add_u32 v{t1}, {F2}, v{off}")
        e(f"s_and_b64 s[74:75], s[74:75], s[72:73]")
        e(f"s_and_b64 s[76:77], s[76:77], s[72:73]")
        e(f"s_and_b64 s[76:77], s[76:77], s[78:79]")
        if F1: e(f"v_add_u32 v{off}, {F1}, v{off}")
        e(f"v_cndmask_b32 v{SA1+ci}, v{vDump}, v{off}, s[74:75]")
        e(f"v_cndmask_b32 v{SA2+ci}, v{vDump}, v{t1}, s[76:77]")
    e("s_waitcnt lgkmcnt(0)")
    e("s_barrier")
    st("b1")
    NYOUNG = 1 + 1 + 8 + 26 + 6
    e(f"s_waitcnt vmcnt({NYOUNG})")
    st("idx")
    e(f"v_lshl_add_u32 v{vIdx0}, v{vIdx0}, 5, v{vPar}")
    e(f"v_lshl_add_u32 v{vIdx1}, v{vIdx1}, 5, v{vPar}")
    e(f"s_mul_i32 s63, s{sW}, 1664")
    e(f"s_add_u32 s63, s63, {X0}")
    e("s_mov_b32 exec_lo, -1"); e("s_mov_b32 exec_hi, 0xfffff")
    e("s_mov_b32 m0, s63")
    e("s_nop 0")
    e(f"buffer_load_dwordx4 v{vIdx0}, s[{SRD_TAB}:{SRD_TAB+3}], 0 offen lds")
    e("s_add_u32 m0, s63, 832")
    e("s_nop 0")
    e(f"buffer_load_dwordx4 v{vIdx1}, s[{SRD_TAB}:{SRD_TAB+3}], 0 offen lds")
    e("s_mov_b64 exec, -1")
    e(f"s_waitcnt vmcnt({26+6+2})")
    st("w1")
    e(f"v_lshlrev_b32 v{t5}, 16, v{vWs}")
    e(f"v_cmp_gt_u32 s[72:73], 26, v{vLane}")
    e(f"v_cmp_gt_u32 s[74:75], 32, v{vLane}")
    e(f"v_lshlrev_b32 v{t6}, 2, v{vLane}")
    e(f"v_add_u32 v{t6}, {W1F}, v{t6}")
    e(f"v_cndmask_b32 v{t5}, 0, v{t5}, s[72:73]")
    e(f"v_cndmask_b32 v{t6}, v{vDump}, v{t6}, s[74:75]")
    e(f"ds_write_b32 v{t6}, v{t5}")
    e(f"v_subrev_u32 v{t5}, 26, v{vLane}")
    e(f"v_cmp_gt_u32 s[72:73], 26, v{t5}")
    e(f"v_lshrrev_b32 v{t6}, 3, v{t5}")
    e(f"v_lshlrev_b32 v{t6}, 8, v{t6}")
    e(f"v_and_b32 v{t7}, 7, v{t5}")
    e(f"v_lshl_add_u32 v{t6}, v{t7}, 1, v{t6}")
    e(f"v_add_u32 v{t6}, {QB+1024+160}, v{t6}")
    e(f"v_cndmask_b32 v{t6}, v{vDump}, v{t6}, s[72:73]")
    e(f"ds_write_b16 v{t6}, v{vWs}")

    def s_mfma(D, A0, A1, B0, B1):
        e(f"v_mfma_f32_16x16x32_bf16 v[{D}:{D+3}], v[{A0}:{A0+3}], v[{B0}:{B0+3}], 0")
        e(f"v_mfma_f32_16x16x32_bf16 v[{D+4}:{D+7}], v[{A1}:{A1+3}], v[{B0}:{B0+3}], 0")
        e(f"v_mfma_f32_16x16x32_bf16 v[{D+8}:{D+11}], v[{A1}:{A1+3}], v[{B1}:{B1+3}], 0")
        e(f"v_mfma_f32_16x16x32_bf16 v[{D}:{D+3}], v[{B0}:{B0+3}], v[{A0}:{A0+3}], v[{D}:{D+3}]")
        e(f"v_mfma_f32_16x16x32_bf16 v[{D+4}:{D+7}], v[{B1}:{B1+3}], v[{A0}:{A0+3}], v[{D+4}:{D+7}]")
        e(f"v_mfma_f32_16x16x32_bf16 v[{D+8}:{D+11}], v[{B1}:{B1+3}], v[{A1}:{A1+3}], v[{D+8}:{D+11}]")
    def s_out(D, C, SA, k):
        for ci in range(6):
            e(f"v_cvt_pk_bf16_f32 v{C+ci}, v{D+2*ci}, v{D+2*ci+1}")
        for ci in range(6):
            e(f"ds_write_b32 v{SA+ci}, v{C+ci} offset:{k*128}")
    a.c("S1")
    for k in range(4):
        if k == 3:
            e(f"s_cmp_ge_u32 s{sW}, 2"); e("s_cbranch_scc1 L_s1_skip")
        s_mfma(DS[k & 1], W1R+8*k, W1R+8*k+4, I0, I1)
        if k > 0: s_out(DS[(k-1) & 1], CV[(k-1) & 1], SA1, k-1)
        if k == 3:
            a.nop(8); s_out(DS[1], CV[1], SA1, 3); e("s_branch L_s1_done")
    a.label("L_s1_skip")
    a.nop(2); s_out(DS[0], CV[0], SA1, 2)
    a.label("L_s1_done")

    st("s1")
    a.c("Weff")
    e(f"s_waitcnt vmcnt({6+2})")
    e(f"v_mov_b32 v{WA}, 0"); e(f"v_mov_b32 v{WA+1}, 0")
    for hp in range(26):
        sd = 48 + hp//2
        if hp % 2 == 0:
            e(f"s_and_b32 s63, s{sd}, 0xffff"); e(f"s_lshl_b32 s64, s{sd}, 16")
        else:
            e(f"s_lshr_b32 s63, s{sd}, 16"); e(f"s_and_b32 s64, s{sd}, 0xffff0000")
        e(f"v_dot2c_f32_bf16 v{WA}, s63, v{W3R+hp}")
        e(f"v_dot2c_f32_bf16 v{WA+1}, s64, v{W3R+hp}")
    e(f"v_mul_u32_u24 v{t4}, 5042, v0")
    e(f"v_lshrrev_b32 v{t4}, 16, v{t4}")
    e(f"v_mul_u32_u24 v{t5}, 13, v{t4}")
    e(f"v_sub_u32 v{t5}, v0, v{t5}")
    e(f"v_lshlrev_b32 v{t5}, 1, v{t5}")
    e(f"v_lshrrev_b32 v{t6}, 4, v{t5}")
    e(f"v_lshlrev_b32 v{t6}, 10, v{t6}")
    e(f"v_and_b32 v{t5}, 15, v{t5}")
    e(f"v_lshl_add_u32 v{t6}, v{t5}, 4, v{t6}")
    e(f"v_lshrrev_b32 v{t5}, 3, v{t4}")
    e(f"v_lshl_add_u32 v{t6}, v{t5}, 8, v{t6}")
    e(f"v_and_b32 v{t4}, 7, v{t4}")
    e(f"v_lshl_add_u32 v{t6}, v{t4}, 1, v{t6}")
    e(f"v_add_u32 v{t6}, {QB}, v{t6}")
    e(f"v_cmp_gt_u32 vcc, 338, v0")
    e(f"v_cvt_pk_bf16_f32 v{t7}, v{WA}, v{WA+1}")
    e("s_nop 0")
    e(f"v_cndmask_b32 v{t6}, v{vDump}, v{t6}, vcc")
    e(f"ds_write_b16 v{t6}, v{t7}")
    e(f"ds_write_b16_d16_hi v{t6}, v{t7} offset:16")
    st("weff")
    e("s_waitcnt vmcnt(2) lgkmcnt(0)")
    e("s_barrier")
    st("b2")
    sD = 66
    sDB = 67
    sKO = 80
    vPA, vPB = 150, 151
    e(f"s_and_b32 s{sD}, s{sW}, 3")
    e(f"s_lshl_b32 s{sDB}, s{sD}, 13")
    e(f"s_add_u32 s{sDB}, s{sDB}, {RING}")
    e(f"s_mul_i32 s63, s{sD}, 192"); e("s_add_u32 s63, s63, 64")
    e(f"s_cmp_eq_u32 s{sD}, 0")
    e("s_cselect_b32 s63, 0, s63")
    e("s_cselect_b32 s64, 16, 12")
    e(f"s_mov_b32 s81, s63")
    e(f"s_mov_b32 s82, s64")
    e(f"v_mul_u32_u24 v{t4}, 832, v{vG}")
    e(f"v_add_u32 v{t4}, s63, v{t4}")
    e(f"v_lshlrev_b32 v{t5}, 1, v{vG}")
    e(f"v_xor_b32 v{t5}, v{t5}, v{vL15}")
    e(f"v_xor_b32 v{t6}, 8, v{t5}")
    e(f"v_mov_b32 v{t7}, {BIG}")
    e(f"v_cmp_gt_u32 s[72:73], s64, v{t5}")
    e(f"v_cmp_gt_u32 s[74:75], s64, v{t6}")
    e(f"v_lshl_add_u32 v{t5}, v{t5}, 4, v{t4}")
    e(f"v_lshl_add_u32 v{t6}, v{t6}, 4, v{t4}")
    e(f"v_cndmask_b32 v{vPA}, v{t7}, v{t5}, s[72:73]")
    e(f"v_cndmask_b32 v{vPB}, v{t7}, v{t6}, s[74:75]")
    e(f"s_mov_b32 s{sKO}, 0")
    e(f"s_cmp_lt_u32 s{sW}, 4"); e("s_cbranch_scc1 L_noK0")
    def dma_step(s):
        slot = (s + 2) % 3
        for m in range(8):
            e(f"s_add_u32 m0, s{sDB}, {slot*32768 + m*1024}")
            v = vPA if ((m >> 1) & 1) == 0 else vPB
            if m: e(f"s_add_u32 s{sKO}, s{sKO}, 3328")
            else: e("s_nop 0")
            e(f"buffer_load_dwordx4 v{v}, s[{SRD_WD}:{SRD_WD+3}], s{sKO} offen lds")
        e(f"s_add_u32 s{sKO}, s{sKO}, 3328")
    dma_step(0)
    a.label("L_noK0")

    a.c("S2")
    Q0, Q1 = 64, 68
    e(f"v_lshlrev_b32 v{t4}, 4, v{vLane}")
    e(f"v_add_u32 v{t4}, {QB}, v{t4}")
    e(f"ds_read_b128 v[{Q0}:{Q0+3}], v{t4}")
    e(f"ds_read_b128 v[{Q1}:{Q1+3}], v{t4} offset:1024")
    TA = 48
    e(f"v_lshrrev_b32 v{t5}, 2, v{vL15}")
    e(f"v_lshl_add_u32 v{t5}, v{vG}, 3, v{t5}")
    e(f"v_add_u32 v{t6}, 4, v{t5}")
    e(f"v_min_u32 v{t5}, 25, v{t5}")
    e(f"v_min_u32 v{t6}, 25, v{t6}")
    e(f"v_mul_u32_u24 v{t5}, {27*64}, v{t5}")
    e(f"v_mul_u32_u24 v{t6}, {27*64}, v{t6}")
    e(f"s_lshl_b32 s63, s{sW}, 6")
    e(f"s_add_u32 s63, s63, {W2L}")
    e(f"v_add_u32 v{t5}, s63, v{t5}")
    e(f"v_add_u32 v{t6}, s63, v{t6}")
    e(f"v_bfe_u32 v{t7}, v{vL15}, 1, 1")
    e(f"v_and_b32 v{t0}, 1, v{vG}")
    e(f"v_lshlrev_b32 v{t0}, 1, v{t0}")
    e(f"v_xor_b32 v{t1}, v{t7}, v{t0}")
    e(f"v_xor_b32 v{t2}, 2, v{t1}")
    e(f"v_and_b32 v{t3}, 1, v{vL15}")
    e(f"v_lshlrev_b32 v{t3}, 3, v{t3}")
    e(f"v_lshl_add_u32 v{t1}, v{t1}, 4, v{t3}")
    e(f"v_lshl_add_u32 v{t2}, v{t2}, 4, v{t3}")
    e(f"v_add_u32 v{TA}, v{t5}, v{t1}")
    e(f"v_add_u32 v{TA+1}, v{t6}, v{t1}")
    e(f"v_add_u32 v{TA+2}, v{t5}, v{t2}")
    e(f"v_add_u32 v{TA+3}, v{t6}, v{t2}")
    vM = 52
    e(f"v_cmp_gt_u32 vcc, 10, v{vL15}")
    e("s_nop 1")
    e(f"v_cndmask_b32 v{vM}, 0, -1, vcc")
    PS = [32, 40]
    def p_read(P, k):
        e(f"ds_read_b64_tr_b16 v[{P}:{P+1}], v{TA} offset:{k*512}")
        e(f"ds_read_b64_tr_b16 v[{P+2}:{P+3}], v{TA+1} offset:{k*512}")
        e(f"ds_read_b64_tr_b16 v[{P+4}:{P+5}], v{TA+2} offset:{k*512}")
        e(f"ds_read_b64_tr_b16 v[{P+6}:{P+7}], v{TA+3} offset:{k*512}")
    def p_mask(P):
        for j in range(4): e(f"v_and_b32 v{P+4+j}, v{vM}, v{P+4+j}")
    p_read(PS[0], 0)
    for k in range(4):
        if k == 3:
            e(f"s_cmp_ge_u32 s{sW}, 2"); e("s_cbranch_scc1 L_s2_skip")
        e("s_waitcnt lgkmcnt(0)")
        p_mask(PS[k & 1])
        if k < 3: p_read(PS[(k+1) & 1], k+1)
        else: a.nop(2)
        s_mfma(DS[k & 1], PS[k & 1], PS[k & 1]+4, Q0, Q1)
        if k > 0: s_out(DS[(k-1) & 1], CV[(k-1) & 1], SA2, k-1)
        if k == 3:
            a.nop(8); s_out(DS[1], CV[1], SA2, 3); e("s_branch L_s2_done")
    a.label("L_s2_skip")
    a.nop(2); s_out(DS[0], CV[0], SA2, 2)
    a.label("L_s2_done")
    st("s2")
    e(f"s_cmp_lt_u32 s{sW}, 4"); e("s_cbranch_scc1 L_b3c")
    e("s_waitcnt vmcnt(8) lgkmcnt(0)")
    e("s_barrier")
    e("s_branch L_dwave")
    a.label("L_b3c")
    e("s_waitcnt vmcnt(0) lgkmcnt(0)")
    e("s_barrier")
    if dbg == "lds":
        e("s_cmp_eq_u32 s2, 0"); e("s_cbranch_scc0 L_nodump")
        e(f"v_lshlrev_b32 v{t4}, 4, v0")
        for k in range(16):
            e(f"ds_read_b128 v[{t0}:{t3}], v{t4} offset:{k*4096}")
            e("s_waitcnt lgkmcnt(0)")
            e(f"v_add_u32 v{t5}, {k*4096}, v{t4}")
            e(f"global_store_dwordx4 v{t5}, v[{t0}:{t3}], s[98:99]")
            e("s_waitcnt vmcnt(0)")
        a.label("L_nodump")

    a.c("C wave")
    st("b3")
    XA, YA, XB, YB = 8, 34, 47, 73
    D1A, D2A, D1B, D2B = 96, 112, 128, 144
    ZB = [[160, 164], [168, 172]]
    AB = [176, 184, 192]
    TM = [200, 201, 202, 203, 204, 205, 206, 207]
    WI = 208
    vXb, vYb, vFa = 224, 225, 226
    for r in list(range(XA, XA+26))+list(range(YA, YA+13))+list(range(XB, XB+26))+list(range(YB, YB+13)):
        pass
    e(f"v_bfe_u32 v{TM[0]}, v{vLane}, 4, 1")
    e(f"s_lshl_b32 s63, s{sW}, 2")
    e(f"v_add_u32 v{TM[0]}, s63, v{TM[0]}")
    e(f"v_mul_u32_u24 v{TM[0]}, 832, v{TM[0]}")
    e(f"v_lshl_add_u32 v{TM[0]}, v{vL15}, 1, v{TM[0]}")
    e(f"v_add_u32 v{vXb}, {X0}, v{TM[0]}")
    e(f"v_lshrrev_b32 v{TM[1]}, 5, v{vLane}")
    e(f"v_lshl_add_u32 v{vYb}, v{TM[1]}, 5, v{vXb}")
    e(f"v_mul_u32_u24 v{TM[2]}, {HS}, v{TM[1]}")
    e(f"v_and_b32 v{TM[3]}, 31, v{vLane}")
    e(f"v_lshl_add_u32 v{vFa}, v{TM[3]}, 4, v{TM[2]}")
    e(f"v_lshlrev_b32 v{TM[1]}, 4, v{TM[1]}")
    e(f"v_add_u32 v{TM[1]}, {W1F}, v{TM[1]}")
    for m in range(4): e(f"ds_read_b128 v[{WI+4*m}:{WI+4*m+3}], v{TM[1]} offset:{m*32}")
    for r in range(XA, YB+13): e(f"v_mov_b32 v{r}, 0")
    for T, (X, Y) in enumerate(((XA, YA), (XB, YB))):
        for f in range(26): e(f"ds_read_u16_d16_hi v{X+f}, v{vXb} offset:{T*1664 + f*32}")
        for g in range(13): e(f"ds_read_u16_d16_hi v{Y+g}, v{vYb} offset:{T*1664 + g*64}")
        e("s_waitcnt lgkmcnt(0)") if T == 0 else None
    def a_read(t):
        b = AB[t % 3]
        n = 0
        if t <= 22: e(f"ds_read_b128 v[{b}:{b+3}], v{vFa} offset:{F1 + t*FS}"); n += 1
        if t <= 25: e(f"ds_read_b128 v[{b+4}:{b+7}], v{vFa} offset:{F2 + t*FS}"); n += 1
        return n
    blocks = [(g, gp) for g in range(14) for gp in range(min(g, 12)+1)]
    assert len(blocks) == 104
    def zgen(t, T):
        X, Y = ((XA, YA), (XB, YB))[T]
        z = ZB[t & 1][T]
        out = []
        for j in range(4):
            g, gp = blocks[4*t + j]
            ta, tb, th = TM[(2*j) % 8 if T == 0 else (2*j) % 8], TM[(2*j+1) % 8], 228 + T
            if g == 13:
                out.append(f"v_cvt_pk_bf16_f32 v{z+j}, v{Y+gp}, 0")
            else:
                y = Y + gp
                if g == gp:
                    out.append(f"v_mul_f32 v{th}, 0.5, v{Y+gp}"); y = th
                out.append(f"v_mul_f32 v{ta}, v{X+2*g}, v{y}")
                out.append(f"v_mul_f32 v{tb}, v{X+2*g+1}, v{y}")
                out.append(f"v_cvt_pk_bf16_f32 v{z+j}, v{ta}, v{tb}")
        return out
    e("s_waitcnt lgkmcnt(0)")
    st("xld")
    a_read(0); a_read(1)
    for T in range(2):
        for s in zgen(0, T): e(s)
    cnt = {t: (1 if t > 22 else 2) for t in range(26)}
    for t in range(26):
        younger = cnt[t+1] if t+1 <= 25 else 0
        e(f"s_waitcnt lgkmcnt({younger})")
        if t + 2 <= 25: a_read(t + 2)
        b = AB[t % 3]
        mf = []
        for T, (D1, D2) in enumerate(((D1A, D2A), (D1B, D2B))):
            z = ZB[t & 1][T]
            if t <= 22:
                c = "0" if t == 0 else f"v[{D1}:{D1+15}]"
                mf.append(f"v_mfma_f32_32x32x16_bf16 v[{D1}:{D1+15}], v[{b}:{b+3}], v[{z}:{z+3}], {c}")
            c = f"v[{WI}:{WI+15}]" if t == 0 else f"v[{D2}:{D2+15}]"
            mf.append(f"v_mfma_f32_32x32x16_bf16 v[{D2}:{D2+15}], v[{b+4}:{b+7}], v[{z}:{z+3}], {c}")
        va = (zgen(t+1, 0) + zgen(t+1, 1)) if t < 25 else []
        n = len(mf); per = (len(va) + n - 1)//n if va else 0
        if t == 0: a.nop(2)
        vi = 0
        for i, m in enumerate(mf):
            e(m)
            for s in va[vi:vi+per]: e(s)
            vi += per
    a.nop(16)
    st("main")
    for T, (D1, D2) in enumerate(((D1A, D2A), (D1B, D2B))):
        acc = TM[T]
        e(f"v_mul_f32 v{acc}, v{D1}, v{D2}")
    for r in range(1, 14):
        for T, (D1, D2) in enumerate(((D1A, D2A), (D1B, D2B))):
            e(f"v_fmac_f32 v{TM[T]}, v{D1+r}, v{D2+r}")
    for sh in (8, 4, 2, 1):
        a.nop(2)
        for T in range(2):
            e(f"v_add_f32_dpp v{TM[T]}, v{TM[T]}, v{TM[T]} row_ror:{sh} row_mask:0xf bank_mask:0xf")
    e(f"v_bfe_u32 v{TM[2]}, v{vLane}, 4, 1")
    e(f"v_lshlrev_b32 v{TM[2]}, 3, v{TM[2]}")
    e(f"v_lshrrev_b32 v{TM[3]}, 5, v{vLane}")
    e(f"v_lshl_add_u32 v{TM[2]}, v{TM[3]}, 2, v{TM[2]}")
    e(f"s_lshl_b32 s63, s{sW}, 5")
    e(f"s_add_u32 s63, s63, {RED}")
    e(f"v_add_u32 v{TM[2]}, s63, v{TM[2]}")
    e(f"ds_write_b32 v{TM[2]}, v{TM[0]}")
    e(f"ds_write_b32 v{TM[2]}, v{TM[1]} offset:16")
    e("s_branch L_final")

    a.label("L_dwave")
    a.c("D wave")
    st("b3")
    AX = 8
    ACC = 64
    BB = 96
    TRA = 160
    TRA2 = 168
    W2R = 176
    BIAS = 184
    OUT = 192
    GT = 200
    vC0 = 216
    e("s_mov_b32 s68, s14"); e("s_mov_b32 s69, s15"); e("s_mov_b32 s70, 832"); e("s_mov_b32 s71, 0x20000")
    e("s_mov_b32 s72, s16"); e("s_mov_b32 s73, s17"); e("s_mov_b32 s74, 832"); e("s_mov_b32 s75, 0x20000")
    e(f"v_lshlrev_b32 v{GT}, 1, v{vL15}")
    e(f"v_add_u32 v{GT}, s81, v{GT}")
    for tau in range(8):
        e(f"v_mov_b32 v{BIAS+tau}, 0"); e(f"v_mov_b32 v{W2R+tau}, 0")
    e(f"s_cmp_eq_u32 s{sD}, 0"); e(f"s_cselect_b32 s63, 0, {BIG}")
    for tau in range(8):
        so = "0" if tau < 6 else "s63"
        e(f"buffer_load_short_d16_hi v{BIAS+tau}, v{GT}, s[68:71], {so} offen offset:{tau*32}")
        e(f"buffer_load_short_d16_hi v{W2R+tau}, v{GT}, s[72:75], {so} offen offset:{tau*32}")
    dma_step(1); dma_step(2)
    e(f"v_mul_u32_u24 v{GT+1}, 832, v{vL15}")
    e(f"v_lshl_add_u32 v{GT+1}, v{vG}, 4, v{GT+1}")
    e(f"v_add_u32 v{GT+1}, {X0}, v{GT+1}")
    for s in range(13): e(f"ds_read_b128 v[{AX+4*s}:{AX+4*s+3}], v{GT+1} offset:{s*64}")
    e(f"v_lshrrev_b32 v{GT+2}, 2, v{vL15}")
    e(f"v_lshl_add_u32 v{GT+3}, v{vG}, 3, v{GT+2}")
    e(f"v_lshlrev_b32 v{GT+3}, 8, v{GT+3}")
    e(f"v_and_b32 v{GT+4}, 3, v{vL15}")
    e(f"v_lshl_add_u32 v{GT+3}, v{GT+4}, 3, v{GT+3}")
    e(f"v_add_u32 v{GT+3}, s{sDB}, v{GT+3}")
    e(f"v_and_b32 v{GT+4}, 1, v{vG}")
    e(f"v_lshl_add_u32 v{GT+2}, v{GT+4}, 2, v{GT+2}")
    for tau in range(8):
        e(f"v_xor_b32 v{GT+4}, {tau}, v{GT+2}")
        e(f"v_lshl_add_u32 v{TRA+tau}, v{GT+4}, 5, v{GT+3}")
        e(f"v_add_u32 v{TRA2+tau}, 0x10000, v{TRA+tau}")
    e(f"s_waitcnt vmcnt(16)")
    for tau in range(8):
        for r in range(4): e(f"v_mov_b32 v{ACC+4*tau+r}, v{BIAS+tau}")
    st("xld")
    e(f"s_cmp_eq_u32 s{sD}, 0")
    e("s_cselect_b32 s83, 1, 0")
    for s in range(13):
        slot = (s + 2) % 3
        nout = 16 if s <= 10 else (8 if s == 11 else 0)
        e(f"s_waitcnt vmcnt({nout})")
        def rd(tau):
            v = (TRA2 if slot == 2 else TRA) + tau
            o = 32768 if slot == 1 else 0
            e(f"ds_read_b64_tr_b16 v[{BB+4*tau}:{BB+4*tau+1}], v{v} offset:{o}")
            e(f"ds_read_b64_tr_b16 v[{BB+4*tau+2}:{BB+4*tau+3}], v{v} offset:{o+1024}")
        for tau in range(6): rd(tau)
        e("s_cmp_eq_u32 s83, 0"); e(f"s_cbranch_scc1 L_d{s}a")
        rd(6); rd(7)
        a.label(f"L_d{s}a")
        e("s_waitcnt lgkmcnt(0)")
        if s + 3 <= 12: dma_step(s + 3)
        for tau in range(6):
            e(f"v_mfma_f32_16x16x32_bf16 v[{ACC+4*tau}:{ACC+4*tau+3}], v[{AX+4*s}:{AX+4*s+3}], v[{BB+4*tau}:{BB+4*tau+3}], v[{ACC+4*tau}:{ACC+4*tau+3}]")
        e("s_cmp_eq_u32 s83, 0"); e(f"s_cbranch_scc1 L_d{s}b")
        for tau in (6, 7):
            e(f"v_mfma_f32_16x16x32_bf16 v[{ACC+4*tau}:{ACC+4*tau+3}], v[{AX+4*s}:{AX+4*s+3}], v[{BB+4*tau}:{BB+4*tau+3}], v[{ACC+4*tau}:{ACC+4*tau+3}]")
        a.label(f"L_d{s}b")
    st("main")
    C0 = -2.0*0.7978845608028654*1.4426950408889634
    C1 = C0*0.044715
    e(f"v_mov_b32 v{vC0}, 0x{f32bits(C0):08x}")
    for r in range(4): e(f"v_mov_b32 v{OUT+r}, 0")
    a.nop(8)
    def gelu(tau):
        x = ACC + 4*tau
        U, E, Yv = GT, GT+4, GT+8
        for r in range(4): e(f"v_mul_f32 v{U+r}, v{x+r}, v{x+r}")
        for r in range(4): e(f"v_fmamk_f32 v{U+r}, v{U+r}, 0x{f32bits(C1):08x}, v{vC0}")
        for r in range(4): e(f"v_mul_f32 v{U+r}, v{x+r}, v{U+r}")
        for r in range(4): e(f"v_exp_f32 v{E+r}, v{U+r}")
        for r in range(4): e(f"v_mul_f32 v{Yv+r}, v{x+r}, v{W2R+tau}")
        for r in range(4): e(f"v_add_f32 v{E+r}, 1.0, v{E+r}")
        for r in range(4): e(f"v_rcp_f32 v{E+r}, v{E+r}")
        e("s_nop 0")
        for r in range(4): e(f"v_fmac_f32 v{OUT+r}, v{Yv+r}, v{E+r}")
    for tau in range(6): gelu(tau)
    e("s_cmp_eq_u32 s83, 0"); e("s_cbranch_scc1 L_dg")
    gelu(6); gelu(7)
    a.label("L_dg")
    st("gelu")
    for sh in (8, 4, 2, 1):
        a.nop(2)
        for r in range(4):
            e(f"v_add_f32_dpp v{OUT+r}, v{OUT+r}, v{OUT+r} row_ror:{sh} row_mask:0xf bank_mask:0xf")
    e(f"s_lshl_b32 s63, s{sD}, 6")
    e(f"s_add_u32 s63, s63, {RED2}")
    e(f"v_lshlrev_b32 v{GT}, 4, v{vG}")
    e(f"v_add_u32 v{GT}, s63, v{GT}")
    e(f"ds_write_b128 v{GT}, v[{OUT}:{OUT+3}]")

    a.label("L_final")
    e("s_waitcnt lgkmcnt(0)")
    e("s_barrier")
    st("fin")
    if stamp is not None:
        wg, wv = [int(x) for x in stamp.split("_")]
        e(f"s_cmp_eq_u32 s2, {wg}"); e("s_cbranch_scc0 L_nost")
        e(f"s_cmp_eq_u32 s{sW}, {wv}"); e("s_cbranch_scc0 L_nost")
        e(f"v_lshlrev_b32 v30, 2, v{vLane}")
        e("s_mov_b64 exec, 0xffff")
        e(f"global_store_dword v30, v{vSt}, s[96:97]")
        e("s_mov_b64 exec, -1")
        a.label("L_nost")
    e(f"s_cmp_eq_u32 s{sW}, 0"); e("s_cbranch_scc0 L_end")
    e(f"v_lshlrev_b32 v8, 3, v{vL15}")
    e(f"v_add_u32 v8, {RED}, v8")
    e(f"v_lshlrev_b32 v9, 2, v{vL15}")
    e(f"v_add_u32 v9, {RED2}, v9")
    e("ds_read_b64 v[10:11], v8")
    for d in range(4): e(f"ds_read_b32 v{12+d}, v9 offset:{d*64}")
    e("s_lshl_b32 s47, s47, 16")
    e("s_mov_b32 s68, s20"); e("s_mov_b32 s69, s21"); e("s_mov_b32 s70, 8192"); e("s_mov_b32 s71, 0x20000")
    e("s_lshl_b32 s63, s2, 5")
    e(f"v_lshlrev_b32 v16, 1, v{vL15}")
    e("s_waitcnt lgkmcnt(0)")
    e("v_add_f32 v10, v10, v11")
    e("v_add_f32 v12, v12, v13")
    e("v_add_f32 v14, v14, v15")
    e("v_add_f32 v12, v12, v14")
    e("v_add_f32 v10, v10, v12")
    e("v_add_f32 v10, s47, v10")
    e("v_cvt_pk_bf16_f32 v10, v10, v10")
    e("s_mov_b64 exec, 0xffff")
    e("buffer_store_short v10, v16, s[68:71], s63 offen")
    a.label("L_end")
    e("s_endpgm")
    return a

HEADER = """; xDeepFM (CIN + DNN) fused kernel for gfx950 -- generated by my own script
; @launch grid=(256,1,1) block=(512,1,1) lds=163840
.amdgcn_target "amdgcn-amd-amdhsa--gfx950"
.text
.globl {k}
.p2align 8
.type {k},@function
"""
FOOTER = """
.section .rodata,"a"
.p2align 6
.amdhsa_kernel {k}
  .amdhsa_next_free_vgpr {nv}
  .amdhsa_next_free_sgpr 102
  .amdhsa_accum_offset {nv}
  .amdhsa_group_segment_fixed_size 0
  .amdhsa_kernarg_size 88
  .amdhsa_user_sgpr_count 2
  .amdhsa_user_sgpr_kernarg_segment_ptr 1
  .amdhsa_system_sgpr_workgroup_id_x 1
.end_amdhsa_kernel
"""
if __name__ == "__main__":
    opts = dict(x.split("=") for x in sys.argv[2:])
    a = gen(opts)
    body = a.text()
    probs = check_hazards(body)
    for p in probs: print("HAZARD:", p, file=sys.stderr)
    open(sys.argv[1], "w").write(HEADER.format(k=KNAME) + body + FOOTER.format(k=KNAME, nv=232))
    print("written", sys.argv[1], "hazards:", len(probs), file=sys.stderr)
```

```python
import sys, struct
from asmlib import Asm, check_hazards

KNAME = "standalone__deep_cross_xdeepfm__recsys_kernel"
FS, HS = 1040, 528
F1 = 0; NF1 = 23
F2 = F1 + NF1*FS; NF2 = 26
X0 = F2 + NF2*FS
W1F = X0 + 13312
RED = W1F + 128
RED2 = RED + 128
RING = 65536
W2L = RING
QB = RING + 45056
DUMP = QB + 2048
LDS_BYTES = 163840
assert RED2 + 256 <= RING
BIG = 0x10000000

def f32bits(x): return struct.unpack("<I", struct.pack("<f", x))[0]

def gen(opts):
    a = Asm(); e = a.e
    dbg = opts.get("dbg")
    sW = 22; sT = 23
    SRD_IDX, SRD_TAB, SRD_WS, SRD_WD, SRD_T = 24, 28, 32, 36, 40
    def srd(base, ptr, nbytes):
        e(f"s_mov_b32 s{base}, s{ptr}")
        e(f"s_mov_b32 s{base+1}, s{ptr+1}")
        e(f"s_mov_b32 s{base+2}, {nbytes}")
        e(f"s_mov_b32 s{base+3}, 0x20000")
    vTid, vLane, vL15, vG = 0, 1, 2, 3
    vIdx0, vIdx1, vPar = 4, 5, 6
    t0, t1, t2, t3 = 8, 9, 10, 11
    vTouch, vWs = 12, 13
    t4, t5, t6, t7 = 14, 15, 16, 17
    W1R = 32
    I0, I1 = 64, 68
    SA1 = 72
    SA2 = 18
    DS = [80, 92]
    CV = [104, 110]
    W3R = 116
    WA = 142
    vDump = 24
    vW2o = 144

    stamp = opts.get("stamp")
    vSt = 231
    nst = [0]
    def st(name):
        if stamp is None: return
        e("s_memtime s[84:85]")
        e("s_waitcnt lgkmcnt(0)")
        if name == "entry":
            e("s_mov_b32 s86, s84"); e(f"v_mov_b32 v{vSt}, 0")
        else:
            e("s_sub_u32 s84, s84, s86")
            e(f"v_writelane_b32 v{vSt}, s84, {STI[name]}")
    STI = dict(karg=0, issued=1, b1=2, idx=3, w1=4, s1=5, weff=6, b2=7, s2=8, b3=9, xld=10, main=11, gelu=12, fin=13)
    a.label(KNAME)
    st("entry")
    e("s_cmp_ge_u32 s2, 256")
    e("s_cbranch_scc1 L_end")
    e("s_load_dwordx16 s[4:19], s[0:1], 0")
    e("s_load_dwordx2 s[20:21], s[0:1], 64")
    if dbg or stamp: e("s_load_dwordx4 s[96:99], s[0:1], 72")
    pf = opts.get("pf")
    if pf:
        e("s_getpc_b64 s[88:89]")
        e("v_lshlrev_b32 v28, 7, v0")
        e(f"v_min_u32 v28, CODE_END-{KNAME}-256, v28")
        e("v_mov_b32 v29, s89")
        e("v_add_co_u32 v28, vcc, s88, v28")
        e("s_nop 1")
        e("v_addc_co_u32 v29, vcc, 0, v29, vcc")
        e(f"s_movk_i32 s90, {int(pf)}")
        e("v_cmp_gt_u32 vcc, s90, v0")
        e("s_and_saveexec_b64 s[92:93], vcc")
        e("s_cbranch_execz L_nopf")
        e("global_load_dword v30, v[28:29], off")
        a.label("L_nopf")
        e("s_mov_b64 exec, -1")
    e(f"v_lshrrev_b32 v{t4}, 6, v0")
    e(f"v_and_b32 v{vLane}, 63, v0")
    e(f"v_and_b32 v{vL15}, 15, v0")
    e(f"v_readfirstlane_b32 s{sW}, v{t4}")
    e(f"v_bfe_u32 v{vG}, v0, 4, 2")
    for r in (t0, t1, t2, t3): e(f"v_mov_b32 v{r}, 0")
    e(f"v_lshlrev_b32 v{t4}, 4, v0")
    for k in range(7): e(f"ds_write_b128 v{t4}, v[{t0}:{t3}] offset:{k*8192}")
    e(f"v_and_b32 v{t5}, 127, v0")
    e(f"v_lshlrev_b32 v{t5}, 4, v{t5}")
    e(f"v_add_u32 v{t5}, {QB}, v{t5}")
    e(f"ds_write_b128 v{t5}, v[{t0}:{t3}]")
    e(f"v_lshrrev_b32 v{t6}, 1, v{vLane}")
    e(f"v_lshlrev_b32 v{t6}, 2, v{t6}")
    e(f"v_and_b32 v{vPar}, 1, v{vLane}")
    e(f"v_lshlrev_b32 v{vPar}, 4, v{vPar}")
    e(f"v_lshlrev_b32 v{vDump}, 2, v{vLane}")
    e(f"v_add_u32 v{vDump}, {DUMP}, v{vDump}")
    e(f"v_mul_u32_u24 v{t7}, 52, v{vL15}")
    e(f"v_lshl_add_u32 v{t7}, v{vG}, 4, v{t7}")
    e(f"s_lshl_b32 s{sT}, s2, 4")
    e(f"s_lshl_b32 s61, s{sW}, 1")
    e(f"s_add_u32 s{sT}, s{sT}, s61")
    e(f"s_mul_i32 s61, s{sT}, 104")
    e("s_waitcnt lgkmcnt(0)")
    st("karg")
    srd(SRD_IDX, 4, 4096*26*4)
    e(f"buffer_load_dword v{vIdx0}, v{t6}, s[{SRD_IDX}:{SRD_IDX+3}], s61 offen")
    e(f"buffer_load_dword v{vIdx1}, v{t6}, s[{SRD_IDX}:{SRD_IDX+3}], s61 offen offset:104")
    srd(SRD_TAB, 6, 3200000)
    srd(SRD_WS, 8, 105456)
    srd(SRD_WD, 12, 346112)
    e("s_load_dwordx8 s[48:55], s[10:11], 104")
    e("s_load_dwordx4 s[56:59], s[10:11], 136")
    e("s_load_dword s60, s[10:11], 152")
    e("s_load_dword s47, s[18:19], 0")
    e("s_lshr_b32 s62, s2, 3")
    e("s_and_b32 s62, s62, 31")
    e(f"v_lshlrev_b32 v{t5}, 7, v{vLane}")
    e(f"s_mov_b32 s{SRD_T}, s12"); e(f"s_mov_b32 s{SRD_T+1}, s13"); e(f"s_mov_b32 s{SRD_T+3}, 0x20000")
    e("s_mul_i32 s63, s62, 10880")
    e("s_add_u32 s64, s63, 10880")
    e("s_min_u32 s64, s64, 346112")
    e(f"s_mov_b32 s{SRD_T+2}, s64")
    e(f"s_cmp_eq_u32 s{sW}, 0"); e("s_cbranch_scc1 L_touch")
    e("s_add_u32 s63, s63, 8192")
    e(f"s_cmp_eq_u32 s{sW}, 1"); e("s_cbranch_scc1 L_touch")
    e(f"s_mov_b32 s{SRD_T}, s8"); e(f"s_mov_b32 s{SRD_T+1}, s9")
    e("s_mul_i32 s63, s62, 3328")
    e("s_add_u32 s64, s63, 3328")
    e("s_min_u32 s64, s64, 105456")
    e(f"s_mov_b32 s{SRD_T+2}, s64")
    e(f"s_cmp_eq_u32 s{sW}, 2"); e("s_cbranch_scc1 L_touch")
    e("s_mov_b32 s63, 0")
    e(f"s_mov_b32 s{SRD_T}, s14"); e(f"s_mov_b32 s{SRD_T+1}, s15"); e(f"s_mov_b32 s{SRD_T+2}, 832")
    e(f"s_cmp_eq_u32 s{sW}, 3"); e("s_cbranch_scc1 L_touch")
    e(f"s_mov_b32 s{SRD_T}, s16"); e(f"s_mov_b32 s{SRD_T+1}, s17")
    e(f"s_cmp_eq_u32 s{sW}, 5"); e("s_cbranch_scc1 L_touch")
    e(f"s_mov_b32 s{SRD_T}, s6"); e(f"s_mov_b32 s{SRD_T+1}, s7"); e(f"s_mov_b32 s{SRD_T+2}, 3200000")
    e(f"v_lshlrev_b32 v{t5}, 16, v{vLane}")
    a.label("L_touch")
    e(f"buffer_load_dword v{vTouch}, v{t5}, s[{SRD_T}:{SRD_T+3}], s63 offen")
    e("s_mov_b32 s68, s10"); e("s_mov_b32 s69, s11"); e("s_mov_b32 s70, 156"); e("s_mov_b32 s71, 0x20000")
    e(f"v_lshlrev_b32 v{t6}, 1, v{vLane}")
    e(f"buffer_load_ushort v{vWs}, v{t6}, s[68:71], 0 offen")
    e(f"s_mul_i32 s63, s{sW}, 1352")
    for k in range(4):
        if k == 3:
            e(f"s_cmp_lt_u32 s{sW}, 2")
            e(f"s_cselect_b32 s63, s63, {BIG}")
        e(f"buffer_load_dwordx4 v[{W1R+8*k}:{W1R+8*k+3}], v{t7}, s[{SRD_WS}:{SRD_WS+3}], s63 offen")
        e(f"buffer_load_dwordx4 v[{W1R+8*k+4}:{W1R+8*k+7}], v{t7}, s[{SRD_WS}:{SRD_WS+3}], s63 offen offset:832")
        if k < 3: e(f"s_add_u32 s63, s63, {8*1352}")
    e(f"v_lshlrev_b32 v{t5}, 2, v0")
    e(f"v_mov_b32 v{t6}, {BIG}")
    e(f"v_cmp_gt_u32 vcc, 338, v0")
    e(f"s_mov_b32 s63, {2*35152}")
    e("s_nop 0")
    e(f"v_cndmask_b32 v{t5}, v{t6}, v{t5}, vcc")
    for hp in range(26):
        e(f"buffer_load_dword v{W3R+hp}, v{t5}, s[{SRD_WS}:{SRD_WS+3}], s63 offen")
        if hp < 25: e(f"s_add_u32 s63, s63, 1352")
    e(f"v_lshrrev_b32 v{t4}, 2, v{vLane}")
    e(f"s_lshl_b32 s63, s{sW}, 4")
    e(f"v_add_u32 v{t4}, s63, v{t4}")
    e(f"v_and_b32 v{t6}, 3, v{vLane}")
    for k in range(6):
        o = vW2o + k
        e(f"v_add_u32 v{t5}, {128*k}, v{t4}")
        e(f"v_mul_u32_u24 v{t7}, 2428, v{t5}")
        e(f"v_lshrrev_b32 v{t7}, 16, v{t7}")
        e(f"v_sub_u32 v{t5}, v{t5}, v{t7}")
        e(f"v_mul_u32_u24 v{t5}, 52, v{t5}")
        e(f"v_lshrrev_b32 v{t7}, 2, v{t7}")
        e(f"v_and_b32 v{t7}, 2, v{t7}")
        e(f"v_xor_b32 v{t7}, v{t7}, v{t6}")
        e(f"v_lshl_add_u32 v{o}, v{t7}, 4, v{t5}")
    e(f"s_lshl_b32 s64, s{sW}, 10")
    e(f"s_add_u32 s64, s64, {W2L}")
    e(f"s_mov_b32 s63, 35152")
    for k in range(6):
        if k == 5:
            e(f"s_cmp_lt_u32 s{sW}, 4")
            e(f"s_cselect_b32 s63, s63, {BIG}")
            e(f"s_add_u32 s65, s64, {k*8192}")
            e(f"s_cmp_lt_u32 s{sW}, 4")
            e(f"s_cselect_b32 m0, s65, {DUMP}")
        else:
            e(f"s_add_u32 m0, s64, {k*8192}")
        e("s_nop 0")
        e(f"buffer_load_dwordx4 v{vW2o+k}, s[{SRD_WS}:{SRD_WS+3}], s63 offen lds")
    st("issued")
    for aa, I in ((0, I0), (1, I1)):
        e(f"v_lshlrev_b32 v{t4}, 3, v{vG}")
        e(f"v_sub_u32 v{t4}, v{vL15}, v{t4}")
        if aa: e(f"v_add_u32 v{t4}, 16, v{t4}")
        e(f"v_and_b32 v{t5}, 1, v{t4}")
        e(f"v_lshlrev_b32 v{t5}, 4, v{t5}")
        e(f"v_mov_b32 v{t6}, 0x3f80")
        e(f"v_lshlrev_b32 v{t5}, v{t5}, v{t6}")
        e(f"v_ashrrev_i32 v{t4}, 1, v{t4}")
        for j in range(4): e(f"v_cmp_eq_u32 s[{72+2*j}:{73+2*j}], {j}, v{t4}")
        e("s_nop 1")
        for j in range(4): e(f"v_cndmask_b32 v{I+j}, 0, v{t5}, s[{72+2*j}:{73+2*j}]")
    combos = [(0,0,0),(0,0,1),(1,0,0),(1,0,1),(1,1,0),(1,1,1)]
    e(f"v_and_b32 v{t4}, 1, v{vL15}")
    e(f"v_mul_u32_u24 v{t4}, {HS}, v{t4}")
    e(f"s_lshl_b32 s63, s{sW}, 4")
    e(f"v_add_u32 v{t4}, s63, v{t4}")
    for ci, (aa, bb, pp) in enumerate(combos):
        g, gp, q, off = t5, t6, t7, t0
        e(f"v_lshlrev_b32 v{g}, 1, v{vG}")
        e(f"v_add_u32 v{g}, {8*aa+pp}, v{g}")
        e(f"v_lshrrev_b32 v{gp}, 1, v{vL15}")
        if bb: e(f"v_add_u32 v{gp}, 8, v{gp}")
        e(f"v_mad_u32_u24 v{q}, v{g}, v{g}, v{g}")
        e(f"v_lshrrev_b32 v{q}, 1, v{q}")
        e(f"v_add_u32 v{q}, v{q}, v{gp}")
        e(f"v_and_b32 v{off}, 0x7c, v{q}")
        e(f"v_lshlrev_b32 v{off}, 8, v{off}")
        e(f"v_lshl_add_u32 v{off}, v{q}, 2, v{off}")
        e(f"v_add_u32 v{off}, v{off}, v{t4}")
        e(f"v_cmp_le_u32 s[72:73], v{gp}, v{g}")
        e(f"v_cmp_gt_u32 s[74:75], 13, v{g}")
        e(f"v_cmp_gt_u32 s[76:77], 14, v{g}")
        e(f"v_cmp_gt_u32 s[78:79], 13, v{gp}")
        e(f"v_add_u32 v{t1}, {F2}, v{off}")
        e(f"s_and_b64 s[74:75], s[74:75], s[72:73]")
        e(f"s_and_b64 s[76:77], s[76:77], s[72:73]")
        e(f"s_and_b64 s[76:77], s[76:77], s[78:79]")
        if F1: e(f"v_add_u32 v{off}, {F1}, v{off}")
        e(f"v_cndmask_b32 v{SA1+ci}, v{vDump}, v{off}, s[74:75]")
        e(f"v_cndmask_b32 v{SA2+ci}, v{vDump}, v{t1}, s[76:77]")
    e("s_waitcnt lgkmcnt(0)")
    e("s_barrier")
    st("b1")
    NYOUNG = 1 + 1 + 8 + 26 + 6
    e(f"s_waitcnt vmcnt({NYOUNG})")
    st("idx")
    e(f"v_lshl_add_u32 v{vIdx0}, v{vIdx0}, 5, v{vPar}")
    e(f"v_lshl_add_u32 v{vIdx1}, v{vIdx1}, 5, v{vPar}")
    e(f"s_mul_i32 s63, s{sW}, 1664")
    e(f"s_add_u32 s63, s63, {X0}")
    e("s_mov_b32 exec_lo, -1"); e("s_mov_b32 exec_hi, 0xfffff")
    e("s_mov_b32 m0, s63")
    e("s_nop 0")
    e(f"buffer_load_dwordx4 v{vIdx0}, s[{SRD_TAB}:{SRD_TAB+3}], 0 offen lds")
    e("s_add_u32 m0, s63, 832")
    e("s_nop 0")
    e(f"buffer_load_dwordx4 v{vIdx1}, s[{SRD_TAB}:{SRD_TAB+3}], 0 offen lds")
    e("s_mov_b64 exec, -1")
    e(f"s_waitcnt vmcnt({26+6+2})")
    st("w1")
    e(f"v_lshlrev_b32 v{t5}, 16, v{vWs}")
    e(f"v_cmp_gt_u32 s[72:73], 26, v{vLane}")
    e(f"v_cmp_gt_u32 s[74:75], 32, v{vLane}")
    e(f"v_lshlrev_b32 v{t6}, 2, v{vLane}")
    e(f"v_add_u32 v{t6}, {W1F}, v{t6}")
    e(f"v_cndmask_b32 v{t5}, 0, v{t5}, s[72:73]")
    e(f"v_cndmask_b32 v{t6}, v{vDump}, v{t6}, s[74:75]")
    e(f"ds_write_b32 v{t6}, v{t5}")
    e(f"v_subrev_u32 v{t5}, 26, v{vLane}")
    e(f"v_cmp_gt_u32 s[72:73], 26, v{t5}")
    e(f"v_lshrrev_b32 v{t6}, 3, v{t5}")
    e(f"v_lshlrev_b32 v{t6}, 8, v{t6}")
    e(f"v_and_b32 v{t7}, 7, v{t5}")
    e(f"v_lshl_add_u32 v{t6}, v{t7}, 1, v{t6}")
    e(f"v_add_u32 v{t6}, {QB+1024+160}, v{t6}")
    e(f"v_cndmask_b32 v{t6}, v{vDump}, v{t6}, s[72:73]")
    e(f"ds_write_b16 v{t6}, v{vWs}")

    def s_mfma(D, A0, A1, B0, B1):
        e(f"v_mfma_f32_16x16x32_bf16 v[{D}:{D+3}], v[{A0}:{A0+3}], v[{B0}:{B0+3}], 0")
        e(f"v_mfma_f32_16x16x32_bf16 v[{D+4}:{D+7}], v[{A1}:{A1+3}], v[{B0}:{B0+3}], 0")
        e(f"v_mfma_f32_16x16x32_bf16 v[{D+8}:{D+11}], v[{A1}:{A1+3}], v[{B1}:{B1+3}], 0")
        e(f"v_mfma_f32_16x16x32_bf16 v[{D}:{D+3}], v[{B0}:{B0+3}], v[{A0}:{A0+3}], v[{D}:{D+3}]")
        e(f"v_mfma_f32_16x16x32_bf16 v[{D+4}:{D+7}], v[{B1}:{B1+3}], v[{A0}:{A0+3}], v[{D+4}:{D+7}]")
        e(f"v_mfma_f32_16x16x32_bf16 v[{D+8}:{D+11}], v[{B1}:{B1+3}], v[{A1}:{A1+3}], v[{D+8}:{D+11}]")
    def s_out(D, C, SA, k):
        for ci in range(6):
            e(f"v_cvt_pk_bf16_f32 v{C+ci}, v{D+2*ci}, v{D+2*ci+1}")
        for ci in range(6):
            e(f"ds_write_b32 v{SA+ci}, v{C+ci} offset:{k*128}")
    a.c("S1")
    for k in range(4):
        if k == 3:
            e(f"s_cmp_ge_u32 s{sW}, 2"); e("s_cbranch_scc1 L_s1_skip")
        s_mfma(DS[k & 1], W1R+8*k, W1R+8*k+4, I0, I1)
        if k > 0: s_out(DS[(k-1) & 1], CV[(k-1) & 1], SA1, k-1)
        if k == 3:
            a.nop(8); s_out(DS[1], CV[1], SA1, 3); e("s_branch L_s1_done")
    a.label("L_s1_skip")
    a.nop(2); s_out(DS[0], CV[0], SA1, 2)
    a.label("L_s1_done")

    st("s1")
    a.c("Weff")
    e(f"s_waitcnt vmcnt({6+2})")
    e(f"v_mov_b32 v{WA}, 0"); e(f"v_mov_b32 v{WA+1}, 0")
    for hp in range(26):
        sd = 48 + hp//2
        if hp % 2 == 0:
            e(f"s_and_b32 s63, s{sd}, 0xffff"); e(f"s_lshl_b32 s64, s{sd}, 16")
        else:
            e(f"s_lshr_b32 s63, s{sd}, 16"); e(f"s_and_b32 s64, s{sd}, 0xffff0000")
        e(f"v_dot2c_f32_bf16 v{WA}, s63, v{W3R+hp}")
        e(f"v_dot2c_f32_bf16 v{WA+1}, s64, v{W3R+hp}")
    e(f"v_mul_u32_u24 v{t4}, 5042, v0")
    e(f"v_lshrrev_b32 v{t4}, 16, v{t4}")
    e(f"v_mul_u32_u24 v{t5}, 13, v{t4}")
    e(f"v_sub_u32 v{t5}, v0, v{t5}")
    e(f"v_lshlrev_b32 v{t5}, 1, v{t5}")
    e(f"v_lshrrev_b32 v{t6}, 4, v{t5}")
    e(f"v_lshlrev_b32 v{t6}, 10, v{t6}")
    e(f"v_and_b32 v{t5}, 15, v{t5}")
    e(f"v_lshl_add_u32 v{t6}, v{t5}, 4, v{t6}")
    e(f"v_lshrrev_b32 v{t5}, 3, v{t4}")
    e(f"v_lshl_add_u32 v{t6}, v{t5}, 8, v{t6}")
    e(f"v_and_b32 v{t4}, 7, v{t4}")
    e(f"v_lshl_add_u32 v{t6}, v{t4}, 1, v{t6}")
    e(f"v_add_u32 v{t6}, {QB}, v{t6}")
    e(f"v_cmp_gt_u32 vcc, 338, v0")
    e(f"v_cvt_pk_bf16_f32 v{t7}, v{WA}, v{WA+1}")
    e("s_nop 0")
    e(f"v_cndmask_b32 v{t6}, v{vDump}, v{t6}, vcc")
    e(f"ds_write_b16 v{t6}, v{t7}")
    e(f"ds_write_b16_d16_hi v{t6}, v{t7} offset:16")
    st("weff")
    e("s_waitcnt vmcnt(2) lgkmcnt(0)")
    e("s_barrier")
    st("b2")
    sD = 66
    sDB = 67
    sKO = 80
    vPA, vPB = 150, 151
    e(f"s_and_b32 s{sD}, s{sW}, 3")
    e(f"s_lshl_b32 s{sDB}, s{sD}, 13")
    e(f"s_add_u32 s{sDB}, s{sDB}, {RING}")
    e(f"s_mul_i32 s63, s{sD}, 192"); e("s_add_u32 s63, s63, 64")
    e(f"s_cmp_eq_u32 s{sD}, 0")
    e("s_cselect_b32 s63, 0, s63")
    e("s_cselect_b32 s64, 16, 12")
    e(f"s_mov_b32 s81, s63")
    e(f"s_mov_b32 s82, s64")
    e(f"v_mul_u32_u24 v{t4}, 832, v{vG}")
    e(f"v_add_u32 v{t4}, s63, v{t4}")
    e(f"v_lshlrev_b32 v{t5}, 1, v{vG}")
    e(f"v_xor_b32 v{t5}, v{t5}, v{vL15}")
    e(f"v_xor_b32 v{t6}, 8, v{t5}")
    e(f"v_mov_b32 v{t7}, {BIG}")
    e(f"v_cmp_gt_u32 s[72:73], s64, v{t5}")
    e(f"v_cmp_gt_u32 s[74:75], s64, v{t6}")
    e(f"v_lshl_add_u32 v{t5}, v{t5}, 4, v{t4}")
    e(f"v_lshl_add_u32 v{t6}, v{t6}, 4, v{t4}")
    e(f"v_cndmask_b32 v{vPA}, v{t7}, v{t5}, s[72:73]")
    e(f"v_cndmask_b32 v{vPB}, v{t7}, v{t6}, s[74:75]")
    e(f"s_mov_b32 s{sKO}, 0")
    e(f"s_cmp_lt_u32 s{sW}, 4"); e("s_cbranch_scc1 L_noK0")
    def dma_step(s):
        slot = (s + 2) % 3
        for m in range(8):
            e(f"s_add_u32 m0, s{sDB}, {slot*32768 + m*1024}")
            v = vPA if ((m >> 1) & 1) == 0 else vPB
            if m: e(f"s_add_u32 s{sKO}, s{sKO}, 3328")
            else: e("s_nop 0")
            e(f"buffer_load_dwordx4 v{v}, s[{SRD_WD}:{SRD_WD+3}], s{sKO} offen lds")
        e(f"s_add_u32 s{sKO}, s{sKO}, 3328")
    dma_step(0)
    a.label("L_noK0")

    a.c("S2")
    Q0, Q1 = 64, 68
    e(f"v_lshlrev_b32 v{t4}, 4, v{vLane}")
    e(f"v_add_u32 v{t4}, {QB}, v{t4}")
    e(f"ds_read_b128 v[{Q0}:{Q0+3}], v{t4}")
    e(f"ds_read_b128 v[{Q1}:{Q1+3}], v{t4} offset:1024")
    TA = 48
    e(f"v_lshrrev_b32 v{t5}, 2, v{vL15}")
    e(f"v_lshl_add_u32 v{t5}, v{vG}, 3, v{t5}")
    e(f"v_add_u32 v{t6}, 4, v{t5}")
    e(f"v_min_u32 v{t5}, 25, v{t5}")
    e(f"v_min_u32 v{t6}, 25, v{t6}")
    e(f"v_mul_u32_u24 v{t5}, {27*64}, v{t5}")
    e(f"v_mul_u32_u24 v{t6}, {27*64}, v{t6}")
    e(f"s_lshl_b32 s63, s{sW}, 6")
    e(f"s_add_u32 s63, s63, {W2L}")
    e(f"v_add_u32 v{t5}, s63, v{t5}")
    e(f"v_add_u32 v{t6}, s63, v{t6}")
    e(f"v_bfe_u32 v{t7}, v{vL15}, 1, 1")
    e(f"v_and_b32 v{t0}, 1, v{vG}")
    e(f"v_lshlrev_b32 v{t0}, 1, v{t0}")
    e(f"v_xor_b32 v{t1}, v{t7}, v{t0}")
    e(f"v_xor_b32 v{t2}, 2, v{t1}")
    e(f"v_and_b32 v{t3}, 1, v{vL15}")
    e(f"v_lshlrev_b32 v{t3}, 3, v{t3}")
    e(f"v_lshl_add_u32 v{t1}, v{t1}, 4, v{t3}")
    e(f"v_lshl_add_u32 v{t2}, v{t2}, 4, v{t3}")
    e(f"v_add_u32 v{TA}, v{t5}, v{t1}")
    e(f"v_add_u32 v{TA+1}, v{t6}, v{t1}")
    e(f"v_add_u32 v{TA+2}, v{t5}, v{t2}")
    e(f"v_add_u32 v{TA+3}, v{t6}, v{t2}")
    vM = 52
    e(f"v_cmp_gt_u32 vcc, 10, v{vL15}")
    e("s_nop 1")
    e(f"v_cndmask_b32 v{vM}, 0, -1, vcc")
    PS = [32, 40]
    def p_read(P, k):
        e(f"ds_read_b64_tr_b16 v[{P}:{P+1}], v{TA} offset:{k*512}")
        e(f"ds_read_b64_tr_b16 v[{P+2}:{P+3}], v{TA+1} offset:{k*512}")
        e(f"ds_read_b64_tr_b16 v[{P+4}:{P+5}], v{TA+2} offset:{k*512}")
        e(f"ds_read_b64_tr_b16 v[{P+6}:{P+7}], v{TA+3} offset:{k*512}")
    def p_mask(P):
        for j in range(4): e(f"v_and_b32 v{P+4+j}, v{vM}, v{P+4+j}")
    p_read(PS[0], 0)
    for k in range(4):
        if k == 3:
            e(f"s_cmp_ge_u32 s{sW}, 2"); e("s_cbranch_scc1 L_s2_skip")
        e("s_waitcnt lgkmcnt(0)")
        p_mask(PS[k & 1])
        if k < 3: p_read(PS[(k+1) & 1], k+1)
        else: a.nop(2)
        s_mfma(DS[k & 1], PS[k & 1], PS[k & 1]+4, Q0, Q1)
        if k > 0: s_out(DS[(k-1) & 1], CV[(k-1) & 1], SA2, k-1)
        if k == 3:
            a.nop(8); s_out(DS[1], CV[1], SA2, 3); e("s_branch L_s2_done")
    a.label("L_s2_skip")
    a.nop(2); s_out(DS[0], CV[0], SA2, 2)
    a.label("L_s2_done")
    st("s2")
    e(f"s_cmp_lt_u32 s{sW}, 4"); e("s_cbranch_scc1 L_b3c")
    e("s_waitcnt vmcnt(8) lgkmcnt(0)")
    e("s_barrier")
    e("s_branch L_dwave")
    a.label("L_b3c")
    e("s_waitcnt vmcnt(0) lgkmcnt(0)")
    e("s_barrier")
    if dbg == "lds":
        e("s_cmp_eq_u32 s2, 0"); e("s_cbranch_scc0 L_nodump")
        e(f"v_lshlrev_b32 v{t4}, 4, v0")
        for k in range(16):
            e(f"ds_read_b128 v[{t0}:{t3}], v{t4} offset:{k*4096}")
            e("s_waitcnt lgkmcnt(0)")
            e(f"v_add_u32 v{t5}, {k*4096}, v{t4}")
            e(f"global_store_dwordx4 v{t5}, v[{t0}:{t3}], s[98:99]")
            e("s_waitcnt vmcnt(0)")
        a.label("L_nodump")

    a.c("C wave")
    st("b3")
    XA, YA, XB, YB = 8, 34, 47, 73
    D1A, D2A, D1B, D2B = 96, 112, 128, 144
    ZB = [[160, 164], [168, 172]]
    AB = [176, 184, 192]
    TM = [200, 201, 202, 203, 204, 205, 206, 207]
    WI = 208
    vXb, vYb, vFa = 224, 225, 226
    for r in list(range(XA, XA+26))+list(range(YA, YA+13))+list(range(XB, XB+26))+list(range(YB, YB+13)):
        pass
    e(f"v_bfe_u32 v{TM[0]}, v{vLane}, 4, 1")
    e(f"s_lshl_b32 s63, s{sW}, 2")
    e(f"v_add_u32 v{TM[0]}, s63, v{TM[0]}")
    e(f"v_mul_u32_u24 v{TM[0]}, 832, v{TM[0]}")
    e(f"v_lshl_add_u32 v{TM[0]}, v{vL15}, 1, v{TM[0]}")
    e(f"v_add_u32 v{vXb}, {X0}, v{TM[0]}")
    e(f"v_lshrrev_b32 v{TM[1]}, 5, v{vLane}")
    e(f"v_lshl_add_u32 v{vYb}, v{TM[1]}, 5, v{vXb}")
    e(f"v_mul_u32_u24 v{TM[2]}, {HS}, v{TM[1]}")
    e(f"v_and_b32 v{TM[3]}, 31, v{vLane}")
    e(f"v_lshl_add_u32 v{vFa}, v{TM[3]}, 4, v{TM[2]}")
    e(f"v_lshlrev_b32 v{TM[1]}, 4, v{TM[1]}")
    e(f"v_add_u32 v{TM[1]}, {W1F}, v{TM[1]}")
    for m in range(4): e(f"ds_read_b128 v[{WI+4*m}:{WI+4*m+3}], v{TM[1]} offset:{m*32}")
    for r in range(XA, YB+13): e(f"v_mov_b32 v{r}, 0")
    for T, (X, Y) in enumerate(((XA, YA), (XB, YB))):
        for f in range(26): e(f"ds_read_u16_d16_hi v{X+f}, v{vXb} offset:{T*1664 + f*32}")
        for g in range(13): e(f"ds_read_u16_d16_hi v{Y+g}, v{vYb} offset:{T*1664 + g*64}")
        e("s_waitcnt lgkmcnt(0)") if T == 0 else None
    def a_read(t):
        b = AB[t % 3]
        n = 0
        if t <= 22: e(f"ds_read_b128 v[{b}:{b+3}], v{vFa} offset:{F1 + t*FS}"); n += 1
        if t <= 25: e(f"ds_read_b128 v[{b+4}:{b+7}], v{vFa} offset:{F2 + t*FS}"); n += 1
        return n
    blocks = [(g, gp) for g in range(14) for gp in range(min(g, 12)+1)]
    assert len(blocks) == 104
    def zgen(t, T):
        X, Y = ((XA, YA), (XB, YB))[T]
        z = ZB[t & 1][T]
        out = []
        for j in range(4):
            g, gp = blocks[4*t + j]
            ta, tb, th = TM[(2*j) % 8 if T == 0 else (2*j) % 8], TM[(2*j+1) % 8], 228 + T
            if g == 13:
                out.append(f"v_cvt_pk_bf16_f32 v{z+j}, v{Y+gp}, 0")
            else:
                y = Y + gp
                if g == gp:
                    out.append(f"v_mul_f32 v{th}, 0.5, v{Y+gp}"); y = th
                out.append(f"v_mul_f32 v{ta}, v{X+2*g}, v{y}")
                out.append(f"v_mul_f32 v{tb}, v{X+2*g+1}, v{y}")
                out.append(f"v_cvt_pk_bf16_f32 v{z+j}, v{ta}, v{tb}")
        return out
    e("s_waitcnt lgkmcnt(0)")
    st("xld")
    a_read(0); a_read(1)
    for T in range(2):
        for s in zgen(0, T): e(s)
    cnt = {t: (1 if t > 22 else 2) for t in range(26)}
    for t in range(26):
        younger = cnt[t+1] if t+1 <= 25 else 0
        e(f"s_waitcnt lgkmcnt({younger})")
        if t + 2 <= 25: a_read(t + 2)
        b = AB[t % 3]
        mf = []
        for T, (D1, D2) in enumerate(((D1A, D2A), (D1B, D2B))):
            z = ZB[t & 1][T]
            if t <= 22:
                c = "0" if t == 0 else f"v[{D1}:{D1+15}]"
                mf.append(f"v_mfma_f32_32x32x16_bf16 v[{D1}:{D1+15}], v[{b}:{b+3}], v[{z}:{z+3}], {c}")
            c = f"v[{WI}:{WI+15}]" if t == 0 else f"v[{D2}:{D2+15}]"
            mf.append(f"v_mfma_f32_32x32x16_bf16 v[{D2}:{D2+15}], v[{b+4}:{b+7}], v[{z}:{z+3}], {c}")
        va = (zgen(t+1, 0) + zgen(t+1, 1)) if t < 25 else []
        n = len(mf); per = (len(va) + n - 1)//n if va else 0
        if t == 0: a.nop(2)
        vi = 0
        for i, m in enumerate(mf):
            e(m)
            for s in va[vi:vi+per]: e(s)
            vi += per
    a.nop(16)
    st("main")
    for T, (D1, D2) in enumerate(((D1A, D2A), (D1B, D2B))):
        acc = TM[T]
        e(f"v_mul_f32 v{acc}, v{D1}, v{D2}")
    for r in range(1, 14):
        for T, (D1, D2) in enumerate(((D1A, D2A), (D1B, D2B))):
            e(f"v_fmac_f32 v{TM[T]}, v{D1+r}, v{D2+r}")
    for sh in (8, 4, 2, 1):
        a.nop(2)
        for T in range(2):
            e(f"v_add_f32_dpp v{TM[T]}, v{TM[T]}, v{TM[T]} row_ror:{sh} row_mask:0xf bank_mask:0xf")
    e(f"v_bfe_u32 v{TM[2]}, v{vLane}, 4, 1")
    e(f"v_lshlrev_b32 v{TM[2]}, 3, v{TM[2]}")
    e(f"v_lshrrev_b32 v{TM[3]}, 5, v{vLane}")
    e(f"v_lshl_add_u32 v{TM[2]}, v{TM[3]}, 2, v{TM[2]}")
    e(f"s_lshl_b32 s63, s{sW}, 5")
    e(f"s_add_u32 s63, s63, {RED}")
    e(f"v_add_u32 v{TM[2]}, s63, v{TM[2]}")
    e(f"ds_write_b32 v{TM[2]}, v{TM[0]}")
    e(f"ds_write_b32 v{TM[2]}, v{TM[1]} offset:16")
    e("s_branch L_final")

    a.label("L_dwave")
    a.c("D wave")
    st("b3")
    AX = 8
    ACC = 64
    BB = 96
    TRA = 160
    TRA2 = 168
    W2R = 176
    BIAS = 184
    OUT = 192
    GT = 200
    vC0 = 216
    e("s_mov_b32 s68, s14"); e("s_mov_b32 s69, s15"); e("s_mov_b32 s70, 832"); e("s_mov_b32 s71, 0x20000")
    e("s_mov_b32 s72, s16"); e("s_mov_b32 s73, s17"); e("s_mov_b32 s74, 832"); e("s_mov_b32 s75, 0x20000")
    e(f"v_lshlrev_b32 v{GT}, 1, v{vL15}")
    e(f"v_add_u32 v{GT}, s81, v{GT}")
    for tau in range(8):
        e(f"v_mov_b32 v{BIAS+tau}, 0"); e(f"v_mov_b32 v{W2R+tau}, 0")
    e(f"s_cmp_eq_u32 s{sD}, 0"); e(f"s_cselect_b32 s63, 0, {BIG}")
    for tau in range(8):
        so = "0" if tau < 6 else "s63"
        e(f"buffer_load_short_d16_hi v{BIAS+tau}, v{GT}, s[68:71], {so} offen offset:{tau*32}")
        e(f"buffer_load_short_d16_hi v{W2R+tau}, v{GT}, s[72:75], {so} offen offset:{tau*32}")
    dma_step(1); dma_step(2)
    e(f"v_mul_u32_u24 v{GT+1}, 832, v{vL15}")
    e(f"v_lshl_add_u32 v{GT+1}, v{vG}, 4, v{GT+1}")
    e(f"v_add_u32 v{GT+1}, {X0}, v{GT+1}")
    for s in range(13): e(f"ds_read_b128 v[{AX+4*s}:{AX+4*s+3}], v{GT+1} offset:{s*64}")
    e(f"v_lshrrev_b32 v{GT+2}, 2, v{vL15}")
    e(f"v_lshl_add_u32 v{GT+3}, v{vG}, 3, v{GT+2}")
    e(f"v_lshlrev_b32 v{GT+3}, 8, v{GT+3}")
    e(f"v_and_b32 v{GT+4}, 3, v{vL15}")
    e(f"v_lshl_add_u32 v{GT+3}, v{GT+4}, 3, v{GT+3}")
    e(f"v_add_u32 v{GT+3}, s{sDB}, v{GT+3}")
    e(f"v_and_b32 v{GT+4}, 1, v{vG}")
    e(f"v_lshl_add_u32 v{GT+2}, v{GT+4}, 2, v{GT+2}")
    for tau in range(8):
        e(f"v_xor_b32 v{GT+4}, {tau}, v{GT+2}")
        e(f"v_lshl_add_u32 v{TRA+tau}, v{GT+4}, 5, v{GT+3}")
        e(f"v_add_u32 v{TRA2+tau}, 0x10000, v{TRA+tau}")
    e(f"s_waitcnt vmcnt(16)")
    for tau in range(8):
        for r in range(4): e(f"v_mov_b32 v{ACC+4*tau+r}, v{BIAS+tau}")
    st("xld")
    e(f"s_cmp_eq_u32 s{sD}, 0")
    e("s_cselect_b32 s83, 1, 0")
    for s in range(13):
        slot = (s + 2) % 3
        nout = 16 if s <= 10 else (8 if s == 11 else 0)
        e(f"s_waitcnt vmcnt({nout})")
        def rd(tau):
            v = (TRA2 if slot == 2 else TRA) + tau
            o = 32768 if slot == 1 else 0
            e(f"ds_read_b64_tr_b16 v[{BB+4*tau}:{BB+4*tau+1}], v{v} offset:{o}")
            e(f"ds_read_b64_tr_b16 v[{BB+4*tau+2}:{BB+4*tau+3}], v{v} offset:{o+1024}")
        for tau in range(6): rd(tau)
        e("s_cmp_eq_u32 s83, 0"); e(f"s_cbranch_scc1 L_d{s}a")
        rd(6); rd(7)
        a.label(f"L_d{s}a")
        e("s_waitcnt lgkmcnt(0)")
        if s + 3 <= 12: dma_step(s + 3)
        for tau in range(6):
            e(f"v_mfma_f32_16x16x32_bf16 v[{ACC+4*tau}:{ACC+4*tau+3}], v[{AX+4*s}:{AX+4*s+3}], v[{BB+4*tau}:{BB+4*tau+3}], v[{ACC+4*tau}:{ACC+4*tau+3}]")
        e("s_cmp_eq_u32 s83, 0"); e(f"s_cbranch_scc1 L_d{s}b")
        for tau in (6, 7):
            e(f"v_mfma_f32_16x16x32_bf16 v[{ACC+4*tau}:{ACC+4*tau+3}], v[{AX+4*s}:{AX+4*s+3}], v[{BB+4*tau}:{BB+4*tau+3}], v[{ACC+4*tau}:{ACC+4*tau+3}]")
        a.label(f"L_d{s}b")
    st("main")
    C0 = -2.0*0.7978845608028654*1.4426950408889634
    C1 = C0*0.044715
    e(f"v_mov_b32 v{vC0}, 0x{f32bits(C0):08x}")
    for r in range(4): e(f"v_mov_b32 v{OUT+r}, 0")
    a.nop(8)
    def gelu(tau):
        x = ACC + 4*tau
        U, E, Yv = GT, GT+4, GT+8
        for r in range(4): e(f"v_mul_f32 v{U+r}, v{x+r}, v{x+r}")
        for r in range(4): e(f"v_fmamk_f32 v{U+r}, v{U+r}, 0x{f32bits(C1):08x}, v{vC0}")
        for r in range(4): e(f"v_mul_f32 v{U+r}, v{x+r}, v{U+r}")
        for r in range(4): e(f"v_exp_f32 v{E+r}, v{U+r}")
        for r in range(4): e(f"v_mul_f32 v{Yv+r}, v{x+r}, v{W2R+tau}")
        for r in range(4): e(f"v_add_f32 v{E+r}, 1.0, v{E+r}")
        for r in range(4): e(f"v_rcp_f32 v{E+r}, v{E+r}")
        e("s_nop 0")
        for r in range(4): e(f"v_fmac_f32 v{OUT+r}, v{Yv+r}, v{E+r}")
    for tau in range(6): gelu(tau)
    e("s_cmp_eq_u32 s83, 0"); e("s_cbranch_scc1 L_dg")
    gelu(6); gelu(7)
    a.label("L_dg")
    st("gelu")
    for sh in (8, 4, 2, 1):
        a.nop(2)
        for r in range(4):
            e(f"v_add_f32_dpp v{OUT+r}, v{OUT+r}, v{OUT+r} row_ror:{sh} row_mask:0xf bank_mask:0xf")
    e(f"s_lshl_b32 s63, s{sD}, 6")
    e(f"s_add_u32 s63, s63, {RED2}")
    e(f"v_lshlrev_b32 v{GT}, 4, v{vG}")
    e(f"v_add_u32 v{GT}, s63, v{GT}")
    e(f"ds_write_b128 v{GT}, v[{OUT}:{OUT+3}]")

    a.label("L_final")
    e("s_waitcnt lgkmcnt(0)")
    e("s_barrier")
    st("fin")
    if stamp is not None:
        wg, wv = [int(x) for x in stamp.split("_")]
        e(f"s_cmp_eq_u32 s2, {wg}"); e("s_cbranch_scc0 L_nost")
        e(f"s_cmp_eq_u32 s{sW}, {wv}"); e("s_cbranch_scc0 L_nost")
        e(f"v_lshlrev_b32 v30, 2, v{vLane}")
        e("s_mov_b64 exec, 0xffff")
        e(f"global_store_dword v30, v{vSt}, s[96:97]")
        e("s_mov_b64 exec, -1")
        a.label("L_nost")
    e(f"s_cmp_eq_u32 s{sW}, 0"); e("s_cbranch_scc0 L_end")
    e(f"v_lshlrev_b32 v8, 3, v{vL15}")
    e(f"v_add_u32 v8, {RED}, v8")
    e(f"v_lshlrev_b32 v9, 2, v{vL15}")
    e(f"v_add_u32 v9, {RED2}, v9")
    e("ds_read_b64 v[10:11], v8")
    for d in range(4): e(f"ds_read_b32 v{12+d}, v9 offset:{d*64}")
    e("s_lshl_b32 s47, s47, 16")
    e("s_mov_b32 s68, s20"); e("s_mov_b32 s69, s21"); e("s_mov_b32 s70, 8192"); e("s_mov_b32 s71, 0x20000")
    e("s_lshl_b32 s63, s2, 5")
    e(f"v_lshlrev_b32 v16, 1, v{vL15}")
    e("s_waitcnt lgkmcnt(0)")
    e("v_add_f32 v10, v10, v11")
    e("v_add_f32 v12, v12, v13")
    e("v_add_f32 v14, v14, v15")
    e("v_add_f32 v12, v12, v14")
    e("v_add_f32 v10, v10, v12")
    e("v_add_f32 v10, s47, v10")
    e("v_cvt_pk_bf16_f32 v10, v10, v10")
    e("s_mov_b64 exec, 0xffff")
    e("buffer_store_short v10, v16, s[68:71], s63 offen")
    a.label("L_end")
    e("s_endpgm")
    a.label("CODE_END")
    return a

HEADER = """; xDeepFM (CIN + DNN) fused kernel for gfx950 -- generated by my own script
; @launch grid=(256,1,1) block=(512,1,1) lds=163840
.amdgcn_target "amdgcn-amd-amdhsa--gfx950"
.text
.globl {k}
.p2align 8
.type {k},@function
"""
FOOTER = """
.section .rodata,"a"
.p2align 6
.amdhsa_kernel {k}
  .amdhsa_next_free_vgpr {nv}
  .amdhsa_next_free_sgpr 102
  .amdhsa_accum_offset {nv}
  .amdhsa_group_segment_fixed_size 0
  .amdhsa_kernarg_size 88
  .amdhsa_user_sgpr_count 2
  .amdhsa_user_sgpr_kernarg_segment_ptr 1
  .amdhsa_system_sgpr_workgroup_id_x 1
.end_amdhsa_kernel
"""
if __name__ == "__main__":
    opts = dict(x.split("=") for x in sys.argv[2:])
    a = gen(opts)
    body = a.text()
    probs = check_hazards(body)
    for p in probs: print("HAZARD:", p, file=sys.stderr)
    open(sys.argv[1], "w").write(HEADER.format(k=KNAME) + body + FOOTER.format(k=KNAME, nv=232))
    print("written", sys.argv[1], "hazards:", len(probs), file=sys.stderr)
```

```python
import sys, struct
from asmlib import Asm, check_hazards

KNAME = "standalone__deep_cross_xdeepfm__recsys_kernel"
FS, HS = 1040, 528
F1 = 0; NF1 = 23
F2 = F1 + NF1*FS; NF2 = 26
X0 = F2 + NF2*FS
W1F = X0 + 13312
RED = W1F + 128
RED2 = RED + 128
RING = RED2 + 256
SLOT = 26624
W2L = RING + 2*SLOT
QB = W2L + 43264
DUMP = QB + 2048
LDS_BYTES = 163840
assert DUMP + 496 <= LDS_BYTES and RING % 16 == 0
BIG = 0x10000000
def f32bits(x): return struct.unpack("<I", struct.pack("<f", x))[0]

def gen(opts):
    a = Asm(); e = a.e
    dbg = opts.get("dbg"); stamp = opts.get("stamp"); pf = opts.get("pf", "160")
    sW = 22
    SRD_IDX, SRD_TAB, SRD_WS, SRD_WD, SRD_T = 24, 28, 32, 36, 40
    def srd(base, ptr, nbytes):
        e(f"s_mov_b32 s{base}, s{ptr}"); e(f"s_mov_b32 s{base+1}, s{ptr+1}")
        e(f"s_mov_b32 s{base+2}, {nbytes}"); e(f"s_mov_b32 s{base+3}, 0x20000")
    vLane, vL15, vG = 1, 2, 3
    t0, t1, t2, t3, t4, t5, t6, t7 = 8, 9, 10, 11, 12, 13, 14, 15
    vSt = 231
    STI = dict(karg=0, issued=1, b1=2, idx=3, w1=4, s1=5, weff=6, b2=7, s2=8, b3=9, xld=10, main=11, gelu=12, fin=13)
    def st(name):
        if stamp is None: return
        e("s_memtime s[84:85]"); e("s_waitcnt lgkmcnt(0)")
        if name == "entry":
            e("s_mov_b32 s86, s84"); e(f"v_mov_b32 v{vSt}, 0")
        else:
            e("s_sub_u32 s84, s84, s86"); e(f"v_writelane_b32 v{vSt}, s84, {STI[name]}")

    a.label(KNAME)
    st("entry")
    e("s_cmp_ge_u32 s2, 256")
    e("s_cbranch_scc1 L_end")
    e("s_load_dwordx16 s[4:19], s[0:1], 0")
    e("s_load_dwordx2 s[20:21], s[0:1], 64")
    if dbg or stamp: e("s_load_dwordx4 s[96:99], s[0:1], 72")
    if pf != "0":
        e("s_getpc_b64 s[88:89]")
        e("v_lshlrev_b32 v28, 7, v0")
        e(f"v_min_u32 v28, CODE_END-{KNAME}-256, v28")
        e("v_mov_b32 v29, s89")
        e("v_add_co_u32 v28, vcc, s88, v28")
        e("s_nop 1")
        e("v_addc_co_u32 v29, vcc, 0, v29, vcc")
        e(f"s_movk_i32 s90, {int(pf)}")
        e("v_cmp_gt_u32 vcc, s90, v0")
        e("s_nop 0")
        e("s_and_saveexec_b64 s[92:93], vcc")
        e("s_cbranch_execz L_nopf")
        e("global_load_dword v30, v[28:29], off")
        a.label("L_nopf")
        e("s_mov_b64 exec, -1")
    e(f"v_lshrrev_b32 v{t4}, 6, v0")
    e(f"v_and_b32 v{vLane}, 63, v0")
    e(f"v_and_b32 v{vL15}, 15, v0")
    e(f"v_readfirstlane_b32 s{sW}, v{t4}")
    e(f"v_bfe_u32 v{vG}, v0, 4, 2")
    e(f"v_lshrrev_b32 v{t6}, 1, v{vLane}")
    e(f"v_lshlrev_b32 v{t6}, 2, v{t6}")
    e(f"s_lshl_b32 s23, s2, 4")
    e(f"s_and_b32 s66, s{sW}, 3")
    e(f"s_lshl_b32 s61, s66, 2")
    e(f"s_add_u32 s23, s23, s61")
    e(f"s_mul_i32 s61, s23, 104")
    for r in (t0, t1, t2, t3): e(f"v_mov_b32 v{r}, 0")
    e(f"v_lshlrev_b32 v{t4}, 4, v0")
    for k in range(7): e(f"ds_write_b128 v{t4}, v[{t0}:{t3}] offset:{k*8192}")
    e(f"v_and_b32 v{t5}, 127, v0")
    e(f"v_lshlrev_b32 v{t5}, 4, v{t5}")
    e(f"v_add_u32 v{t5}, {QB}, v{t5}")
    e(f"ds_write_b128 v{t5}, v[{t0}:{t3}]")
    e("s_waitcnt lgkmcnt(0)")
    e("s_barrier")
    st("karg")
    e(f"s_cmp_lt_u32 s{sW}, 4"); e("s_cbranch_scc1 L_touch0")
    vIdx = 4
    srd(SRD_IDX, 4, 4096*26*4)
    for k in range(4):
        e(f"buffer_load_dword v{vIdx+k}, v{t6}, s[{SRD_IDX}:{SRD_IDX+3}], s61 offen offset:{104*k}")
    a.label("L_touch0")
    e("s_lshr_b32 s62, s2, 3"); e("s_and_b32 s62, s62, 31")
    e(f"v_lshlrev_b32 v{t5}, 7, v{vLane}")
    e(f"s_mov_b32 s{SRD_T}, s12"); e(f"s_mov_b32 s{SRD_T+1}, s13"); e(f"s_mov_b32 s{SRD_T+3}, 0x20000")
    e("s_mul_i32 s63, s62, 10880"); e("s_add_u32 s64, s63, 10880"); e("s_min_u32 s64, s64, 346112")
    e(f"s_mov_b32 s{SRD_T+2}, s64")
    e(f"s_cmp_eq_u32 s{sW}, 0"); e("s_cbranch_scc1 L_touch")
    e("s_add_u32 s63, s63, 8192")
    e(f"s_cmp_eq_u32 s{sW}, 1"); e("s_cbranch_scc1 L_touch")
    e(f"s_mov_b32 s{SRD_T}, s8"); e(f"s_mov_b32 s{SRD_T+1}, s9")
    e("s_mul_i32 s63, s62, 3328"); e("s_add_u32 s64, s63, 3328"); e("s_min_u32 s64, s64, 105456")
    e(f"s_mov_b32 s{SRD_T+2}, s64")
    e(f"s_cmp_eq_u32 s{sW}, 2"); e("s_cbranch_scc1 L_touch")
    e("s_mov_b32 s63, 0")
    e(f"s_mov_b32 s{SRD_T}, s14"); e(f"s_mov_b32 s{SRD_T+1}, s15"); e(f"s_mov_b32 s{SRD_T+2}, 832")
    e(f"s_cmp_eq_u32 s{sW}, 3"); e("s_cbranch_scc1 L_touch")
    e(f"s_mov_b32 s{SRD_T}, s16"); e(f"s_mov_b32 s{SRD_T+1}, s17")
    e(f"s_cmp_eq_u32 s{sW}, 5"); e("s_cbranch_scc1 L_touch")
    e(f"s_mov_b32 s{SRD_T}, s6"); e(f"s_mov_b32 s{SRD_T+1}, s7"); e(f"s_mov_b32 s{SRD_T+2}, 3200000")
    e(f"v_lshlrev_b32 v{t5}, 16, v{vLane}")
    a.label("L_touch")
    e(f"buffer_load_dword v31, v{t5}, s[{SRD_T}:{SRD_T+3}], s63 offen")
    e(f"s_cmp_lt_u32 s{sW}, 4"); e("s_cbranch_scc0 L_D")

    sC = 66
    W1R, W3R = 32, 88
    I0, I1 = 140, 144
    SA1, SA2 = 148, 154
    DS = [160, 172]; CV = [184, 190]; WA = 196
    vDump, vWs = 24, 25
    srd(SRD_WS, 8, 105456)
    e("s_mov_b32 s68, s10"); e("s_mov_b32 s69, s11"); e("s_mov_b32 s70, 156"); e("s_mov_b32 s71, 0x20000")
    e(f"v_lshlrev_b32 v{t6}, 1, v{vLane}")
    e(f"buffer_load_ushort v{vWs}, v{t6}, s[68:71], 0 offen")
    e(f"v_mul_u32_u24 v{t7}, 52, v{vL15}")
    e(f"v_lshl_add_u32 v{t7}, v{vG}, 4, v{t7}")
    e(f"s_mul_i32 s63, s{sC}, 1352")
    for k in range(7):
        if k == 6:
            e(f"s_cmp_lt_u32 s{sC}, 2"); e(f"s_cselect_b32 s63, s63, {BIG}")
        e(f"buffer_load_dwordx4 v[{W1R+8*k}:{W1R+8*k+3}], v{t7}, s[{SRD_WS}:{SRD_WS+3}], s63 offen")
        e(f"buffer_load_dwordx4 v[{W1R+8*k+4}:{W1R+8*k+7}], v{t7}, s[{SRD_WS}:{SRD_WS+3}], s63 offen offset:832")
        if k < 6: e(f"s_add_u32 s63, s63, {4*1352}")
    vE4 = 26
    e(f"s_mul_i32 s63, s{sC}, 43")
    e(f"v_add_u32 v{vE4}, s63, v{vLane}")
    e(f"v_cmp_gt_u32 s[72:73], 43, v{vLane}")
    e("s_movk_i32 s64, 169")
    e(f"v_cmp_gt_u32 s[74:75], s64, v{vE4}")
    e(f"v_lshlrev_b32 v{t5}, 3, v{vE4}")
    e(f"v_mov_b32 v{t6}, {BIG}")
    e("s_and_b64 s[76:77], s[72:73], s[74:75]")
    e(f"s_mov_b32 s63, {2*35152}")
    e(f"v_cndmask_b32 v{t5}, v{t6}, v{t5}, s[76:77]")
    for hp in range(26):
        e(f"buffer_load_dwordx2 v[{W3R+2*hp}:{W3R+2*hp+1}], v{t5}, s[{SRD_WS}:{SRD_WS+3}], s63 offen")
        if hp < 25: e("s_add_u32 s63, s63, 1352")
    e("s_load_dwordx8 s[48:55], s[10:11], 104")
    e("s_load_dwordx4 s[56:59], s[10:11], 136")
    e("s_load_dword s60, s[10:11], 152")
    e("s_load_dword s47, s[18:19], 0")
    e(f"v_lshrrev_b32 v{t4}, 2, v{vLane}")
    e(f"s_lshl_b32 s63, s{sC}, 4")
    e(f"v_add_u32 v{t4}, s63, v{t4}")
    e(f"v_and_b32 v{t6}, 3, v{vLane}")
    e(f"s_lshl_b32 s64, s{sC}, 10")
    e(f"s_add_u32 s64, s64, {W2L}")
    e("s_mov_b32 s65, 0")
    e("s_mov_b32 s63, 35152")
    a.label("L_w2")
    e(f"v_mul_u32_u24 v{t7}, 2521, v{t4}")
    e(f"v_lshrrev_b32 v{t7}, 16, v{t7}")
    e(f"v_mul_u32_u24 v{t5}, 26, v{t7}")
    e(f"v_sub_u32 v{t0}, v{t4}, v{t5}")
    e(f"v_bfe_u32 v{t1}, v{t7}, 1, 1")
    e(f"v_xor_b32 v{t0}, v{t0}, v{t1}")
    e(f"v_add_u32 v{t0}, v{t0}, v{t5}")
    e(f"v_mul_u32_u24 v{t0}, 52, v{t0}")
    e(f"v_lshrrev_b32 v{t7}, 2, v{t7}")
    e(f"v_and_b32 v{t7}, 2, v{t7}")
    e(f"v_xor_b32 v{t7}, v{t7}, v{t6}")
    e(f"v_lshl_add_u32 v{t0}, v{t7}, 4, v{t0}")
    e("s_cmp_lt_u32 s65, 10"); e("s_cbranch_scc1 L_w2go")
    e(f"s_cmp_lt_u32 s{sC}, 2"); e("s_cbranch_scc1 L_w2go")
    e("s_mov_b64 exec, 0xffff")
    e(f"s_cmp_eq_u32 s{sC}, 2"); e("s_cbranch_scc1 L_w2go")
    e(f"s_mov_b32 s63, {BIG}"); e(f"s_mov_b32 s64, {DUMP}")
    a.label("L_w2go")
    e("s_mov_b32 m0, s64")
    e(f"v_add_u32 v{t4}, 64, v{t4}")
    e(f"buffer_load_dwordx4 v{t0}, s[{SRD_WS}:{SRD_WS+3}], s63 offen lds")
    e("s_add_u32 s64, s64, 4096")
    e("s_add_u32 s65, s65, 1")
    e("s_cmp_lt_u32 s65, 11"); e("s_cbranch_scc1 L_w2")
    e("s_mov_b64 exec, -1")
    st("issued")
    e(f"v_lshlrev_b32 v{vDump}, 2, v{vL15}")
    e(f"v_add_u32 v{vDump}, {DUMP}, v{vDump}")
    for aa, I in ((0, I0), (1, I1)):
        e(f"v_lshlrev_b32 v{t4}, 3, v{vG}")
        e(f"v_sub_u32 v{t4}, v{vL15}, v{t4}")
        if aa: e(f"v_add_u32 v{t4}, 16, v{t4}")
        e(f"v_and_b32 v{t5}, 1, v{t4}")
        e(f"v_lshlrev_b32 v{t5}, 4, v{t5}")
        e(f"v_mov_b32 v{t6}, 0x3f80")
        e(f"v_lshlrev_b32 v{t5}, v{t5}, v{t6}")
        e(f"v_ashrrev_i32 v{t4}, 1, v{t4}")
        for j in range(4): e(f"v_cmp_eq_u32 s[{72+8}:{73+8}], {j}, v{t4}".replace("s[80:81]", f"s[{88+2*j}:{89+2*j}]"))
        e("s_nop 1")
        for j in range(4): e(f"v_cndmask_b32 v{I+j}, 0, v{t5}, s[{88+2*j}:{89+2*j}]")
    combos = [(0,0,0),(0,0,1),(1,0,0),(1,0,1),(1,1,0),(1,1,1)]
    e(f"v_and_b32 v{t4}, 1, v{vL15}")
    e(f"v_mul_u32_u24 v{t4}, {HS}, v{t4}")
    e(f"s_lshl_b32 s63, s{sC}, 4")
    e(f"v_add_u32 v{t4}, s63, v{t4}")
    for ci, (aa, bb, pp) in enumerate(combos):
        g, gp, q, off = t5, t6, t7, t0
        e(f"v_lshlrev_b32 v{g}, 1, v{vG}")
        if 8*aa+pp: e(f"v_add_u32 v{g}, {8*aa+pp}, v{g}")
        e(f"v_lshrrev_b32 v{gp}, 1, v{vL15}")
        if bb: e(f"v_add_u32 v{gp}, 8, v{gp}")
        e(f"v_mad_u32_u24 v{q}, v{g}, v{g}, v{g}")
        e(f"v_lshrrev_b32 v{q}, 1, v{q}")
        e(f"v_add_u32 v{q}, v{q}, v{gp}")
        e(f"v_and_b32 v{off}, 0x7c, v{q}")
        e(f"v_lshlrev_b32 v{off}, 8, v{off}")
        e(f"v_lshl_add_u32 v{off}, v{q}, 2, v{off}")
        e(f"v_add_u32 v{off}, v{off}, v{t4}")
        e(f"v_cmp_le_u32 s[88:89], v{gp}, v{g}")
        e(f"v_cmp_gt_u32 s[90:91], 13, v{g}")
        e(f"v_cmp_gt_u32 s[92:93], 14, v{g}")
        e(f"v_cmp_gt_u32 s[94:95], 13, v{gp}")
        e(f"v_add_u32 v{t1}, {F2}, v{off}")
        e("s_and_b64 s[90:91], s[90:91], s[88:89]")
        e("s_and_b64 s[92:93], s[92:93], s[88:89]")
        e("s_and_b64 s[92:93], s[92:93], s[94:95]")
        e(f"v_cndmask_b32 v{SA1+ci}, v{vDump}, v{off}, s[90:91]")
        e(f"v_cndmask_b32 v{SA2+ci}, v{vDump}, v{t1}, s[92:93]")
    e("s_waitcnt lgkmcnt(0)")
    st("b1")
    NW3, NW2 = 26, 11
    e(f"s_waitcnt vmcnt({NW3+NW2+12})")
    st("w1")
    e(f"v_lshlrev_b32 v{t5}, 16, v{vWs}")
    e(f"v_cmp_gt_u32 s[88:89], 26, v{vLane}")
    e(f"v_cmp_gt_u32 s[90:91], 32, v{vLane}")
    e(f"v_lshlrev_b32 v{t6}, 2, v{vLane}")
    e(f"v_add_u32 v{t6}, {W1F}, v{t6}")
    e(f"v_cndmask_b32 v{t5}, 0, v{t5}, s[88:89]")
    e(f"v_cndmask_b32 v{t6}, v{vDump}, v{t6}, s[90:91]")
    e(f"ds_write_b32 v{t6}, v{t5}")
    e(f"v_subrev_u32 v{t5}, 26, v{vLane}")
    e(f"v_cmp_gt_u32 s[88:89], 26, v{t5}")
    e(f"v_lshrrev_b32 v{t6}, 3, v{t5}")
    e(f"v_lshlrev_b32 v{t6}, 8, v{t6}")
    e(f"v_and_b32 v{t7}, 7, v{t5}")
    e(f"v_lshl_add_u32 v{t6}, v{t7}, 1, v{t6}")
    e(f"v_add_u32 v{t6}, {QB+1024+160}, v{t6}")
    e(f"v_cndmask_b32 v{t6}, v{vDump}, v{t6}, s[88:89]")
    e(f"ds_write_b16 v{t6}, v{vWs}")
    def s_mfma(D, A0, A1, B0, B1):
        e(f"v_mfma_f32_16x16x32_bf16 v[{D}:{D+3}], v[{A0}:{A0+3}], v[{B0}:{B0+3}], 0")
        e(f"v_mfma_f32_16x16x32_bf16 v[{D+4}:{D+7}], v[{A1}:{A1+3}], v[{B0}:{B0+3}], 0")
        e(f"v_mfma_f32_16x16x32_bf16 v[{D+8}:{D+11}], v[{A1}:{A1+3}], v[{B1}:{B1+3}], 0")
        e(f"v_mfma_f32_16x16x32_bf16 v[{D}:{D+3}], v[{B0}:{B0+3}], v[{A0}:{A0+3}], v[{D}:{D+3}]")
        e(f"v_mfma_f32_16x16x32_bf16 v[{D+4}:{D+7}], v[{B1}:{B1+3}], v[{A0}:{A0+3}], v[{D+4}:{D+7}]")
        e(f"v_mfma_f32_16x16x32_bf16 v[{D+8}:{D+11}], v[{B1}:{B1+3}], v[{A1}:{A1+3}], v[{D+8}:{D+11}]")
    def s_out(D, C, SA, k):
        for ci in range(6): e(f"v_cvt_pk_bf16_f32 v{C+ci}, v{D+2*ci}, v{D+2*ci+1}")
        for ci in range(6): e(f"ds_write_b32 v{SA+ci}, v{C+ci} offset:{k*64}")
    a.c("S1")
    for k in range(7):
        if k == 6:
            e(f"s_cmp_ge_u32 s{sC}, 2"); e("s_cbranch_scc1 L_s1_skip")
        if k > 0: e(f"s_waitcnt vmcnt({NW3+NW2+2*(6-k)})")
        s_mfma(DS[k & 1], W1R+8*k, W1R+8*k+4, I0, I1)
        if k > 0: s_out(DS[(k-1) & 1], CV[(k-1) & 1], SA1, k-1)
        if k == 6:
            a.nop(8); s_out(DS[0], CV[0], SA1, 6); e("s_branch L_s1_done")
    a.label("L_s1_skip")
    a.nop(2); s_out(DS[1], CV[1], SA1, 5)
    a.label("L_s1_done")
    st("s1")
    a.c("Weff")
    e(f"s_waitcnt vmcnt({NW2})")
    for j in range(4): e(f"v_mov_b32 v{WA+j}, 0")
    for hp in range(26):
        sd = 48 + hp//2
        if hp % 2 == 0:
            e(f"s_and_b32 s63, s{sd}, 0xffff"); e(f"s_lshl_b32 s64, s{sd}, 16")
        else:
            e(f"s_lshr_b32 s63, s{sd}, 16"); e(f"s_and_b32 s64, s{sd}, 0xffff0000")
        e(f"v_dot2c_f32_bf16 v{WA}, s63, v{W3R+2*hp}")
        e(f"v_dot2c_f32_bf16 v{WA+1}, s64, v{W3R+2*hp}")
        e(f"v_dot2c_f32_bf16 v{WA+2}, s63, v{W3R+2*hp+1}")
        e(f"v_dot2c_f32_bf16 v{WA+3}, s64, v{W3R+2*hp+1}")
    for j in range(2):
        m = t3
        e(f"v_lshlrev_b32 v{m}, 1, v{vE4}")
        if j: e(f"v_add_u32 v{m}, 1, v{m}")
        e(f"v_mul_u32_u24 v{t4}, 5042, v{m}")
        e(f"v_lshrrev_b32 v{t4}, 16, v{t4}")
        e(f"v_mul_u32_u24 v{t5}, 13, v{t4}")
        e(f"v_sub_u32 v{t5}, v{m}, v{t5}")
        e(f"v_lshlrev_b32 v{t5}, 1, v{t5}")
        e(f"v_lshrrev_b32 v{t6}, 4, v{t5}")
        e(f"v_lshlrev_b32 v{t6}, 10, v{t6}")
        e(f"v_and_b32 v{t5}, 15, v{t5}")
        e(f"v_lshl_add_u32 v{t6}, v{t5}, 4, v{t6}")
        e(f"v_lshrrev_b32 v{t5}, 3, v{t4}")
        e(f"v_lshl_add_u32 v{t6}, v{t5}, 8, v{t6}")
        e(f"v_and_b32 v{t4}, 7, v{t4}")
        e(f"v_lshl_add_u32 v{t6}, v{t4}, 1, v{t6}")
        e(f"v_add_u32 v{t6}, {QB}, v{t6}")
        e(f"v_cvt_pk_bf16_f32 v{t7}, v{WA+2*j}, v{WA+2*j+1}")
        e(f"v_cndmask_b32 v{t6}, v{vDump}, v{t6}, s[76:77]")
        e(f"ds_write_b16 v{t6}, v{t7}")
        e(f"ds_write_b16_d16_hi v{t6}, v{t7} offset:16")
    st("weff")
    e("s_waitcnt vmcnt(0) lgkmcnt(0)")
    e("s_barrier")
    st("b2")
    a.c("S2")
    Q0, Q1 = 140, 144
    e(f"v_lshlrev_b32 v{t4}, 4, v{vLane}")
    e(f"v_add_u32 v{t4}, {QB}, v{t4}")
    e(f"ds_read_b128 v[{Q0}:{Q0+3}], v{t4}")
    e(f"ds_read_b128 v[{Q1}:{Q1+3}], v{t4} offset:1024")
    TA = 48
    e(f"v_lshrrev_b32 v{t5}, 2, v{vL15}")
    e(f"v_lshl_add_u32 v{t5}, v{vG}, 3, v{t5}")
    e(f"v_add_u32 v{t6}, 4, v{t5}")
    e(f"v_min_u32 v{t5}, 25, v{t5}")
    e(f"v_min_u32 v{t6}, 25, v{t6}")
    e(f"s_and_b32 s63, s{sC}, 1")
    e("s_lshl_b32 s63, s63, 7"); e("s_sub_u32 s63, 64, s63")
    e(f"s_lshl_b32 s64, s{sC}, 6"); e(f"s_add_u32 s64, s64, {W2L}")
    for h in (t5, t6):
        e(f"v_bfe_u32 v{t7}, v{h}, 1, 1")
        e(f"v_mul_i32_i24 v{t7}, s63, v{t7}")
        e(f"v_mul_u32_u24 v{h}, {26*64}, v{h}")
        e(f"v_add3_u32 v{h}, v{h}, v{t7}, s64")
    e(f"v_bfe_u32 v{t7}, v{vL15}, 1, 1")
    e(f"v_and_b32 v{t0}, 1, v{vG}")
    e(f"v_lshlrev_b32 v{t0}, 1, v{t0}")
    e(f"v_xor_b32 v{t1}, v{t7}, v{t0}")
    e(f"v_xor_b32 v{t2}, 2, v{t1}")
    e(f"v_and_b32 v{t3}, 1, v{vL15}")
    e(f"v_lshlrev_b32 v{t3}, 3, v{t3}")
    e(f"v_lshl_add_u32 v{t1}, v{t1}, 4, v{t3}")
    e(f"v_lshl_add_u32 v{t2}, v{t2}, 4, v{t3}")
    e(f"v_add_u32 v{TA}, v{t5}, v{t1}")
    e(f"v_add_u32 v{TA+1}, v{t6}, v{t1}")
    e(f"v_add_u32 v{TA+2}, v{t5}, v{t2}")
    e(f"v_add_u32 v{TA+3}, v{t6}, v{t2}")
    vM = 52
    e(f"v_cmp_gt_u32 vcc, 10, v{vL15}")
    e("s_nop 1")
    e(f"v_cndmask_b32 v{vM}, 0, -1, vcc")
    PS = [32, 40]
    def p_read(P, k):
        for j in range(4): e(f"ds_read_b64_tr_b16 v[{P+2*j}:{P+2*j+1}], v{TA+j} offset:{k*256}")
    p_read(PS[0], 0)
    for k in range(7):
        if k == 6:
            e(f"s_cmp_ge_u32 s{sC}, 2"); e("s_cbranch_scc1 L_s2_skip")
        e(f"s_waitcnt lgkmcnt({0 if k < 2 else 6})")
        for j in range(4): e(f"v_and_b32 v{PS[k&1]+4+j}, v{vM}, v{PS[k&1]+4+j}")
        if k < 6: p_read(PS[(k+1) & 1], k+1)
        else: a.nop(2)
        s_mfma(DS[k & 1], PS[k & 1], PS[k & 1]+4, Q0, Q1)
        if k > 0: s_out(DS[(k-1) & 1], CV[(k-1) & 1], SA2, k-1)
        if k == 6:
            a.nop(8); s_out(DS[0], CV[0], SA2, 6); e("s_branch L_s2_done")
    a.label("L_s2_skip")
    a.nop(2); s_out(DS[1], CV[1], SA2, 5)
    a.label("L_s2_done")
    st("s2")
    e("s_waitcnt lgkmcnt(0)")
    e("s_barrier")
    st("b3")
    if dbg == "lds":
        e("s_cmp_eq_u32 s2, 0"); e("s_cbranch_scc0 L_nodump")
        e(f"v_lshlrev_b32 v{t4}, 4, v0")
        for k in range(16):
            e(f"ds_read_b128 v[{t0}:{t3}], v{t4} offset:{k*4096}")
            e("s_waitcnt lgkmcnt(0)")
            e(f"v_add_u32 v{t5}, {k*4096}, v{t4}")
            e(f"global_store_dwordx4 v{t5}, v[{t0}:{t3}], s[98:99]")
            e("s_waitcnt vmcnt(0)")
        a.label("L_nodump")
    a.c("C main")
    XA, YA, XB, YB = 8, 34, 47, 73
    D1A, D2A, D1B, D2B = 96, 112, 128, 144
    ZB = [[160, 164], [168, 172]]
    AB = [176, 184, 192]
    TM = [200, 201, 202, 203, 204, 205, 206, 207]
    WI = 208
    vXb, vFa = 224, 226
    PK = 176
    e(f"v_and_b32 v{TM[4]}, 1, v{vG}")
    e(f"s_lshl_b32 s63, s{sC}, 2")
    e(f"v_add_u32 v{TM[4]}, s63, v{TM[4]}")
    e(f"v_mul_u32_u24 v{TM[4]}, 832, v{TM[4]}")
    e(f"v_lshrrev_b32 v{TM[5]}, 2, v{vL15}")
    e(f"v_lshl_add_u32 v{TM[4]}, v{TM[5]}, 5, v{TM[4]}")
    e(f"v_and_b32 v{TM[5]}, 3, v{vL15}")
    e(f"v_lshl_add_u32 v{TM[4]}, v{TM[5]}, 3, v{TM[4]}")
    e(f"v_add_u32 v{vXb}, {X0}, v{TM[4]}")
    for T in range(2):
        for fb in range(7):
            e(f"ds_read_b64_tr_b16 v[{PK+14*T+2*fb}:{PK+14*T+2*fb+1}], v{vXb} offset:{T*1664 + fb*128}")
    e(f"v_lshrrev_b32 v{TM[5]}, 5, v{vLane}")
    e(f"v_mul_u32_u24 v{TM[6]}, {HS}, v{TM[5]}")
    e(f"v_and_b32 v{TM[7]}, 31, v{vLane}")
    e(f"v_lshl_add_u32 v{vFa}, v{TM[7]}, 4, v{TM[6]}")
    e(f"v_lshlrev_b32 v{TM[6]}, 4, v{TM[5]}")
    e(f"v_add_u32 v{TM[6]}, {W1F}, v{TM[6]}")
    for m in range(4): e(f"ds_read_b128 v[{WI+4*m}:{WI+4*m+3}], v{TM[6]} offset:{m*32}")
    e(f"v_cmp_eq_u32 s[72:73], 1, v{TM[5]}")
    e("s_waitcnt lgkmcnt(4)")
    for T, (X, Y) in enumerate(((XA, YA), (XB, YB))):
        for g in range(13):
            p = PK + 14*T + g
            e(f"v_lshlrev_b32 v{X+2*g}, 16, v{p}")
            e(f"v_and_b32 v{X+2*g+1}, 0xffff0000, v{p}")
        for g in range(13):
            e(f"v_cndmask_b32 v{Y+g}, v{X+2*g}, v{X+2*g+1}, s[72:73]")
    def a_read(t):
        b = AB[t % 3]
        if t <= 22: e(f"ds_read_b128 v[{b}:{b+3}], v{vFa} offset:{F1 + t*FS}")
        if t <= 25: e(f"ds_read_b128 v[{b+4}:{b+7}], v{vFa} offset:{F2 + t*FS}")
    blocks = [(g, gp) for g in range(14) for gp in range(min(g, 12)+1)]
    def zgen(t, T):
        X, Y = ((XA, YA), (XB, YB))[T]
        z = ZB[t & 1][T]; out = []
        for j in range(4):
            g, gp = blocks[4*t + j]
            ta, tb, th = TM[2*j], TM[2*j+1], 228 + T
            if g == 13:
                out.append(f"v_cvt_pk_bf16_f32 v{z+j}, v{Y+gp}, 0")
            else:
                y = Y + gp
                if g == gp:
                    out.append(f"v_mul_f32 v{th}, 0.5, v{Y+gp}"); y = th
                out.append(f"v_mul_f32 v{ta}, v{X+2*g}, v{y}")
                out.append(f"v_mul_f32 v{tb}, v{X+2*g+1}, v{y}")
                out.append(f"v_cvt_pk_bf16_f32 v{z+j}, v{ta}, v{tb}")
        return out
    st("xld")
    e("s_waitcnt lgkmcnt(0)")
    a_read(0); a_read(1)
    for T in range(2):
        for s in zgen(0, T): e(s)
    cnt = {t: (1 if t > 22 else 2) for t in range(26)}
    for t in range(26):
        younger = cnt[t+1] if t+1 <= 25 else 0
        e(f"s_waitcnt lgkmcnt({younger})")
        if t + 2 <= 25: a_read(t + 2)
        b = AB[t % 3]; mf = []
        for T, (D1, D2) in enumerate(((D1A, D2A), (D1B, D2B))):
            z = ZB[t & 1][T]
            if t <= 22:
                c = "0" if t == 0 else f"v[{D1}:{D1+15}]"
                mf.append(f"v_mfma_f32_32x32x16_bf16 v[{D1}:{D1+15}], v[{b}:{b+3}], v[{z}:{z+3}], {c}")
            c = f"v[{WI}:{WI+15}]" if t == 0 else f"v[{D2}:{D2+15}]"
            mf.append(f"v_mfma_f32_32x32x16_bf16 v[{D2}:{D2+15}], v[{b+4}:{b+7}], v[{z}:{z+3}], {c}")
        va = (zgen(t+1, 0) + zgen(t+1, 1)) if t < 25 else []
        n = len(mf); per = (len(va) + n - 1)//n if va else 0
        if t == 0: a.nop(2)
        vi = 0
        for m in mf:
            e(m)
            for s in va[vi:vi+per]: e(s)
            vi += per
    a.nop(16)
    st("main")
    for T, (D1, D2) in enumerate(((D1A, D2A), (D1B, D2B))): e(f"v_mul_f32 v{TM[T]}, v{D1}, v{D2}")
    for r in range(1, 14):
        for T, (D1, D2) in enumerate(((D1A, D2A), (D1B, D2B))): e(f"v_fmac_f32 v{TM[T]}, v{D1+r}, v{D2+r}")
    for sh in (8, 4, 2, 1):
        a.nop(2)
        for T in range(2): e(f"v_add_f32_dpp v{TM[T]}, v{TM[T]}, v{TM[T]} row_ror:{sh} row_mask:0xf bank_mask:0xf")
    e(f"v_bfe_u32 v{TM[2]}, v{vLane}, 4, 1")
    e(f"v_lshlrev_b32 v{TM[2]}, 3, v{TM[2]}")
    e(f"v_lshrrev_b32 v{TM[3]}, 5, v{vLane}")
    e(f"v_lshl_add_u32 v{TM[2]}, v{TM[3]}, 2, v{TM[2]}")
    e(f"s_lshl_b32 s63, s{sC}, 5"); e(f"s_add_u32 s63, s63, {RED}")
    e(f"v_add_u32 v{TM[2]}, s63, v{TM[2]}")
    e(f"ds_write_b32 v{TM[2]}, v{TM[0]}")
    e(f"ds_write_b32 v{TM[2]}, v{TM[1]} offset:16")
    e("s_branch L_final")

    a.label("L_D")
    sD, sDB, sK = 66, 67, 80
    srd(SRD_TAB, 6, 3200000)
    srd(SRD_WD, 12, 346112)
    P = 16; ACC = 64; BB = 96; AF = 128; TRA = 132; W2R = 140; BIAS = 148; OUT = 156; GT = 160; vC0 = 176; vA = 177
    e(f"v_and_b32 v{t0}, 1, v{vLane}"); e(f"v_lshlrev_b32 v{t0}, 4, v{t0}")
    e(f"s_cmp_eq_u32 s{sD}, 0"); e("s_cbranch_scc0 L_D3")
    def emit_D(U):
        tag = f"U{U}"; nI = 2*U; nt = 2*U; RS = 64*U
        if U == 4:
            e(f"s_mov_b32 s81, 0"); e(f"s_mov_b32 s{sDB}, {RING}")
        else:
            e(f"s_mul_i32 s81, s{sD}, 192"); e("s_add_u32 s81, s81, 64")
            e(f"s_mul_i32 s{sDB}, s{sD}, 6144"); e(f"s_add_u32 s{sDB}, s{sDB}, {RING + 8192 - 6144}")
        for j in range(nI):
            m, row, cp, sw = t1, t2, t3, t4
            e(f"v_add_u32 v{m}, {64*j}, v{vLane}")
            if U == 4:
                e(f"v_lshrrev_b32 v{row}, 4, v{m}")
                e(f"v_and_b32 v{cp}, 15, v{m}")
                e(f"v_and_b32 v{sw}, 3, v{row}"); e(f"v_lshlrev_b32 v{sw}, 1, v{sw}")
                if (4*j) & 8: e(f"v_or_b32 v{sw}, 8, v{sw}")
            else:
                e(f"v_mul_u32_u24 v{row}, 5462, v{m}"); e(f"v_lshrrev_b32 v{row}, 16, v{row}")
                e(f"v_mul_u32_u24 v{cp}, 12, v{row}"); e(f"v_sub_u32 v{cp}, v{m}, v{cp}")
                e(f"v_lshrrev_b32 v{sw}, 2, v{row}"); e(f"v_and_b32 v{sw}, 2, v{sw}")
            e(f"v_xor_b32 v{cp}, v{cp}, v{sw}")
            e(f"v_mul_u32_u24 v{row}, 832, v{row}")
            e(f"v_lshl_add_u32 v{cp}, v{cp}, 4, v{row}")
            e(f"v_add_u32 v{P+j}, s81, v{cp}")
        e(f"s_mov_b32 s{sK}, 0")
        def dma(slot):
            for j in range(nI):
                e(f"s_add_u32 m0, s{sDB}, {slot*SLOT + j*1024}")
                e("s_nop 0")
                e(f"buffer_load_dwordx4 v{P+j}, s[{SRD_WD}:{SRD_WD+3}], s{sK} offen lds")
            e(f"s_add_u32 s{sK}, s{sK}, {SLOT}")
        st("b1")
        e("s_waitcnt vmcnt(1)")
        st("idx")
        for k in range(4): e(f"v_lshl_add_u32 v{vIdx+k}, v{vIdx+k}, 5, v{t0}")
        e(f"s_mul_i32 s63, s{sD}, {4*832}"); e(f"s_add_u32 s63, s63, {X0}")
        e("s_mov_b32 exec_lo, -1"); e("s_mov_b32 exec_hi, 0xfffff")
        for k in range(4):
            e(f"s_add_u32 m0, s63, {832*k}"); e("s_nop 0")
            e(f"buffer_load_dwordx4 v{vIdx+k}, s[{SRD_TAB}:{SRD_TAB+3}], 0 offen lds")
        e("s_mov_b64 exec, -1")
        e("s_mov_b32 s68, s14"); e("s_mov_b32 s69, s15"); e("s_mov_b32 s70, 832"); e("s_mov_b32 s71, 0x20000")
        e("s_mov_b32 s72, s16"); e("s_mov_b32 s73, s17"); e("s_mov_b32 s74, 832"); e("s_mov_b32 s75, 0x20000")
        e(f"v_lshlrev_b32 v{t1}, 1, v{vL15}"); e(f"v_add_u32 v{t1}, s81, v{t1}")
        for tau in range(nt):
            e(f"v_mov_b32 v{BIAS+tau}, 0"); e(f"v_mov_b32 v{W2R+tau}, 0")
        for tau in range(nt):
            e(f"buffer_load_short_d16_hi v{BIAS+tau}, v{t1}, s[68:71], 0 offen offset:{tau*32}")
            e(f"buffer_load_short_d16_hi v{W2R+tau}, v{t1}, s[72:75], 0 offen offset:{tau*32}")
        dma(0); dma(1)
        st("issued")
        e(f"v_lshrrev_b32 v{t2}, 2, v{vL15}")
        e(f"v_lshl_add_u32 v{t3}, v{vG}, 3, v{t2}")
        e(f"v_mul_u32_u24 v{t3}, {RS}, v{t3}")
        e(f"v_and_b32 v{t4}, 3, v{vL15}")
        e(f"v_lshl_add_u32 v{t3}, v{t4}, 3, v{t3}")
        e(f"v_add_u32 v{t3}, s{sDB}, v{t3}")
        e(f"v_and_b32 v{t4}, 1, v{vG}")
        if U == 4: e(f"v_lshl_add_u32 v{t2}, v{t4}, 2, v{t2}")
        else: e(f"v_mov_b32 v{t2}, v{t4}")
        for tau in range(nt):
            e(f"v_xor_b32 v{t4}, {tau}, v{t2}")
            e(f"v_lshl_add_u32 v{TRA+tau}, v{t4}, 5, v{t3}")
        e(f"v_mul_u32_u24 v{vA}, 832, v{vL15}")
        e(f"v_lshl_add_u32 v{vA}, v{vG}, 4, v{vA}")
        e(f"v_add_u32 v{vA}, {X0}, v{vA}")
        e("s_barrier")
        st("b2")
        e(f"s_waitcnt vmcnt({2*nI})")
        for tau in range(nt):
            for r in range(4): e(f"v_mov_b32 v{ACC+4*tau+r}, v{BIAS+tau}")
        st("s2")
        e("s_barrier")
        st("b3")
        dma(2)
        e("s_mov_b32 s82, 0")
        a.label(f"L_dl{tag}")
        for slot in range(3):
            e(f"s_waitcnt vmcnt({2*nI})")
            e(f"ds_read_b128 v[{AF}:{AF+3}], v{vA} offset:{64*slot}")
            for tau in range(nt):
                e(f"ds_read_b64_tr_b16 v[{BB+4*tau}:{BB+4*tau+1}], v{TRA+tau} offset:{slot*SLOT}")
                e(f"ds_read_b64_tr_b16 v[{BB+4*tau+2}:{BB+4*tau+3}], v{TRA+tau} offset:{slot*SLOT + 4*RS}")
            for tp in range(nt//2):
                rem = 2*(nt - 2*tp - 2)
                e(f"s_waitcnt lgkmcnt({min(rem,15)})")
                if rem == 0: dma(slot)
                for tau in (2*tp, 2*tp+1):
                    e(f"v_mfma_f32_16x16x32_bf16 v[{ACC+4*tau}:{ACC+4*tau+3}], v[{AF}:{AF+3}], v[{BB+4*tau}:{BB+4*tau+3}], v[{ACC+4*tau}:{ACC+4*tau+3}]")
            if slot == 0:
                e("s_cmp_eq_u32 s82, 4"); e(f"s_cbranch_scc1 L_dx{tag}")
        e(f"v_add_u32 v{vA}, 192, v{vA}")
        e("s_add_u32 s82, s82, 1")
        e(f"s_branch L_dl{tag}")
        a.label(f"L_dx{tag}")
        st("main")
        C0 = -2.0*0.7978845608028654*1.4426950408889634; C1 = C0*0.044715
        e(f"v_mov_b32 v{vC0}, 0x{f32bits(C0):08x}")
        for r in range(4): e(f"v_mov_b32 v{OUT+r}, 0")
        a.nop(8)
        for tau in range(nt):
            x = ACC + 4*tau; Uu, E, Yv = GT, GT+4, GT+8
            for r in range(4): e(f"v_mul_f32 v{Uu+r}, v{x+r}, v{x+r}")
            for r in range(4): e(f"v_fmamk_f32 v{Uu+r}, v{Uu+r}, 0x{f32bits(C1):08x}, v{vC0}")
            for r in range(4): e(f"v_mul_f32 v{Uu+r}, v{x+r}, v{Uu+r}")
            for r in range(4): e(f"v_exp_f32 v{E+r}, v{Uu+r}")
            for r in range(4): e(f"v_mul_f32 v{Yv+r}, v{x+r}, v{W2R+tau}")
            for r in range(4): e(f"v_add_f32 v{E+r}, 1.0, v{E+r}")
            for r in range(4): e(f"v_rcp_f32 v{E+r}, v{E+r}")
            e("s_nop 0")
            for r in range(4): e(f"v_fmac_f32 v{OUT+r}, v{Yv+r}, v{E+r}")
        st("gelu")
        for sh in (8, 4, 2, 1):
            a.nop(2)
            for r in range(4): e(f"v_add_f32_dpp v{OUT+r}, v{OUT+r}, v{OUT+r} row_ror:{sh} row_mask:0xf bank_mask:0xf")
        e(f"s_lshl_b32 s63, s{sD}, 6"); e(f"s_add_u32 s63, s63, {RED2}")
        e(f"v_lshlrev_b32 v{GT}, 4, v{vG}"); e(f"v_add_u32 v{GT}, s63, v{GT}")
        e(f"ds_write_b128 v{GT}, v[{OUT}:{OUT+3}]")
    emit_D(4)
    e("s_branch L_final")
    a.label("L_D3")
    emit_D(3)

    a.label("L_final")
    e("s_waitcnt lgkmcnt(0)")
    e("s_barrier")
    st("fin")
    if stamp is not None:
        wg, wv = [int(x) for x in stamp.split("_")]
        e(f"s_cmp_eq_u32 s2, {wg}"); e("s_cbranch_scc0 L_nost")
        e(f"s_cmp_eq_u32 s{sW}, {wv}"); e("s_cbranch_scc0 L_nost")
        e(f"v_lshlrev_b32 v30, 2, v{vLane}")
        e("s_mov_b64 exec, 0xffff")
        e(f"global_store_dword v30, v{vSt}, s[96:97]")
        e("s_mov_b64 exec, -1")
        a.label("L_nost")
    e(f"s_cmp_eq_u32 s{sW}, 0"); e("s_cbranch_scc0 L_end")
    e(f"v_lshlrev_b32 v8, 3, v{vL15}"); e(f"v_add_u32 v8, {RED}, v8")
    e(f"v_lshlrev_b32 v9, 2, v{vL15}"); e(f"v_add_u32 v9, {RED2}, v9")
    e("ds_read_b64 v[10:11], v8")
    for d in range(4): e(f"ds_read_b32 v{12+d}, v9 offset:{d*64}")
    e("s_lshl_b32 s47, s47, 16")
    e("s_mov_b32 s68, s20"); e("s_mov_b32 s69, s21"); e("s_mov_b32 s70, 8192"); e("s_mov_b32 s71, 0x20000")
    e("s_lshl_b32 s63, s2, 5")
    e(f"v_lshlrev_b32 v16, 1, v{vL15}")
    e("s_waitcnt lgkmcnt(0)")
    e("v_add_f32 v10, v10, v11"); e("v_add_f32 v12, v12, v13"); e("v_add_f32 v14, v14, v15")
    e("v_add_f32 v12, v12, v14"); e("v_add_f32 v10, v10, v12"); e("v_add_f32 v10, s47, v10")
    e("v_cvt_pk_bf16_f32 v10, v10, v10")
    e("s_mov_b64 exec, 0xffff")
    e("buffer_store_short v10, v16, s[68:71], s63 offen")
    a.label("L_end")
    e("s_endpgm")
    a.label("CODE_END")
    return a

HEADER = """; xDeepFM (CIN + DNN) fused kernel for gfx950 -- generated by my own script
; @launch grid=(256,1,1) block=(512,1,1) lds=163840
.amdgcn_target "amdgcn-amd-amdhsa--gfx950"
.text
.globl {k}
.p2align 8
.type {k},@function
"""
FOOTER = """
.section .rodata,"a"
.p2align 6
.amdhsa_kernel {k}
  .amdhsa_next_free_vgpr {nv}
  .amdhsa_next_free_sgpr 102
  .amdhsa_accum_offset {nv}
  .amdhsa_group_segment_fixed_size 0
  .amdhsa_kernarg_size 88
  .amdhsa_user_sgpr_count 2
  .amdhsa_user_sgpr_kernarg_segment_ptr 1
  .amdhsa_system_sgpr_workgroup_id_x 1
.end_amdhsa_kernel
"""
if __name__ == "__main__":
    opts = dict(x.split("=") for x in sys.argv[2:])
    a = gen(opts)
    body = a.text()
    probs = check_hazards(body)
    for p in probs: print("HAZARD:", p, file=sys.stderr)
    open(sys.argv[1], "w").write(HEADER.format(k=KNAME) + body + FOOTER.format(k=KNAME, nv=232))
    print("written", sys.argv[1], "hazards:", len(probs), file=sys.stderr)
```

```python
import sys, struct
from asmlib import Asm, check_hazards

KNAME = "standalone__deep_cross_xdeepfm__recsys_kernel"
FS, HS = 1040, 528
F1 = 0; F2 = 23920
W3L = F2
RING = 59072; SLOT = 26624
W2L = 112816
QB = 147968
X0 = 150016
W1F = 163328; RED = W1F + 128; RED2 = RED + 128
DUM = 0x30000
BIG = 0x10000000
def f32bits(x): return struct.unpack("<I", struct.pack("<f", x))[0]

class Track:
    def __init__(self, a, name, cap): self.a, self.name, self.cap, self.l = a, name, cap, []
    def add(self, tag, n=1): self.l.extend([tag]*n)
    def count(self, tag):
        idx = [i for i, t in enumerate(self.l) if t == tag]
        assert idx, tag
        return min(len(self.l) - 1 - idx[-1], self.cap)
    def wait(self, tag): self.a.e(f"s_waitcnt {self.name}({self.count(tag)})")

def gen(opts):
    a = Asm(); e = a.e
    dbg = opts.get("dbg"); stamp = opts.get("stamp"); pf = opts.get("pf", "168")
    prio = int(opts.get("prio", "2")); pk = int(opts.get("pk", "1"))
    n3first = int(opts.get("n3", "3"))
    sW = 22; sC = 66
    SRD_IDX, SRD_TAB, SRD_WS, SRD_WD, SRD_T = 24, 28, 32, 36, 40
    def srd(base, ptr, nbytes):
        e(f"s_mov_b32 s{base}, s{ptr}"); e(f"s_mov_b32 s{base+1}, s{ptr+1}")
        e(f"s_mov_b32 s{base+2}, {nbytes}"); e(f"s_mov_b32 s{base+3}, 0x20000")
    vLane, vL15, vG = 1, 2, 3
    t0, t1, t2, t3, t4, t5, t6, t7 = 8, 9, 10, 11, 12, 13, 14, 15
    vL16 = 26; vDum = 24
    vSt = 231
    STI = dict(karg=0, issued=1, bi=2, idx=3, w1=4, s1=5, weff=6, b2=7, s2=8, b3=9, xld=10, main=11, gelu=12, fin=13, sb1=14)
    def st(name):
        if stamp is None: return
        e("s_memtime s[84:85]"); e("s_waitcnt lgkmcnt(0)")
        if name == "entry":
            e("s_mov_b32 s86, s84"); e(f"v_mov_b32 v{vSt}, 0")
        else:
            e("s_sub_u32 s84, s84, s86"); e(f"v_writelane_b32 v{vSt}, s84, {STI[name]}")
    combos = [(0,0,0),(0,0,1),(1,0,0),(1,0,1),(1,1,0),(1,1,1)]
    sSh = 62
    def scatter_addr(SA, Fb, shifted, gmax):
        g0, gp0, hb, gpv = 16, 17, 18, 19
        q, off, lim, gq = 20, 21, 22, 23
        e(f"v_lshlrev_b32 v{g0}, 1, v{vG}")
        e(f"v_lshrrev_b32 v{gp0}, 1, v{vL15}")
        if shifted:
            e(f"v_subrev_u32 v{g0}, s{sSh}, v{g0}"); e(f"v_subrev_u32 v{gp0}, s{sSh}, v{gp0}")
        e(f"v_and_b32 v{hb}, 1, v{vL15}")
        e(f"v_mul_u32_u24 v{hb}, {HS}, v{hb}")
        e(f"s_lshl_b32 s65, s{sC}, 4")
        if Fb: e(f"s_add_u32 s65, s65, {Fb}")
        e(f"v_add_u32 v{hb}, s65, v{hb}")
        for ci, (aa, bb, pp) in enumerate(combos):
            cg = 8*aa + pp; m0_, m1_ = 88 + 4*(ci % 2), 90 + 4*(ci % 2)
            e(f"v_add_u32 v{gq}, {cg}, v{g0}")
            e(f"v_mad_i32_i24 v{q}, v{gq}, v{gq}, v{gq}")
            e(f"v_lshrrev_b32 v{q}, 1, v{q}")
            e(f"v_add3_u32 v{q}, v{q}, v{gp0}, {8*bb}")
            e(f"v_min_u32 v{lim}, 12, v{gq}")
            e(f"v_cmp_ge_u32 s[{m0_}:{m0_+1}], {gmax}, v{gq}")
            e(f"v_add_u32 v{gpv}, {8*bb}, v{gp0}")
            e(f"v_and_b32 v{off}, 0x7c, v{q}")
            e(f"v_cmp_le_u32 s[{m1_}:{m1_+1}], v{gpv}, v{lim}")
            e(f"v_lshlrev_b32 v{off}, 8, v{off}")
            e(f"v_lshl_add_u32 v{off}, v{q}, 2, v{off}")
            e(f"s_and_b64 s[{m0_}:{m0_+1}], s[{m0_}:{m0_+1}], s[{m1_}:{m1_+1}]")
            e(f"v_add_u32 v{off}, v{off}, v{hb}")
            e(f"v_cndmask_b32 v{SA+ci}, v{vDum}, v{off}, s[{m0_}:{m0_+1}]")
    def mf6(D, A0, A1, B0, B1):
        return [
         f"v_mfma_f32_16x16x32_bf16 v[{D}:{D+3}], v[{A0}:{A0+3}], v[{B0}:{B0+3}], 0",
         f"v_mfma_f32_16x16x32_bf16 v[{D+4}:{D+7}], v[{A1}:{A1+3}], v[{B0}:{B0+3}], 0",
         f"v_mfma_f32_16x16x32_bf16 v[{D+8}:{D+11}], v[{A1}:{A1+3}], v[{B1}:{B1+3}], 0",
         f"v_mfma_f32_16x16x32_bf16 v[{D}:{D+3}], v[{B0}:{B0+3}], v[{A0}:{A0+3}], v[{D}:{D+3}]",
         f"v_mfma_f32_16x16x32_bf16 v[{D+4}:{D+7}], v[{B1}:{B1+3}], v[{A0}:{A0+3}], v[{D+4}:{D+7}]",
         f"v_mfma_f32_16x16x32_bf16 v[{D+8}:{D+11}], v[{B1}:{B1+3}], v[{A1}:{A1+3}], v[{D+8}:{D+11}]"]

    a.label(KNAME)
    st("entry")
    e("s_cmp_ge_u32 s2, 256")
    e("s_cbranch_scc1 L_end")
    e("s_load_dwordx16 s[4:19], s[0:1], 0")
    e("s_load_dwordx2 s[20:21], s[0:1], 64")
    if dbg or stamp: e("s_load_dwordx4 s[96:99], s[0:1], 72")
    if pf != "0":
        e("s_getpc_b64 s[88:89]")
        e("v_lshlrev_b32 v28, 7, v0")
        e(f"v_min_u32 v28, CODE_END-{KNAME}-256, v28")
        e("v_mov_b32 v29, s89")
        e("v_add_co_u32 v28, vcc, s88, v28")
        e("s_nop 1")
        e("v_addc_co_u32 v29, vcc, 0, v29, vcc")
        e(f"s_movk_i32 s90, {int(pf)}")
        e("v_cmp_gt_u32 vcc, s90, v0")
        e("s_nop 0")
        e("s_and_saveexec_b64 s[92:93], vcc")
        e("s_cbranch_execz L_nopf")
        e("global_load_dword v30, v[28:29], off")
        a.label("L_nopf")
        e("s_mov_b64 exec, -1")
    e(f"v_lshrrev_b32 v{t4}, 6, v0")
    e(f"v_and_b32 v{vLane}, 63, v0")
    e(f"v_and_b32 v{vL15}, 15, v0")
    e(f"v_readfirstlane_b32 s{sW}, v{t4}")
    e(f"v_bfe_u32 v{vG}, v0, 4, 2")
    e(f"v_lshrrev_b32 v{t6}, 1, v{vLane}")
    e(f"v_lshlrev_b32 v{t6}, 2, v{t6}")
    e("s_lshl_b32 s61, s2, 4")
    e(f"s_and_b32 s{sC}, s{sW}, 3")
    e(f"s_lshl_b32 s62, s{sC}, 2")
    e("s_add_u32 s61, s61, s62")
    e("s_mul_i32 s61, s61, 104")
    for r in (t0, t1, t2, t3): e(f"v_mov_b32 v{r}, 0")
    e(f"v_lshlrev_b32 v{t4}, 4, v0")
    for k in range(3): e(f"ds_write_b128 v{t4}, v[{t0}:{t3}] offset:{k*8192}")
    e(f"v_and_b32 v{t5}, 127, v0")
    e(f"v_lshlrev_b32 v{t5}, 4, v{t5}")
    e(f"v_add_u32 v{t5}, {QB}, v{t5}")
    e(f"ds_write_b128 v{t5}, v[{t0}:{t3}]")
    e(f"v_lshlrev_b32 v{vL16}, 4, v{vLane}")
    e(f"v_mov_b32 v{vDum}, {DUM}")
    e("s_waitcnt lgkmcnt(0)")
    e("s_barrier")
    st("karg")
    e(f"s_cmp_lt_u32 s{sW}, 4"); e("s_cbranch_scc1 L_touch0")
    vIdx = 4
    srd(SRD_IDX, 4, 4096*26*4)
    for k in range(4):
        e(f"buffer_load_dword v{vIdx+k}, v{t6}, s[{SRD_IDX}:{SRD_IDX+3}], s61 offen offset:{104*k}")
    a.label("L_touch0")
    e("s_lshr_b32 s62, s2, 3"); e("s_and_b32 s62, s62, 31")
    e(f"v_lshlrev_b32 v{t5}, 7, v{vLane}")
    e(f"s_mov_b32 s{SRD_T}, s12"); e(f"s_mov_b32 s{SRD_T+1}, s13"); e(f"s_mov_b32 s{SRD_T+3}, 0x20000")
    e("s_mul_i32 s63, s62, 10880"); e("s_add_u32 s64, s63, 10880"); e("s_min_u32 s64, s64, 346112")
    e(f"s_mov_b32 s{SRD_T+2}, s64")
    e(f"s_cmp_eq_u32 s{sW}, 4"); e("s_cbranch_scc1 L_touch")
    e("s_add_u32 s63, s63, 8192")
    e(f"s_cmp_eq_u32 s{sW}, 5"); e("s_cbranch_scc1 L_touch")
    e(f"s_mov_b32 s{SRD_T}, s8"); e(f"s_mov_b32 s{SRD_T+1}, s9")
    e("s_mul_i32 s63, s62, 3328"); e("s_add_u32 s64, s63, 3328"); e("s_min_u32 s64, s64, 105456")
    e(f"s_mov_b32 s{SRD_T+2}, s64")
    e(f"s_cmp_eq_u32 s{sW}, 6"); e("s_cbranch_scc1 L_touch")
    e(f"s_mov_b32 s{SRD_T}, s6"); e(f"s_mov_b32 s{SRD_T+1}, s7"); e(f"s_mov_b32 s{SRD_T+2}, 3200000")
    e("s_mov_b32 s63, 0")
    e(f"v_lshlrev_b32 v{t5}, 16, v{vLane}")
    e(f"s_cmp_eq_u32 s{sW}, 7"); e("s_cbranch_scc1 L_touch")
    e("s_branch L_C")
    a.label("L_touch")
    e(f"buffer_load_dword v31, v{t5}, s[{SRD_T}:{SRD_T+3}], s63 offen")
    e("s_branch L_D")

    a.label("L_C")
    vm = Track(a, "vmcnt", 63); lg = Track(a, "lgkmcnt", 15)
    SA2 = 154
    DS = [160, 172]; CV = [184, 190]
    vWs = 25; W3F = 32
    srd(SRD_WS, 8, 105456)
    e("s_mov_b32 s68, s10"); e("s_mov_b32 s69, s11"); e("s_mov_b32 s70, 156"); e("s_mov_b32 s71, 0x20000")
    sLS, sLD = 72, 73
    def lin_start(src, dst):
        e(f"s_lshl_b32 s{sLD}, s{sC}, 10")
        e(f"s_add_u32 s{sLS}, s{sLD}, {src}"); e(f"s_add_u32 s{sLD}, s{sLD}, {dst}")
    def lin_one(k, tag):
        if k < 8:
            e(f"s_mov_b32 m0, s{sLD}"); e(f"s_add_u32 s{sLD}, s{sLD}, 4096")
            e(f"buffer_load_dwordx4 v{vL16}, s[{SRD_WS}:{SRD_WS+3}], s{sLS} offen lds")
            e(f"s_add_u32 s{sLS}, s{sLS}, 4096")
        else:
            e(f"s_cmp_lt_u32 s{sC}, 2"); e(f"s_cbranch_scc1 L_{tag}go")
            e("s_mov_b64 exec, 0x1fffff")
            e(f"s_cmp_eq_u32 s{sC}, 2"); e(f"s_cbranch_scc1 L_{tag}go")
            e(f"s_mov_b32 s{sLS}, {BIG}"); e(f"s_mov_b32 s{sLD}, {DUM}")
            a.label(f"L_{tag}go")
            e(f"s_mov_b32 m0, s{sLD}"); e("s_nop 0")
            e(f"buffer_load_dwordx4 v{vL16}, s[{SRD_WS}:{SRD_WS+3}], s{sLS} offen lds")
            e("s_mov_b64 exec, -1")
        vm.add(tag)
    e(f"v_lshlrev_b32 v{t6}, 1, v{vLane}")
    e(f"buffer_load_ushort v{vWs}, v{t6}, s[68:71], 0 offen"); vm.add("ws")
    e(f"v_lshlrev_b32 v{t6}, 4, v{vG}")
    e(f"buffer_load_dwordx4 v[{W3F}:{W3F+3}], v{t6}, s[68:71], 0 offen offset:104"); vm.add("w3f")
    lin_start(2*35152, W3L)
    for k in range(n3first): lin_one(k, "w3")
    e("s_load_dword s47, s[18:19], 0")
    e(f"s_and_b32 s{sSh}, s{sC}, 1")
    scatter_addr(SA2, F2, True, 13)
    vH1, vH2 = 72, 73
    e(f"v_lshrrev_b32 v{t5}, 2, v{vL15}")
    e(f"v_lshl_add_u32 v{t5}, v{vG}, 3, v{t5}")
    e(f"v_add_u32 v{t6}, 4, v{t5}")
    e(f"v_min_u32 v{t5}, 25, v{t5}"); e(f"v_min_u32 v{t6}, 25, v{t6}")
    e(f"v_and_b32 v{t7}, 3, v{vL15}"); e(f"v_lshlrev_b32 v{t7}, 3, v{t7}")
    e("s_movk_i32 s64, 1352")
    e(f"v_mad_u32_u24 v{vH1}, v{t5}, s64, v{t7}"); e(f"v_mad_u32_u24 v{vH2}, v{t6}, s64, v{t7}")
    QA = 76
    for j in range(3):
        ee, h, k_, ad = t4, t5, t6, QA + j
        e(f"s_lshl_b32 s63, s{sC}, 6"); e(f"s_add_u32 s63, s63, {256*j}")
        e(f"v_add_u32 v{ee}, s63, v{vLane}")
        e(f"v_mul_u32_u24 v{h}, 2521, v{ee}"); e(f"v_lshrrev_b32 v{h}, 16, v{h}")
        e(f"v_mul_u32_u24 v{k_}, 26, v{h}"); e(f"v_sub_u32 v{k_}, v{ee}, v{k_}")
        e(f"v_cmp_gt_u32 vcc, 676, v{ee}")
        e(f"v_lshrrev_b32 v{ad}, 4, v{k_}"); e(f"v_lshlrev_b32 v{ad}, 10, v{ad}")
        e(f"v_and_b32 v{k_}, 15, v{k_}"); e(f"v_lshl_add_u32 v{ad}, v{k_}, 4, v{ad}")
        e(f"v_lshrrev_b32 v{k_}, 3, v{h}"); e(f"v_lshl_add_u32 v{ad}, v{k_}, 8, v{ad}")
        e(f"v_and_b32 v{h}, 7, v{h}"); e(f"v_lshl_add_u32 v{ad}, v{h}, 1, v{ad}")
        e(f"v_add_u32 v{ad}, {QB}, v{ad}")
        e(f"v_cndmask_b32 v{ad}, v{vDum}, v{ad}, vcc")
    vT1, vT2 = 37, 38
    e(f"s_lshl_b32 s63, s{sC}, 7"); e(f"s_add_u32 s63, s63, {W3L}")
    e(f"v_add_u32 v{vT1}, s63, v{vH1}"); e(f"v_add_u32 v{vT2}, s63, v{vH2}")
    TA1, TA2, vM = 39, 75, 74
    e(f"s_mul_i32 s63, s{sC}, 52"); e(f"s_lshl_b32 s64, s{sSh}, 2"); e("s_sub_u32 s63, s63, s64"); e(f"s_add_u32 s63, s63, {W2L}")
    e(f"v_add_u32 v{TA1}, s63, v{vH1}"); e(f"v_add_u32 v{TA2}, s63, v{vH2}")
    e(f"s_lshl_b32 s64, s{sSh}, 1"); e("s_add_u32 s64, s64, 10")
    e(f"v_cmp_gt_u32 vcc, s64, v{vL15}")
    QAD = [44, 45]
    e(f"s_lshl_b32 s63, s{sSh}, 1")
    e("s_nop 0")
    e(f"v_cndmask_b32 v{vM}, 0, -1, vcc")
    for aa in range(2):
        e(f"v_subrev_u32 v{t4}, s63, v{vL15}")
        if aa: e(f"v_add_u32 v{t4}, 16, v{t4}")
        e(f"v_min_u32 v{t4}, 31, v{t4}")
        e(f"v_lshrrev_b32 v{t5}, 4, v{t4}"); e(f"v_lshlrev_b32 v{t5}, 10, v{t5}")
        e(f"v_and_b32 v{t4}, 15, v{t4}"); e(f"v_lshl_add_u32 v{t5}, v{t4}, 4, v{t5}")
        e(f"v_lshl_add_u32 v{t5}, v{vG}, 8, v{t5}")
        e(f"v_add_u32 v{QAD[aa]}, {QB}, v{t5}")
    vFa = 226
    e(f"v_lshrrev_b32 v{t5}, 5, v{vLane}")
    e(f"v_mul_u32_u24 v{t6}, {HS}, v{t5}")
    e(f"v_and_b32 v{t7}, 31, v{vLane}")
    e(f"v_lshl_add_u32 v{vFa}, v{t7}, 4, v{t6}")
    st("w1")
    for k in range(n3first, 9): lin_one(k, "w3")
    lin_start(35152, W2L)
    for k in range(9): lin_one(k, "w2")
    st("issued")
    vm.wait("w3f")
    e(f"v_lshlrev_b32 v{t5}, 16, v{vWs}")
    e(f"v_cmp_gt_u32 s[88:89], 26, v{vLane}")
    e(f"v_cmp_gt_u32 s[90:91], 32, v{vLane}")
    e(f"v_lshlrev_b32 v{t6}, 2, v{vLane}")
    e(f"v_add_u32 v{t6}, {W1F}, v{t6}")
    e(f"v_cndmask_b32 v{t5}, 0, v{t5}, s[88:89]")
    e(f"v_cndmask_b32 v{t6}, v{vDum}, v{t6}, s[90:91]")
    e(f"ds_write_b32 v{t6}, v{t5}")
    e(f"v_subrev_u32 v{t5}, 26, v{vLane}")
    e(f"v_cmp_gt_u32 s[88:89], 26, v{t5}")
    e(f"v_lshrrev_b32 v{t6}, 3, v{t5}")
    e(f"v_lshlrev_b32 v{t6}, 8, v{t6}")
    e(f"v_and_b32 v{t7}, 7, v{t5}")
    e(f"v_lshl_add_u32 v{t6}, v{t7}, 1, v{t6}")
    e(f"v_add_u32 v{t6}, {QB+1024+160}, v{t6}")
    e(f"v_cndmask_b32 v{t6}, v{vDum}, v{t6}, s[88:89]")
    e(f"ds_write_b16 v{t6}, v{vWs}")
    AW = 56
    for gq in range(4): e(f"v_cmp_eq_u32 s[{88+2*gq}:{89+2*gq}], {4*gq}, v{vL15}")
    for gq in range(4):
        for j in range(4): e(f"v_cndmask_b32 v{AW+4*gq+j}, 0, v{W3F+j}, s[{88+2*gq}:{89+2*gq}]")
    vm.wait("w3")
    e("s_waitcnt lgkmcnt(0)")
    e("s_barrier")
    st("bi")
    a.c("Weff")
    WB = 80; WD = 128
    for j in range(3):
        for gq in range(4):
            b = WB + 16*j + 4*gq
            e(f"ds_read_b64_tr_b16 v[{b}:{b+1}], v{vT1} offset:{j*512+32*gq}")
            e(f"ds_read_b64_tr_b16 v[{b+2}:{b+3}], v{vT2} offset:{j*512+32*gq}")
    for j in range(3):
        e(f"s_waitcnt lgkmcnt({min(15, 8*(2-j))})")
        for gq in range(4):
            b = WB + 16*j + 4*gq; d = WD + 4*j
            c = "0" if gq == 0 else f"v[{d}:{d+3}]"
            e(f"v_mfma_f32_16x16x32_bf16 v[{d}:{d+3}], v[{AW+4*gq}:{AW+4*gq+3}], v[{b}:{b+3}], {c}")
    a.nop(8)
    for j in range(3): e(f"v_cvt_pk_bf16_f32 v{t4+j}, v{WD+4*j}, v{WD+4*j}")
    for j in range(3): e(f"ds_write_b16 v{QA+j}, v{t4+j}")
    st("weff")
    e("s_waitcnt vmcnt(0) lgkmcnt(0)")
    e("s_barrier")
    st("b2")
    a.c("S2")
    Q0, Q1 = 140, 144
    lg.l = []
    e(f"ds_read_b128 v[{Q0}:{Q0+3}], v{QAD[0]}"); e(f"ds_read_b128 v[{Q1}:{Q1+3}], v{QAD[1]}"); lg.add("q", 2)
    PS = [48, 56, 64]
    cvt = lambda k, j: f"v_cvt_pk_bf16_f32 v{CV[k&1]+j}, v{DS[k&1]+2*j}, v{DS[k&1]+2*j+1}"
    wr = lambda SA, k, j: f"ds_write_b32 v{SA+j}, v{CV[k&1]+j} offset:{k*64}"
    def p_reads(k):
        P = PS[k % 3]
        return [f"ds_read_b64_tr_b16 v[{P}:{P+1}], v{TA1} offset:{k*208}",
                f"ds_read_b64_tr_b16 v[{P+2}:{P+3}], v{TA2} offset:{k*208}",
                f"ds_read_b64_tr_b16 v[{P+4}:{P+5}], v{TA1} offset:{k*208+32}",
                f"ds_read_b64_tr_b16 v[{P+6}:{P+7}], v{TA2} offset:{k*208+32}"]
    for k in (0, 1):
        for x in p_reads(k): e(x)
        lg.add(f"p{k}", 4)
    def masks(k): return [f"v_and_b32 v{PS[k%3]+4+j}, v{vM}, v{PS[k%3]+4+j}" for j in range(4)]
    lg.wait("p0")
    for x in masks(0): e(x)
    a.nop(1)
    for k in range(9):
        M = mf6(DS[k & 1], PS[k % 3], PS[k % 3]+4, Q0, Q1) if k < 7 else [None]*6
        R = p_reads(k+2) if k + 2 < 7 else []
        if k == 7: a.nop(4)
        if k == 8:
            e(f"s_cmp_lt_u32 s{sC}, 2"); e("s_cbranch_scc1 L_s2v")
            for j in range(6): e(f"v_mov_b32 v{SA2+j}, v{vDum}")
            a.label("L_s2v")
        for j in range(6):
            if j == 4 and k + 1 < 7:
                lg.wait(f"p{k+1}")
                for x in masks(k+1): e(x)
            if M[j]: e(M[j])
            if k >= 2: e(wr(SA2, k-2, j)); lg.add("w")
            if 1 <= k <= 7: e(cvt(k-1, j))
            if j < len(R): e(R[j]); lg.add(f"p{k+2}")
    st("s2")
    e("s_waitcnt lgkmcnt(0)")
    e("s_barrier")
    e("s_barrier")
    st("b3")
    if dbg == "lds":
        e("s_cmp_eq_u32 s2, 0"); e("s_cbranch_scc0 L_nodump")
        e(f"v_lshlrev_b32 v{t4}, 4, v0")
        for k in range(40):
            e(f"v_add_u32 v{t5}, {k*4096}, v{t4}")
            e(f"ds_read_b128 v[{t0}:{t3}], v{t5}")
            e("s_waitcnt lgkmcnt(0)")
            e(f"global_store_dwordx4 v{t5}, v[{t0}:{t3}], s[98:99]")
            e("s_waitcnt vmcnt(0)")
        a.label("L_nodump")
    a.c("C main")
    XA, YA, XB, YB = 8, 34, 47, 73
    D1A, D2A, D1B, D2B = 96, 112, 128, 144
    ZB = [[160, 164], [168, 172]]
    AB = [176, 184, 192]
    TM = [200, 201, 202, 203, 204, 205, 206, 207]
    WI = 208; vXb = 224; PK = 176
    e(f"v_and_b32 v{TM[4]}, 1, v{vG}")
    e(f"s_lshl_b32 s63, s{sC}, 2")
    e(f"v_add_u32 v{TM[4]}, s63, v{TM[4]}")
    e(f"v_mul_u32_u24 v{TM[4]}, 832, v{TM[4]}")
    e(f"v_lshrrev_b32 v{TM[5]}, 2, v{vL15}")
    e(f"v_lshl_add_u32 v{TM[4]}, v{TM[5]}, 5, v{TM[4]}")
    e(f"v_and_b32 v{TM[5]}, 3, v{vL15}")
    e(f"v_lshl_add_u32 v{TM[4]}, v{TM[5]}, 3, v{TM[4]}")
    e(f"v_add_u32 v{vXb}, {X0}, v{TM[4]}")
    for T in range(2):
        for fb in range(7):
            e(f"ds_read_b64_tr_b16 v[{PK+14*T+2*fb}:{PK+14*T+2*fb+1}], v{vXb} offset:{T*1664 + fb*128}")
    e(f"v_lshrrev_b32 v{TM[5]}, 5, v{vLane}")
    e(f"v_lshlrev_b32 v{TM[6]}, 4, v{TM[5]}")
    e(f"v_add_u32 v{TM[6]}, {W1F}, v{TM[6]}")
    for m in range(4): e(f"ds_read_b128 v[{WI+4*m}:{WI+4*m+3}], v{TM[6]} offset:{m*32}")
    e(f"v_cmp_eq_u32 s[72:73], 1, v{TM[5]}")
    for T, (X, Y) in enumerate(((XA, YA), (XB, YB))):
        e(f"s_waitcnt lgkmcnt({11 if T == 0 else 4})")
        for g in range(13):
            p = PK + 14*T + g
            e(f"v_lshlrev_b32 v{X+2*g}, 16, v{p}")
            e(f"v_and_b32 v{X+2*g+1}, 0xffff0000, v{p}")
        for g in range(13): e(f"v_cndmask_b32 v{Y+g}, v{X+2*g}, v{X+2*g+1}, s[72:73]")
    def a_read(t):
        b = AB[t % 3]
        if t <= 22: e(f"ds_read_b128 v[{b}:{b+3}], v{vFa} offset:{F1 + t*FS}")
        if t <= 25: e(f"ds_read_b128 v[{b+4}:{b+7}], v{vFa} offset:{F2 + t*FS}")
    blocks = [(g, gp) for g in range(14) for gp in range(min(g, 12)+1)]
    def zgen(t, T):
        X, Y = ((XA, YA), (XB, YB))[T]
        z = ZB[t & 1][T]; mul = []; cv = []
        for j in range(4):
            g, gp = blocks[4*t + j]
            ta, tb, th = TM[2*j], TM[2*j+1], 228 + T
            if g == 13: cv.append(f"v_cvt_pk_bf16_f32 v{z+j}, v{Y+gp}, 0")
            else:
                y = Y + gp
                if g == gp:
                    mul.append(f"v_mul_f32 v{th}, 0.5, v{Y+gp}"); y = th
                mul.append(f"v_mul_f32 v{ta}, v{X+2*g}, v{y}")
                mul.append(f"v_mul_f32 v{tb}, v{X+2*g+1}, v{y}")
                cv.append(f"v_cvt_pk_bf16_f32 v{z+j}, v{ta}, v{tb}")
        return mul + cv
    st("xld")
    a_read(0); a_read(1)
    for T in range(2):
        for s in zgen(0, T): e(s)
    cnt = {t: (1 if t > 22 else 2) for t in range(26)}
    for t in range(26):
        younger = cnt[t+1] if t+1 <= 25 else 0
        e(f"s_waitcnt lgkmcnt({younger})")
        b = AB[t % 3]; mf = []; rds = []
        if t + 2 <= 25:
            b2 = AB[(t+2) % 3]
            if t + 2 <= 22: rds.append(f"ds_read_b128 v[{b2}:{b2+3}], v{vFa} offset:{F1 + (t+2)*FS}")
            rds.append(f"ds_read_b128 v[{b2+4}:{b2+7}], v{vFa} offset:{F2 + (t+2)*FS}")
        for T, (D1, D2) in enumerate(((D1A, D2A), (D1B, D2B))):
            z = ZB[t & 1][T]
            if t <= 22:
                c = "0" if t == 0 else f"v[{D1}:{D1+15}]"
                mf.append(f"v_mfma_f32_32x32x16_bf16 v[{D1}:{D1+15}], v[{b}:{b+3}], v[{z}:{z+3}], {c}")
            c = f"v[{WI}:{WI+15}]" if t == 0 else f"v[{D2}:{D2+15}]"
            mf.append(f"v_mfma_f32_32x32x16_bf16 v[{D2}:{D2+15}], v[{b+4}:{b+7}], v[{z}:{z+3}], {c}")
        va = (zgen(t+1, 0) + zgen(t+1, 1)) if t < 25 else []
        n = len(mf); per = (len(va) + n - 1)//n if va else 0
        if t == 0: a.nop(2)
        vi = 0
        for mi, m in enumerate(mf):
            e(m)
            if mi < len(rds): e(rds[mi])
            for s in va[vi:vi+per]: e(s)
            vi += per
    a.nop(16)
    st("main")
    for T, (D1, D2) in enumerate(((D1A, D2A), (D1B, D2B))): e(f"v_mul_f32 v{TM[T]}, v{D1}, v{D2}")
    for r in range(1, 14):
        for T, (D1, D2) in enumerate(((D1A, D2A), (D1B, D2B))): e(f"v_fmac_f32 v{TM[T]}, v{D1+r}, v{D2+r}")
    for sh in (8, 4, 2, 1):
        a.nop(2)
        for T in range(2): e(f"v_add_f32_dpp v{TM[T]}, v{TM[T]}, v{TM[T]} row_ror:{sh} row_mask:0xf bank_mask:0xf")
    e(f"v_bfe_u32 v{TM[2]}, v{vLane}, 4, 1")
    e(f"v_lshlrev_b32 v{TM[2]}, 3, v{TM[2]}")
    e(f"v_lshrrev_b32 v{TM[3]}, 5, v{vLane}")
    e(f"v_lshl_add_u32 v{TM[2]}, v{TM[3]}, 2, v{TM[2]}")
    e(f"s_lshl_b32 s63, s{sC}, 5"); e(f"s_add_u32 s63, s63, {RED}")
    e(f"v_add_u32 v{TM[2]}, s63, v{TM[2]}")
    e(f"ds_write_b32 v{TM[2]}, v{TM[0]}")
    e(f"ds_write_b32 v{TM[2]}, v{TM[1]} offset:16")
    e("s_branch L_final")

    a.label("L_D")
    sD, sDB, sK = 66, 67, 80
    srd(SRD_TAB, 6, 3200000)
    srd(SRD_WD, 12, 346112)
    srd(SRD_WS, 8, 105456)
    e(f"s_cmp_eq_u32 s{sD}, 0"); e("s_cbranch_scc0 L_nobias")
    for ptr, off in ((14, 0), (16, 1024)):
        e(f"s_mov_b32 s68, s{ptr}"); e(f"s_mov_b32 s69, s{ptr+1}"); e("s_mov_b32 s70, 832"); e("s_mov_b32 s71, 0x20000")
        e(f"s_mov_b32 m0, {RING+off}"); e("s_nop 0")
        e(f"buffer_load_dwordx4 v{vL16}, s[68:71], 0 offen lds")
    a.label("L_nobias")
    P = 16; ACC = 32; BB = [64, 96]; AF = [128, 132]; TRA = 136; W2R = 144; BIAS = 152; OUT = 160; GT = 164; vC0 = 184; vA = 185
    W1R = 64
    I0, I1 = 120, 124
    SA1 = 192; DSd = [198, 210]; CVd = [222, 164]
    vW1 = 27
    e(f"v_and_b32 v{t0}, 1, v{vLane}"); e(f"v_lshlrev_b32 v{t0}, 4, v{t0}")
    e(f"v_lshlrev_b32 v{t4}, 3, v{vG}")
    e(f"v_sub_u32 v{t4}, v{vL15}, v{t4}")
    e(f"v_and_b32 v{t5}, 1, v{t4}")
    e(f"v_lshlrev_b32 v{t5}, 4, v{t5}")
    e(f"v_mov_b32 v{t6}, 0x3f80")
    e(f"v_lshlrev_b32 v{t5}, v{t5}, v{t6}")
    e(f"v_ashrrev_i32 v{t4}, 1, v{t4}")
    e(f"v_add_u32 v{t6}, 8, v{t4}")
    for j in range(4): e(f"v_cmp_eq_u32 s[{88+2*j}:{89+2*j}], {j}, v{t4}")
    for j in range(4): e(f"v_cndmask_b32 v{I0+j}, 0, v{t5}, s[{88+2*j}:{89+2*j}]")
    for j in range(4): e(f"v_cmp_eq_u32 s[{88+2*j}:{89+2*j}], {j}, v{t6}")
    for j in range(4): e(f"v_cndmask_b32 v{I1+j}, 0, v{t5}, s[{88+2*j}:{89+2*j}]")
    scatter_addr(SA1, F1, False, 12)
    e(f"v_mul_u32_u24 v{t7}, 52, v{vL15}")
    e(f"v_lshl_add_u32 v{vW1}, v{vG}, 4, v{t7}")
    e(f"s_cmp_eq_u32 s{sD}, 0"); e("s_cbranch_scc0 L_D3")
    def emit_D(U):
        tag = f"U{U}"; nI = 2*U; nt = 2*U; RS = 64*U
        vm = Track(a, "vmcnt", 63)
        if U == 4:
            e("s_mov_b32 s81, 0"); e(f"s_mov_b32 s{sDB}, {RING}")
        else:
            e(f"s_mul_i32 s81, s{sD}, 192"); e("s_add_u32 s81, s81, 64")
            e(f"s_mul_i32 s{sDB}, s{sD}, 6144"); e(f"s_add_u32 s{sDB}, s{sDB}, {RING + 8192 - 6144}")
        for j in range(nI):
            m, row, cp, sw = t1, t2, t3, t4
            e(f"v_add_u32 v{m}, {64*j}, v{vLane}")
            if U == 4:
                e(f"v_lshrrev_b32 v{row}, 4, v{m}")
                e(f"v_and_b32 v{cp}, 15, v{m}")
                e(f"v_and_b32 v{sw}, 3, v{row}"); e(f"v_lshlrev_b32 v{sw}, 1, v{sw}")
                if (4*j) & 8: e(f"v_or_b32 v{sw}, 8, v{sw}")
            else:
                e(f"v_mul_u32_u24 v{row}, 5462, v{m}"); e(f"v_lshrrev_b32 v{row}, 16, v{row}")
                e(f"v_mul_u32_u24 v{cp}, 12, v{row}"); e(f"v_sub_u32 v{cp}, v{m}, v{cp}")
                e(f"v_lshrrev_b32 v{sw}, 2, v{row}"); e(f"v_and_b32 v{sw}, 2, v{sw}")
            e(f"v_xor_b32 v{cp}, v{cp}, v{sw}")
            e(f"v_mul_u32_u24 v{row}, 832, v{row}")
            e(f"v_lshl_add_u32 v{cp}, v{cp}, 4, v{row}")
            e(f"v_add_u32 v{P+j}, s81, v{cp}")
        e(f"s_mov_b32 s{sK}, 0")
        sSL = 83; sRD = 87
        def dma_ops(base_sgpr):
            return [(f"s_add_u32 m0, s{base_sgpr}, {j*1024}",
                     f"buffer_load_dwordx4 v{P+j}, s[{SRD_WD}:{SRD_WD+3}], s{sK} offen lds") for j in range(nI)]
        def dma(base_sgpr):
            for x, y in dma_ops(base_sgpr): e(x); e("s_nop 0"); e(y)
            e(f"s_add_u32 s{sK}, s{sK}, {SLOT}")
        e(f"v_lshrrev_b32 v{t2}, 2, v{vL15}")
        e(f"v_lshl_add_u32 v{t3}, v{vG}, 3, v{t2}")
        e(f"v_mul_u32_u24 v{t3}, {RS}, v{t3}")
        e(f"v_and_b32 v{t4}, 3, v{vL15}")
        e(f"v_lshl_add_u32 v{t3}, v{t4}, 3, v{t3}")
        e(f"v_add_u32 v{t3}, s{sDB}, v{t3}")
        e(f"v_and_b32 v{t4}, 1, v{vG}")
        if U == 4: e(f"v_lshl_add_u32 v{t2}, v{t4}, 2, v{t2}")
        else: e(f"v_mov_b32 v{t2}, v{t4}")
        for tau in range(nt):
            e(f"v_xor_b32 v{t4}, {tau}, v{t2}")
            e(f"v_lshl_add_u32 v{TRA+tau}, v{t4}, 5, v{t3}")
        e(f"v_mul_u32_u24 v{vA}, 832, v{vL15}")
        e(f"v_lshl_add_u32 v{vA}, v{vG}, 4, v{vA}")
        e(f"v_add_u32 v{vA}, {X0}, v{vA}")
        e("s_waitcnt vmcnt(0)")
        st("idx")
        for k in range(4): e(f"v_lshl_add_u32 v{vIdx+k}, v{vIdx+k}, 5, v{t0}")
        e("s_barrier")
        st("bi")
        sW1 = 79
        e(f"s_mul_i32 s{sW1}, s{sD}, 1352")
        for k in range(7):
            if k == 6:
                if U == 4: pass
                else: e(f"s_cmp_lt_u32 s{sD}, 2"); e(f"s_cselect_b32 s{sW1}, s{sW1}, {BIG}")
            e(f"buffer_load_dwordx4 v[{W1R+8*k}:{W1R+8*k+3}], v{vW1}, s[{SRD_WS}:{SRD_WS+3}], s{sW1} offen")
            e(f"buffer_load_dwordx4 v[{W1R+8*k+4}:{W1R+8*k+7}], v{vW1}, s[{SRD_WS}:{SRD_WS+3}], s{sW1} offen offset:832")
            if k < 6: e(f"s_add_u32 s{sW1}, s{sW1}, {4*1352}")
            vm.add(f"w1_{k}", 2)
        e(f"v_lshlrev_b32 v{t1}, 1, v{vL15}"); e(f"v_add_u32 v{t1}, s81, v{t1}"); e(f"v_add_u32 v{t1}, {RING}, v{t1}")
        for tau in range(nt):
            e(f"v_mov_b32 v{BIAS+tau}, 0"); e(f"v_mov_b32 v{W2R+tau}, 0")
        for tau in range(nt):
            e(f"ds_read_u16_d16_hi v{BIAS+tau}, v{t1} offset:{tau*32}")
            e(f"ds_read_u16_d16_hi v{W2R+tau}, v{t1} offset:{1024+tau*32}")
        e("s_waitcnt lgkmcnt(0)")
        for tau in range(nt):
            for r in range(4): e(f"v_mov_b32 v{ACC+4*tau+r}, v{BIAS+tau}")
        e("s_barrier")
        st("b2")
        e(f"s_mul_i32 s63, s{sD}, {4*832}"); e(f"s_add_u32 s63, s63, {X0}")
        e("s_mov_b32 exec_lo, -1"); e("s_mov_b32 exec_hi, 0xfffff")
        for k in range(4):
            e(f"s_add_u32 m0, s63, {832*k}"); e("s_nop 0")
            e(f"buffer_load_dwordx4 v{vIdx+k}, s[{SRD_TAB}:{SRD_TAB+3}], 0 offen lds")
        e("s_mov_b64 exec, -1")
        vm.add("g", 4)
        st("sb1")
        cvt = lambda k, j: f"v_cvt_pk_bf16_f32 v{CVd[k&1]+j}, v{DSd[k&1]+2*j}, v{DSd[k&1]+2*j+1}"
        wr = lambda k, j: f"ds_write_b32 v{SA1+j}, v{CVd[k&1]+j} offset:{k*64}"
        vm.wait("w1_6")
        for k in range(9):
            M = mf6(DSd[k & 1], W1R+8*k, W1R+8*k+4, I0, I1) if k < 7 else [None]*6
            if k == 7: a.nop(4)
            if k == 1: a.nop(5)
            if k == 2: a.nop(1)
            for j in range(6):
                if M[j]: e(M[j])
                if k >= 2: e(wr(k-2, j))
                if 1 <= k <= 7: e(cvt(k-1, j))
        for r in (28, 29, 30, 31): e(f"v_mov_b32 v{r}, 0")
        e(f"v_lshrrev_b32 v{t5}, 5, v{vLane}")
        e(f"v_mul_u32_u24 v{t6}, {HS}, v{t5}")
        e(f"v_and_b32 v{t7}, 31, v{vLane}")
        e(f"v_lshl_add_u32 v{t6}, v{t7}, 4, v{t6}")
        e(f"s_mul_i32 s64, s{sD}, {FS}"); e(f"s_add_u32 s64, s64, {F2}")
        e(f"v_add_u32 v{t6}, s64, v{t6}")
        e("s_mov_b32 exec_lo, 0xfc000000"); e("s_mov_b32 exec_hi, 0xfc000000")
        for j in range(6): e(f"ds_write_b128 v{t6}, v[28:31] offset:{j*4*FS}")
        if U == 4: e(f"ds_write_b128 v{t6}, v[28:31] offset:{6*4*FS}")
        else:
            e(f"s_cmp_lt_u32 s{sD}, 2"); e(f"s_cselect_b32 s64, 0, {DUM}")
            e(f"v_add_u32 v{t6}, s64, v{t6}")
            e(f"ds_write_b128 v{t6}, v[28:31] offset:{6*4*FS}")
        e("s_mov_b64 exec, -1")
        st("s1")
        e("s_barrier")
        e(f"s_mov_b32 s{sSL}, s{sDB}"); dma(sSL)
        e(f"s_add_u32 s{sSL}, s{sDB}, {SLOT}"); dma(sSL)
        e(f"s_add_u32 s{sSL}, s{sDB}, {2*SLOT}"); dma(sSL)
        st("issued")
        e(f"s_waitcnt vmcnt({3*nI}) lgkmcnt(0)")
        st("s2")
        e("s_barrier")
        st("b3")
        if prio: e(f"s_setprio {prio}")
        def reads(b):
            r = [f"ds_read_b128 v[{AF[b]}:{AF[b]+3}], v{vA}"]
            for tau in range(nt):
                r.append(f"ds_read_b64_tr_b16 v[{BB[b]+4*tau}:{BB[b]+4*tau+1}], v{TRA+tau}")
                r.append(f"ds_read_b64_tr_b16 v[{BB[b]+4*tau+2}:{BB[b]+4*tau+3}], v{TRA+tau} offset:{4*RS}")
            return r
        def advance():
            e(f"s_add_u32 s{sRD}, s{sRD}, 1")
            e(f"s_cmp_eq_u32 s{sRD}, 3")
            e(f"s_cselect_b32 s78, s75, s74")
            e(f"s_cselect_b32 s{sRD}, 0, s{sRD}")
            for tau in range(nt): e(f"v_add_u32 v{TRA+tau}, s78, v{TRA+tau}")
            e(f"v_add_u32 v{vA}, 64, v{vA}")
        def mfmas(b):
            return [f"v_mfma_f32_16x16x32_bf16 v[{ACC+4*tau}:{ACC+4*tau+3}], v[{AF[b]}:{AF[b]+3}], v[{BB[b]+4*tau}:{BB[b]+4*tau+3}], v[{ACC+4*tau}:{ACC+4*tau+3}]" for tau in range(nt)]
        def rot():
            e(f"s_add_u32 s{sK}, s{sK}, {SLOT}")
            e(f"s_add_u32 s{sSL}, s{sSL}, s74")
            e(f"s_cmp_eq_u32 s{sSL}, s77")
            e(f"s_cselect_b32 s{sSL}, s{sDB}, s{sSL}")
        e(f"s_mov_b32 s{sRD}, 0"); e(f"s_mov_b32 s{sSL}, s{sDB}")
        e(f"s_mov_b32 s74, {SLOT}"); e(f"s_mov_b32 s75, {(-2*SLOT) & 0xffffffff}")
        e(f"s_add_u32 s77, s{sDB}, {3*SLOT}")
        e(f"s_waitcnt vmcnt({2*nI})")
        for x in reads(0): e(x)
        advance()
        e("s_waitcnt lgkmcnt(0)")
        e("s_mov_b32 s82, 0")
        st("xld")
        a.label(f"L_dl{tag}")
        for b in range(2):
            e(f"s_waitcnt vmcnt({nI})")
            R = reads(1-b); M = mfmas(b); Dm = dma_ops(sSL)
            ri = 0
            for j in range(nt):
                e(Dm[j][0]); e(R[ri]); ri += 1
                e(Dm[j][1]); e(R[ri]); ri += 1
                e(M[j])
            while ri < len(R): e(R[ri]); ri += 1
            rot(); advance()
            e("s_waitcnt lgkmcnt(0)")
        e("s_add_u32 s82, s82, 1")
        e("s_cmp_lt_u32 s82, 6"); e(f"s_cbranch_scc1 L_dl{tag}")
        for x in mfmas(0): e(x)
        st("main")
        C0 = -2.0*0.7978845608028654*1.4426950408889634; C1 = C0*0.044715
        for r in range(4): e(f"v_mov_b32 v{OUT+r}, 0")
        c0, c1, one = vC0+2, vC0+4, vC0+6
        for r_, val in ((c0, C0), (c1, C1), (one, 1.0)):
            e(f"v_mov_b32 v{r_}, 0x{f32bits(val):08x}"); e(f"v_mov_b32 v{r_+1}, 0x{f32bits(val):08x}")
        a.nop(8)
        pr = lambda r: f"v[{r}:{r+1}]"
        for tau in range(nt):
            x = ACC + 4*tau; Uu, E, Yv = GT, GT+4, GT+8
            for h in (0, 2): e(f"v_pk_mul_f32 {pr(Uu+h)}, {pr(x+h)}, {pr(x+h)}")
            for h in (0, 2): e(f"v_pk_fma_f32 {pr(Uu+h)}, {pr(Uu+h)}, {pr(c1)}, {pr(c0)}")
            for h in (0, 2): e(f"v_pk_mul_f32 {pr(Uu+h)}, {pr(x+h)}, {pr(Uu+h)}")
            for r in range(4): e(f"v_exp_f32 v{E+r}, v{Uu+r}")
            for h in (0, 2): e(f"v_pk_mul_f32 {pr(Yv+h)}, {pr(x+h)}, v[{W2R+(tau&~1)}:{W2R+(tau&~1)+1}] op_sel:[0,{tau&1}] op_sel_hi:[1,{tau&1}]")
            for h in (0, 2): e(f"v_pk_add_f32 {pr(E+h)}, {pr(E+h)}, {pr(one)}")
            for r in range(4): e(f"v_rcp_f32 v{E+r}, v{E+r}")
            e("s_nop 0")
            for h in (0, 2): e(f"v_pk_fma_f32 {pr(OUT+h)}, {pr(Yv+h)}, {pr(E+h)}, {pr(OUT+h)}")
        st("gelu")
        for sh in (8, 4, 2, 1):
            a.nop(2)
            for r in range(4): e(f"v_add_f32_dpp v{OUT+r}, v{OUT+r}, v{OUT+r} row_ror:{sh} row_mask:0xf bank_mask:0xf")
        e(f"s_lshl_b32 s63, s{sD}, 6"); e(f"s_add_u32 s63, s63, {RED2}")
        e(f"v_lshlrev_b32 v{GT}, 4, v{vG}"); e(f"v_add_u32 v{GT}, s63, v{GT}")
        e(f"ds_write_b128 v{GT}, v[{OUT}:{OUT+3}]")
    emit_D(4)
    e("s_branch L_final")
    a.label("L_D3")
    emit_D(3)

    a.label("L_final")
    e("s_waitcnt lgkmcnt(0)")
    e("s_barrier")
    st("fin")
    if stamp is not None:
        wg, wv = [int(x) for x in stamp.split("_")]
        e(f"s_cmp_eq_u32 s2, {wg}"); e("s_cbranch_scc0 L_nost")
        e(f"s_cmp_eq_u32 s{sW}, {wv}"); e("s_cbranch_scc0 L_nost")
        e(f"v_lshlrev_b32 v30, 2, v{vLane}")
        e("s_mov_b64 exec, 0xffff")
        e(f"global_store_dword v30, v{vSt}, s[96:97]")
        e("s_mov_b64 exec, -1")
        a.label("L_nost")
    e(f"s_cmp_eq_u32 s{sW}, 0"); e("s_cbranch_scc0 L_end")
    e(f"v_lshlrev_b32 v8, 3, v{vL15}"); e(f"v_add_u32 v8, {RED}, v8")
    e(f"v_lshlrev_b32 v9, 2, v{vL15}"); e(f"v_add_u32 v9, {RED2}, v9")
    e("ds_read_b64 v[10:11], v8")
    for d in range(4): e(f"ds_read_b32 v{12+d}, v9 offset:{d*64}")
    e("s_lshl_b32 s47, s47, 16")
    e("s_mov_b32 s68, s20"); e("s_mov_b32 s69, s21"); e("s_mov_b32 s70, 8192"); e("s_mov_b32 s71, 0x20000")
    e("s_lshl_b32 s63, s2, 5")
    e(f"v_lshlrev_b32 v16, 1, v{vL15}")
    e("s_waitcnt lgkmcnt(0)")
    e("v_add_f32 v10, v10, v11"); e("v_add_f32 v12, v12, v13"); e("v_add_f32 v14, v14, v15")
    e("v_add_f32 v12, v12, v14"); e("v_add_f32 v10, v10, v12"); e("v_add_f32 v10, s47, v10")
    e("v_cvt_pk_bf16_f32 v10, v10, v10")
    e("s_mov_b64 exec, 0xffff")
    e("buffer_store_short v10, v16, s[68:71], s63 offen")
    a.label("L_end")
    e("s_endpgm")
    a.label("CODE_END")
    return a

HEADER = """; xDeepFM (CIN + DNN) fused kernel for gfx950 -- generated by my own script
; @launch grid=(256,1,1) block=(512,1,1) lds=163840
.amdgcn_target "amdgcn-amd-amdhsa--gfx950"
.text
.globl {k}
.p2align 8
.type {k},@function
"""
FOOTER = """
.section .rodata,"a"
.p2align 6
.amdhsa_kernel {k}
  .amdhsa_next_free_vgpr {nv}
  .amdhsa_next_free_sgpr 102
  .amdhsa_accum_offset {nv}
  .amdhsa_group_segment_fixed_size 0
  .amdhsa_kernarg_size 88
  .amdhsa_user_sgpr_count 2
  .amdhsa_user_sgpr_kernarg_segment_ptr 1
  .amdhsa_system_sgpr_workgroup_id_x 1
.end_amdhsa_kernel
"""
if __name__ == "__main__":
    opts = dict(x.split("=") for x in sys.argv[2:])
    a = gen(opts)
    body = a.text()
    probs = check_hazards(body)
    for p in probs: print("HAZARD:", p, file=sys.stderr)
    open(sys.argv[1], "w").write(HEADER.format(k=KNAME) + body + FOOTER.format(k=KNAME, nv=232))
    print("written", sys.argv[1], "hazards:", len(probs), file=sys.stderr)
```

```python
import sys, struct
from asmlib import Asm, check_hazards

KNAME = "standalone__deep_cross_xdeepfm__recsys_kernel"
FS, HS = 1040, 528
F1 = 0; F2 = 23920
W3L = F2
RING = 59072; SLOT = 26624
W2L = 112816
QB = 147968
X0 = 150016
W1F = 163328; RED = W1F + 128; RED2 = RED + 128
DUM = 0x30000
BIG = 0x10000000
def f32bits(x): return struct.unpack("<I", struct.pack("<f", x))[0]

class Track:
    def __init__(self, a, name, cap): self.a, self.name, self.cap, self.l = a, name, cap, []
    def add(self, tag, n=1): self.l.extend([tag]*n)
    def count(self, tag):
        idx = [i for i, t in enumerate(self.l) if t == tag]
        assert idx, tag
        return min(len(self.l) - 1 - idx[-1], self.cap)
    def wait(self, tag): self.a.e(f"s_waitcnt {self.name}({self.count(tag)})")

def gen(opts):
    a = Asm(); e = a.e
    dbg = opts.get("dbg"); stamp = opts.get("stamp"); pf = opts.get("pf", "184")
    prio = int(opts.get("prio", "2")); pk = int(opts.get("pk", "1"))
    n3first = int(opts.get("n3", "3"))
    mode = opts.get("mode", "B")
    kin = int(opts.get("kin", "4"))
    sM = 23
    sW = 22; sC = 66
    SRD_IDX, SRD_TAB, SRD_WS, SRD_WD, SRD_T = 24, 28, 32, 36, 40
    def srd(base, ptr, nbytes):
        e(f"s_mov_b32 s{base}, s{ptr}"); e(f"s_mov_b32 s{base+1}, s{ptr+1}")
        e(f"s_mov_b32 s{base+2}, {nbytes}"); e(f"s_mov_b32 s{base+3}, 0x20000")
    vLane, vL15, vG = 1, 2, 3
    t0, t1, t2, t3, t4, t5, t6, t7 = 8, 9, 10, 11, 12, 13, 14, 15
    vL16 = 26; vDum = 24
    vSt = 231
    STI = dict(karg=0, issued=1, bi=2, idx=3, w1=4, s1=5, weff=6, b2=7, s2=8, b3=9, xld=10, main=11, gelu=12, fin=13, sb1=14)
    def st(name):
        if stamp is None: return
        e("s_memtime s[84:85]"); e("s_waitcnt lgkmcnt(0)")
        if name == "entry":
            e("s_mov_b32 s86, s84"); e(f"v_mov_b32 v{vSt}, 0")
        else:
            e("s_sub_u32 s84, s84, s86"); e(f"v_writelane_b32 v{vSt}, s84, {STI[name]}")
    combos = [(0,0,0),(0,0,1),(1,0,0),(1,0,1),(1,1,0),(1,1,1)]
    sSh = 62
    def scatter_addr(SA, Fb, shifted, gmax):
        g0, gp0, hb, gpv = 16, 17, 18, 19
        q, off, lim, gq = 20, 21, 22, 23
        e(f"v_lshlrev_b32 v{g0}, 1, v{vG}")
        e(f"v_lshrrev_b32 v{gp0}, 1, v{vL15}")
        if shifted:
            e(f"v_subrev_u32 v{g0}, s{sSh}, v{g0}"); e(f"v_subrev_u32 v{gp0}, s{sSh}, v{gp0}")
        e(f"v_and_b32 v{hb}, 1, v{vL15}")
        e(f"v_mul_u32_u24 v{hb}, {HS}, v{hb}")
        e(f"s_lshl_b32 s65, s{sC}, 4")
        if Fb: e(f"s_add_u32 s65, s65, {Fb}")
        e(f"v_add_u32 v{hb}, s65, v{hb}")
        for ci, (aa, bb, pp) in enumerate(combos):
            cg = 8*aa + pp; m0_, m1_ = 88 + 4*(ci % 2), 90 + 4*(ci % 2)
            e(f"v_add_u32 v{gq}, {cg}, v{g0}")
            e(f"v_mad_i32_i24 v{q}, v{gq}, v{gq}, v{gq}")
            e(f"v_lshrrev_b32 v{q}, 1, v{q}")
            e(f"v_add3_u32 v{q}, v{q}, v{gp0}, {8*bb}")
            e(f"v_min_u32 v{lim}, 12, v{gq}")
            e(f"v_cmp_ge_u32 s[{m0_}:{m0_+1}], {gmax}, v{gq}")
            e(f"v_add_u32 v{gpv}, {8*bb}, v{gp0}")
            e(f"v_and_b32 v{off}, 0x7c, v{q}")
            e(f"v_cmp_le_u32 s[{m1_}:{m1_+1}], v{gpv}, v{lim}")
            e(f"v_lshlrev_b32 v{off}, 8, v{off}")
            e(f"v_lshl_add_u32 v{off}, v{q}, 2, v{off}")
            e(f"s_and_b64 s[{m0_}:{m0_+1}], s[{m0_}:{m0_+1}], s[{m1_}:{m1_+1}]")
            e(f"v_add_u32 v{off}, v{off}, v{hb}")
            e(f"v_cndmask_b32 v{SA+ci}, v{vDum}, v{off}, s[{m0_}:{m0_+1}]")
    def mf6(D, A0, A1, B0, B1):
        return [
         f"v_mfma_f32_16x16x32_bf16 v[{D}:{D+3}], v[{A0}:{A0+3}], v[{B0}:{B0+3}], 0",
         f"v_mfma_f32_16x16x32_bf16 v[{D+4}:{D+7}], v[{A1}:{A1+3}], v[{B0}:{B0+3}], 0",
         f"v_mfma_f32_16x16x32_bf16 v[{D+8}:{D+11}], v[{A1}:{A1+3}], v[{B1}:{B1+3}], 0",
         f"v_mfma_f32_16x16x32_bf16 v[{D}:{D+3}], v[{B0}:{B0+3}], v[{A0}:{A0+3}], v[{D}:{D+3}]",
         f"v_mfma_f32_16x16x32_bf16 v[{D+4}:{D+7}], v[{B1}:{B1+3}], v[{A0}:{A0+3}], v[{D+4}:{D+7}]",
         f"v_mfma_f32_16x16x32_bf16 v[{D+8}:{D+11}], v[{B1}:{B1+3}], v[{A1}:{A1+3}], v[{D+8}:{D+11}]"]

    a.label(KNAME)
    st("entry")
    e("s_cmp_ge_u32 s2, 256")
    e("s_cbranch_scc1 L_end")
    e("s_load_dwordx16 s[4:19], s[0:1], 0")
    e("s_load_dwordx2 s[20:21], s[0:1], 64")
    if dbg or stamp: e("s_load_dwordx4 s[96:99], s[0:1], 72")
    if pf != "0":
        e("s_getpc_b64 s[88:89]")
        e("v_lshlrev_b32 v28, 7, v0")
        e(f"v_min_u32 v28, CODE_END-{KNAME}-256, v28")
        e("v_mov_b32 v29, s89")
        e("v_add_co_u32 v28, vcc, s88, v28")
        e("s_nop 1")
        e("v_addc_co_u32 v29, vcc, 0, v29, vcc")
        e(f"s_movk_i32 s90, {int(pf)}")
        e("v_cmp_gt_u32 vcc, s90, v0")
        e("s_nop 0")
        e("s_and_saveexec_b64 s[92:93], vcc")
        e("s_cbranch_execz L_nopf")
        e("global_load_dword v30, v[28:29], off")
        a.label("L_nopf")
        e("s_mov_b64 exec, -1")
    e(f"v_lshrrev_b32 v{t4}, 6, v0")
    e(f"v_and_b32 v{vLane}, 63, v0")
    e(f"v_and_b32 v{vL15}, 15, v0")
    e(f"v_readfirstlane_b32 s{sW}, v{t4}")
    e(f"v_bfe_u32 v{vG}, v0, 4, 2")
    e(f"v_lshrrev_b32 v{t6}, 1, v{vLane}")
    e(f"v_lshlrev_b32 v{t6}, 2, v{t6}")
    e("s_lshl_b32 s61, s2, 4")
    e(f"s_and_b32 s{sC}, s{sW}, 3")
    e(f"s_lshl_b32 s62, s{sC}, 2")
    e("s_add_u32 s61, s61, s62")
    e("s_mul_i32 s61, s61, 104")
    e(f"s_bfe_u32 s{sM}, s2, 0x10003")
    for r in (t0, t1, t2, t3): e(f"v_mov_b32 v{r}, 0")
    e(f"v_lshlrev_b32 v{t4}, 4, v0")
    for k in range(3): e(f"ds_write_b128 v{t4}, v[{t0}:{t3}] offset:{k*8192}")
    e(f"v_and_b32 v{t5}, 127, v0")
    e(f"v_lshlrev_b32 v{t5}, 4, v{t5}")
    e(f"v_add_u32 v{t5}, {QB}, v{t5}")
    e(f"ds_write_b128 v{t5}, v[{t0}:{t3}]")
    e(f"v_lshlrev_b32 v{vL16}, 4, v{vLane}")
    e(f"v_mov_b32 v{vDum}, {DUM}")
    e("s_waitcnt lgkmcnt(0)")
    e("s_barrier")
    st("karg")
    e(f"s_cmp_lt_u32 s{sW}, 4"); e("s_cbranch_scc1 L_touch0")
    vIdx = 4
    srd(SRD_IDX, 4, 4096*26*4)
    for k in range(4):
        e(f"buffer_load_dword v{vIdx+k}, v{t6}, s[{SRD_IDX}:{SRD_IDX+3}], s61 offen offset:{104*k}")
    a.label("L_touch0")
    e("s_lshr_b32 s62, s2, 3"); e("s_and_b32 s62, s62, 31")
    e(f"v_lshlrev_b32 v{t5}, 7, v{vLane}")
    e(f"s_mov_b32 s{SRD_T}, s12"); e(f"s_mov_b32 s{SRD_T+1}, s13"); e(f"s_mov_b32 s{SRD_T+3}, 0x20000")
    e("s_mul_i32 s63, s62, 10880"); e("s_add_u32 s64, s63, 10880"); e("s_min_u32 s64, s64, 346112")
    e(f"s_mov_b32 s{SRD_T+2}, s64")
    e(f"s_cmp_eq_u32 s{sW}, 4"); e("s_cbranch_scc1 L_touch")
    e("s_add_u32 s63, s63, 8192")
    e(f"s_cmp_eq_u32 s{sW}, 5"); e("s_cbranch_scc1 L_touch")
    e(f"s_mov_b32 s{SRD_T}, s8"); e(f"s_mov_b32 s{SRD_T+1}, s9")
    e("s_mul_i32 s63, s62, 3328"); e("s_add_u32 s64, s63, 3328"); e("s_min_u32 s64, s64, 105456")
    e(f"s_mov_b32 s{SRD_T+2}, s64")
    e(f"s_cmp_eq_u32 s{sW}, 6"); e("s_cbranch_scc1 L_touch")
    e(f"s_mov_b32 s{SRD_T}, s6"); e(f"s_mov_b32 s{SRD_T+1}, s7"); e(f"s_mov_b32 s{SRD_T+2}, 3200000")
    e("s_mov_b32 s63, 0")
    e(f"v_lshlrev_b32 v{t5}, 16, v{vLane}")
    e(f"s_cmp_eq_u32 s{sW}, 7"); e("s_cbranch_scc1 L_touch")
    e("s_branch L_C")
    a.label("L_touch")
    e(f"buffer_load_dword v31, v{t5}, s[{SRD_T}:{SRD_T+3}], s63 offen")
    e("s_branch L_D")

    a.label("L_C")
    vm = Track(a, "vmcnt", 63); lg = Track(a, "lgkmcnt", 15)
    SA2 = 154
    DS = [160, 172]; CV = [184, 190]
    vWs = 25; W3F = 32
    e("s_mov_b32 s68, s10"); e("s_mov_b32 s69, s11"); e("s_mov_b32 s70, 156"); e("s_mov_b32 s71, 0x20000")
    e(f"v_lshlrev_b32 v{t6}, 1, v{vLane}")
    e(f"buffer_load_ushort v{vWs}, v{t6}, s[68:71], 0 offen"); vm.add("ws")
    e(f"v_lshlrev_b32 v{t6}, 4, v{vG}")
    e(f"buffer_load_dwordx4 v[{W3F}:{W3F+3}], v{t6}, s[68:71], 0 offen offset:104"); vm.add("w3f")
    e("s_load_dword s47, s[18:19], 0")
    e(f"s_and_b32 s{sSh}, s{sC}, 1")
    scatter_addr(SA2, F2, True, 13)
    vH1, vH2 = 72, 73
    e(f"v_lshrrev_b32 v{t5}, 2, v{vL15}")
    e(f"v_lshl_add_u32 v{t5}, v{vG}, 3, v{t5}")
    e(f"v_add_u32 v{t6}, 4, v{t5}")
    e(f"v_min_u32 v{t5}, 25, v{t5}"); e(f"v_min_u32 v{t6}, 25, v{t6}")
    e(f"v_and_b32 v{t7}, 3, v{vL15}"); e(f"v_lshlrev_b32 v{t7}, 3, v{t7}")
    e("s_movk_i32 s64, 1352")
    e(f"v_mad_u32_u24 v{vH1}, v{t5}, s64, v{t7}"); e(f"v_mad_u32_u24 v{vH2}, v{t6}, s64, v{t7}")
    QA = 76
    for j in range(3):
        ee, h, k_, ad = t4, t5, t6, QA + j
        e(f"s_lshl_b32 s63, s{sC}, 6"); e(f"s_add_u32 s63, s63, {256*j}")
        e(f"v_add_u32 v{ee}, s63, v{vLane}")
        e(f"v_mul_u32_u24 v{h}, 2521, v{ee}"); e(f"v_lshrrev_b32 v{h}, 16, v{h}")
        e(f"v_mul_u32_u24 v{k_}, 26, v{h}"); e(f"v_sub_u32 v{k_}, v{ee}, v{k_}")
        e(f"v_cmp_gt_u32 vcc, 676, v{ee}")
        e(f"v_lshrrev_b32 v{ad}, 4, v{k_}"); e(f"v_lshlrev_b32 v{ad}, 10, v{ad}")
        e(f"v_and_b32 v{k_}, 15, v{k_}"); e(f"v_lshl_add_u32 v{ad}, v{k_}, 4, v{ad}")
        e(f"v_lshrrev_b32 v{k_}, 3, v{h}"); e(f"v_lshl_add_u32 v{ad}, v{k_}, 8, v{ad}")
        e(f"v_and_b32 v{h}, 7, v{h}"); e(f"v_lshl_add_u32 v{ad}, v{h}, 1, v{ad}")
        e(f"v_add_u32 v{ad}, {QB}, v{ad}")
        e(f"v_cndmask_b32 v{ad}, v{vDum}, v{ad}, vcc")
    vT1, vT2 = 37, 38
    e(f"s_lshl_b32 s63, s{sC}, 7"); e(f"s_add_u32 s63, s63, {W3L}")
    e(f"v_add_u32 v{vT1}, s63, v{vH1}"); e(f"v_add_u32 v{vT2}, s63, v{vH2}")
    TA1, TA2, vM = 39, 75, 74
    e(f"s_mul_i32 s63, s{sC}, 52"); e(f"s_lshl_b32 s64, s{sSh}, 2"); e("s_sub_u32 s63, s63, s64"); e(f"s_add_u32 s63, s63, {W2L}")
    e(f"v_add_u32 v{TA1}, s63, v{vH1}"); e(f"v_add_u32 v{TA2}, s63, v{vH2}")
    e(f"s_lshl_b32 s64, s{sSh}, 1"); e("s_add_u32 s64, s64, 10")
    e(f"v_cmp_gt_u32 vcc, s64, v{vL15}")
    QAD = [44, 45]
    e(f"s_lshl_b32 s63, s{sSh}, 1")
    e("s_nop 0")
    e(f"v_cndmask_b32 v{vM}, 0, -1, vcc")
    for aa in range(2):
        e(f"v_subrev_u32 v{t4}, s63, v{vL15}")
        if aa: e(f"v_add_u32 v{t4}, 16, v{t4}")
        e(f"v_min_u32 v{t4}, 31, v{t4}")
        e(f"v_lshrrev_b32 v{t5}, 4, v{t4}"); e(f"v_lshlrev_b32 v{t5}, 10, v{t5}")
        e(f"v_and_b32 v{t4}, 15, v{t4}"); e(f"v_lshl_add_u32 v{t5}, v{t4}, 4, v{t5}")
        e(f"v_lshl_add_u32 v{t5}, v{vG}, 8, v{t5}")
        e(f"v_add_u32 v{QAD[aa]}, {QB}, v{t5}")
    vFa = 226
    e(f"v_lshrrev_b32 v{t5}, 5, v{vLane}")
    e(f"v_mul_u32_u24 v{t6}, {HS}, v{t5}")
    e(f"v_and_b32 v{t7}, 31, v{vLane}")
    e(f"v_lshl_add_u32 v{vFa}, v{t7}, 4, v{t6}")
    st("w1")
    vm.wait("w3f")
    e(f"v_lshlrev_b32 v{t5}, 16, v{vWs}")
    e(f"v_cmp_gt_u32 s[88:89], 26, v{vLane}")
    e(f"v_cmp_gt_u32 s[90:91], 32, v{vLane}")
    e(f"v_lshlrev_b32 v{t6}, 2, v{vLane}")
    e(f"v_add_u32 v{t6}, {W1F}, v{t6}")
    e(f"v_cndmask_b32 v{t5}, 0, v{t5}, s[88:89]")
    e(f"v_cndmask_b32 v{t6}, v{vDum}, v{t6}, s[90:91]")
    e(f"ds_write_b32 v{t6}, v{t5}")
    e(f"v_subrev_u32 v{t5}, 26, v{vLane}")
    e(f"v_cmp_gt_u32 s[88:89], 26, v{t5}")
    e(f"v_lshrrev_b32 v{t6}, 3, v{t5}")
    e(f"v_lshlrev_b32 v{t6}, 8, v{t6}")
    e(f"v_and_b32 v{t7}, 7, v{t5}")
    e(f"v_lshl_add_u32 v{t6}, v{t7}, 1, v{t6}")
    e(f"v_add_u32 v{t6}, {QB+1024+160}, v{t6}")
    e(f"v_cndmask_b32 v{t6}, v{vDum}, v{t6}, s[88:89]")
    e(f"ds_write_b16 v{t6}, v{vWs}")
    AW = 56
    for gq in range(4): e(f"v_cmp_eq_u32 s[{88+2*gq}:{89+2*gq}], {4*gq}, v{vL15}")
    for gq in range(4):
        for j in range(4): e(f"v_cndmask_b32 v{AW+4*gq+j}, 0, v{W3F+j}, s[{88+2*gq}:{89+2*gq}]")
    e("s_waitcnt lgkmcnt(0)")
    e("s_barrier")
    st("bi")
    a.c("Weff")
    WB = 80; WD = 128
    for j in range(3):
        for gq in range(4):
            b = WB + 16*j + 4*gq
            e(f"ds_read_b64_tr_b16 v[{b}:{b+1}], v{vT1} offset:{j*512+32*gq}")
            e(f"ds_read_b64_tr_b16 v[{b+2}:{b+3}], v{vT2} offset:{j*512+32*gq}")
    for j in range(3):
        e(f"s_waitcnt lgkmcnt({min(15, 8*(2-j))})")
        for gq in range(4):
            b = WB + 16*j + 4*gq; d = WD + 4*j
            c = "0" if gq == 0 else f"v[{d}:{d+3}]"
            e(f"v_mfma_f32_16x16x32_bf16 v[{d}:{d+3}], v[{AW+4*gq}:{AW+4*gq+3}], v[{b}:{b+3}], {c}")
    a.nop(8)
    for j in range(3): e(f"v_cvt_pk_bf16_f32 v{t4+j}, v{WD+4*j}, v{WD+4*j}")
    for j in range(3): e(f"ds_write_b16 v{QA+j}, v{t4+j}")
    st("weff")
    e("s_waitcnt vmcnt(0) lgkmcnt(0)")
    e("s_barrier")
    st("b2")
    a.c("S2")
    Q0, Q1 = 140, 144
    lg.l = []
    e(f"ds_read_b128 v[{Q0}:{Q0+3}], v{QAD[0]}"); e(f"ds_read_b128 v[{Q1}:{Q1+3}], v{QAD[1]}"); lg.add("q", 2)
    PS = [48, 56, 64]
    cvt = lambda k, j: f"v_cvt_pk_bf16_f32 v{CV[k&1]+j}, v{DS[k&1]+2*j}, v{DS[k&1]+2*j+1}"
    wr = lambda SA, k, j: f"ds_write_b32 v{SA+j}, v{CV[k&1]+j} offset:{k*64}"
    def p_reads(k):
        P = PS[k % 3]
        return [f"ds_read_b64_tr_b16 v[{P}:{P+1}], v{TA1} offset:{k*208}",
                f"ds_read_b64_tr_b16 v[{P+2}:{P+3}], v{TA2} offset:{k*208}",
                f"ds_read_b64_tr_b16 v[{P+4}:{P+5}], v{TA1} offset:{k*208+32}",
                f"ds_read_b64_tr_b16 v[{P+6}:{P+7}], v{TA2} offset:{k*208+32}"]
    for k in (0, 1):
        for x in p_reads(k): e(x)
        lg.add(f"p{k}", 4)
    def masks(k): return [f"v_and_b32 v{PS[k%3]+4+j}, v{vM}, v{PS[k%3]+4+j}" for j in range(4)]
    lg.wait("p0")
    for x in masks(0): e(x)
    a.nop(1)
    for k in range(9):
        M = mf6(DS[k & 1], PS[k % 3], PS[k % 3]+4, Q0, Q1) if k < 7 else [None]*6
        R = p_reads(k+2) if k + 2 < 7 else []
        if k == 7: a.nop(4)
        if k == 8:
            e(f"s_cmp_lt_u32 s{sC}, 2"); e("s_cbranch_scc1 L_s2v")
            for j in range(6): e(f"v_mov_b32 v{SA2+j}, v{vDum}")
            a.label("L_s2v")
        for j in range(6):
            if j == 4 and k + 1 < 7:
                lg.wait(f"p{k+1}")
                for x in masks(k+1): e(x)
            if M[j]: e(M[j])
            if k >= 2: e(wr(SA2, k-2, j)); lg.add("w")
            if 1 <= k <= 7: e(cvt(k-1, j))
            if j < len(R): e(R[j]); lg.add(f"p{k+2}")
    st("s2")
    e("s_waitcnt lgkmcnt(0)")
    e("s_barrier")
    e("s_barrier")
    st("b3")
    if dbg == "lds":
        e("s_cmp_eq_u32 s2, 0"); e("s_cbranch_scc0 L_nodump")
        e(f"v_lshlrev_b32 v{t4}, 4, v0")
        for k in range(40):
            e(f"v_add_u32 v{t5}, {k*4096}, v{t4}")
            e(f"ds_read_b128 v[{t0}:{t3}], v{t5}")
            e("s_waitcnt lgkmcnt(0)")
            e(f"global_store_dwordx4 v{t5}, v[{t0}:{t3}], s[98:99]")
            e("s_waitcnt vmcnt(0)")
        a.label("L_nodump")
    a.c("C main")
    XA, YA, XB, YB = 8, 34, 47, 73
    D1A, D2A, D1B, D2B = 96, 112, 128, 144
    ZB = [[160, 164], [168, 172]]
    AB = [176, 184, 192]
    TM = [200, 201, 202, 203, 204, 205, 206, 207]
    WI = 208; vXb = 224; PK = 176
    e(f"v_and_b32 v{TM[4]}, 1, v{vG}")
    e(f"s_lshl_b32 s63, s{sC}, 2")
    e(f"v_add_u32 v{TM[4]}, s63, v{TM[4]}")
    e(f"v_mul_u32_u24 v{TM[4]}, 832, v{TM[4]}")
    e(f"v_lshrrev_b32 v{TM[5]}, 2, v{vL15}")
    e(f"v_lshl_add_u32 v{TM[4]}, v{TM[5]}, 5, v{TM[4]}")
    e(f"v_and_b32 v{TM[5]}, 3, v{vL15}")
    e(f"v_lshl_add_u32 v{TM[4]}, v{TM[5]}, 3, v{TM[4]}")
    e(f"v_add_u32 v{vXb}, {X0}, v{TM[4]}")
    safe = int(opts.get("safe", "0"))
    for T in range(2):
        for fb in range(7):
            e(f"ds_read_b64_tr_b16 v[{PK+14*T+2*fb}:{PK+14*T+2*fb+1}], v{vXb} offset:{T*1664 + fb*128}")
    e(f"v_lshrrev_b32 v{TM[5]}, 5, v{vLane}")
    e(f"v_lshlrev_b32 v{TM[6]}, 4, v{TM[5]}")
    e(f"v_add_u32 v{TM[6]}, {W1F}, v{TM[6]}")
    if safe: e("s_waitcnt lgkmcnt(0)")
    for m in range(4): e(f"ds_read_b128 v[{WI+4*m}:{WI+4*m+3}], v{TM[6]} offset:{m*32}")
    e(f"v_cmp_eq_u32 s[72:73], 1, v{TM[5]}")
    for T, (X, Y) in enumerate(((XA, YA), (XB, YB))):
        e(f"s_waitcnt lgkmcnt({11 if T == 0 else 4})")
        for g in range(13):
            p = PK + 14*T + g
            e(f"v_lshlrev_b32 v{X+2*g}, 16, v{p}")
            e(f"v_and_b32 v{X+2*g+1}, 0xffff0000, v{p}")
        for g in range(13): e(f"v_cndmask_b32 v{Y+g}, v{X+2*g}, v{X+2*g+1}, s[72:73]")
    def a_read(t):
        b = AB[t % 3]
        if t <= 22: e(f"ds_read_b128 v[{b}:{b+3}], v{vFa} offset:{F1 + t*FS}")
        if t <= 25: e(f"ds_read_b128 v[{b+4}:{b+7}], v{vFa} offset:{F2 + t*FS}")
    blocks = [(g, gp) for g in range(14) for gp in range(min(g, 12)+1)]
    def zgen(t, T):
        X, Y = ((XA, YA), (XB, YB))[T]
        z = ZB[t & 1][T]; mul = []; cv = []
        for j in range(4):
            g, gp = blocks[4*t + j]
            ta, tb, th = TM[2*j], TM[2*j+1], 228 + T
            if g == 13: cv.append(f"v_cvt_pk_bf16_f32 v{z+j}, v{Y+gp}, 0")
            else:
                y = Y + gp
                if g == gp:
                    mul.append(f"v_mul_f32 v{th}, 0.5, v{Y+gp}"); y = th
                mul.append(f"v_mul_f32 v{ta}, v{X+2*g}, v{y}")
                mul.append(f"v_mul_f32 v{tb}, v{X+2*g+1}, v{y}")
                cv.append(f"v_cvt_pk_bf16_f32 v{z+j}, v{ta}, v{tb}")
        return mul + cv
    st("xld")
    a_read(0); a_read(1)
    for T in range(2):
        for s in zgen(0, T): e(s)
    cnt = {t: (1 if t > 22 else 2) for t in range(26)}
    for t in range(26):
        younger = cnt[t+1] if t+1 <= 25 else 0
        e(f"s_waitcnt lgkmcnt({younger})")
        b = AB[t % 3]; mf = []; rds = []
        if t + 2 <= 25:
            b2 = AB[(t+2) % 3]
            if t + 2 <= 22: rds.append(f"ds_read_b128 v[{b2}:{b2+3}], v{vFa} offset:{F1 + (t+2)*FS}")
            rds.append(f"ds_read_b128 v[{b2+4}:{b2+7}], v{vFa} offset:{F2 + (t+2)*FS}")
        for T, (D1, D2) in enumerate(((D1A, D2A), (D1B, D2B))):
            z = ZB[t & 1][T]
            if t <= 22:
                c = "0" if t == 0 else f"v[{D1}:{D1+15}]"
                mf.append(f"v_mfma_f32_32x32x16_bf16 v[{D1}:{D1+15}], v[{b}:{b+3}], v[{z}:{z+3}], {c}")
            c = f"v[{WI}:{WI+15}]" if t == 0 else f"v[{D2}:{D2+15}]"
            mf.append(f"v_mfma_f32_32x32x16_bf16 v[{D2}:{D2+15}], v[{b+4}:{b+7}], v[{z}:{z+3}], {c}")
        va = (zgen(t+1, 0) + zgen(t+1, 1)) if t < 25 else []
        n = len(mf); per = (len(va) + n - 1)//n if va else 0
        if t == 0: a.nop(2)
        vi = 0
        for mi, m in enumerate(mf):
            e(m)
            if mi < len(rds): e(rds[mi])
            for s in va[vi:vi+per]: e(s)
            vi += per
    a.nop(16)
    st("main")
    for T, (D1, D2) in enumerate(((D1A, D2A), (D1B, D2B))): e(f"v_mul_f32 v{TM[T]}, v{D1}, v{D2}")
    for r in range(1, 14):
        for T, (D1, D2) in enumerate(((D1A, D2A), (D1B, D2B))): e(f"v_fmac_f32 v{TM[T]}, v{D1+r}, v{D2+r}")
    for sh in (8, 4, 2, 1):
        a.nop(2)
        for T in range(2): e(f"v_add_f32_dpp v{TM[T]}, v{TM[T]}, v{TM[T]} row_ror:{sh} row_mask:0xf bank_mask:0xf")
    e(f"v_bfe_u32 v{TM[2]}, v{vLane}, 4, 1")
    e(f"v_lshlrev_b32 v{TM[2]}, 3, v{TM[2]}")
    e(f"v_lshrrev_b32 v{TM[3]}, 5, v{vLane}")
    e(f"v_lshl_add_u32 v{TM[2]}, v{TM[3]}, 2, v{TM[2]}")
    e(f"s_lshl_b32 s63, s{sC}, 5"); e(f"s_add_u32 s63, s63, {RED}")
    e(f"v_add_u32 v{TM[2]}, s63, v{TM[2]}")
    e(f"ds_write_b32 v{TM[2]}, v{TM[0]}")
    e(f"ds_write_b32 v{TM[2]}, v{TM[1]} offset:16")
    e("s_branch L_final")

    a.label("L_D")
    sD, sDB, sK, sNI = 66, 67, 80, 79
    srd(SRD_TAB, 6, 3200000)
    srd(SRD_WD, 12, 346112)
    srd(SRD_WS, 8, 105456)
    P = 16; ACC = 32; BB = [64, 96]; AF = [128, 132]; TRA = 136; W2R = 144; BIAS = 152; OUT = 160; GT = 164; vC0 = 184; vA = 185
    W1R = 64; I0, I1 = 120, 124
    SA1 = 192; DSd = [198, 210]; CVd = [222, 164]
    vW1 = 27
    e(f"s_cmp_eq_u32 s{sD}, 0"); e("s_cbranch_scc0 L_nobias")
    for ptr, off in ((14, 0), (16, 1024)):
        e(f"s_mov_b32 s68, s{ptr}"); e(f"s_mov_b32 s69, s{ptr+1}"); e("s_mov_b32 s70, 832"); e("s_mov_b32 s71, 0x20000")
        e(f"s_mov_b32 m0, {RING+off}"); e("s_nop 0")
        e(f"buffer_load_dwordx4 v{vL16}, s[68:71], 0 offen lds")
    a.label("L_nobias")
    sLS, sLD = 72, 73
    def lin_start(src, dst):
        e(f"s_lshl_b32 s{sLD}, s{sD}, 10")
        e(f"s_add_u32 s{sLS}, s{sLD}, {src}"); e(f"s_add_u32 s{sLD}, s{sLD}, {dst}")
    uid = [0]
    def lin_one(k):
        if k < 8:
            e(f"s_mov_b32 m0, s{sLD}"); e(f"s_add_u32 s{sLD}, s{sLD}, 4096")
            e(f"buffer_load_dwordx4 v{vL16}, s[{SRD_WS}:{SRD_WS+3}], s{sLS} offen lds")
            e(f"s_add_u32 s{sLS}, s{sLS}, 4096")
        else:
            uid[0] += 1; lab = f"L_lin{uid[0]}"
            e(f"s_cmp_lt_u32 s{sD}, 2"); e(f"s_cbranch_scc1 {lab}")
            e("s_mov_b64 exec, 0x1fffff")
            e(f"s_cmp_eq_u32 s{sD}, 2"); e(f"s_cbranch_scc1 {lab}")
            e(f"s_mov_b32 s{sLS}, {BIG}"); e(f"s_mov_b32 s{sLD}, {DUM}")
            a.label(lab)
            e(f"s_mov_b32 m0, s{sLD}"); e("s_nop 0")
            e(f"buffer_load_dwordx4 v{vL16}, s[{SRD_WS}:{SRD_WS+3}], s{sLS} offen lds")
            e("s_mov_b64 exec, -1")
    lin_start(2*35152, W3L)
    for k in range(n3first): lin_one(k)
    e(f"v_and_b32 v{t0}, 1, v{vLane}"); e(f"v_lshlrev_b32 v{t0}, 4, v{t0}")
    e(f"v_lshlrev_b32 v{t4}, 3, v{vG}")
    e(f"v_sub_u32 v{t4}, v{vL15}, v{t4}")
    e(f"v_and_b32 v{t5}, 1, v{t4}")
    e(f"v_lshlrev_b32 v{t5}, 4, v{t5}")
    e(f"v_mov_b32 v{t6}, 0x3f80")
    e(f"v_lshlrev_b32 v{t5}, v{t5}, v{t6}")
    e(f"v_ashrrev_i32 v{t4}, 1, v{t4}")
    e(f"v_add_u32 v{t6}, 8, v{t4}")
    for j in range(4): e(f"v_cmp_eq_u32 s[{88+2*j}:{89+2*j}], {j}, v{t4}")
    for j in range(4): e(f"v_cndmask_b32 v{I0+j}, 0, v{t5}, s[{88+2*j}:{89+2*j}]")
    for j in range(4): e(f"v_cmp_eq_u32 s[{88+2*j}:{89+2*j}], {j}, v{t6}")
    for j in range(4): e(f"v_cndmask_b32 v{I1+j}, 0, v{t5}, s[{88+2*j}:{89+2*j}]")
    scatter_addr(SA1, F1, False, 12)
    e(f"v_mul_u32_u24 v{t7}, 52, v{vL15}")
    e(f"v_lshl_add_u32 v{vW1}, v{vG}, 4, v{t7}")
    e(f"s_mul_i32 s81, s{sD}, 192"); e("s_add_u32 s81, s81, 64")
    e(f"s_mul_i32 s{sDB}, s{sD}, 6144"); e(f"s_add_u32 s{sDB}, s{sDB}, {RING + 8192 - 6144}")
    e(f"s_cmp_eq_u32 s{sD}, 0")
    e("s_cselect_b32 s81, 0, s81"); e(f"s_cselect_b32 s{sDB}, {RING}, s{sDB}")
    e(f"s_cselect_b32 s{sNI}, 8, 6")
    e("s_movk_i32 s74, 5462"); e("s_cselect_b32 s74, 4096, s74")
    e("s_cselect_b32 s75, 16, 12")
    e("s_cselect_b32 s76, -1, 0")
    e("s_cselect_b32 s77, 0, 2")
    e("s_movk_i32 s78, 192"); e("s_cselect_b32 s78, 256, s78")
    for j in range(8):
        m, row, cp, sw = t1, t2, t3, t4
        e(f"v_add_u32 v{m}, {64*j}, v{vLane}")
        e(f"v_mul_u32_u24 v{row}, s74, v{m}"); e(f"v_lshrrev_b32 v{row}, 16, v{row}")
        e(f"v_mul_u32_u24 v{cp}, s75, v{row}"); e(f"v_sub_u32 v{cp}, v{m}, v{cp}")
        e(f"v_and_b32 v{sw}, 3, v{row}"); e(f"v_lshlrev_b32 v{sw}, 1, v{sw}"); e(f"v_and_b32 v{sw}, s76, v{sw}")
        e(f"v_and_b32 v{t5}, 8, v{row}"); e(f"v_lshrrev_b32 v{t5}, s77, v{t5}")
        e(f"v_or_b32 v{sw}, v{sw}, v{t5}")
        e(f"v_xor_b32 v{cp}, v{cp}, v{sw}")
        e(f"v_mul_u32_u24 v{row}, 832, v{row}")
        e(f"v_lshl_add_u32 v{cp}, v{cp}, 4, v{row}")
        e(f"v_add_u32 v{P+j}, s81, v{cp}")
    e(f"v_lshrrev_b32 v{t2}, 2, v{vL15}")
    e(f"v_lshl_add_u32 v{t3}, v{vG}, 3, v{t2}")
    e(f"v_mul_u32_u24 v{t3}, s78, v{t3}")
    e(f"v_and_b32 v{t4}, 3, v{vL15}")
    e(f"v_lshl_add_u32 v{t3}, v{t4}, 3, v{t3}")
    e(f"v_add_u32 v{t3}, s{sDB}, v{t3}")
    e(f"v_and_b32 v{t4}, 1, v{vG}")
    e(f"v_lshl_add_u32 v{t5}, v{t4}, 2, v{t2}")
    e(f"v_and_b32 v{t5}, s76, v{t5}")
    e(f"v_not_b32 v{t6}, s76"); e(f"v_and_b32 v{t4}, v{t6}, v{t4}")
    e(f"v_or_b32 v{t2}, v{t5}, v{t4}")
    for tau in range(8):
        e(f"v_xor_b32 v{t4}, {tau}, v{t2}")
        e(f"v_lshl_add_u32 v{TRA+tau}, v{t4}, 5, v{t3}")
    e(f"v_mul_u32_u24 v{vA}, 832, v{vL15}")
    e(f"v_lshl_add_u32 v{vA}, v{vG}, 4, v{vA}")
    e(f"v_add_u32 v{vA}, {X0}, v{vA}")
    st("w1")
    def w1_loads():
        e(f"s_mul_i32 s63, s{sD}, 1352")
        for k in range(7):
            if k == 6:
                e(f"s_cmp_lt_u32 s{sD}, 2"); e(f"s_cselect_b32 s63, s63, {BIG}")
            e(f"buffer_load_dwordx4 v[{W1R+8*k}:{W1R+8*k+3}], v{vW1}, s[{SRD_WS}:{SRD_WS+3}], s63 offen")
            e(f"buffer_load_dwordx4 v[{W1R+8*k+4}:{W1R+8*k+7}], v{vW1}, s[{SRD_WS}:{SRD_WS+3}], s63 offen offset:832")
            if k < 6: e(f"s_add_u32 s63, s63, {4*1352}")
    def gathers():
        for k in range(4): e(f"v_lshl_add_u32 v{vIdx+k}, v{vIdx+k}, 5, v{t0}")
        e(f"s_mul_i32 s63, s{sD}, {4*832}"); e(f"s_add_u32 s63, s63, {X0}")
        e("s_mov_b32 exec_lo, -1"); e("s_mov_b32 exec_hi, 0xfffff")
        for k in range(4):
            e(f"s_add_u32 m0, s63, {832*k}"); e("s_nop 0")
            e(f"buffer_load_dwordx4 v{vIdx+k}, s[{SRD_TAB}:{SRD_TAB+3}], 0 offen lds")
        e("s_mov_b64 exec, -1")
    def bias_read():
        e(f"v_lshlrev_b32 v{t1}, 1, v{vL15}"); e(f"v_add_u32 v{t1}, s81, v{t1}"); e(f"v_add_u32 v{t1}, {RING}, v{t1}")
        for tau in range(8):
            e(f"v_mov_b32 v{BIAS+tau}, 0"); e(f"v_mov_b32 v{W2R+tau}, 0")
        for tau in range(8):
            e(f"ds_read_u16_d16_hi v{BIAS+tau}, v{t1} offset:{tau*32}")
            e(f"ds_read_u16_d16_hi v{W2R+tau}, v{t1} offset:{1024+tau*32}")
        e("s_waitcnt lgkmcnt(0)")
        for tau in range(8):
            for r in range(4): e(f"v_mov_b32 v{ACC+4*tau+r}, v{BIAS+tau}")
    def kdma(slot):
        uid[0] += 1; lab = f"L_k{uid[0]}"
        for j in range(8):
            if j == 6:
                e(f"s_cmp_eq_u32 s{sNI}, 6"); e(f"s_cbranch_scc1 {lab}")
            e(f"s_add_u32 m0, s{sDB}, {slot*SLOT + j*1024}"); e("s_nop 0")
            e(f"buffer_load_dwordx4 v{P+j}, s[{SRD_WD}:{SRD_WD+3}], s{sK} offen lds")
        a.label(lab)
        e(f"s_add_u32 s{sK}, s{sK}, {SLOT}")
    def S1():
        cvt = lambda k, j: f"v_cvt_pk_bf16_f32 v{CVd[k&1]+j}, v{DSd[k&1]+2*j}, v{DSd[k&1]+2*j+1}"
        wr = lambda k, j: f"ds_write_b32 v{SA1+j}, v{CVd[k&1]+j} offset:{k*64}"
        for k in range(9):
            M = mf6(DSd[k & 1], W1R+8*k, W1R+8*k+4, I0, I1) if k < 7 else [None]*6
            if k == 7: a.nop(4)
            if k == 1: a.nop(5)
            if k == 2: a.nop(1)
            for j in range(6):
                if M[j]: e(M[j])
                if k >= 2: e(wr(k-2, j))
                if 1 <= k <= 7: e(cvt(k-1, j))
    e(f"s_mov_b32 s{sK}, 0")
    if mode == "S":
        e(f"s_cmp_eq_u32 s{sM}, 1"); e("s_cbranch_scc1 L_modeA")
    if mode in ("B", "S"):
        for k in range(n3first, 9): lin_one(k)
        lin_start(35152, W2L)
        for k in range(9): lin_one(k)
        e("s_waitcnt vmcnt(9)")
        e("s_barrier")
        st("bi")
        w1_loads()
        bias_read()
        e("s_waitcnt vmcnt(14)")
        e("s_barrier")
        st("b2")
        gathers()
        st("sb1")
        e("s_waitcnt vmcnt(4)")
        if mode == "S": e("s_branch L_S1")
    if mode in ("A", "S"):
        a.label("L_modeA")
        for k in range(n3first, 9): lin_one(k)
        e("s_waitcnt vmcnt(9)")
        gathers()
        e("s_waitcnt vmcnt(4)")
        e("s_barrier")
        st("bi")
        lin_start(35152, W2L)
        for k in range(9): lin_one(k)
        bias_read()
        e("s_waitcnt vmcnt(0)")
        e("s_barrier")
        st("b2")
        w1_loads()
        kdma(0); kdma(1)
        st("sb1")
        uid[0] += 1
        e(f"s_cmp_eq_u32 s{sNI}, 6"); e(f"s_cbranch_scc1 L_wa6")
        e("s_waitcnt vmcnt(16)"); e("s_branch L_S1a")
        a.label("L_wa6"); e("s_waitcnt vmcnt(12)")
        a.label("L_S1a")
        if mode == "S": e("s_mov_b32 s64, 1")
    if mode == "S":
        e("s_branch L_S1go")
        a.label("L_S1"); e("s_mov_b32 s64, 0")
        a.label("L_S1go")
    S1()
    k01late = int(opts.get("k01late", "0"))
    if mode == "B" and not k01late:
        kdma(0); kdma(1)
    elif mode == "S":
        e("s_cmp_eq_u32 s64, 1"); e("s_cbranch_scc1 L_nok")
        kdma(0); kdma(1)
        a.label("L_nok")
    st("s1")
    e("s_waitcnt lgkmcnt(0)")
    e("s_barrier")
    if k01late: kdma(0); kdma(1)
    kdma(2)
    st("issued")
    e(f"s_cmp_eq_u32 s{sD}, 0"); e("s_cbranch_scc0 L_D3")
    def emit_D(U):
        tag = f"U{U}"; nI = 2*U; nt = 2*U; RS = 64*U
        e(f"s_waitcnt vmcnt({3*nI})")
        st("s2")
        e("s_barrier")
        st("b3")
        if prio: e(f"s_setprio {prio}")
        def reads(b, slot, astep):
            r = [f"ds_read_b128 v[{AF[b]}:{AF[b]+3}], v{vA} offset:{64*astep}"]
            for tau in range(nt):
                r.append(f"ds_read_b64_tr_b16 v[{BB[b]+4*tau}:{BB[b]+4*tau+1}], v{TRA+tau} offset:{slot*SLOT}")
                r.append(f"ds_read_b64_tr_b16 v[{BB[b]+4*tau+2}:{BB[b]+4*tau+3}], v{TRA+tau} offset:{slot*SLOT+4*RS}")
            return r
        def mfmas(b):
            return [f"v_mfma_f32_16x16x32_bf16 v[{ACC+4*tau}:{ACC+4*tau+3}], v[{AF[b]}:{AF[b]+3}], v[{BB[b]+4*tau}:{BB[b]+4*tau+3}], v[{ACC+4*tau}:{ACC+4*tau+3}]" for tau in range(nt)]
        e(f"s_waitcnt vmcnt({2*nI})")
        for x in reads(0, 0, 0): e(x)
        e("s_waitcnt lgkmcnt(0)")
        e("s_mov_b32 s82, 0")
        st("xld")
        a.label(f"L_dl{tag}")
        for i in range(6):
            e(f"s_waitcnt vmcnt({nI})")
            R = reads((i+1) & 1, (i+1) % 3, i+1)
            ri = 0
            burst = int(opts.get("burst", "1"))
            Ms = mfmas(i & 1)
            for j in range(nI):
                e(f"s_add_u32 m0, s{sDB}, {(i % 3)*SLOT + j*1024}")
                e(R[ri]); ri += 1
                e(f"buffer_load_dwordx4 v{P+j}, s[{SRD_WD}:{SRD_WD+3}], s{sK} offen lds")
                e(R[ri]); ri += 1
                if not burst: e(Ms[j])
            while ri < len(R): e(R[ri]); ri += 1
            e(f"s_add_u32 s{sK}, s{sK}, {SLOT}")
            if burst:
                for x in Ms: e(x)
            e("s_waitcnt lgkmcnt(0)")
        e(f"v_add_u32 v{vA}, {6*64}, v{vA}")
        e("s_add_u32 s82, s82, 1")
        e("s_cmp_lt_u32 s82, 2"); e(f"s_cbranch_scc1 L_dl{tag}")
        for x in mfmas(0): e(x)
        st("main")
        C0 = -2.0*0.7978845608028654*1.4426950408889634; C1 = C0*0.044715
        for r in range(4): e(f"v_mov_b32 v{OUT+r}, 0")
        c0, c1, one = vC0+2, vC0+4, vC0+6
        for r_, val in ((c0, C0), (c1, C1), (one, 1.0)):
            e(f"v_mov_b32 v{r_}, 0x{f32bits(val):08x}"); e(f"v_mov_b32 v{r_+1}, 0x{f32bits(val):08x}")
        a.nop(8)
        pr = lambda r: f"v[{r}:{r+1}]"
        for tau in range(nt):
            x = ACC + 4*tau; Uu, E, Yv = GT, GT+4, GT+8
            for h in (0, 2): e(f"v_pk_mul_f32 {pr(Uu+h)}, {pr(x+h)}, {pr(x+h)}")
            for h in (0, 2): e(f"v_pk_fma_f32 {pr(Uu+h)}, {pr(Uu+h)}, {pr(c1)}, {pr(c0)}")
            for h in (0, 2): e(f"v_pk_mul_f32 {pr(Uu+h)}, {pr(x+h)}, {pr(Uu+h)}")
            for r in range(4): e(f"v_exp_f32 v{E+r}, v{Uu+r}")
            for h in (0, 2): e(f"v_pk_mul_f32 {pr(Yv+h)}, {pr(x+h)}, v[{W2R+(tau&~1)}:{W2R+(tau&~1)+1}] op_sel:[0,{tau&1}] op_sel_hi:[1,{tau&1}]")
            for h in (0, 2): e(f"v_pk_add_f32 {pr(E+h)}, {pr(E+h)}, {pr(one)}")
            for r in range(4): e(f"v_rcp_f32 v{E+r}, v{E+r}")
            e("s_nop 0")
            for h in (0, 2): e(f"v_pk_fma_f32 {pr(OUT+h)}, {pr(Yv+h)}, {pr(E+h)}, {pr(OUT+h)}")
        st("gelu")
        for sh in (8, 4, 2, 1):
            a.nop(2)
            for r in range(4): e(f"v_add_f32_dpp v{OUT+r}, v{OUT+r}, v{OUT+r} row_ror:{sh} row_mask:0xf bank_mask:0xf")
        e(f"s_lshl_b32 s63, s{sD}, 6"); e(f"s_add_u32 s63, s63, {RED2}")
        e(f"v_lshlrev_b32 v{GT}, 4, v{vG}"); e(f"v_add_u32 v{GT}, s63, v{GT}")
        e(f"ds_write_b128 v{GT}, v[{OUT}:{OUT+3}]")
    emit_D(4)
    e("s_branch L_final")
    a.label("L_D3")
    emit_D(3)

    a.label("L_final")
    e("s_waitcnt lgkmcnt(0)")
    e("s_barrier")
    st("fin")
    if stamp is not None:
        wg, wv = [int(x) for x in stamp.split("_")]
        e(f"s_cmp_eq_u32 s2, {wg}"); e("s_cbranch_scc0 L_nost")
        e(f"s_cmp_eq_u32 s{sW}, {wv}"); e("s_cbranch_scc0 L_nost")
        e(f"v_lshlrev_b32 v30, 2, v{vLane}")
        e("s_mov_b64 exec, 0xffff")
        e(f"global_store_dword v30, v{vSt}, s[96:97]")
        e("s_mov_b64 exec, -1")
        a.label("L_nost")
    e(f"s_cmp_eq_u32 s{sW}, 0"); e("s_cbranch_scc0 L_end")
    e(f"v_lshlrev_b32 v8, 3, v{vL15}"); e(f"v_add_u32 v8, {RED}, v8")
    e(f"v_lshlrev_b32 v9, 2, v{vL15}"); e(f"v_add_u32 v9, {RED2}, v9")
    e("ds_read_b64 v[10:11], v8")
    for d in range(4): e(f"ds_read_b32 v{12+d}, v9 offset:{d*64}")
    e("s_lshl_b32 s47, s47, 16")
    e("s_mov_b32 s68, s20"); e("s_mov_b32 s69, s21"); e("s_mov_b32 s70, 8192"); e("s_mov_b32 s71, 0x20000")
    e("s_lshl_b32 s63, s2, 5")
    e(f"v_lshlrev_b32 v16, 1, v{vL15}")
    e("s_waitcnt lgkmcnt(0)")
    e("v_add_f32 v10, v10, v11"); e("v_add_f32 v12, v12, v13"); e("v_add_f32 v14, v14, v15")
    e("v_add_f32 v12, v12, v14"); e("v_add_f32 v10, v10, v12"); e("v_add_f32 v10, s47, v10")
    e("v_cvt_pk_bf16_f32 v10, v10, v10")
    e("s_mov_b64 exec, 0xffff")
    e("buffer_store_short v10, v16, s[68:71], s63 offen")
    a.label("L_end")
    e("s_endpgm")
    a.label("CODE_END")
    return a

HEADER = """; xDeepFM (CIN + DNN) fused kernel for gfx950 -- generated by my own script
; @launch grid=(256,1,1) block=(512,1,1) lds=163840
.amdgcn_target "amdgcn-amd-amdhsa--gfx950"
.text
.globl {k}
.p2align 8
.type {k},@function
"""
FOOTER = """
.section .rodata,"a"
.p2align 6
.amdhsa_kernel {k}
  .amdhsa_next_free_vgpr {nv}
  .amdhsa_next_free_sgpr 102
  .amdhsa_accum_offset {nv}
  .amdhsa_group_segment_fixed_size 0
  .amdhsa_kernarg_size 88
  .amdhsa_user_sgpr_count 2
  .amdhsa_user_sgpr_kernarg_segment_ptr 1
  .amdhsa_system_sgpr_workgroup_id_x 1
.end_amdhsa_kernel
"""
if __name__ == "__main__":
    opts = dict(x.split("=") for x in sys.argv[2:])
    a = gen(opts)
    body = a.text()
    probs = check_hazards(body)
    for p in probs: print("HAZARD:", p, file=sys.stderr)
    open(sys.argv[1], "w").write(HEADER.format(k=KNAME) + body + FOOTER.format(k=KNAME, nv=232))
    print("written", sys.argv[1], "hazards:", len(probs), file=sys.stderr)
```

```python
import sys, struct
from asmlib import Asm, check_hazards

KNAME = "standalone__deep_cross_xdeepfm__recsys_kernel"
FS, HS = 1040, 528
F1 = 0; F2 = 23920
W3L = F2
RING = 59072; SLOT = 26624
W2L = 112816
QB = 147968
X0 = 150016
W1F = 163328; RED = W1F + 128; RED2 = RED + 128
DUM = 0x30000
BIG = 0x10000000
def f32bits(x): return struct.unpack("<I", struct.pack("<f", x))[0]

class Track:
    def __init__(self, a, name, cap): self.a, self.name, self.cap, self.l = a, name, cap, []
    def add(self, tag, n=1): self.l.extend([tag]*n)
    def count(self, tag):
        idx = [i for i, t in enumerate(self.l) if t == tag]
        assert idx, tag
        return min(len(self.l) - 1 - idx[-1], self.cap)
    def wait(self, tag): self.a.e(f"s_waitcnt {self.name}({self.count(tag)})")

def gen(opts):
    a = Asm(); e = a.e
    dbg = opts.get("dbg"); stamp = opts.get("stamp"); pf = opts.get("pf", "184")
    prio = int(opts.get("prio", "2")); pk = int(opts.get("pk", "1"))
    n3first = int(opts.get("n3", "3"))
    mode = opts.get("mode", "B")
    kin = int(opts.get("kin", "4"))
    sM = 23
    sW = 22; sC = 66
    SRD_IDX, SRD_TAB, SRD_WS, SRD_WD, SRD_T = 24, 28, 32, 36, 40
    def srd(base, ptr, nbytes):
        e(f"s_mov_b32 s{base}, s{ptr}"); e(f"s_mov_b32 s{base+1}, s{ptr+1}")
        e(f"s_mov_b32 s{base+2}, {nbytes}"); e(f"s_mov_b32 s{base+3}, 0x20000")
    vLane, vL15, vG = 1, 2, 3
    t0, t1, t2, t3, t4, t5, t6, t7 = 8, 9, 10, 11, 12, 13, 14, 15
    vL16 = 26; vDum = 24
    vSt = 231
    STI = dict(karg=0, issued=1, bi=2, idx=3, w1=4, s1=5, weff=6, b2=7, s2=8, b3=9, xld=10, main=11, gelu=12, fin=13, sb1=14)
    def st(name):
        if stamp is None: return
        e("s_memtime s[84:85]"); e("s_waitcnt lgkmcnt(0)")
        if name == "entry":
            e("s_mov_b32 s86, s84"); e(f"v_mov_b32 v{vSt}, 0")
        else:
            e("s_sub_u32 s84, s84, s86"); e(f"v_writelane_b32 v{vSt}, s84, {STI[name]}")
    combos = [(0,0,0),(0,0,1),(1,0,0),(1,0,1),(1,1,0),(1,1,1)]
    sSh = 62
    def scatter_addr(SA, Fb, shifted, gmax):
        g0, gp0, hb, gpv = 16, 17, 18, 19
        q, off, lim, gq = 20, 21, 22, 23
        e(f"v_lshlrev_b32 v{g0}, 1, v{vG}")
        e(f"v_lshrrev_b32 v{gp0}, 1, v{vL15}")
        if shifted:
            e(f"v_subrev_u32 v{g0}, s{sSh}, v{g0}"); e(f"v_subrev_u32 v{gp0}, s{sSh}, v{gp0}")
        e(f"v_and_b32 v{hb}, 1, v{vL15}")
        e(f"v_mul_u32_u24 v{hb}, {HS}, v{hb}")
        e(f"s_lshl_b32 s65, s{sC}, 4")
        if Fb: e(f"s_add_u32 s65, s65, {Fb}")
        e(f"v_add_u32 v{hb}, s65, v{hb}")
        for ci, (aa, bb, pp) in enumerate(combos):
            cg = 8*aa + pp; m0_, m1_ = 88 + 4*(ci % 2), 90 + 4*(ci % 2)
            e(f"v_add_u32 v{gq}, {cg}, v{g0}")
            e(f"v_mad_i32_i24 v{q}, v{gq}, v{gq}, v{gq}")
            e(f"v_lshrrev_b32 v{q}, 1, v{q}")
            e(f"v_add3_u32 v{q}, v{q}, v{gp0}, {8*bb}")
            e(f"v_min_u32 v{lim}, 12, v{gq}")
            e(f"v_cmp_ge_u32 s[{m0_}:{m0_+1}], {gmax}, v{gq}")
            e(f"v_add_u32 v{gpv}, {8*bb}, v{gp0}")
            e(f"v_and_b32 v{off}, 0x7c, v{q}")
            e(f"v_cmp_le_u32 s[{m1_}:{m1_+1}], v{gpv}, v{lim}")
            e(f"v_lshlrev_b32 v{off}, 8, v{off}")
            e(f"v_lshl_add_u32 v{off}, v{q}, 2, v{off}")
            e(f"s_and_b64 s[{m0_}:{m0_+1}], s[{m0_}:{m0_+1}], s[{m1_}:{m1_+1}]")
            e(f"v_add_u32 v{off}, v{off}, v{hb}")
            e(f"v_cndmask_b32 v{SA+ci}, v{vDum}, v{off}, s[{m0_}:{m0_+1}]")
    def mf6(D, A0, A1, B0, B1):
        return [
         f"v_mfma_f32_16x16x32_bf16 v[{D}:{D+3}], v[{A0}:{A0+3}], v[{B0}:{B0+3}], 0",
         f"v_mfma_f32_16x16x32_bf16 v[{D+4}:{D+7}], v[{A1}:{A1+3}], v[{B0}:{B0+3}], 0",
         f"v_mfma_f32_16x16x32_bf16 v[{D+8}:{D+11}], v[{A1}:{A1+3}], v[{B1}:{B1+3}], 0",
         f"v_mfma_f32_16x16x32_bf16 v[{D}:{D+3}], v[{B0}:{B0+3}], v[{A0}:{A0+3}], v[{D}:{D+3}]",
         f"v_mfma_f32_16x16x32_bf16 v[{D+4}:{D+7}], v[{B1}:{B1+3}], v[{A0}:{A0+3}], v[{D+4}:{D+7}]",
         f"v_mfma_f32_16x16x32_bf16 v[{D+8}:{D+11}], v[{B1}:{B1+3}], v[{A1}:{A1+3}], v[{D+8}:{D+11}]"]

    a.label(KNAME)
    st("entry")
    e("s_cmp_ge_u32 s2, 256")
    e("s_cbranch_scc1 L_end")
    e("s_load_dwordx16 s[4:19], s[0:1], 0")
    e("s_load_dwordx2 s[20:21], s[0:1], 64")
    if dbg or stamp: e("s_load_dwordx4 s[96:99], s[0:1], 72")
    if pf != "0":
        e("s_getpc_b64 s[88:89]")
        e("v_lshlrev_b32 v28, 7, v0")
        e(f"v_min_u32 v28, CODE_END-{KNAME}-256, v28")
        e("v_mov_b32 v29, s89")
        e("v_add_co_u32 v28, vcc, s88, v28")
        e("s_nop 1")
        e("v_addc_co_u32 v29, vcc, 0, v29, vcc")
        e(f"s_movk_i32 s90, {int(pf)}")
        e("v_cmp_gt_u32 vcc, s90, v0")
        e("s_nop 0")
        e("s_and_saveexec_b64 s[92:93], vcc")
        e("s_cbranch_execz L_nopf")
        e("global_load_dword v30, v[28:29], off")
        a.label("L_nopf")
        e("s_mov_b64 exec, -1")
    e(f"v_lshrrev_b32 v{t4}, 6, v0")
    e(f"v_and_b32 v{vLane}, 63, v0")
    e(f"v_and_b32 v{vL15}, 15, v0")
    e(f"v_readfirstlane_b32 s{sW}, v{t4}")
    e(f"v_bfe_u32 v{vG}, v0, 4, 2")
    e(f"v_lshrrev_b32 v{t6}, 1, v{vLane}")
    e(f"v_lshlrev_b32 v{t6}, 2, v{t6}")
    e("s_lshl_b32 s61, s2, 4")
    e(f"s_and_b32 s{sC}, s{sW}, 3")
    e(f"s_lshl_b32 s62, s{sC}, 2")
    e("s_add_u32 s61, s61, s62")
    e("s_mul_i32 s61, s61, 104")
    e(f"s_bfe_u32 s{sM}, s2, 0x10003")
    for r in (t0, t1, t2, t3): e(f"v_mov_b32 v{r}, 0")
    e(f"v_lshlrev_b32 v{t4}, 4, v0")
    for k in range(3): e(f"ds_write_b128 v{t4}, v[{t0}:{t3}] offset:{k*8192}")
    e(f"v_and_b32 v{t5}, 127, v0")
    e(f"v_lshlrev_b32 v{t5}, 4, v{t5}")
    e(f"v_add_u32 v{t5}, {QB}, v{t5}")
    e(f"ds_write_b128 v{t5}, v[{t0}:{t3}]")
    e(f"v_lshlrev_b32 v{vL16}, 4, v{vLane}")
    e(f"v_mov_b32 v{vDum}, {DUM}")
    e("s_waitcnt lgkmcnt(0)")
    e("s_barrier")
    st("karg")
    e(f"s_cmp_lt_u32 s{sW}, 4"); e("s_cbranch_scc1 L_touch0")
    vIdx = 4
    srd(SRD_IDX, 4, 4096*26*4)
    for k in range(4):
        e(f"buffer_load_dword v{vIdx+k}, v{t6}, s[{SRD_IDX}:{SRD_IDX+3}], s61 offen offset:{104*k}")
    a.label("L_touch0")
    e("s_lshr_b32 s62, s2, 3"); e("s_and_b32 s62, s62, 31")
    e(f"v_lshlrev_b32 v{t5}, 7, v{vLane}")
    e(f"s_mov_b32 s{SRD_T}, s12"); e(f"s_mov_b32 s{SRD_T+1}, s13"); e(f"s_mov_b32 s{SRD_T+3}, 0x20000")
    e("s_mul_i32 s63, s62, 10880"); e("s_add_u32 s64, s63, 10880"); e("s_min_u32 s64, s64, 346112")
    e(f"s_mov_b32 s{SRD_T+2}, s64")
    e(f"s_cmp_eq_u32 s{sW}, 4"); e("s_cbranch_scc1 L_touch")
    e("s_add_u32 s63, s63, 8192")
    e(f"s_cmp_eq_u32 s{sW}, 5"); e("s_cbranch_scc1 L_touch")
    e(f"s_mov_b32 s{SRD_T}, s8"); e(f"s_mov_b32 s{SRD_T+1}, s9")
    e("s_mul_i32 s63, s62, 3328"); e("s_add_u32 s64, s63, 3328"); e("s_min_u32 s64, s64, 105456")
    e(f"s_mov_b32 s{SRD_T+2}, s64")
    e(f"s_cmp_eq_u32 s{sW}, 6"); e("s_cbranch_scc1 L_touch")
    e(f"s_mov_b32 s{SRD_T}, s6"); e(f"s_mov_b32 s{SRD_T+1}, s7"); e(f"s_mov_b32 s{SRD_T+2}, 3200000")
    e("s_mov_b32 s63, 0")
    e(f"v_lshlrev_b32 v{t5}, 16, v{vLane}")
    e(f"s_cmp_eq_u32 s{sW}, 7"); e("s_cbranch_scc1 L_touch")
    e("s_branch L_C")
    a.label("L_touch")
    e(f"buffer_load_dword v31, v{t5}, s[{SRD_T}:{SRD_T+3}], s63 offen")
    e("s_branch L_D")

    a.label("L_C")
    vm = Track(a, "vmcnt", 63); lg = Track(a, "lgkmcnt", 15)
    SA2 = 154
    DS = [160, 172]; CV = [184, 190]
    vWs = 25; W3F = 32
    e("s_mov_b32 s68, s10"); e("s_mov_b32 s69, s11"); e("s_mov_b32 s70, 156"); e("s_mov_b32 s71, 0x20000")
    e(f"v_lshlrev_b32 v{t6}, 1, v{vLane}")
    e(f"buffer_load_ushort v{vWs}, v{t6}, s[68:71], 0 offen"); vm.add("ws")
    e(f"v_lshlrev_b32 v{t6}, 4, v{vG}")
    e(f"buffer_load_dwordx4 v[{W3F}:{W3F+3}], v{t6}, s[68:71], 0 offen offset:104"); vm.add("w3f")
    e("s_load_dword s47, s[18:19], 0")
    e(f"s_and_b32 s{sSh}, s{sC}, 1")
    scatter_addr(SA2, F2, True, 13)
    vH1, vH2 = 72, 73
    e(f"v_lshrrev_b32 v{t5}, 2, v{vL15}")
    e(f"v_lshl_add_u32 v{t5}, v{vG}, 3, v{t5}")
    e(f"v_add_u32 v{t6}, 4, v{t5}")
    e(f"v_min_u32 v{t5}, 25, v{t5}"); e(f"v_min_u32 v{t6}, 25, v{t6}")
    e(f"v_and_b32 v{t7}, 3, v{vL15}"); e(f"v_lshlrev_b32 v{t7}, 3, v{t7}")
    e("s_movk_i32 s64, 1352")
    e(f"v_mad_u32_u24 v{vH1}, v{t5}, s64, v{t7}"); e(f"v_mad_u32_u24 v{vH2}, v{t6}, s64, v{t7}")
    QA = 76
    for j in range(3):
        ee, h, k_, ad = t4, t5, t6, QA + j
        e(f"s_lshl_b32 s63, s{sC}, 6"); e(f"s_add_u32 s63, s63, {256*j}")
        e(f"v_add_u32 v{ee}, s63, v{vLane}")
        e(f"v_mul_u32_u24 v{h}, 2521, v{ee}"); e(f"v_lshrrev_b32 v{h}, 16, v{h}")
        e(f"v_mul_u32_u24 v{k_}, 26, v{h}"); e(f"v_sub_u32 v{k_}, v{ee}, v{k_}")
        e(f"v_cmp_gt_u32 vcc, 676, v{ee}")
        e(f"v_lshrrev_b32 v{ad}, 4, v{k_}"); e(f"v_lshlrev_b32 v{ad}, 10, v{ad}")
        e(f"v_and_b32 v{k_}, 15, v{k_}"); e(f"v_lshl_add_u32 v{ad}, v{k_}, 4, v{ad}")
        e(f"v_lshrrev_b32 v{k_}, 3, v{h}"); e(f"v_lshl_add_u32 v{ad}, v{k_}, 8, v{ad}")
        e(f"v_and_b32 v{h}, 7, v{h}"); e(f"v_lshl_add_u32 v{ad}, v{h}, 1, v{ad}")
        e(f"v_add_u32 v{ad}, {QB}, v{ad}")
        e(f"v_cndmask_b32 v{ad}, v{vDum}, v{ad}, vcc")
    vT1, vT2 = 37, 38
    e(f"s_lshl_b32 s63, s{sC}, 7"); e(f"s_add_u32 s63, s63, {W3L}")
    e(f"v_add_u32 v{vT1}, s63, v{vH1}"); e(f"v_add_u32 v{vT2}, s63, v{vH2}")
    TA1, TA2, vM = 39, 75, 74
    e(f"s_mul_i32 s63, s{sC}, 52"); e(f"s_lshl_b32 s64, s{sSh}, 2"); e("s_sub_u32 s63, s63, s64"); e(f"s_add_u32 s63, s63, {W2L}")
    e(f"v_add_u32 v{TA1}, s63, v{vH1}"); e(f"v_add_u32 v{TA2}, s63, v{vH2}")
    e(f"s_lshl_b32 s64, s{sSh}, 1"); e("s_add_u32 s64, s64, 10")
    e(f"v_cmp_gt_u32 vcc, s64, v{vL15}")
    QAD = [44, 45]
    e(f"s_lshl_b32 s63, s{sSh}, 1")
    e("s_nop 0")
    e(f"v_cndmask_b32 v{vM}, 0, -1, vcc")
    for aa in range(2):
        e(f"v_subrev_u32 v{t4}, s63, v{vL15}")
        if aa: e(f"v_add_u32 v{t4}, 16, v{t4}")
        e(f"v_min_u32 v{t4}, 31, v{t4}")
        e(f"v_lshrrev_b32 v{t5}, 4, v{t4}"); e(f"v_lshlrev_b32 v{t5}, 10, v{t5}")
        e(f"v_and_b32 v{t4}, 15, v{t4}"); e(f"v_lshl_add_u32 v{t5}, v{t4}, 4, v{t5}")
        e(f"v_lshl_add_u32 v{t5}, v{vG}, 8, v{t5}")
        e(f"v_add_u32 v{QAD[aa]}, {QB}, v{t5}")
    vFa = 226
    e(f"v_lshrrev_b32 v{t5}, 5, v{vLane}")
    e(f"v_mul_u32_u24 v{t6}, {HS}, v{t5}")
    e(f"v_and_b32 v{t7}, 31, v{vLane}")
    e(f"v_lshl_add_u32 v{vFa}, v{t7}, 4, v{t6}")
    st("w1")
    vm.wait("w3f")
    e(f"v_lshlrev_b32 v{t5}, 16, v{vWs}")
    e(f"v_cmp_gt_u32 s[88:89], 26, v{vLane}")
    e(f"v_cmp_gt_u32 s[90:91], 32, v{vLane}")
    e(f"v_lshlrev_b32 v{t6}, 2, v{vLane}")
    e(f"v_add_u32 v{t6}, {W1F}, v{t6}")
    e(f"v_cndmask_b32 v{t5}, 0, v{t5}, s[88:89]")
    e(f"v_cndmask_b32 v{t6}, v{vDum}, v{t6}, s[90:91]")
    e(f"ds_write_b32 v{t6}, v{t5}")
    e(f"v_subrev_u32 v{t5}, 26, v{vLane}")
    e(f"v_cmp_gt_u32 s[88:89], 26, v{t5}")
    e(f"v_lshrrev_b32 v{t6}, 3, v{t5}")
    e(f"v_lshlrev_b32 v{t6}, 8, v{t6}")
    e(f"v_and_b32 v{t7}, 7, v{t5}")
    e(f"v_lshl_add_u32 v{t6}, v{t7}, 1, v{t6}")
    e(f"v_add_u32 v{t6}, {QB+1024+160}, v{t6}")
    e(f"v_cndmask_b32 v{t6}, v{vDum}, v{t6}, s[88:89]")
    e(f"ds_write_b16 v{t6}, v{vWs}")
    AW = 56
    for gq in range(4): e(f"v_cmp_eq_u32 s[{88+2*gq}:{89+2*gq}], {4*gq}, v{vL15}")
    for gq in range(4):
        for j in range(4): e(f"v_cndmask_b32 v{AW+4*gq+j}, 0, v{W3F+j}, s[{88+2*gq}:{89+2*gq}]")
    e("s_waitcnt lgkmcnt(0)")
    e("s_barrier")
    st("bi")
    a.c("Weff")
    WB = 80; WD = 128
    for j in range(3):
        for gq in range(4):
            b = WB + 16*j + 4*gq
            e(f"ds_read_b64_tr_b16 v[{b}:{b+1}], v{vT1} offset:{j*512+32*gq}")
            e(f"ds_read_b64_tr_b16 v[{b+2}:{b+3}], v{vT2} offset:{j*512+32*gq}")
    for j in range(3):
        e(f"s_waitcnt lgkmcnt({min(15, 8*(2-j))})")
        for gq in range(4):
            b = WB + 16*j + 4*gq; d = WD + 4*j
            c = "0" if gq == 0 else f"v[{d}:{d+3}]"
            e(f"v_mfma_f32_16x16x32_bf16 v[{d}:{d+3}], v[{AW+4*gq}:{AW+4*gq+3}], v[{b}:{b+3}], {c}")
    a.nop(8)
    for j in range(3): e(f"v_cvt_pk_bf16_f32 v{t4+j}, v{WD+4*j}, v{WD+4*j}")
    for j in range(3): e(f"ds_write_b16 v{QA+j}, v{t4+j}")
    st("weff")
    e("s_waitcnt vmcnt(0) lgkmcnt(0)")
    e("s_barrier")
    st("b2")
    a.c("S2")
    Q0, Q1 = 140, 144
    lg.l = []
    e(f"ds_read_b128 v[{Q0}:{Q0+3}], v{QAD[0]}"); e(f"ds_read_b128 v[{Q1}:{Q1+3}], v{QAD[1]}"); lg.add("q", 2)
    PS = [48, 56, 64]
    cvt = lambda k, j: f"v_cvt_pk_bf16_f32 v{CV[k&1]+j}, v{DS[k&1]+2*j}, v{DS[k&1]+2*j+1}"
    wr = lambda SA, k, j: f"ds_write_b32 v{SA+j}, v{CV[k&1]+j} offset:{k*64}"
    def p_reads(k):
        P = PS[k % 3]
        return [f"ds_read_b64_tr_b16 v[{P}:{P+1}], v{TA1} offset:{k*208}",
                f"ds_read_b64_tr_b16 v[{P+2}:{P+3}], v{TA2} offset:{k*208}",
                f"ds_read_b64_tr_b16 v[{P+4}:{P+5}], v{TA1} offset:{k*208+32}",
                f"ds_read_b64_tr_b16 v[{P+6}:{P+7}], v{TA2} offset:{k*208+32}"]
    for k in (0, 1):
        for x in p_reads(k): e(x)
        lg.add(f"p{k}", 4)
    def masks(k): return [f"v_and_b32 v{PS[k%3]+4+j}, v{vM}, v{PS[k%3]+4+j}" for j in range(4)]
    lg.wait("p0")
    for x in masks(0): e(x)
    a.nop(1)
    for k in range(9):
        M = mf6(DS[k & 1], PS[k % 3], PS[k % 3]+4, Q0, Q1) if k < 7 else [None]*6
        R = p_reads(k+2) if k + 2 < 7 else []
        if k == 7: a.nop(4)
        if k == 8:
            e(f"s_cmp_lt_u32 s{sC}, 2"); e("s_cbranch_scc1 L_s2v")
            for j in range(6): e(f"v_mov_b32 v{SA2+j}, v{vDum}")
            a.label("L_s2v")
        for j in range(6):
            if j == 4 and k + 1 < 7:
                lg.wait(f"p{k+1}")
                for x in masks(k+1): e(x)
            if M[j]: e(M[j])
            if k >= 2: e(wr(SA2, k-2, j)); lg.add("w")
            if 1 <= k <= 7: e(cvt(k-1, j))
            if j < len(R): e(R[j]); lg.add(f"p{k+2}")
    st("s2")
    e("s_waitcnt lgkmcnt(0)")
    e("s_barrier")
    e("s_barrier")
    st("b3")
    if dbg == "lds":
        e("s_cmp_eq_u32 s2, 0"); e("s_cbranch_scc0 L_nodump")
        e(f"v_lshlrev_b32 v{t4}, 4, v0")
        for k in range(40):
            e(f"v_add_u32 v{t5}, {k*4096}, v{t4}")
            e(f"ds_read_b128 v[{t0}:{t3}], v{t5}")
            e("s_waitcnt lgkmcnt(0)")
            e(f"global_store_dwordx4 v{t5}, v[{t0}:{t3}], s[98:99]")
            e("s_waitcnt vmcnt(0)")
        a.label("L_nodump")
    a.c("C main")
    XA, YA, XB, YB = 8, 34, 47, 73
    D1A, D2A, D1B, D2B = 96, 112, 128, 144
    ZB = [[160, 164], [168, 172]]
    AB = [176, 184, 192]
    TM = [200, 201, 202, 203, 204, 205, 206, 207]
    WI = 208; vXb = 224; PK = 176
    e(f"v_and_b32 v{TM[4]}, 1, v{vG}")
    e(f"s_lshl_b32 s63, s{sC}, 2")
    e(f"v_add_u32 v{TM[4]}, s63, v{TM[4]}")
    e(f"v_mul_u32_u24 v{TM[4]}, 832, v{TM[4]}")
    e(f"v_lshrrev_b32 v{TM[5]}, 2, v{vL15}")
    e(f"v_lshl_add_u32 v{TM[4]}, v{TM[5]}, 5, v{TM[4]}")
    e(f"v_and_b32 v{TM[5]}, 3, v{vL15}")
    e(f"v_lshl_add_u32 v{TM[4]}, v{TM[5]}, 3, v{TM[4]}")
    e(f"v_add_u32 v{vXb}, {X0}, v{TM[4]}")
    safe = int(opts.get("safe", "0"))
    for T in range(2):
        for fb in range(7):
            e(f"ds_read_b64_tr_b16 v[{PK+14*T+2*fb}:{PK+14*T+2*fb+1}], v{vXb} offset:{T*1664 + fb*128}")
    e(f"v_lshrrev_b32 v{TM[5]}, 5, v{vLane}")
    e(f"v_lshlrev_b32 v{TM[6]}, 4, v{TM[5]}")
    e(f"v_add_u32 v{TM[6]}, {W1F}, v{TM[6]}")
    if safe: e("s_waitcnt lgkmcnt(0)")
    for m in range(4): e(f"ds_read_b128 v[{WI+4*m}:{WI+4*m+3}], v{TM[6]} offset:{m*32}")
    e(f"v_cmp_eq_u32 s[72:73], 1, v{TM[5]}")
    for T, (X, Y) in enumerate(((XA, YA), (XB, YB))):
        e(f"s_waitcnt lgkmcnt({11 if T == 0 else 4})")
        for g in range(13):
            p = PK + 14*T + g
            e(f"v_lshlrev_b32 v{X+2*g}, 16, v{p}")
            e(f"v_and_b32 v{X+2*g+1}, 0xffff0000, v{p}")
        for g in range(13): e(f"v_cndmask_b32 v{Y+g}, v{X+2*g}, v{X+2*g+1}, s[72:73]")
    def a_read(t):
        b = AB[t % 3]
        if t <= 22: e(f"ds_read_b128 v[{b}:{b+3}], v{vFa} offset:{F1 + t*FS}")
        if t <= 25: e(f"ds_read_b128 v[{b+4}:{b+7}], v{vFa} offset:{F2 + t*FS}")
    blocks = [(g, gp) for g in range(14) for gp in range(min(g, 12)+1)]
    def zgen(t, T):
        X, Y = ((XA, YA), (XB, YB))[T]
        z = ZB[t & 1][T]; mul = []; cv = []
        for j in range(4):
            g, gp = blocks[4*t + j]
            ta, tb, th = TM[2*j], TM[2*j+1], 228 + T
            if g == 13: cv.append(f"v_cvt_pk_bf16_f32 v{z+j}, v{Y+gp}, 0")
            else:
                y = Y + gp
                if g == gp:
                    mul.append(f"v_mul_f32 v{th}, 0.5, v{Y+gp}"); y = th
                mul.append(f"v_mul_f32 v{ta}, v{X+2*g}, v{y}")
                mul.append(f"v_mul_f32 v{tb}, v{X+2*g+1}, v{y}")
                cv.append(f"v_cvt_pk_bf16_f32 v{z+j}, v{ta}, v{tb}")
        return mul + cv
    st("xld")
    a_read(0); a_read(1)
    for T in range(2):
        for s in zgen(0, T): e(s)
    cnt = {t: (1 if t > 22 else 2) for t in range(26)}
    for t in range(26):
        younger = cnt[t+1] if t+1 <= 25 else 0
        e(f"s_waitcnt lgkmcnt({younger})")
        b = AB[t % 3]; mf = []; rds = []
        if t + 2 <= 25:
            b2 = AB[(t+2) % 3]
            if t + 2 <= 22: rds.append(f"ds_read_b128 v[{b2}:{b2+3}], v{vFa} offset:{F1 + (t+2)*FS}")
            rds.append(f"ds_read_b128 v[{b2+4}:{b2+7}], v{vFa} offset:{F2 + (t+2)*FS}")
        for T, (D1, D2) in enumerate(((D1A, D2A), (D1B, D2B))):
            z = ZB[t & 1][T]
            if t <= 22:
                c = "0" if t == 0 else f"v[{D1}:{D1+15}]"
                mf.append(f"v_mfma_f32_32x32x16_bf16 v[{D1}:{D1+15}], v[{b}:{b+3}], v[{z}:{z+3}], {c}")
            c = f"v[{WI}:{WI+15}]" if t == 0 else f"v[{D2}:{D2+15}]"
            mf.append(f"v_mfma_f32_32x32x16_bf16 v[{D2}:{D2+15}], v[{b+4}:{b+7}], v[{z}:{z+3}], {c}")
        va = (zgen(t+1, 0) + zgen(t+1, 1)) if t < 25 else []
        n = len(mf); per = (len(va) + n - 1)//n if va else 0
        if t == 0: a.nop(2)
        vi = 0
        for mi, m in enumerate(mf):
            e(m)
            if mi < len(rds): e(rds[mi])
            for s in va[vi:vi+per]: e(s)
            vi += per
    a.nop(16)
    st("main")
    for T, (D1, D2) in enumerate(((D1A, D2A), (D1B, D2B))): e(f"v_mul_f32 v{TM[T]}, v{D1}, v{D2}")
    for r in range(1, 14):
        for T, (D1, D2) in enumerate(((D1A, D2A), (D1B, D2B))): e(f"v_fmac_f32 v{TM[T]}, v{D1+r}, v{D2+r}")
    if opts.get("chk"):
        for T in range(2):
            for fb in range(7):
                e(f"ds_read_b64_tr_b16 v[{96+14*T+2*fb}:{96+14*T+2*fb+1}], v{vXb} offset:{T*1664 + fb*128}")
            e("s_waitcnt lgkmcnt(0)")
        e("v_mov_b32 v230, 0x41200000")
        for T, (X, Y) in enumerate(((XA, YA), (XB, YB))):
            for g in range(13):
                p = 96 + 14*T + g
                e(f"v_lshlrev_b32 v228, 16, v{p}")
                e(f"v_cmp_ne_u32 vcc, v228, v{X+2*g}")
                e("s_nop 1")
                e(f"v_cndmask_b32 v229, 0, v230, vcc")
                e(f"v_add_f32 v{TM[T]}, v{TM[T]}, v229")
                e(f"v_and_b32 v228, 0xffff0000, v{p}")
                e(f"v_cmp_ne_u32 vcc, v228, v{X+2*g+1}")
                e("s_nop 1")
                e(f"v_cndmask_b32 v229, 0, v230, vcc")
                e(f"v_add_f32 v{TM[T]}, v{TM[T]}, v229")
    for sh in (8, 4, 2, 1):
        a.nop(2)
        for T in range(2): e(f"v_add_f32_dpp v{TM[T]}, v{TM[T]}, v{TM[T]} row_ror:{sh} row_mask:0xf bank_mask:0xf")
    e(f"v_bfe_u32 v{TM[2]}, v{vLane}, 4, 1")
    e(f"v_lshlrev_b32 v{TM[2]}, 3, v{TM[2]}")
    e(f"v_lshrrev_b32 v{TM[3]}, 5, v{vLane}")
    e(f"v_lshl_add_u32 v{TM[2]}, v{TM[3]}, 2, v{TM[2]}")
    e(f"s_lshl_b32 s63, s{sC}, 5"); e(f"s_add_u32 s63, s63, {RED}")
    e(f"v_add_u32 v{TM[2]}, s63, v{TM[2]}")
    e(f"ds_write_b32 v{TM[2]}, v{TM[0]}")
    e(f"ds_write_b32 v{TM[2]}, v{TM[1]} offset:16")
    e("s_branch L_final")

    a.label("L_D")
    sD, sDB, sK, sNI = 66, 67, 80, 79
    srd(SRD_TAB, 6, 3200000)
    srd(SRD_WD, 12, 346112)
    srd(SRD_WS, 8, 105456)
    P = 16; ACC = 32; BB = [64, 96]; AF = [128, 132]; TRA = 136; W2R = 144; BIAS = 152; OUT = 160; GT = 164; vC0 = 184; vA = 185
    W1R = 64; I0, I1 = 120, 124
    SA1 = 192; DSd = [198, 210]; CVd = [222, 164]
    vW1 = 27
    e(f"s_cmp_eq_u32 s{sD}, 0"); e("s_cbranch_scc0 L_nobias")
    for ptr, off in ((14, 0), (16, 1024)):
        e(f"s_mov_b32 s68, s{ptr}"); e(f"s_mov_b32 s69, s{ptr+1}"); e("s_mov_b32 s70, 832"); e("s_mov_b32 s71, 0x20000")
        e(f"s_mov_b32 m0, {RING+off}"); e("s_nop 0")
        e(f"buffer_load_dwordx4 v{vL16}, s[68:71], 0 offen lds")
    a.label("L_nobias")
    sLS, sLD = 72, 73
    def lin_start(src, dst):
        e(f"s_lshl_b32 s{sLD}, s{sD}, 10")
        e(f"s_add_u32 s{sLS}, s{sLD}, {src}"); e(f"s_add_u32 s{sLD}, s{sLD}, {dst}")
    uid = [0]
    def lin_one(k):
        if k < 8:
            e(f"s_mov_b32 m0, s{sLD}"); e(f"s_add_u32 s{sLD}, s{sLD}, 4096")
            e(f"buffer_load_dwordx4 v{vL16}, s[{SRD_WS}:{SRD_WS+3}], s{sLS} offen lds")
            e(f"s_add_u32 s{sLS}, s{sLS}, 4096")
        else:
            uid[0] += 1; lab = f"L_lin{uid[0]}"
            e(f"s_cmp_lt_u32 s{sD}, 2"); e(f"s_cbranch_scc1 {lab}")
            e("s_mov_b64 exec, 0x1fffff")
            e(f"s_cmp_eq_u32 s{sD}, 2"); e(f"s_cbranch_scc1 {lab}")
            e(f"s_mov_b32 s{sLS}, {BIG}"); e(f"s_mov_b32 s{sLD}, {DUM}")
            a.label(lab)
            e(f"s_mov_b32 m0, s{sLD}"); e("s_nop 0")
            e(f"buffer_load_dwordx4 v{vL16}, s[{SRD_WS}:{SRD_WS+3}], s{sLS} offen lds")
            e("s_mov_b64 exec, -1")
    lin_start(2*35152, W3L)
    for k in range(n3first): lin_one(k)
    e(f"v_and_b32 v{t0}, 1, v{vLane}"); e(f"v_lshlrev_b32 v{t0}, 4, v{t0}")
    e(f"v_lshlrev_b32 v{t4}, 3, v{vG}")
    e(f"v_sub_u32 v{t4}, v{vL15}, v{t4}")
    e(f"v_and_b32 v{t5}, 1, v{t4}")
    e(f"v_lshlrev_b32 v{t5}, 4, v{t5}")
    e(f"v_mov_b32 v{t6}, 0x3f80")
    e(f"v_lshlrev_b32 v{t5}, v{t5}, v{t6}")
    e(f"v_ashrrev_i32 v{t4}, 1, v{t4}")
    e(f"v_add_u32 v{t6}, 8, v{t4}")
    for j in range(4): e(f"v_cmp_eq_u32 s[{88+2*j}:{89+2*j}], {j}, v{t4}")
    for j in range(4): e(f"v_cndmask_b32 v{I0+j}, 0, v{t5}, s[{88+2*j}:{89+2*j}]")
    for j in range(4): e(f"v_cmp_eq_u32 s[{88+2*j}:{89+2*j}], {j}, v{t6}")
    for j in range(4): e(f"v_cndmask_b32 v{I1+j}, 0, v{t5}, s[{88+2*j}:{89+2*j}]")
    scatter_addr(SA1, F1, False, 12)
    e(f"v_mul_u32_u24 v{t7}, 52, v{vL15}")
    e(f"v_lshl_add_u32 v{vW1}, v{vG}, 4, v{t7}")
    e(f"s_mul_i32 s81, s{sD}, 192"); e("s_add_u32 s81, s81, 64")
    e(f"s_mul_i32 s{sDB}, s{sD}, 6144"); e(f"s_add_u32 s{sDB}, s{sDB}, {RING + 8192 - 6144}")
    e(f"s_cmp_eq_u32 s{sD}, 0")
    e("s_cselect_b32 s81, 0, s81"); e(f"s_cselect_b32 s{sDB}, {RING}, s{sDB}")
    e(f"s_cselect_b32 s{sNI}, 8, 6")
    e("s_movk_i32 s74, 5462"); e("s_cselect_b32 s74, 4096, s74")
    e("s_cselect_b32 s75, 16, 12")
    e("s_cselect_b32 s76, -1, 0")
    e("s_cselect_b32 s77, 0, 2")
    e("s_movk_i32 s78, 192"); e("s_cselect_b32 s78, 256, s78")
    for j in range(8):
        m, row, cp, sw = t1, t2, t3, t4
        e(f"v_add_u32 v{m}, {64*j}, v{vLane}")
        e(f"v_mul_u32_u24 v{row}, s74, v{m}"); e(f"v_lshrrev_b32 v{row}, 16, v{row}")
        e(f"v_mul_u32_u24 v{cp}, s75, v{row}"); e(f"v_sub_u32 v{cp}, v{m}, v{cp}")
        e(f"v_and_b32 v{sw}, 3, v{row}"); e(f"v_lshlrev_b32 v{sw}, 1, v{sw}"); e(f"v_and_b32 v{sw}, s76, v{sw}")
        e(f"v_and_b32 v{t5}, 8, v{row}"); e(f"v_lshrrev_b32 v{t5}, s77, v{t5}")
        e(f"v_or_b32 v{sw}, v{sw}, v{t5}")
        e(f"v_xor_b32 v{cp}, v{cp}, v{sw}")
        e(f"v_mul_u32_u24 v{row}, 832, v{row}")
        e(f"v_lshl_add_u32 v{cp}, v{cp}, 4, v{row}")
        e(f"v_add_u32 v{P+j}, s81, v{cp}")
    e(f"v_lshrrev_b32 v{t2}, 2, v{vL15}")
    e(f"v_lshl_add_u32 v{t3}, v{vG}, 3, v{t2}")
    e(f"v_mul_u32_u24 v{t3}, s78, v{t3}")
    e(f"v_and_b32 v{t4}, 3, v{vL15}")
    e(f"v_lshl_add_u32 v{t3}, v{t4}, 3, v{t3}")
    e(f"v_add_u32 v{t3}, s{sDB}, v{t3}")
    e(f"v_and_b32 v{t4}, 1, v{vG}")
    e(f"v_lshl_add_u32 v{t5}, v{t4}, 2, v{t2}")
    e(f"v_and_b32 v{t5}, s76, v{t5}")
    e(f"v_not_b32 v{t6}, s76"); e(f"v_and_b32 v{t4}, v{t6}, v{t4}")
    e(f"v_or_b32 v{t2}, v{t5}, v{t4}")
    for tau in range(8):
        e(f"v_xor_b32 v{t4}, {tau}, v{t2}")
        e(f"v_lshl_add_u32 v{TRA+tau}, v{t4}, 5, v{t3}")
    e(f"v_mul_u32_u24 v{vA}, 832, v{vL15}")
    e(f"v_lshl_add_u32 v{vA}, v{vG}, 4, v{vA}")
    e(f"v_add_u32 v{vA}, {X0}, v{vA}")
    st("w1")
    def w1_loads():
        e(f"s_mul_i32 s63, s{sD}, 1352")
        for k in range(7):
            if k == 6:
                e(f"s_cmp_lt_u32 s{sD}, 2"); e(f"s_cselect_b32 s63, s63, {BIG}")
            e(f"buffer_load_dwordx4 v[{W1R+8*k}:{W1R+8*k+3}], v{vW1}, s[{SRD_WS}:{SRD_WS+3}], s63 offen")
            e(f"buffer_load_dwordx4 v[{W1R+8*k+4}:{W1R+8*k+7}], v{vW1}, s[{SRD_WS}:{SRD_WS+3}], s63 offen offset:832")
            if k < 6: e(f"s_add_u32 s63, s63, {4*1352}")
    def gathers():
        for k in range(4): e(f"v_lshl_add_u32 v{vIdx+k}, v{vIdx+k}, 5, v{t0}")
        e(f"s_mul_i32 s63, s{sD}, {4*832}"); e(f"s_add_u32 s63, s63, {X0}")
        e("s_mov_b32 exec_lo, -1"); e("s_mov_b32 exec_hi, 0xfffff")
        for k in range(4):
            e(f"s_add_u32 m0, s63, {832*k}"); e("s_nop 0")
            e(f"buffer_load_dwordx4 v{vIdx+k}, s[{SRD_TAB}:{SRD_TAB+3}], 0 offen lds")
        e("s_mov_b64 exec, -1")
    def bias_read():
        e(f"v_lshlrev_b32 v{t1}, 1, v{vL15}"); e(f"v_add_u32 v{t1}, s81, v{t1}"); e(f"v_add_u32 v{t1}, {RING}, v{t1}")
        for tau in range(8):
            e(f"v_mov_b32 v{BIAS+tau}, 0"); e(f"v_mov_b32 v{W2R+tau}, 0")
        for tau in range(8):
            e(f"ds_read_u16_d16_hi v{BIAS+tau}, v{t1} offset:{tau*32}")
            e(f"ds_read_u16_d16_hi v{W2R+tau}, v{t1} offset:{1024+tau*32}")
        e("s_waitcnt lgkmcnt(0)")
        for tau in range(8):
            for r in range(4): e(f"v_mov_b32 v{ACC+4*tau+r}, v{BIAS+tau}")
    def kdma(slot):
        uid[0] += 1; lab = f"L_k{uid[0]}"
        for j in range(8):
            if j == 6:
                e(f"s_cmp_eq_u32 s{sNI}, 6"); e(f"s_cbranch_scc1 {lab}")
            e(f"s_add_u32 m0, s{sDB}, {slot*SLOT + j*1024}"); e("s_nop 0")
            e(f"buffer_load_dwordx4 v{P+j}, s[{SRD_WD}:{SRD_WD+3}], s{sK} offen lds")
        a.label(lab)
        e(f"s_add_u32 s{sK}, s{sK}, {SLOT}")
    def S1():
        cvt = lambda k, j: f"v_cvt_pk_bf16_f32 v{CVd[k&1]+j}, v{DSd[k&1]+2*j}, v{DSd[k&1]+2*j+1}"
        wr = lambda k, j: f"ds_write_b32 v{SA1+j}, v{CVd[k&1]+j} offset:{k*64}"
        for k in range(9):
            M = mf6(DSd[k & 1], W1R+8*k, W1R+8*k+4, I0, I1) if k < 7 else [None]*6
            if k == 7: a.nop(4)
            if k == 1: a.nop(5)
            if k == 2: a.nop(1)
            for j in range(6):
                if M[j]: e(M[j])
                if k >= 2: e(wr(k-2, j))
                if 1 <= k <= 7: e(cvt(k-1, j))
    e(f"s_mov_b32 s{sK}, 0")
    if mode == "S":
        e(f"s_cmp_eq_u32 s{sM}, 1"); e("s_cbranch_scc1 L_modeA")
    if mode in ("B", "S"):
        for k in range(n3first, 9): lin_one(k)
        lin_start(35152, W2L)
        for k in range(9): lin_one(k)
        e("s_waitcnt vmcnt(9)")
        e("s_barrier")
        st("bi")
        w1_loads()
        bias_read()
        e("s_waitcnt vmcnt(14)")
        e("s_barrier")
        st("b2")
        gathers()
        st("sb1")
        e("s_waitcnt vmcnt(4)")
        if mode == "S": e("s_branch L_S1")
    if mode in ("A", "S"):
        a.label("L_modeA")
        for k in range(n3first, 9): lin_one(k)
        e("s_waitcnt vmcnt(9)")
        gathers()
        e("s_waitcnt vmcnt(4)")
        e("s_barrier")
        st("bi")
        lin_start(35152, W2L)
        for k in range(9): lin_one(k)
        bias_read()
        e("s_waitcnt vmcnt(0)")
        e("s_barrier")
        st("b2")
        w1_loads()
        kdma(0); kdma(1)
        st("sb1")
        uid[0] += 1
        e(f"s_cmp_eq_u32 s{sNI}, 6"); e(f"s_cbranch_scc1 L_wa6")
        e("s_waitcnt vmcnt(16)"); e("s_branch L_S1a")
        a.label("L_wa6"); e("s_waitcnt vmcnt(12)")
        a.label("L_S1a")
        if mode == "S": e("s_mov_b32 s64, 1")
    if mode == "S":
        e("s_branch L_S1go")
        a.label("L_S1"); e("s_mov_b32 s64, 0")
        a.label("L_S1go")
    S1()
    k01late = int(opts.get("k01late", "0"))
    if mode == "B" and not k01late:
        kdma(0); kdma(1)
    elif mode == "S":
        e("s_cmp_eq_u32 s64, 1"); e("s_cbranch_scc1 L_nok")
        kdma(0); kdma(1)
        a.label("L_nok")
    st("s1")
    e("s_waitcnt lgkmcnt(0)")
    e("s_barrier")
    if k01late: kdma(0); kdma(1)
    kdma(2)
    st("issued")
    e(f"s_cmp_eq_u32 s{sD}, 0"); e("s_cbranch_scc0 L_D3")
    def emit_D(U):
        tag = f"U{U}"; nI = 2*U; nt = 2*U; RS = 64*U
        e(f"s_waitcnt vmcnt({3*nI})")
        st("s2")
        e("s_barrier")
        st("b3")
        if prio: e(f"s_setprio {prio}")
        def reads(b, slot, astep):
            r = [f"ds_read_b128 v[{AF[b]}:{AF[b]+3}], v{vA} offset:{64*astep}"]
            for tau in range(nt):
                r.append(f"ds_read_b64_tr_b16 v[{BB[b]+4*tau}:{BB[b]+4*tau+1}], v{TRA+tau} offset:{slot*SLOT}")
                r.append(f"ds_read_b64_tr_b16 v[{BB[b]+4*tau+2}:{BB[b]+4*tau+3}], v{TRA+tau} offset:{slot*SLOT+4*RS}")
            return r
        def mfmas(b):
            return [f"v_mfma_f32_16x16x32_bf16 v[{ACC+4*tau}:{ACC+4*tau+3}], v[{AF[b]}:{AF[b]+3}], v[{BB[b]+4*tau}:{BB[b]+4*tau+3}], v[{ACC+4*tau}:{ACC+4*tau+3}]" for tau in range(nt)]
        e(f"s_waitcnt vmcnt({2*nI})")
        for x in reads(0, 0, 0): e(x)
        e("s_waitcnt lgkmcnt(0)")
        e("s_mov_b32 s82, 0")
        st("xld")
        a.label(f"L_dl{tag}")
        for i in range(6):
            e(f"s_waitcnt vmcnt({nI})")
            R = reads((i+1) & 1, (i+1) % 3, i+1)
            ri = 0
            burst = int(opts.get("burst", "1"))
            Ms = mfmas(i & 1)
            for j in range(nI):
                e(f"s_add_u32 m0, s{sDB}, {(i % 3)*SLOT + j*1024}")
                e(R[ri]); ri += 1
                e(f"buffer_load_dwordx4 v{P+j}, s[{SRD_WD}:{SRD_WD+3}], s{sK} offen lds")
                e(R[ri]); ri += 1
                if not burst: e(Ms[j])
            while ri < len(R): e(R[ri]); ri += 1
            e(f"s_add_u32 s{sK}, s{sK}, {SLOT}")
            if burst:
                for x in Ms: e(x)
            e("s_waitcnt lgkmcnt(0)")
        e(f"v_add_u32 v{vA}, {6*64}, v{vA}")
        e("s_add_u32 s82, s82, 1")
        e("s_cmp_lt_u32 s82, 2"); e(f"s_cbranch_scc1 L_dl{tag}")
        for x in mfmas(0): e(x)
        st("main")
        C0 = -2.0*0.7978845608028654*1.4426950408889634; C1 = C0*0.044715
        for r in range(4): e(f"v_mov_b32 v{OUT+r}, 0")
        c0, c1, one = vC0+2, vC0+4, vC0+6
        for r_, val in ((c0, C0), (c1, C1), (one, 1.0)):
            e(f"v_mov_b32 v{r_}, 0x{f32bits(val):08x}"); e(f"v_mov_b32 v{r_+1}, 0x{f32bits(val):08x}")
        a.nop(8)
        pr = lambda r: f"v[{r}:{r+1}]"
        for tau in range(nt):
            x = ACC + 4*tau; Uu, E, Yv = GT, GT+4, GT+8
            for h in (0, 2): e(f"v_pk_mul_f32 {pr(Uu+h)}, {pr(x+h)}, {pr(x+h)}")
            for h in (0, 2): e(f"v_pk_fma_f32 {pr(Uu+h)}, {pr(Uu+h)}, {pr(c1)}, {pr(c0)}")
            for h in (0, 2): e(f"v_pk_mul_f32 {pr(Uu+h)}, {pr(x+h)}, {pr(Uu+h)}")
            for r in range(4): e(f"v_exp_f32 v{E+r}, v{Uu+r}")
            for h in (0, 2): e(f"v_pk_mul_f32 {pr(Yv+h)}, {pr(x+h)}, v[{W2R+(tau&~1)}:{W2R+(tau&~1)+1}] op_sel:[0,{tau&1}] op_sel_hi:[1,{tau&1}]")
            for h in (0, 2): e(f"v_pk_add_f32 {pr(E+h)}, {pr(E+h)}, {pr(one)}")
            for r in range(4): e(f"v_rcp_f32 v{E+r}, v{E+r}")
            e("s_nop 0")
            for h in (0, 2): e(f"v_pk_fma_f32 {pr(OUT+h)}, {pr(Yv+h)}, {pr(E+h)}, {pr(OUT+h)}")
        st("gelu")
        for sh in (8, 4, 2, 1):
            a.nop(2)
            for r in range(4): e(f"v_add_f32_dpp v{OUT+r}, v{OUT+r}, v{OUT+r} row_ror:{sh} row_mask:0xf bank_mask:0xf")
        e(f"s_lshl_b32 s63, s{sD}, 6"); e(f"s_add_u32 s63, s63, {RED2}")
        e(f"v_lshlrev_b32 v{GT}, 4, v{vG}"); e(f"v_add_u32 v{GT}, s63, v{GT}")
        e(f"ds_write_b128 v{GT}, v[{OUT}:{OUT+3}]")
    emit_D(4)
    e("s_branch L_final")
    a.label("L_D3")
    emit_D(3)

    a.label("L_final")
    e("s_waitcnt lgkmcnt(0)")
    e("s_barrier")
    st("fin")
    if stamp is not None:
        wg, wv = [int(x) for x in stamp.split("_")]
        e(f"s_cmp_eq_u32 s2, {wg}"); e("s_cbranch_scc0 L_nost")
        e(f"s_cmp_eq_u32 s{sW}, {wv}"); e("s_cbranch_scc0 L_nost")
        e(f"v_lshlrev_b32 v30, 2, v{vLane}")
        e("s_mov_b64 exec, 0xffff")
        e(f"global_store_dword v30, v{vSt}, s[96:97]")
        e("s_mov_b64 exec, -1")
        a.label("L_nost")
    e(f"s_cmp_eq_u32 s{sW}, 0"); e("s_cbranch_scc0 L_end")
    e(f"v_lshlrev_b32 v8, 3, v{vL15}"); e(f"v_add_u32 v8, {RED}, v8")
    e(f"v_lshlrev_b32 v9, 2, v{vL15}"); e(f"v_add_u32 v9, {RED2}, v9")
    e("ds_read_b64 v[10:11], v8")
    for d in range(4): e(f"ds_read_b32 v{12+d}, v9 offset:{d*64}")
    e("s_lshl_b32 s47, s47, 16")
    e("s_mov_b32 s68, s20"); e("s_mov_b32 s69, s21"); e("s_mov_b32 s70, 8192"); e("s_mov_b32 s71, 0x20000")
    e("s_lshl_b32 s63, s2, 5")
    e(f"v_lshlrev_b32 v16, 1, v{vL15}")
    e("s_waitcnt lgkmcnt(0)")
    e("v_add_f32 v10, v10, v11"); e("v_add_f32 v12, v12, v13"); e("v_add_f32 v14, v14, v15")
    e("v_add_f32 v12, v12, v14"); e("v_add_f32 v10, v10, v12"); e("v_add_f32 v10, s47, v10")
    e("v_cvt_pk_bf16_f32 v10, v10, v10")
    e("s_mov_b64 exec, 0xffff")
    e("buffer_store_short v10, v16, s[68:71], s63 offen")
    a.label("L_end")
    e("s_endpgm")
    a.label("CODE_END")
    return a

HEADER = """; xDeepFM (CIN + DNN) fused kernel for gfx950 -- generated by my own script
; @launch grid=(256,1,1) block=(512,1,1) lds=163840
.amdgcn_target "amdgcn-amd-amdhsa--gfx950"
.text
.globl {k}
.p2align 8
.type {k},@function
"""
FOOTER = """
.section .rodata,"a"
.p2align 6
.amdhsa_kernel {k}
  .amdhsa_next_free_vgpr {nv}
  .amdhsa_next_free_sgpr 102
  .amdhsa_accum_offset {nv}
  .amdhsa_group_segment_fixed_size 0
  .amdhsa_kernarg_size 88
  .amdhsa_user_sgpr_count 2
  .amdhsa_user_sgpr_kernarg_segment_ptr 1
  .amdhsa_system_sgpr_workgroup_id_x 1
.end_amdhsa_kernel
"""
if __name__ == "__main__":
    opts = dict(x.split("=") for x in sys.argv[2:])
    a = gen(opts)
    body = a.text()
    probs = check_hazards(body)
    for p in probs: print("HAZARD:", p, file=sys.stderr)
    open(sys.argv[1], "w").write(HEADER.format(k=KNAME) + body + FOOTER.format(k=KNAME, nv=232))
    print("written", sys.argv[1], "hazards:", len(probs), file=sys.stderr)
```

```python
import sys, struct
from asmlib import Asm, check_hazards

KNAME = "standalone__deep_cross_xdeepfm__recsys_kernel"
FS, HS = 1040, 528
F1 = 0; F2 = 23920
W3L = F2
RING = 59072; SLOT = 26624
W2L = 112816
QB = 147968
X0 = 150016
W1F = 163328; RED = W1F + 128; RED2 = RED + 128
DUM = 0x30000
BIG = 0x10000000
def f32bits(x): return struct.unpack("<I", struct.pack("<f", x))[0]

class Track:
    def __init__(self, a, name, cap): self.a, self.name, self.cap, self.l = a, name, cap, []
    def add(self, tag, n=1): self.l.extend([tag]*n)
    def count(self, tag):
        idx = [i for i, t in enumerate(self.l) if t == tag]
        assert idx, tag
        return min(len(self.l) - 1 - idx[-1], self.cap)
    def wait(self, tag): self.a.e(f"s_waitcnt {self.name}({self.count(tag)})")

def gen(opts):
    a = Asm(); e = a.e
    dbg = opts.get("dbg"); stamp = opts.get("stamp"); pf = opts.get("pf", "184")
    prio = int(opts.get("prio", "2")); pk = int(opts.get("pk", "0"))
    n3first = int(opts.get("n3", "3"))
    mode = opts.get("mode", "B")
    kin = int(opts.get("kin", "4"))
    sM = 23
    sW = 22; sC = 66
    SRD_IDX, SRD_TAB, SRD_WS, SRD_WD, SRD_T = 24, 28, 32, 36, 40
    def srd(base, ptr, nbytes):
        e(f"s_mov_b32 s{base}, s{ptr}"); e(f"s_mov_b32 s{base+1}, s{ptr+1}")
        e(f"s_mov_b32 s{base+2}, {nbytes}"); e(f"s_mov_b32 s{base+3}, 0x20000")
    vLane, vL15, vG = 1, 2, 3
    t0, t1, t2, t3, t4, t5, t6, t7 = 8, 9, 10, 11, 12, 13, 14, 15
    vL16 = 26; vDum = 24
    vSt = 231
    STI = dict(karg=0, issued=1, bi=2, idx=3, w1=4, s1=5, weff=6, b2=7, s2=8, b3=9, xld=10, main=11, gelu=12, fin=13, sb1=14)
    def st(name):
        if stamp is None: return
        e("s_memtime s[84:85]"); e("s_waitcnt lgkmcnt(0)")
        if name == "entry":
            e("s_mov_b32 s86, s84"); e(f"v_mov_b32 v{vSt}, 0")
        else:
            e("s_sub_u32 s84, s84, s86"); e(f"v_writelane_b32 v{vSt}, s84, {STI[name]}")
    combos = [(0,0,0),(0,0,1),(1,0,0),(1,0,1),(1,1,0),(1,1,1)]
    sSh = 62
    def scatter_addr(SA, Fb, shifted, gmax):
        g0, gp0, hb, gpv = 16, 17, 18, 19
        q, off, lim, gq = 20, 21, 22, 23
        e(f"v_lshlrev_b32 v{g0}, 1, v{vG}")
        e(f"v_lshrrev_b32 v{gp0}, 1, v{vL15}")
        if shifted:
            e(f"v_subrev_u32 v{g0}, s{sSh}, v{g0}"); e(f"v_subrev_u32 v{gp0}, s{sSh}, v{gp0}")
        e(f"v_and_b32 v{hb}, 1, v{vL15}")
        e(f"v_mul_u32_u24 v{hb}, {HS}, v{hb}")
        e(f"s_lshl_b32 s65, s{sC}, 4")
        if Fb: e(f"s_add_u32 s65, s65, {Fb}")
        e(f"v_add_u32 v{hb}, s65, v{hb}")
        for ci, (aa, bb, pp) in enumerate(combos):
            cg = 8*aa + pp; m0_, m1_ = 88 + 4*(ci % 2), 90 + 4*(ci % 2)
            e(f"v_add_u32 v{gq}, {cg}, v{g0}")
            e(f"v_mad_i32_i24 v{q}, v{gq}, v{gq}, v{gq}")
            e(f"v_lshrrev_b32 v{q}, 1, v{q}")
            e(f"v_add3_u32 v{q}, v{q}, v{gp0}, {8*bb}")
            e(f"v_min_u32 v{lim}, 12, v{gq}")
            e(f"v_cmp_ge_u32 s[{m0_}:{m0_+1}], {gmax}, v{gq}")
            e(f"v_add_u32 v{gpv}, {8*bb}, v{gp0}")
            e(f"v_and_b32 v{off}, 0x7c, v{q}")
            e(f"v_cmp_le_u32 s[{m1_}:{m1_+1}], v{gpv}, v{lim}")
            e(f"v_lshlrev_b32 v{off}, 8, v{off}")
            e(f"v_lshl_add_u32 v{off}, v{q}, 2, v{off}")
            e(f"s_and_b64 s[{m0_}:{m0_+1}], s[{m0_}:{m0_+1}], s[{m1_}:{m1_+1}]")
            e(f"v_add_u32 v{off}, v{off}, v{hb}")
            e(f"v_cndmask_b32 v{SA+ci}, v{vDum}, v{off}, s[{m0_}:{m0_+1}]")
    def mf6(D, A0, A1, B0, B1):
        return [
         f"v_mfma_f32_16x16x32_bf16 v[{D}:{D+3}], v[{A0}:{A0+3}], v[{B0}:{B0+3}], 0",
         f"v_mfma_f32_16x16x32_bf16 v[{D+4}:{D+7}], v[{A1}:{A1+3}], v[{B0}:{B0+3}], 0",
         f"v_mfma_f32_16x16x32_bf16 v[{D+8}:{D+11}], v[{A1}:{A1+3}], v[{B1}:{B1+3}], 0",
         f"v_mfma_f32_16x16x32_bf16 v[{D}:{D+3}], v[{B0}:{B0+3}], v[{A0}:{A0+3}], v[{D}:{D+3}]",
         f"v_mfma_f32_16x16x32_bf16 v[{D+4}:{D+7}], v[{B1}:{B1+3}], v[{A0}:{A0+3}], v[{D+4}:{D+7}]",
         f"v_mfma_f32_16x16x32_bf16 v[{D+8}:{D+11}], v[{B1}:{B1+3}], v[{A1}:{A1+3}], v[{D+8}:{D+11}]"]

    a.label(KNAME)
    st("entry")
    e("s_cmp_ge_u32 s2, 256")
    e("s_cbranch_scc1 L_end")
    e("s_load_dwordx16 s[4:19], s[0:1], 0")
    e("s_load_dwordx2 s[20:21], s[0:1], 64")
    if dbg or stamp: e("s_load_dwordx4 s[96:99], s[0:1], 72")
    if pf != "0":
        e("s_getpc_b64 s[88:89]")
        e("v_lshlrev_b32 v28, 7, v0")
        e(f"v_min_u32 v28, CODE_END-{KNAME}-256, v28")
        e("v_mov_b32 v29, s89")
        e("v_add_co_u32 v28, vcc, s88, v28")
        e("s_nop 1")
        e("v_addc_co_u32 v29, vcc, 0, v29, vcc")
        e(f"s_movk_i32 s90, {int(pf)}")
        e("v_cmp_gt_u32 vcc, s90, v0")
        e("s_nop 0")
        e("s_and_saveexec_b64 s[92:93], vcc")
        e("s_cbranch_execz L_nopf")
        e("global_load_dword v30, v[28:29], off")
        a.label("L_nopf")
        e("s_mov_b64 exec, -1")
    e(f"v_lshrrev_b32 v{t4}, 6, v0")
    e(f"v_and_b32 v{vLane}, 63, v0")
    e(f"v_and_b32 v{vL15}, 15, v0")
    e(f"v_readfirstlane_b32 s{sW}, v{t4}")
    e(f"v_bfe_u32 v{vG}, v0, 4, 2")
    e(f"v_lshrrev_b32 v{t6}, 1, v{vLane}")
    e(f"v_lshlrev_b32 v{t6}, 2, v{t6}")
    e("s_lshl_b32 s61, s2, 4")
    e(f"s_and_b32 s{sC}, s{sW}, 3")
    e(f"s_lshl_b32 s62, s{sC}, 2")
    e("s_add_u32 s61, s61, s62")
    e("s_mul_i32 s61, s61, 104")
    e(f"s_bfe_u32 s{sM}, s2, 0x10003")
    for r in (t0, t1, t2, t3): e(f"v_mov_b32 v{r}, 0")
    e(f"v_lshlrev_b32 v{t4}, 4, v0")
    for k in range(3): e(f"ds_write_b128 v{t4}, v[{t0}:{t3}] offset:{k*8192}")
    e(f"v_and_b32 v{t5}, 127, v0")
    e(f"v_lshlrev_b32 v{t5}, 4, v{t5}")
    e(f"v_add_u32 v{t5}, {QB}, v{t5}")
    e(f"ds_write_b128 v{t5}, v[{t0}:{t3}]")
    e(f"v_lshlrev_b32 v{vL16}, 4, v{vLane}")
    e(f"v_mov_b32 v{vDum}, {DUM}")
    e("s_waitcnt lgkmcnt(0)")
    e("s_barrier")
    st("karg")
    e(f"s_cmp_lt_u32 s{sW}, 4"); e("s_cbranch_scc1 L_touch0")
    vIdx = 4
    srd(SRD_IDX, 4, 4096*26*4)
    for k in range(4):
        e(f"buffer_load_dword v{vIdx+k}, v{t6}, s[{SRD_IDX}:{SRD_IDX+3}], s61 offen offset:{104*k}")
    a.label("L_touch0")
    e("s_lshr_b32 s62, s2, 3"); e("s_and_b32 s62, s62, 31")
    e(f"v_lshlrev_b32 v{t5}, 7, v{vLane}")
    e(f"s_mov_b32 s{SRD_T}, s12"); e(f"s_mov_b32 s{SRD_T+1}, s13"); e(f"s_mov_b32 s{SRD_T+3}, 0x20000")
    e("s_mul_i32 s63, s62, 10880"); e("s_add_u32 s64, s63, 10880"); e("s_min_u32 s64, s64, 346112")
    e(f"s_mov_b32 s{SRD_T+2}, s64")
    e(f"s_cmp_eq_u32 s{sW}, 4"); e("s_cbranch_scc1 L_touch")
    e("s_add_u32 s63, s63, 8192")
    e(f"s_cmp_eq_u32 s{sW}, 5"); e("s_cbranch_scc1 L_touch")
    e(f"s_mov_b32 s{SRD_T}, s8"); e(f"s_mov_b32 s{SRD_T+1}, s9")
    e("s_mul_i32 s63, s62, 3328"); e("s_add_u32 s64, s63, 3328"); e("s_min_u32 s64, s64, 105456")
    e(f"s_mov_b32 s{SRD_T+2}, s64")
    e(f"s_cmp_eq_u32 s{sW}, 6"); e("s_cbranch_scc1 L_touch")
    e(f"s_mov_b32 s{SRD_T}, s6"); e(f"s_mov_b32 s{SRD_T+1}, s7"); e(f"s_mov_b32 s{SRD_T+2}, 3200000")
    e("s_mov_b32 s63, 0")
    e(f"v_lshlrev_b32 v{t5}, 16, v{vLane}")
    e(f"s_cmp_eq_u32 s{sW}, 7"); e("s_cbranch_scc1 L_touch")
    e("s_branch L_C")
    a.label("L_touch")
    e(f"buffer_load_dword v31, v{t5}, s[{SRD_T}:{SRD_T+3}], s63 offen")
    e("s_branch L_D")

    a.label("L_C")
    vm = Track(a, "vmcnt", 63); lg = Track(a, "lgkmcnt", 15)
    SA2 = 154
    DS = [160, 172]; CV = [184, 190]
    vWs = 25; W3F = 32
    e("s_mov_b32 s68, s10"); e("s_mov_b32 s69, s11"); e("s_mov_b32 s70, 156"); e("s_mov_b32 s71, 0x20000")
    e(f"v_lshlrev_b32 v{t6}, 1, v{vLane}")
    e(f"buffer_load_ushort v{vWs}, v{t6}, s[68:71], 0 offen"); vm.add("ws")
    e(f"v_lshlrev_b32 v{t6}, 4, v{vG}")
    e(f"buffer_load_dwordx4 v[{W3F}:{W3F+3}], v{t6}, s[68:71], 0 offen offset:104"); vm.add("w3f")
    e("s_load_dword s47, s[18:19], 0")
    e(f"s_and_b32 s{sSh}, s{sC}, 1")
    scatter_addr(SA2, F2, True, 13)
    vH1, vH2 = 72, 73
    e(f"v_lshrrev_b32 v{t5}, 2, v{vL15}")
    e(f"v_lshl_add_u32 v{t5}, v{vG}, 3, v{t5}")
    e(f"v_add_u32 v{t6}, 4, v{t5}")
    e(f"v_min_u32 v{t5}, 25, v{t5}"); e(f"v_min_u32 v{t6}, 25, v{t6}")
    e(f"v_and_b32 v{t7}, 3, v{vL15}"); e(f"v_lshlrev_b32 v{t7}, 3, v{t7}")
    e("s_movk_i32 s64, 1352")
    e(f"v_mad_u32_u24 v{vH1}, v{t5}, s64, v{t7}"); e(f"v_mad_u32_u24 v{vH2}, v{t6}, s64, v{t7}")
    QA = 76
    for j in range(3):
        ee, h, k_, ad = t4, t5, t6, QA + j
        e(f"s_lshl_b32 s63, s{sC}, 6"); e(f"s_add_u32 s63, s63, {256*j}")
        e(f"v_add_u32 v{ee}, s63, v{vLane}")
        e(f"v_mul_u32_u24 v{h}, 2521, v{ee}"); e(f"v_lshrrev_b32 v{h}, 16, v{h}")
        e(f"v_mul_u32_u24 v{k_}, 26, v{h}"); e(f"v_sub_u32 v{k_}, v{ee}, v{k_}")
        e(f"v_cmp_gt_u32 vcc, 676, v{ee}")
        e(f"v_lshrrev_b32 v{ad}, 4, v{k_}"); e(f"v_lshlrev_b32 v{ad}, 10, v{ad}")
        e(f"v_and_b32 v{k_}, 15, v{k_}"); e(f"v_lshl_add_u32 v{ad}, v{k_}, 4, v{ad}")
        e(f"v_lshrrev_b32 v{k_}, 3, v{h}"); e(f"v_lshl_add_u32 v{ad}, v{k_}, 8, v{ad}")
        e(f"v_and_b32 v{h}, 7, v{h}"); e(f"v_lshl_add_u32 v{ad}, v{h}, 1, v{ad}")
        e(f"v_add_u32 v{ad}, {QB}, v{ad}")
        e(f"v_cndmask_b32 v{ad}, v{vDum}, v{ad}, vcc")
    vT1, vT2 = 37, 38
    e(f"s_lshl_b32 s63, s{sC}, 7"); e(f"s_add_u32 s63, s63, {W3L}")
    e(f"v_add_u32 v{vT1}, s63, v{vH1}"); e(f"v_add_u32 v{vT2}, s63, v{vH2}")
    TA1, TA2, vM = 39, 75, 74
    e(f"s_mul_i32 s63, s{sC}, 52"); e(f"s_lshl_b32 s64, s{sSh}, 2"); e("s_sub_u32 s63, s63, s64"); e(f"s_add_u32 s63, s63, {W2L}")
    e(f"v_add_u32 v{TA1}, s63, v{vH1}"); e(f"v_add_u32 v{TA2}, s63, v{vH2}")
    e(f"s_lshl_b32 s64, s{sSh}, 1"); e("s_add_u32 s64, s64, 10")
    e(f"v_cmp_gt_u32 vcc, s64, v{vL15}")
    QAD = [44, 45]
    e(f"s_lshl_b32 s63, s{sSh}, 1")
    e("s_nop 0")
    e(f"v_cndmask_b32 v{vM}, 0, -1, vcc")
    for aa in range(2):
        e(f"v_subrev_u32 v{t4}, s63, v{vL15}")
        if aa: e(f"v_add_u32 v{t4}, 16, v{t4}")
        e(f"v_min_u32 v{t4}, 31, v{t4}")
        e(f"v_lshrrev_b32 v{t5}, 4, v{t4}"); e(f"v_lshlrev_b32 v{t5}, 10, v{t5}")
        e(f"v_and_b32 v{t4}, 15, v{t4}"); e(f"v_lshl_add_u32 v{t5}, v{t4}, 4, v{t5}")
        e(f"v_lshl_add_u32 v{t5}, v{vG}, 8, v{t5}")
        e(f"v_add_u32 v{QAD[aa]}, {QB}, v{t5}")
    vFa = 226
    e(f"v_lshrrev_b32 v{t5}, 5, v{vLane}")
    e(f"v_mul_u32_u24 v{t6}, {HS}, v{t5}")
    e(f"v_and_b32 v{t7}, 31, v{vLane}")
    e(f"v_lshl_add_u32 v{vFa}, v{t7}, 4, v{t6}")
    st("w1")
    vm.wait("w3f")
    e(f"v_lshlrev_b32 v{t5}, 16, v{vWs}")
    e(f"v_cmp_gt_u32 s[88:89], 26, v{vLane}")
    e(f"v_cmp_gt_u32 s[90:91], 32, v{vLane}")
    e(f"v_lshlrev_b32 v{t6}, 2, v{vLane}")
    e(f"v_add_u32 v{t6}, {W1F}, v{t6}")
    e(f"v_cndmask_b32 v{t5}, 0, v{t5}, s[88:89]")
    e(f"v_cndmask_b32 v{t6}, v{vDum}, v{t6}, s[90:91]")
    e(f"ds_write_b32 v{t6}, v{t5}")
    e(f"v_subrev_u32 v{t5}, 26, v{vLane}")
    e(f"v_cmp_gt_u32 s[88:89], 26, v{t5}")
    e(f"v_lshrrev_b32 v{t6}, 3, v{t5}")
    e(f"v_lshlrev_b32 v{t6}, 8, v{t6}")
    e(f"v_and_b32 v{t7}, 7, v{t5}")
    e(f"v_lshl_add_u32 v{t6}, v{t7}, 1, v{t6}")
    e(f"v_add_u32 v{t6}, {QB+1024+160}, v{t6}")
    e(f"v_cndmask_b32 v{t6}, v{vDum}, v{t6}, s[88:89]")
    e(f"ds_write_b16 v{t6}, v{vWs}")
    AW = 56
    for gq in range(4): e(f"v_cmp_eq_u32 s[{88+2*gq}:{89+2*gq}], {4*gq}, v{vL15}")
    for gq in range(4):
        for j in range(4): e(f"v_cndmask_b32 v{AW+4*gq+j}, 0, v{W3F+j}, s[{88+2*gq}:{89+2*gq}]")
    e("s_waitcnt lgkmcnt(0)")
    e("s_barrier")
    st("bi")
    a.c("Weff")
    WB = 80; WD = 128
    for j in range(3):
        for gq in range(4):
            b = WB + 16*j + 4*gq
            e(f"ds_read_b64_tr_b16 v[{b}:{b+1}], v{vT1} offset:{j*512+32*gq}")
            e(f"ds_read_b64_tr_b16 v[{b+2}:{b+3}], v{vT2} offset:{j*512+32*gq}")
    for j in range(3):
        e(f"s_waitcnt lgkmcnt({min(15, 8*(2-j))})")
        for gq in range(4):
            b = WB + 16*j + 4*gq; d = WD + 4*j
            c = "0" if gq == 0 else f"v[{d}:{d+3}]"
            e(f"v_mfma_f32_16x16x32_bf16 v[{d}:{d+3}], v[{AW+4*gq}:{AW+4*gq+3}], v[{b}:{b+3}], {c}")
    a.nop(8)
    for j in range(3): e(f"v_cvt_pk_bf16_f32 v{t4+j}, v{WD+4*j}, v{WD+4*j}")
    for j in range(3): e(f"ds_write_b16 v{QA+j}, v{t4+j}")
    st("weff")
    e("s_waitcnt vmcnt(0) lgkmcnt(0)")
    e("s_barrier")
    st("b2")
    a.c("S2")
    Q0, Q1 = 140, 144
    lg.l = []
    e(f"ds_read_b128 v[{Q0}:{Q0+3}], v{QAD[0]}"); e(f"ds_read_b128 v[{Q1}:{Q1+3}], v{QAD[1]}"); lg.add("q", 2)
    PS = [48, 56, 64]
    cvt = lambda k, j: f"v_cvt_pk_bf16_f32 v{CV[k&1]+j}, v{DS[k&1]+2*j}, v{DS[k&1]+2*j+1}"
    wr = lambda SA, k, j: f"ds_write_b32 v{SA+j}, v{CV[k&1]+j} offset:{k*64}"
    def p_reads(k):
        P = PS[k % 3]
        return [f"ds_read_b64_tr_b16 v[{P}:{P+1}], v{TA1} offset:{k*208}",
                f"ds_read_b64_tr_b16 v[{P+2}:{P+3}], v{TA2} offset:{k*208}",
                f"ds_read_b64_tr_b16 v[{P+4}:{P+5}], v{TA1} offset:{k*208+32}",
                f"ds_read_b64_tr_b16 v[{P+6}:{P+7}], v{TA2} offset:{k*208+32}"]
    for k in (0, 1):
        for x in p_reads(k): e(x)
        lg.add(f"p{k}", 4)
    def masks(k): return [f"v_and_b32 v{PS[k%3]+4+j}, v{vM}, v{PS[k%3]+4+j}" for j in range(4)]
    lg.wait("p0")
    for x in masks(0): e(x)
    a.nop(1)
    for k in range(9):
        M = mf6(DS[k & 1], PS[k % 3], PS[k % 3]+4, Q0, Q1) if k < 7 else [None]*6
        R = p_reads(k+2) if k + 2 < 7 else []
        if k == 7: a.nop(4)
        if k == 8:
            e(f"s_cmp_lt_u32 s{sC}, 2"); e("s_cbranch_scc1 L_s2v")
            for j in range(6): e(f"v_mov_b32 v{SA2+j}, v{vDum}")
            a.label("L_s2v")
        for j in range(6):
            if j == 4 and k + 1 < 7:
                lg.wait(f"p{k+1}")
                for x in masks(k+1): e(x)
            if M[j]: e(M[j])
            if k >= 2: e(wr(SA2, k-2, j)); lg.add("w")
            if 1 <= k <= 7: e(cvt(k-1, j))
            if j < len(R): e(R[j]); lg.add(f"p{k+2}")
    st("s2")
    e("s_waitcnt lgkmcnt(0)")
    e("s_barrier")
    e("s_barrier")
    st("b3")
    if dbg == "lds":
        e("s_cmp_eq_u32 s2, 0"); e("s_cbranch_scc0 L_nodump")
        e(f"v_lshlrev_b32 v{t4}, 4, v0")
        for k in range(40):
            e(f"v_add_u32 v{t5}, {k*4096}, v{t4}")
            e(f"ds_read_b128 v[{t0}:{t3}], v{t5}")
            e("s_waitcnt lgkmcnt(0)")
            e(f"global_store_dwordx4 v{t5}, v[{t0}:{t3}], s[98:99]")
            e("s_waitcnt vmcnt(0)")
        a.label("L_nodump")
    a.c("C main")
    XA, YA, XB, YB = 8, 34, 47, 73
    D1A, D2A, D1B, D2B = 96, 112, 128, 144
    ZB = [[160, 164], [168, 172]]
    AB = [176, 184, 192]
    TM = [200, 201, 202, 203, 204, 205, 206, 207]
    WI = 208; vXb = 224; PK = 176
    e(f"v_and_b32 v{TM[4]}, 1, v{vG}")
    e(f"s_lshl_b32 s63, s{sC}, 2")
    e(f"v_add_u32 v{TM[4]}, s63, v{TM[4]}")
    e(f"v_mul_u32_u24 v{TM[4]}, 832, v{TM[4]}")
    e(f"v_lshrrev_b32 v{TM[5]}, 2, v{vL15}")
    e(f"v_lshl_add_u32 v{TM[4]}, v{TM[5]}, 5, v{TM[4]}")
    e(f"v_and_b32 v{TM[5]}, 3, v{vL15}")
    e(f"v_lshl_add_u32 v{TM[4]}, v{TM[5]}, 3, v{TM[4]}")
    e(f"v_add_u32 v{vXb}, {X0}, v{TM[4]}")
    safe = int(opts.get("safe", "0"))
    for T in range(2):
        for fb in range(7):
            e(f"ds_read_b64_tr_b16 v[{PK+14*T+2*fb}:{PK+14*T+2*fb+1}], v{vXb} offset:{T*1664 + fb*128}")
    e(f"v_lshrrev_b32 v{TM[5]}, 5, v{vLane}")
    e(f"v_lshlrev_b32 v{TM[6]}, 4, v{TM[5]}")
    e(f"v_add_u32 v{TM[6]}, {W1F}, v{TM[6]}")
    if safe: e("s_waitcnt lgkmcnt(0)")
    for m in range(4): e(f"ds_read_b128 v[{WI+4*m}:{WI+4*m+3}], v{TM[6]} offset:{m*32}")
    e(f"v_cmp_eq_u32 s[72:73], 1, v{TM[5]}")
    for T, (X, Y) in enumerate(((XA, YA), (XB, YB))):
        e(f"s_waitcnt lgkmcnt({11 if T == 0 else 4})")
        for g in range(13):
            p = PK + 14*T + g
            e(f"v_lshlrev_b32 v{X+2*g}, 16, v{p}")
            e(f"v_and_b32 v{X+2*g+1}, 0xffff0000, v{p}")
        for g in range(13): e(f"v_cndmask_b32 v{Y+g}, v{X+2*g}, v{X+2*g+1}, s[72:73]")
    def a_read(t):
        b = AB[t % 3]
        if t <= 22: e(f"ds_read_b128 v[{b}:{b+3}], v{vFa} offset:{F1 + t*FS}")
        if t <= 25: e(f"ds_read_b128 v[{b+4}:{b+7}], v{vFa} offset:{F2 + t*FS}")
    blocks = [(g, gp) for g in range(14) for gp in range(min(g, 12)+1)]
    def zgen(t, T):
        X, Y = ((XA, YA), (XB, YB))[T]
        z = ZB[t & 1][T]; mul = []; cv = []
        for j in range(4):
            g, gp = blocks[4*t + j]
            ta, tb, th = TM[2*j], TM[2*j+1], 228 + T
            if g == 13: cv.append(f"v_cvt_pk_bf16_f32 v{z+j}, v{Y+gp}, 0")
            else:
                y = Y + gp
                if g == gp:
                    mul.append(f"v_mul_f32 v{th}, 0.5, v{Y+gp}"); y = th
                mul.append(f"v_mul_f32 v{ta}, v{X+2*g}, v{y}")
                mul.append(f"v_mul_f32 v{tb}, v{X+2*g+1}, v{y}")
                cv.append(f"v_cvt_pk_bf16_f32 v{z+j}, v{ta}, v{tb}")
        return mul + cv
    st("xld")
    a_read(0); a_read(1)
    for T in range(2):
        for s in zgen(0, T): e(s)
    cnt = {t: (1 if t > 22 else 2) for t in range(26)}
    for t in range(26):
        younger = cnt[t+1] if t+1 <= 25 else 0
        e(f"s_waitcnt lgkmcnt({younger})")
        b = AB[t % 3]; mf = []; rds = []
        if t + 2 <= 25:
            b2 = AB[(t+2) % 3]
            if t + 2 <= 22: rds.append(f"ds_read_b128 v[{b2}:{b2+3}], v{vFa} offset:{F1 + (t+2)*FS}")
            rds.append(f"ds_read_b128 v[{b2+4}:{b2+7}], v{vFa} offset:{F2 + (t+2)*FS}")
        for T, (D1, D2) in enumerate(((D1A, D2A), (D1B, D2B))):
            z = ZB[t & 1][T]
            if t <= 22:
                c = "0" if t == 0 else f"v[{D1}:{D1+15}]"
                mf.append(f"v_mfma_f32_32x32x16_bf16 v[{D1}:{D1+15}], v[{b}:{b+3}], v[{z}:{z+3}], {c}")
            c = f"v[{WI}:{WI+15}]" if t == 0 else f"v[{D2}:{D2+15}]"
            mf.append(f"v_mfma_f32_32x32x16_bf16 v[{D2}:{D2+15}], v[{b+4}:{b+7}], v[{z}:{z+3}], {c}")
        va = (zgen(t+1, 0) + zgen(t+1, 1)) if t < 25 else []
        n = len(mf); per = (len(va) + n - 1)//n if va else 0
        if t == 0: a.nop(2)
        vi = 0
        for mi, m in enumerate(mf):
            e(m)
            if mi < len(rds): e(rds[mi])
            for s in va[vi:vi+per]: e(s)
            vi += per
    a.nop(16)
    st("main")
    for T, (D1, D2) in enumerate(((D1A, D2A), (D1B, D2B))): e(f"v_mul_f32 v{TM[T]}, v{D1}, v{D2}")
    for r in range(1, 14):
        for T, (D1, D2) in enumerate(((D1A, D2A), (D1B, D2B))): e(f"v_fmac_f32 v{TM[T]}, v{D1+r}, v{D2+r}")
    if opts.get("chk"):
        for T in range(2):
            for fb in range(7):
                e(f"ds_read_b64_tr_b16 v[{96+14*T+2*fb}:{96+14*T+2*fb+1}], v{vXb} offset:{T*1664 + fb*128}")
            e("s_waitcnt lgkmcnt(0)")
        e("v_mov_b32 v230, 0x41200000")
        for T, (X, Y) in enumerate(((XA, YA), (XB, YB))):
            for g in range(13):
                p = 96 + 14*T + g
                e(f"v_lshlrev_b32 v228, 16, v{p}")
                e(f"v_cmp_ne_u32 vcc, v228, v{X+2*g}")
                e("s_nop 1")
                e(f"v_cndmask_b32 v229, 0, v230, vcc")
                e(f"v_add_f32 v{TM[T]}, v{TM[T]}, v229")
                e(f"v_and_b32 v228, 0xffff0000, v{p}")
                e(f"v_cmp_ne_u32 vcc, v228, v{X+2*g+1}")
                e("s_nop 1")
                e(f"v_cndmask_b32 v229, 0, v230, vcc")
                e(f"v_add_f32 v{TM[T]}, v{TM[T]}, v229")
    for sh in (8, 4, 2, 1):
        a.nop(2)
        for T in range(2): e(f"v_add_f32_dpp v{TM[T]}, v{TM[T]}, v{TM[T]} row_ror:{sh} row_mask:0xf bank_mask:0xf")
    e(f"v_bfe_u32 v{TM[2]}, v{vLane}, 4, 1")
    e(f"v_lshlrev_b32 v{TM[2]}, 3, v{TM[2]}")
    e(f"v_lshrrev_b32 v{TM[3]}, 5, v{vLane}")
    e(f"v_lshl_add_u32 v{TM[2]}, v{TM[3]}, 2, v{TM[2]}")
    e(f"s_lshl_b32 s63, s{sC}, 5"); e(f"s_add_u32 s63, s63, {RED}")
    e(f"v_add_u32 v{TM[2]}, s63, v{TM[2]}")
    e(f"ds_write_b32 v{TM[2]}, v{TM[0]}")
    e(f"ds_write_b32 v{TM[2]}, v{TM[1]} offset:16")
    e("s_branch L_final")

    a.label("L_D")
    sD, sDB, sK, sNI = 66, 67, 80, 79
    srd(SRD_TAB, 6, 3200000)
    srd(SRD_WD, 12, 346112)
    srd(SRD_WS, 8, 105456)
    P = 16; ACC = 32; BB = [64, 96]; AF = [128, 132]; TRA = 136; W2R = 144; BIAS = 152; OUT = 160; GT = 164; vC0 = 184; vA = 185
    W1R = 64; I0, I1 = 120, 124
    SA1 = 192; DSd = [198, 210]; CVd = [222, 164]
    vW1 = 27
    e(f"s_cmp_eq_u32 s{sD}, 0"); e("s_cbranch_scc0 L_nobias")
    for ptr, off in ((14, 0), (16, 1024)):
        e(f"s_mov_b32 s68, s{ptr}"); e(f"s_mov_b32 s69, s{ptr+1}"); e("s_mov_b32 s70, 832"); e("s_mov_b32 s71, 0x20000")
        e(f"s_mov_b32 m0, {RING+off}"); e("s_nop 0")
        e(f"buffer_load_dwordx4 v{vL16}, s[68:71], 0 offen lds")
    a.label("L_nobias")
    sLS, sLD = 72, 73
    def lin_start(src, dst):
        e(f"s_lshl_b32 s{sLD}, s{sD}, 10")
        e(f"s_add_u32 s{sLS}, s{sLD}, {src}"); e(f"s_add_u32 s{sLD}, s{sLD}, {dst}")
    uid = [0]
    def lin_one(k):
        if k < 8:
            e(f"s_mov_b32 m0, s{sLD}"); e(f"s_add_u32 s{sLD}, s{sLD}, 4096")
            e(f"buffer_load_dwordx4 v{vL16}, s[{SRD_WS}:{SRD_WS+3}], s{sLS} offen lds")
            e(f"s_add_u32 s{sLS}, s{sLS}, 4096")
        else:
            uid[0] += 1; lab = f"L_lin{uid[0]}"
            e(f"s_cmp_lt_u32 s{sD}, 2"); e(f"s_cbranch_scc1 {lab}")
            e("s_mov_b64 exec, 0x1fffff")
            e(f"s_cmp_eq_u32 s{sD}, 2"); e(f"s_cbranch_scc1 {lab}")
            e(f"s_mov_b32 s{sLS}, {BIG}"); e(f"s_mov_b32 s{sLD}, {DUM}")
            a.label(lab)
            e(f"s_mov_b32 m0, s{sLD}"); e("s_nop 0")
            e(f"buffer_load_dwordx4 v{vL16}, s[{SRD_WS}:{SRD_WS+3}], s{sLS} offen lds")
            e("s_mov_b64 exec, -1")
    lin_start(2*35152, W3L)
    for k in range(n3first): lin_one(k)
    e(f"v_and_b32 v{t0}, 1, v{vLane}"); e(f"v_lshlrev_b32 v{t0}, 4, v{t0}")
    e(f"v_lshlrev_b32 v{t4}, 3, v{vG}")
    e(f"v_sub_u32 v{t4}, v{vL15}, v{t4}")
    e(f"v_and_b32 v{t5}, 1, v{t4}")
    e(f"v_lshlrev_b32 v{t5}, 4, v{t5}")
    e(f"v_mov_b32 v{t6}, 0x3f80")
    e(f"v_lshlrev_b32 v{t5}, v{t5}, v{t6}")
    e(f"v_ashrrev_i32 v{t4}, 1, v{t4}")
    e(f"v_add_u32 v{t6}, 8, v{t4}")
    for j in range(4): e(f"v_cmp_eq_u32 s[{88+2*j}:{89+2*j}], {j}, v{t4}")
    for j in range(4): e(f"v_cndmask_b32 v{I0+j}, 0, v{t5}, s[{88+2*j}:{89+2*j}]")
    for j in range(4): e(f"v_cmp_eq_u32 s[{88+2*j}:{89+2*j}], {j}, v{t6}")
    for j in range(4): e(f"v_cndmask_b32 v{I1+j}, 0, v{t5}, s[{88+2*j}:{89+2*j}]")
    scatter_addr(SA1, F1, False, 12)
    e(f"v_mul_u32_u24 v{t7}, 52, v{vL15}")
    e(f"v_lshl_add_u32 v{vW1}, v{vG}, 4, v{t7}")
    e(f"s_mul_i32 s81, s{sD}, 192"); e("s_add_u32 s81, s81, 64")
    e(f"s_mul_i32 s{sDB}, s{sD}, 6144"); e(f"s_add_u32 s{sDB}, s{sDB}, {RING + 8192 - 6144}")
    e(f"s_cmp_eq_u32 s{sD}, 0")
    e("s_cselect_b32 s81, 0, s81"); e(f"s_cselect_b32 s{sDB}, {RING}, s{sDB}")
    e(f"s_cselect_b32 s{sNI}, 8, 6")
    e("s_movk_i32 s74, 5462"); e("s_cselect_b32 s74, 4096, s74")
    e("s_cselect_b32 s75, 16, 12")
    e("s_cselect_b32 s76, -1, 0")
    e("s_cselect_b32 s77, 0, 2")
    e("s_movk_i32 s78, 192"); e("s_cselect_b32 s78, 256, s78")
    for j in range(8):
        m, row, cp, sw = t1, t2, t3, t4
        e(f"v_add_u32 v{m}, {64*j}, v{vLane}")
        e(f"v_mul_u32_u24 v{row}, s74, v{m}"); e(f"v_lshrrev_b32 v{row}, 16, v{row}")
        e(f"v_mul_u32_u24 v{cp}, s75, v{row}"); e(f"v_sub_u32 v{cp}, v{m}, v{cp}")
        e(f"v_and_b32 v{sw}, 3, v{row}"); e(f"v_lshlrev_b32 v{sw}, 1, v{sw}"); e(f"v_and_b32 v{sw}, s76, v{sw}")
        e(f"v_and_b32 v{t5}, 8, v{row}"); e(f"v_lshrrev_b32 v{t5}, s77, v{t5}")
        e(f"v_or_b32 v{sw}, v{sw}, v{t5}")
        e(f"v_xor_b32 v{cp}, v{cp}, v{sw}")
        e(f"v_mul_u32_u24 v{row}, 832, v{row}")
        e(f"v_lshl_add_u32 v{cp}, v{cp}, 4, v{row}")
        e(f"v_add_u32 v{P+j}, s81, v{cp}")
    e(f"v_lshrrev_b32 v{t2}, 2, v{vL15}")
    e(f"v_lshl_add_u32 v{t3}, v{vG}, 3, v{t2}")
    e(f"v_mul_u32_u24 v{t3}, s78, v{t3}")
    e(f"v_and_b32 v{t4}, 3, v{vL15}")
    e(f"v_lshl_add_u32 v{t3}, v{t4}, 3, v{t3}")
    e(f"v_add_u32 v{t3}, s{sDB}, v{t3}")
    e(f"v_and_b32 v{t4}, 1, v{vG}")
    e(f"v_lshl_add_u32 v{t5}, v{t4}, 2, v{t2}")
    e(f"v_and_b32 v{t5}, s76, v{t5}")
    e(f"v_not_b32 v{t6}, s76"); e(f"v_and_b32 v{t4}, v{t6}, v{t4}")
    e(f"v_or_b32 v{t2}, v{t5}, v{t4}")
    for tau in range(8):
        e(f"v_xor_b32 v{t4}, {tau}, v{t2}")
        e(f"v_lshl_add_u32 v{TRA+tau}, v{t4}, 5, v{t3}")
    e(f"v_mul_u32_u24 v{vA}, 832, v{vL15}")
    e(f"v_lshl_add_u32 v{vA}, v{vG}, 4, v{vA}")
    e(f"v_add_u32 v{vA}, {X0}, v{vA}")
    st("w1")
    def w1_loads():
        e(f"s_mul_i32 s63, s{sD}, 1352")
        for k in range(7):
            if k == 6:
                e(f"s_cmp_lt_u32 s{sD}, 2"); e(f"s_cselect_b32 s63, s63, {BIG}")
            e(f"buffer_load_dwordx4 v[{W1R+8*k}:{W1R+8*k+3}], v{vW1}, s[{SRD_WS}:{SRD_WS+3}], s63 offen")
            e(f"buffer_load_dwordx4 v[{W1R+8*k+4}:{W1R+8*k+7}], v{vW1}, s[{SRD_WS}:{SRD_WS+3}], s63 offen offset:832")
            if k < 6: e(f"s_add_u32 s63, s63, {4*1352}")
    def gathers():
        for k in range(4): e(f"v_lshl_add_u32 v{vIdx+k}, v{vIdx+k}, 5, v{t0}")
        e(f"s_mul_i32 s63, s{sD}, {4*832}"); e(f"s_add_u32 s63, s63, {X0}")
        e("s_mov_b32 exec_lo, -1"); e("s_mov_b32 exec_hi, 0xfffff")
        for k in range(4):
            e(f"s_add_u32 m0, s63, {832*k}"); e("s_nop 0")
            e(f"buffer_load_dwordx4 v{vIdx+k}, s[{SRD_TAB}:{SRD_TAB+3}], 0 offen lds")
        e("s_mov_b64 exec, -1")
    def bias_read():
        e(f"v_lshlrev_b32 v{t1}, 1, v{vL15}"); e(f"v_add_u32 v{t1}, s81, v{t1}"); e(f"v_add_u32 v{t1}, {RING}, v{t1}")
        for tau in range(8):
            e(f"v_mov_b32 v{BIAS+tau}, 0"); e(f"v_mov_b32 v{W2R+tau}, 0")
        for tau in range(8):
            e(f"ds_read_u16_d16_hi v{BIAS+tau}, v{t1} offset:{tau*32}")
            e(f"ds_read_u16_d16_hi v{W2R+tau}, v{t1} offset:{1024+tau*32}")
        e("s_waitcnt lgkmcnt(0)")
        for tau in range(8):
            for r in range(4): e(f"v_mov_b32 v{ACC+4*tau+r}, v{BIAS+tau}")
    def kdma(slot):
        uid[0] += 1; lab = f"L_k{uid[0]}"
        for j in range(8):
            if j == 6:
                e(f"s_cmp_eq_u32 s{sNI}, 6"); e(f"s_cbranch_scc1 {lab}")
            e(f"s_add_u32 m0, s{sDB}, {slot*SLOT + j*1024}"); e("s_nop 0")
            e(f"buffer_load_dwordx4 v{P+j}, s[{SRD_WD}:{SRD_WD+3}], s{sK} offen lds")
        a.label(lab)
        e(f"s_add_u32 s{sK}, s{sK}, {SLOT}")
    def S1():
        cvt = lambda k, j: f"v_cvt_pk_bf16_f32 v{CVd[k&1]+j}, v{DSd[k&1]+2*j}, v{DSd[k&1]+2*j+1}"
        wr = lambda k, j: f"ds_write_b32 v{SA1+j}, v{CVd[k&1]+j} offset:{k*64}"
        for k in range(9):
            M = mf6(DSd[k & 1], W1R+8*k, W1R+8*k+4, I0, I1) if k < 7 else [None]*6
            if k == 7: a.nop(4)
            if k == 1: a.nop(5)
            if k == 2: a.nop(1)
            for j in range(6):
                if M[j]: e(M[j])
                if k >= 2: e(wr(k-2, j))
                if 1 <= k <= 7: e(cvt(k-1, j))
    e(f"s_mov_b32 s{sK}, 0")
    if mode == "S":
        e(f"s_cmp_eq_u32 s{sM}, 1"); e("s_cbranch_scc1 L_modeA")
    if mode in ("B", "S"):
        for k in range(n3first, 9): lin_one(k)
        lin_start(35152, W2L)
        for k in range(9): lin_one(k)
        e("s_waitcnt vmcnt(9)")
        e("s_barrier")
        st("bi")
        w1_loads()
        bias_read()
        e("s_waitcnt vmcnt(14)")
        e("s_barrier")
        st("b2")
        gathers()
        st("sb1")
        e("s_waitcnt vmcnt(4)")
        if mode == "S": e("s_branch L_S1")
    if mode in ("A", "S"):
        a.label("L_modeA")
        for k in range(n3first, 9): lin_one(k)
        e("s_waitcnt vmcnt(9)")
        gathers()
        e("s_waitcnt vmcnt(4)")
        e("s_barrier")
        st("bi")
        lin_start(35152, W2L)
        for k in range(9): lin_one(k)
        bias_read()
        e("s_waitcnt vmcnt(0)")
        e("s_barrier")
        st("b2")
        w1_loads()
        kdma(0); kdma(1)
        st("sb1")
        uid[0] += 1
        e(f"s_cmp_eq_u32 s{sNI}, 6"); e(f"s_cbranch_scc1 L_wa6")
        e("s_waitcnt vmcnt(16)"); e("s_branch L_S1a")
        a.label("L_wa6"); e("s_waitcnt vmcnt(12)")
        a.label("L_S1a")
        if mode == "S": e("s_mov_b32 s64, 1")
    if mode == "S":
        e("s_branch L_S1go")
        a.label("L_S1"); e("s_mov_b32 s64, 0")
        a.label("L_S1go")
    S1()
    k01late = int(opts.get("k01late", "0"))
    if mode == "B" and not k01late:
        kdma(0); kdma(1)
    elif mode == "S":
        e("s_cmp_eq_u32 s64, 1"); e("s_cbranch_scc1 L_nok")
        kdma(0); kdma(1)
        a.label("L_nok")
    st("s1")
    e("s_waitcnt lgkmcnt(0)")
    e("s_barrier")
    if k01late: kdma(0); kdma(1)
    kdma(2)
    st("issued")
    e(f"s_cmp_eq_u32 s{sD}, 0"); e("s_cbranch_scc0 L_D3")
    def emit_D(U):
        tag = f"U{U}"; nI = 2*U; nt = 2*U; RS = 64*U
        e(f"s_waitcnt vmcnt({3*nI})")
        st("s2")
        e("s_barrier")
        st("b3")
        if prio: e(f"s_setprio {prio}")
        def reads(b, slot, astep):
            r = [f"ds_read_b128 v[{AF[b]}:{AF[b]+3}], v{vA} offset:{64*astep}"]
            for tau in range(nt):
                r.append(f"ds_read_b64_tr_b16 v[{BB[b]+4*tau}:{BB[b]+4*tau+1}], v{TRA+tau} offset:{slot*SLOT}")
                r.append(f"ds_read_b64_tr_b16 v[{BB[b]+4*tau+2}:{BB[b]+4*tau+3}], v{TRA+tau} offset:{slot*SLOT+4*RS}")
            return r
        def mfmas(b):
            return [f"v_mfma_f32_16x16x32_bf16 v[{ACC+4*tau}:{ACC+4*tau+3}], v[{AF[b]}:{AF[b]+3}], v[{BB[b]+4*tau}:{BB[b]+4*tau+3}], v[{ACC+4*tau}:{ACC+4*tau+3}]" for tau in range(nt)]
        e(f"s_waitcnt vmcnt({2*nI})")
        for x in reads(0, 0, 0): e(x)
        e("s_waitcnt lgkmcnt(0)")
        e("s_mov_b32 s82, 0")
        st("xld")
        a.label(f"L_dl{tag}")
        for i in range(6):
            e(f"s_waitcnt vmcnt({nI})")
            R = reads((i+1) & 1, (i+1) % 3, i+1)
            ri = 0
            burst = int(opts.get("burst", "1"))
            Ms = mfmas(i & 1)
            for j in range(nI):
                e(f"s_add_u32 m0, s{sDB}, {(i % 3)*SLOT + j*1024}")
                e(R[ri]); ri += 1
                e(f"buffer_load_dwordx4 v{P+j}, s[{SRD_WD}:{SRD_WD+3}], s{sK} offen lds")
                e(R[ri]); ri += 1
                if not burst: e(Ms[j])
            while ri < len(R): e(R[ri]); ri += 1
            e(f"s_add_u32 s{sK}, s{sK}, {SLOT}")
            if burst:
                for x in Ms: e(x)
            e("s_waitcnt lgkmcnt(0)")
        e(f"v_add_u32 v{vA}, {6*64}, v{vA}")
        e("s_add_u32 s82, s82, 1")
        e("s_cmp_lt_u32 s82, 2"); e(f"s_cbranch_scc1 L_dl{tag}")
        for x in mfmas(0): e(x)
        st("main")
        C0 = -2.0*0.7978845608028654*1.4426950408889634; C1 = C0*0.044715
        for r in range(4): e(f"v_mov_b32 v{OUT+r}, 0")
        if pk:
            c0, c1, one = vC0+2, vC0+4, vC0+6
            for r_, val in ((c0, C0), (c1, C1), (one, 1.0)):
                e(f"v_mov_b32 v{r_}, 0x{f32bits(val):08x}"); e(f"v_mov_b32 v{r_+1}, 0x{f32bits(val):08x}")
            a.nop(8)
            pr = lambda r: f"v[{r}:{r+1}]"
            for tau in range(nt):
                x = ACC + 4*tau; Uu, E, Yv = GT, GT+4, GT+8
                for h in (0, 2): e(f"v_pk_mul_f32 {pr(Uu+h)}, {pr(x+h)}, {pr(x+h)}")
                for h in (0, 2): e(f"v_pk_fma_f32 {pr(Uu+h)}, {pr(Uu+h)}, {pr(c1)}, {pr(c0)}")
                for h in (0, 2): e(f"v_pk_mul_f32 {pr(Uu+h)}, {pr(x+h)}, {pr(Uu+h)}")
                for r in range(4): e(f"v_exp_f32 v{E+r}, v{Uu+r}")
                for h in (0, 2): e(f"v_pk_mul_f32 {pr(Yv+h)}, {pr(x+h)}, v[{W2R+(tau&~1)}:{W2R+(tau&~1)+1}] op_sel:[0,{tau&1}] op_sel_hi:[1,{tau&1}]")
                for h in (0, 2): e(f"v_pk_add_f32 {pr(E+h)}, {pr(E+h)}, {pr(one)}")
                for r in range(4): e(f"v_rcp_f32 v{E+r}, v{E+r}")
                e("s_nop 0")
                for h in (0, 2): e(f"v_pk_fma_f32 {pr(OUT+h)}, {pr(Yv+h)}, {pr(E+h)}, {pr(OUT+h)}")
        else:
            e(f"v_mov_b32 v{vC0}, 0x{f32bits(C0):08x}")
            a.nop(8)
            def g_a(tau, o):
                x = ACC + 4*tau; Uu, E, Yv = GT+o, GT+o+4, GT+o+8
                r4 = range(4)
                return ([f"v_mul_f32 v{Uu+r}, v{x+r}, v{x+r}" for r in r4] +
                        [f"v_fmamk_f32 v{Uu+r}, v{Uu+r}, 0x{f32bits(C1):08x}, v{vC0}" for r in r4] +
                        [f"v_mul_f32 v{Uu+r}, v{x+r}, v{Uu+r}" for r in r4] +
                        [f"v_exp_f32 v{E+r}, v{Uu+r}" for r in r4] +
                        [f"v_mul_f32 v{Yv+r}, v{x+r}, v{W2R+tau}" for r in r4] +
                        [f"v_add_f32 v{E+r}, 1.0, v{E+r}" for r in r4] +
                        [f"v_rcp_f32 v{E+r}, v{E+r}" for r in r4] + ["s_nop 0"] +
                        [f"v_fmac_f32 v{OUT+r}, v{Yv+r}, v{E+r}" for r in r4])
            for tau in range(nt):
                for x in g_a(tau, 0): e(x)
        st("gelu")
        for sh in (8, 4, 2, 1):
            a.nop(2)
            for r in range(4): e(f"v_add_f32_dpp v{OUT+r}, v{OUT+r}, v{OUT+r} row_ror:{sh} row_mask:0xf bank_mask:0xf")
        e(f"s_lshl_b32 s63, s{sD}, 6"); e(f"s_add_u32 s63, s63, {RED2}")
        e(f"v_lshlrev_b32 v{GT}, 4, v{vG}"); e(f"v_add_u32 v{GT}, s63, v{GT}")
        e(f"ds_write_b128 v{GT}, v[{OUT}:{OUT+3}]")
    emit_D(4)
    e("s_branch L_final")
    a.label("L_D3")
    emit_D(3)

    a.label("L_final")
    e("s_waitcnt lgkmcnt(0)")
    e("s_barrier")
    st("fin")
    if stamp is not None:
        wg, wv = [int(x) for x in stamp.split("_")]
        e(f"s_cmp_eq_u32 s2, {wg}"); e("s_cbranch_scc0 L_nost")
        e(f"s_cmp_eq_u32 s{sW}, {wv}"); e("s_cbranch_scc0 L_nost")
        e(f"v_lshlrev_b32 v30, 2, v{vLane}")
        e("s_mov_b64 exec, 0xffff")
        e(f"global_store_dword v30, v{vSt}, s[96:97]")
        e("s_mov_b64 exec, -1")
        a.label("L_nost")
    e(f"s_cmp_eq_u32 s{sW}, 0"); e("s_cbranch_scc0 L_end")
    e(f"v_lshlrev_b32 v8, 3, v{vL15}"); e(f"v_add_u32 v8, {RED}, v8")
    e(f"v_lshlrev_b32 v9, 2, v{vL15}"); e(f"v_add_u32 v9, {RED2}, v9")
    e("ds_read_b64 v[10:11], v8")
    for d in range(4): e(f"ds_read_b32 v{12+d}, v9 offset:{d*64}")
    e("s_lshl_b32 s47, s47, 16")
    e("s_mov_b32 s68, s20"); e("s_mov_b32 s69, s21"); e("s_mov_b32 s70, 8192"); e("s_mov_b32 s71, 0x20000")
    e("s_lshl_b32 s63, s2, 5")
    e(f"v_lshlrev_b32 v16, 1, v{vL15}")
    e("s_waitcnt lgkmcnt(0)")
    e("v_add_f32 v10, v10, v11"); e("v_add_f32 v12, v12, v13"); e("v_add_f32 v14, v14, v15")
    e("v_add_f32 v12, v12, v14"); e("v_add_f32 v10, v10, v12"); e("v_add_f32 v10, s47, v10")
    e("v_cvt_pk_bf16_f32 v10, v10, v10")
    e("s_mov_b64 exec, 0xffff")
    e("buffer_store_short v10, v16, s[68:71], s63 offen")
    a.label("L_end")
    e("s_endpgm")
    a.label("CODE_END")
    return a

HEADER = """; xDeepFM (CIN + DNN) fused kernel for gfx950 -- generated by my own script
; @launch grid=(256,1,1) block=(512,1,1) lds=163840
.amdgcn_target "amdgcn-amd-amdhsa--gfx950"
.text
.globl {k}
.p2align 8
.type {k},@function
"""
FOOTER = """
.section .rodata,"a"
.p2align 6
.amdhsa_kernel {k}
  .amdhsa_next_free_vgpr {nv}
  .amdhsa_next_free_sgpr 102
  .amdhsa_accum_offset {nv}
  .amdhsa_group_segment_fixed_size 0
  .amdhsa_kernarg_size 88
  .amdhsa_user_sgpr_count 2
  .amdhsa_user_sgpr_kernarg_segment_ptr 1
  .amdhsa_system_sgpr_workgroup_id_x 1
.end_amdhsa_kernel
"""
if __name__ == "__main__":
    opts = dict(x.split("=") for x in sys.argv[2:])
    a = gen(opts)
    body = a.text()
    probs = check_hazards(body)
    for p in probs: print("HAZARD:", p, file=sys.stderr)
    open(sys.argv[1], "w").write(HEADER.format(k=KNAME) + body + FOOTER.format(k=KNAME, nv=232))
    print("written", sys.argv[1], "hazards:", len(probs), file=sys.stderr)
```

```python
import sys, struct
from asmlib import Asm, check_hazards

KNAME = "standalone__deep_cross_xdeepfm__recsys_kernel"
FS, HS = 1040, 528
F1 = 0; F2 = 23920
W3L = F2
RING = 59072; SLOT = 26624
W2L = 112816
QB = 147968
X0 = 150016
W1F = 163328; RED = W1F + 128; RED2 = RED + 128
DUM = 0x30000
BIG = 0x10000000
def f32bits(x): return struct.unpack("<I", struct.pack("<f", x))[0]

class Track:
    def __init__(self, a, name, cap): self.a, self.name, self.cap, self.l = a, name, cap, []
    def add(self, tag, n=1): self.l.extend([tag]*n)
    def count(self, tag):
        idx = [i for i, t in enumerate(self.l) if t == tag]
        assert idx, tag
        return min(len(self.l) - 1 - idx[-1], self.cap)
    def wait(self, tag): self.a.e(f"s_waitcnt {self.name}({self.count(tag)})")

def gen(opts):
    a = Asm(); e = a.e
    dbg = opts.get("dbg"); stamp = opts.get("stamp"); pf = opts.get("pf", "184")
    prio = int(opts.get("prio", "2")); pk = int(opts.get("pk", "0"))
    n3first = int(opts.get("n3", "3"))
    mode = "B"
    kin = int(opts.get("kin", "4"))
    sM = 23
    sW = 22; sC = 66
    SRD_IDX, SRD_TAB, SRD_WS, SRD_WD, SRD_T = 24, 28, 32, 36, 40
    def srd(base, ptr, nbytes):
        e(f"s_mov_b32 s{base}, s{ptr}"); e(f"s_mov_b32 s{base+1}, s{ptr+1}")
        e(f"s_mov_b32 s{base+2}, {nbytes}"); e(f"s_mov_b32 s{base+3}, 0x20000")
    vLane, vL15, vG = 1, 2, 3
    t0, t1, t2, t3, t4, t5, t6, t7 = 8, 9, 10, 11, 12, 13, 14, 15
    vL16 = 26; vDum = 24
    vSt = 231
    STI = dict(karg=0, issued=1, bi=2, idx=3, w1=4, s1=5, weff=6, b2=7, s2=8, b3=9, xld=10, main=11, gelu=12, fin=13, sb1=14)
    def st(name):
        if stamp is None: return
        e("s_memtime s[84:85]"); e("s_waitcnt lgkmcnt(0)")
        if name == "entry":
            e("s_mov_b32 s86, s84"); e(f"v_mov_b32 v{vSt}, 0")
        else:
            e("s_sub_u32 s84, s84, s86"); e(f"v_writelane_b32 v{vSt}, s84, {STI[name]}")
    combos = [(0,0,0),(0,0,1),(1,0,0),(1,0,1),(1,1,0),(1,1,1)]
    sSh = 62
    def scatter_addr(SA, Fb, shifted, gmax, tb=16):
        g0, gp0, hb, gpv = tb, tb+1, tb+2, tb+3
        q, off, lim, gq = tb+4, tb+5, tb+6, tb+7
        e(f"v_lshlrev_b32 v{g0}, 1, v{vG}")
        e(f"v_lshrrev_b32 v{gp0}, 1, v{vL15}")
        if shifted:
            e(f"v_subrev_u32 v{g0}, s{sSh}, v{g0}"); e(f"v_subrev_u32 v{gp0}, s{sSh}, v{gp0}")
        e(f"v_and_b32 v{hb}, 1, v{vL15}")
        e(f"v_mul_u32_u24 v{hb}, {HS}, v{hb}")
        e(f"s_lshl_b32 s65, s{sC}, 4")
        if Fb: e(f"s_add_u32 s65, s65, {Fb}")
        e(f"v_add_u32 v{hb}, s65, v{hb}")
        for ci, (aa, bb, pp) in enumerate(combos):
            cg = 8*aa + pp; m0_, m1_ = 88 + 4*(ci % 2), 90 + 4*(ci % 2)
            e(f"v_add_u32 v{gq}, {cg}, v{g0}")
            e(f"v_mad_i32_i24 v{q}, v{gq}, v{gq}, v{gq}")
            e(f"v_lshrrev_b32 v{q}, 1, v{q}")
            e(f"v_add3_u32 v{q}, v{q}, v{gp0}, {8*bb}")
            e(f"v_min_u32 v{lim}, 12, v{gq}")
            e(f"v_cmp_ge_u32 s[{m0_}:{m0_+1}], {gmax}, v{gq}")
            e(f"v_add_u32 v{gpv}, {8*bb}, v{gp0}")
            e(f"v_and_b32 v{off}, 0x7c, v{q}")
            e(f"v_cmp_le_u32 s[{m1_}:{m1_+1}], v{gpv}, v{lim}")
            e(f"v_lshlrev_b32 v{off}, 8, v{off}")
            e(f"v_lshl_add_u32 v{off}, v{q}, 2, v{off}")
            e(f"s_and_b64 s[{m0_}:{m0_+1}], s[{m0_}:{m0_+1}], s[{m1_}:{m1_+1}]")
            e(f"v_add_u32 v{off}, v{off}, v{hb}")
            e(f"v_cndmask_b32 v{SA+ci}, v{vDum}, v{off}, s[{m0_}:{m0_+1}]")
    def mf6(D, A0, A1, B0, B1):
        return [
         f"v_mfma_f32_16x16x32_bf16 v[{D}:{D+3}], v[{A0}:{A0+3}], v[{B0}:{B0+3}], 0",
         f"v_mfma_f32_16x16x32_bf16 v[{D+4}:{D+7}], v[{A1}:{A1+3}], v[{B0}:{B0+3}], 0",
         f"v_mfma_f32_16x16x32_bf16 v[{D+8}:{D+11}], v[{A1}:{A1+3}], v[{B1}:{B1+3}], 0",
         f"v_mfma_f32_16x16x32_bf16 v[{D}:{D+3}], v[{B0}:{B0+3}], v[{A0}:{A0+3}], v[{D}:{D+3}]",
         f"v_mfma_f32_16x16x32_bf16 v[{D+4}:{D+7}], v[{B1}:{B1+3}], v[{A0}:{A0+3}], v[{D+4}:{D+7}]",
         f"v_mfma_f32_16x16x32_bf16 v[{D+8}:{D+11}], v[{B1}:{B1+3}], v[{A1}:{A1+3}], v[{D+8}:{D+11}]"]

    a.label(KNAME)
    st("entry")
    e("s_cmp_ge_u32 s2, 256")
    e("s_cbranch_scc1 L_end")
    e("s_load_dwordx16 s[4:19], s[0:1], 0")
    e("s_load_dwordx2 s[20:21], s[0:1], 64")
    if dbg or stamp: e("s_load_dwordx4 s[96:99], s[0:1], 72")
    if pf != "0":
        e("s_getpc_b64 s[88:89]")
        e("v_lshlrev_b32 v28, 7, v0")
        e(f"v_min_u32 v28, CODE_END-{KNAME}-256, v28")
        e("v_mov_b32 v29, s89")
        e("v_add_co_u32 v28, vcc, s88, v28")
        e("s_nop 1")
        e("v_addc_co_u32 v29, vcc, 0, v29, vcc")
        e(f"s_movk_i32 s90, {int(pf)}")
        e("v_cmp_gt_u32 vcc, s90, v0")
        e("s_nop 0")
        e("s_and_saveexec_b64 s[92:93], vcc")
        e("s_cbranch_execz L_nopf")
        e("global_load_dword v30, v[28:29], off")
        a.label("L_nopf")
        e("s_mov_b64 exec, -1")
    e(f"v_lshrrev_b32 v{t4}, 6, v0")
    e(f"v_and_b32 v{vLane}, 63, v0")
    e(f"v_and_b32 v{vL15}, 15, v0")
    e(f"v_readfirstlane_b32 s{sW}, v{t4}")
    e(f"v_bfe_u32 v{vG}, v0, 4, 2")
    e(f"v_lshrrev_b32 v{t6}, 1, v{vLane}")
    e(f"v_lshlrev_b32 v{t6}, 2, v{t6}")
    e("s_lshl_b32 s61, s2, 4")
    e(f"s_and_b32 s{sC}, s{sW}, 3")
    e(f"s_lshl_b32 s62, s{sC}, 2")
    e("s_add_u32 s61, s61, s62")
    e("s_mul_i32 s61, s61, 104")
    e(f"s_bfe_u32 s{sM}, s2, 0x10003")
    for r in (t0, t1, t2, t3): e(f"v_mov_b32 v{r}, 0")
    e(f"v_lshlrev_b32 v{t4}, 4, v0")
    for k in range(3): e(f"ds_write_b128 v{t4}, v[{t0}:{t3}] offset:{k*8192}")
    e(f"v_and_b32 v{t5}, 127, v0")
    e(f"v_lshlrev_b32 v{t5}, 4, v{t5}")
    e(f"v_add_u32 v{t5}, {QB}, v{t5}")
    e(f"ds_write_b128 v{t5}, v[{t0}:{t3}]")
    e(f"v_lshlrev_b32 v{vL16}, 4, v{vLane}")
    e(f"v_mov_b32 v{vDum}, {DUM}")
    e("s_waitcnt lgkmcnt(0)")
    e("s_barrier")
    st("karg")
    e(f"s_cmp_lt_u32 s{sW}, 4"); e("s_cbranch_scc1 L_touch0")
    vIdx = 4
    srd(SRD_IDX, 4, 4096*26*4)
    for k in range(4):
        e(f"buffer_load_dword v{vIdx+k}, v{t6}, s[{SRD_IDX}:{SRD_IDX+3}], s61 offen offset:{104*k}")
    a.label("L_touch0")
    e("s_lshr_b32 s62, s2, 3"); e("s_and_b32 s62, s62, 31")
    e(f"v_lshlrev_b32 v{t5}, 7, v{vLane}")
    e(f"s_mov_b32 s{SRD_T}, s12"); e(f"s_mov_b32 s{SRD_T+1}, s13"); e(f"s_mov_b32 s{SRD_T+3}, 0x20000")
    e("s_mul_i32 s63, s62, 10880"); e("s_add_u32 s64, s63, 10880"); e("s_min_u32 s64, s64, 346112")
    e(f"s_mov_b32 s{SRD_T+2}, s64")
    e(f"s_cmp_eq_u32 s{sW}, 4"); e("s_cbranch_scc1 L_touch")
    e("s_add_u32 s63, s63, 8192")
    e(f"s_cmp_eq_u32 s{sW}, 5"); e("s_cbranch_scc1 L_touch")
    e(f"s_mov_b32 s{SRD_T}, s8"); e(f"s_mov_b32 s{SRD_T+1}, s9")
    e("s_mul_i32 s63, s62, 3328"); e("s_add_u32 s64, s63, 3328"); e("s_min_u32 s64, s64, 105456")
    e(f"s_mov_b32 s{SRD_T+2}, s64")
    e(f"s_cmp_eq_u32 s{sW}, 6"); e("s_cbranch_scc1 L_touch")
    e(f"s_mov_b32 s{SRD_T}, s6"); e(f"s_mov_b32 s{SRD_T+1}, s7"); e(f"s_mov_b32 s{SRD_T+2}, 3200000")
    e("s_mov_b32 s63, 0")
    e(f"v_lshlrev_b32 v{t5}, 16, v{vLane}")
    e(f"s_cmp_eq_u32 s{sW}, 7"); e("s_cbranch_scc1 L_touch")
    e("s_branch L_C")
    a.label("L_touch")
    e(f"buffer_load_dword v31, v{t5}, s[{SRD_T}:{SRD_T+3}], s63 offen")
    e("s_branch L_D")

    a.label("L_C")
    vm = Track(a, "vmcnt", 63); lg = Track(a, "lgkmcnt", 15)
    SA2 = 154
    DS = [160, 172]; CV = [184, 190]
    vWs = 25; W3F = 32
    e("s_mov_b32 s68, s10"); e("s_mov_b32 s69, s11"); e("s_mov_b32 s70, 156"); e("s_mov_b32 s71, 0x20000")
    e(f"v_lshlrev_b32 v{t6}, 1, v{vLane}")
    e(f"buffer_load_ushort v{vWs}, v{t6}, s[68:71], 0 offen"); vm.add("ws")
    e(f"v_lshlrev_b32 v{t6}, 4, v{vG}")
    e(f"buffer_load_dwordx4 v[{W3F}:{W3F+3}], v{t6}, s[68:71], 0 offen offset:104"); vm.add("w3f")
    e("s_load_dword s47, s[18:19], 0")
    e(f"s_and_b32 s{sSh}, s{sC}, 1")
    scatter_addr(SA2, F2, True, 13)
    vH1, vH2 = 72, 73
    e(f"v_lshrrev_b32 v{t5}, 2, v{vL15}")
    e(f"v_lshl_add_u32 v{t5}, v{vG}, 3, v{t5}")
    e(f"v_add_u32 v{t6}, 4, v{t5}")
    e(f"v_min_u32 v{t5}, 25, v{t5}"); e(f"v_min_u32 v{t6}, 25, v{t6}")
    e(f"v_and_b32 v{t7}, 3, v{vL15}"); e(f"v_lshlrev_b32 v{t7}, 3, v{t7}")
    e("s_movk_i32 s64, 1352")
    e(f"v_mad_u32_u24 v{vH1}, v{t5}, s64, v{t7}"); e(f"v_mad_u32_u24 v{vH2}, v{t6}, s64, v{t7}")
    QA = 76
    for j in range(3):
        ee, h, k_, ad = t4, t5, t6, QA + j
        e(f"s_lshl_b32 s63, s{sC}, 6"); e(f"s_add_u32 s63, s63, {256*j}")
        e(f"v_add_u32 v{ee}, s63, v{vLane}")
        e(f"v_mul_u32_u24 v{h}, 2521, v{ee}"); e(f"v_lshrrev_b32 v{h}, 16, v{h}")
        e(f"v_mul_u32_u24 v{k_}, 26, v{h}"); e(f"v_sub_u32 v{k_}, v{ee}, v{k_}")
        e(f"v_cmp_gt_u32 vcc, 676, v{ee}")
        e(f"v_lshrrev_b32 v{ad}, 4, v{k_}"); e(f"v_lshlrev_b32 v{ad}, 10, v{ad}")
        e(f"v_and_b32 v{k_}, 15, v{k_}"); e(f"v_lshl_add_u32 v{ad}, v{k_}, 4, v{ad}")
        e(f"v_lshrrev_b32 v{k_}, 3, v{h}"); e(f"v_lshl_add_u32 v{ad}, v{k_}, 8, v{ad}")
        e(f"v_and_b32 v{h}, 7, v{h}"); e(f"v_lshl_add_u32 v{ad}, v{h}, 1, v{ad}")
        e(f"v_add_u32 v{ad}, {QB}, v{ad}")
        e(f"v_cndmask_b32 v{ad}, v{vDum}, v{ad}, vcc")
    vT1, vT2 = 37, 38
    e(f"s_lshl_b32 s63, s{sC}, 7"); e(f"s_add_u32 s63, s63, {W3L}")
    e(f"v_add_u32 v{vT1}, s63, v{vH1}"); e(f"v_add_u32 v{vT2}, s63, v{vH2}")
    TA1, TA2, vM = 39, 75, 74
    e(f"s_mul_i32 s63, s{sC}, 52"); e(f"s_lshl_b32 s64, s{sSh}, 2"); e("s_sub_u32 s63, s63, s64"); e(f"s_add_u32 s63, s63, {W2L}")
    e(f"v_add_u32 v{TA1}, s63, v{vH1}"); e(f"v_add_u32 v{TA2}, s63, v{vH2}")
    e(f"s_lshl_b32 s64, s{sSh}, 1"); e("s_add_u32 s64, s64, 10")
    e(f"v_cmp_gt_u32 vcc, s64, v{vL15}")
    QAD = [44, 45]
    e(f"s_lshl_b32 s63, s{sSh}, 1")
    e("s_nop 0")
    e(f"v_cndmask_b32 v{vM}, 0, -1, vcc")
    for aa in range(2):
        e(f"v_subrev_u32 v{t4}, s63, v{vL15}")
        if aa: e(f"v_add_u32 v{t4}, 16, v{t4}")
        e(f"v_min_u32 v{t4}, 31, v{t4}")
        e(f"v_lshrrev_b32 v{t5}, 4, v{t4}"); e(f"v_lshlrev_b32 v{t5}, 10, v{t5}")
        e(f"v_and_b32 v{t4}, 15, v{t4}"); e(f"v_lshl_add_u32 v{t5}, v{t4}, 4, v{t5}")
        e(f"v_lshl_add_u32 v{t5}, v{vG}, 8, v{t5}")
        e(f"v_add_u32 v{QAD[aa]}, {QB}, v{t5}")
    vFa = 226
    e(f"v_lshrrev_b32 v{t5}, 5, v{vLane}")
    e(f"v_mul_u32_u24 v{t6}, {HS}, v{t5}")
    e(f"v_and_b32 v{t7}, 31, v{vLane}")
    e(f"v_lshl_add_u32 v{vFa}, v{t7}, 4, v{t6}")
    st("w1")
    vm.wait("w3f")
    e(f"v_lshlrev_b32 v{t5}, 16, v{vWs}")
    e(f"v_cmp_gt_u32 s[88:89], 26, v{vLane}")
    e(f"v_cmp_gt_u32 s[90:91], 32, v{vLane}")
    e(f"v_lshlrev_b32 v{t6}, 2, v{vLane}")
    e(f"v_add_u32 v{t6}, {W1F}, v{t6}")
    e(f"v_cndmask_b32 v{t5}, 0, v{t5}, s[88:89]")
    e(f"v_cndmask_b32 v{t6}, v{vDum}, v{t6}, s[90:91]")
    e(f"ds_write_b32 v{t6}, v{t5}")
    e(f"v_subrev_u32 v{t5}, 26, v{vLane}")
    e(f"v_cmp_gt_u32 s[88:89], 26, v{t5}")
    e(f"v_lshrrev_b32 v{t6}, 3, v{t5}")
    e(f"v_lshlrev_b32 v{t6}, 8, v{t6}")
    e(f"v_and_b32 v{t7}, 7, v{t5}")
    e(f"v_lshl_add_u32 v{t6}, v{t7}, 1, v{t6}")
    e(f"v_add_u32 v{t6}, {QB+1024+160}, v{t6}")
    e(f"v_cndmask_b32 v{t6}, v{vDum}, v{t6}, s[88:89]")
    e(f"ds_write_b16 v{t6}, v{vWs}")
    AW = 56
    for gq in range(4): e(f"v_cmp_eq_u32 s[{88+2*gq}:{89+2*gq}], {4*gq}, v{vL15}")
    for gq in range(4):
        for j in range(4): e(f"v_cndmask_b32 v{AW+4*gq+j}, 0, v{W3F+j}, s[{88+2*gq}:{89+2*gq}]")
    e("s_waitcnt lgkmcnt(0)")
    e("s_barrier")
    st("bi")
    a.c("Weff")
    WB = 80; WD = 128
    for j in range(3):
        for gq in range(4):
            b = WB + 16*j + 4*gq
            e(f"ds_read_b64_tr_b16 v[{b}:{b+1}], v{vT1} offset:{j*512+32*gq}")
            e(f"ds_read_b64_tr_b16 v[{b+2}:{b+3}], v{vT2} offset:{j*512+32*gq}")
    for j in range(3):
        e(f"s_waitcnt lgkmcnt({min(15, 8*(2-j))})")
        for gq in range(4):
            b = WB + 16*j + 4*gq; d = WD + 4*j
            c = "0" if gq == 0 else f"v[{d}:{d+3}]"
            e(f"v_mfma_f32_16x16x32_bf16 v[{d}:{d+3}], v[{AW+4*gq}:{AW+4*gq+3}], v[{b}:{b+3}], {c}")
    a.nop(8)
    for j in range(3): e(f"v_cvt_pk_bf16_f32 v{t4+j}, v{WD+4*j}, v{WD+4*j}")
    for j in range(3): e(f"ds_write_b16 v{QA+j}, v{t4+j}")
    st("weff")
    e("s_waitcnt vmcnt(0) lgkmcnt(0)")
    e("s_barrier")
    st("b2")
    a.c("S2")
    Q0, Q1 = 140, 144
    lg.l = []
    e(f"ds_read_b128 v[{Q0}:{Q0+3}], v{QAD[0]}"); e(f"ds_read_b128 v[{Q1}:{Q1+3}], v{QAD[1]}"); lg.add("q", 2)
    PS = [48, 56, 64]
    cvt = lambda k, j: f"v_cvt_pk_bf16_f32 v{CV[k&1]+j}, v{DS[k&1]+2*j}, v{DS[k&1]+2*j+1}"
    wr = lambda SA, k, j: f"ds_write_b32 v{SA+j}, v{CV[k&1]+j} offset:{k*64}"
    def p_reads(k):
        P = PS[k % 3]
        return [f"ds_read_b64_tr_b16 v[{P}:{P+1}], v{TA1} offset:{k*208}",
                f"ds_read_b64_tr_b16 v[{P+2}:{P+3}], v{TA2} offset:{k*208}",
                f"ds_read_b64_tr_b16 v[{P+4}:{P+5}], v{TA1} offset:{k*208+32}",
                f"ds_read_b64_tr_b16 v[{P+6}:{P+7}], v{TA2} offset:{k*208+32}"]
    for k in (0, 1):
        for x in p_reads(k): e(x)
        lg.add(f"p{k}", 4)
    def masks(k): return [f"v_and_b32 v{PS[k%3]+4+j}, v{vM}, v{PS[k%3]+4+j}" for j in range(4)]
    lg.wait("p0")
    for x in masks(0): e(x)
    a.nop(1)
    for k in range(9):
        M = mf6(DS[k & 1], PS[k % 3], PS[k % 3]+4, Q0, Q1) if k < 7 else [None]*6
        R = p_reads(k+2) if k + 2 < 7 else []
        if k == 7: a.nop(4)
        if k == 8:
            e(f"s_cmp_lt_u32 s{sC}, 2"); e("s_cbranch_scc1 L_s2v")
            for j in range(6): e(f"v_mov_b32 v{SA2+j}, v{vDum}")
            a.label("L_s2v")
        for j in range(6):
            if j == 4 and k + 1 < 7:
                lg.wait(f"p{k+1}")
                for x in masks(k+1): e(x)
            if M[j]: e(M[j])
            if k >= 2: e(wr(SA2, k-2, j)); lg.add("w")
            if 1 <= k <= 7: e(cvt(k-1, j))
            if j < len(R): e(R[j]); lg.add(f"p{k+2}")
    st("s2")
    e("s_waitcnt lgkmcnt(0)")
    e("s_barrier")
    e("s_barrier")
    st("b3")
    if dbg == "lds":
        e("s_cmp_eq_u32 s2, 0"); e("s_cbranch_scc0 L_nodump")
        e(f"v_lshlrev_b32 v{t4}, 4, v0")
        for k in range(40):
            e(f"v_add_u32 v{t5}, {k*4096}, v{t4}")
            e(f"ds_read_b128 v[{t0}:{t3}], v{t5}")
            e("s_waitcnt lgkmcnt(0)")
            e(f"global_store_dwordx4 v{t5}, v[{t0}:{t3}], s[98:99]")
            e("s_waitcnt vmcnt(0)")
        a.label("L_nodump")
    a.c("C main")
    XA, YA, XB, YB = 8, 34, 47, 73
    D1A, D2A, D1B, D2B = 96, 112, 128, 144
    ZB = [[160, 164], [168, 172]]
    AB = [176, 184, 192]
    TM = [200, 201, 202, 203, 204, 205, 206, 207]
    WI = 208; vXb = 224; PK = 176
    e(f"v_and_b32 v{TM[4]}, 1, v{vG}")
    e(f"s_lshl_b32 s63, s{sC}, 2")
    e(f"v_add_u32 v{TM[4]}, s63, v{TM[4]}")
    e(f"v_mul_u32_u24 v{TM[4]}, 832, v{TM[4]}")
    e(f"v_lshrrev_b32 v{TM[5]}, 2, v{vL15}")
    e(f"v_lshl_add_u32 v{TM[4]}, v{TM[5]}, 5, v{TM[4]}")
    e(f"v_and_b32 v{TM[5]}, 3, v{vL15}")
    e(f"v_lshl_add_u32 v{TM[4]}, v{TM[5]}, 3, v{TM[4]}")
    e(f"v_add_u32 v{vXb}, {X0}, v{TM[4]}")
    safe = int(opts.get("safe", "0"))
    for T in range(2):
        for fb in range(7):
            e(f"ds_read_b64_tr_b16 v[{PK+14*T+2*fb}:{PK+14*T+2*fb+1}], v{vXb} offset:{T*1664 + fb*128}")
    e(f"v_lshrrev_b32 v{TM[5]}, 5, v{vLane}")
    e(f"v_lshlrev_b32 v{TM[6]}, 4, v{TM[5]}")
    e(f"v_add_u32 v{TM[6]}, {W1F}, v{TM[6]}")
    if safe: e("s_waitcnt lgkmcnt(0)")
    for m in range(4): e(f"ds_read_b128 v[{WI+4*m}:{WI+4*m+3}], v{TM[6]} offset:{m*32}")
    e(f"v_cmp_eq_u32 s[72:73], 1, v{TM[5]}")
    for T, (X, Y) in enumerate(((XA, YA), (XB, YB))):
        e(f"s_waitcnt lgkmcnt({11 if T == 0 else 4})")
        for g in range(13):
            p = PK + 14*T + g
            e(f"v_lshlrev_b32 v{X+2*g}, 16, v{p}")
            e(f"v_and_b32 v{X+2*g+1}, 0xffff0000, v{p}")
        for g in range(13): e(f"v_cndmask_b32 v{Y+g}, v{X+2*g}, v{X+2*g+1}, s[72:73]")
    def a_read(t):
        b = AB[t % 3]
        if t <= 22: e(f"ds_read_b128 v[{b}:{b+3}], v{vFa} offset:{F1 + t*FS}")
        if t <= 25: e(f"ds_read_b128 v[{b+4}:{b+7}], v{vFa} offset:{F2 + t*FS}")
    blocks = [(g, gp) for g in range(14) for gp in range(min(g, 12)+1)]
    def zgen(t, T):
        X, Y = ((XA, YA), (XB, YB))[T]
        z = ZB[t & 1][T]; mul = []; cv = []
        for j in range(4):
            g, gp = blocks[4*t + j]
            ta, tb, th = TM[2*j], TM[2*j+1], 228 + T
            if g == 13: cv.append(f"v_cvt_pk_bf16_f32 v{z+j}, v{Y+gp}, 0")
            else:
                y = Y + gp
                if g == gp:
                    mul.append(f"v_mul_f32 v{th}, 0.5, v{Y+gp}"); y = th
                mul.append(f"v_mul_f32 v{ta}, v{X+2*g}, v{y}")
                mul.append(f"v_mul_f32 v{tb}, v{X+2*g+1}, v{y}")
                cv.append(f"v_cvt_pk_bf16_f32 v{z+j}, v{ta}, v{tb}")
        return mul + cv
    st("xld")
    a_read(0); a_read(1)
    for T in range(2):
        for s in zgen(0, T): e(s)
    cnt = {t: (1 if t > 22 else 2) for t in range(26)}
    for t in range(26):
        younger = cnt[t+1] if t+1 <= 25 else 0
        e(f"s_waitcnt lgkmcnt({younger})")
        b = AB[t % 3]; mf = []; rds = []
        if t + 2 <= 25:
            b2 = AB[(t+2) % 3]
            if t + 2 <= 22: rds.append(f"ds_read_b128 v[{b2}:{b2+3}], v{vFa} offset:{F1 + (t+2)*FS}")
            rds.append(f"ds_read_b128 v[{b2+4}:{b2+7}], v{vFa} offset:{F2 + (t+2)*FS}")
        for T, (D1, D2) in enumerate(((D1A, D2A), (D1B, D2B))):
            z = ZB[t & 1][T]
            if t <= 22:
                c = "0" if t == 0 else f"v[{D1}:{D1+15}]"
                mf.append(f"v_mfma_f32_32x32x16_bf16 v[{D1}:{D1+15}], v[{b}:{b+3}], v[{z}:{z+3}], {c}")
            c = f"v[{WI}:{WI+15}]" if t == 0 else f"v[{D2}:{D2+15}]"
            mf.append(f"v_mfma_f32_32x32x16_bf16 v[{D2}:{D2+15}], v[{b+4}:{b+7}], v[{z}:{z+3}], {c}")
        va = (zgen(t+1, 0) + zgen(t+1, 1)) if t < 25 else []
        n = len(mf); per = (len(va) + n - 1)//n if va else 0
        if t == 0: a.nop(2)
        vi = 0
        for mi, m in enumerate(mf):
            e(m)
            if mi < len(rds): e(rds[mi])
            for s in va[vi:vi+per]: e(s)
            vi += per
    a.nop(16)
    st("main")
    for T, (D1, D2) in enumerate(((D1A, D2A), (D1B, D2B))): e(f"v_mul_f32 v{TM[T]}, v{D1}, v{D2}")
    for r in range(1, 14):
        for T, (D1, D2) in enumerate(((D1A, D2A), (D1B, D2B))): e(f"v_fmac_f32 v{TM[T]}, v{D1+r}, v{D2+r}")
    if opts.get("chk"):
        for T in range(2):
            for fb in range(7):
                e(f"ds_read_b64_tr_b16 v[{96+14*T+2*fb}:{96+14*T+2*fb+1}], v{vXb} offset:{T*1664 + fb*128}")
            e("s_waitcnt lgkmcnt(0)")
        e("v_mov_b32 v230, 0x41200000")
        for T, (X, Y) in enumerate(((XA, YA), (XB, YB))):
            for g in range(13):
                p = 96 + 14*T + g
                e(f"v_lshlrev_b32 v228, 16, v{p}")
                e(f"v_cmp_ne_u32 vcc, v228, v{X+2*g}")
                e("s_nop 1")
                e(f"v_cndmask_b32 v229, 0, v230, vcc")
                e(f"v_add_f32 v{TM[T]}, v{TM[T]}, v229")
                e(f"v_and_b32 v228, 0xffff0000, v{p}")
                e(f"v_cmp_ne_u32 vcc, v228, v{X+2*g+1}")
                e("s_nop 1")
                e(f"v_cndmask_b32 v229, 0, v230, vcc")
                e(f"v_add_f32 v{TM[T]}, v{TM[T]}, v229")
    for sh in (8, 4, 2, 1):
        a.nop(2)
        for T in range(2): e(f"v_add_f32_dpp v{TM[T]}, v{TM[T]}, v{TM[T]} row_ror:{sh} row_mask:0xf bank_mask:0xf")
    e(f"v_bfe_u32 v{TM[2]}, v{vLane}, 4, 1")
    e(f"v_lshlrev_b32 v{TM[2]}, 3, v{TM[2]}")
    e(f"v_lshrrev_b32 v{TM[3]}, 5, v{vLane}")
    e(f"v_lshl_add_u32 v{TM[2]}, v{TM[3]}, 2, v{TM[2]}")
    e(f"s_lshl_b32 s63, s{sC}, 5"); e(f"s_add_u32 s63, s63, {RED}")
    e(f"v_add_u32 v{TM[2]}, s63, v{TM[2]}")
    e(f"ds_write_b32 v{TM[2]}, v{TM[0]}")
    e(f"ds_write_b32 v{TM[2]}, v{TM[1]} offset:16")
    e("s_branch L_final")

    a.label("L_D")
    sD, sDB, sK, sNI = 66, 67, 80, 79
    srd(SRD_TAB, 6, 3200000)
    srd(SRD_WD, 12, 346112)
    srd(SRD_WS, 8, 105456)
    P = 16; ACC = 32; BB = [64, 96]; AF = [128, 132]; TRA = 136; W2R = 144; BIAS = 152; OUT = 160; GT = 164; vC0 = 184; vA = 185
    W1R = 64; I0, I1 = 120, 124
    SA1 = 192; DSd = [198, 210]; CVd = [222, 164]
    vW1 = 27
    e(f"s_cmp_eq_u32 s{sD}, 0"); e("s_cbranch_scc0 L_nobias")
    for ptr, off in ((14, 0), (16, 1024)):
        e(f"s_mov_b32 s68, s{ptr}"); e(f"s_mov_b32 s69, s{ptr+1}"); e("s_mov_b32 s70, 832"); e("s_mov_b32 s71, 0x20000")
        e(f"s_mov_b32 m0, {RING+off}"); e("s_nop 0")
        e(f"buffer_load_dwordx4 v{vL16}, s[68:71], 0 offen lds")
    a.label("L_nobias")
    sLS, sLD = 72, 73
    def lin_start(src, dst):
        e(f"s_lshl_b32 s{sLD}, s{sD}, 10")
        e(f"s_add_u32 s{sLS}, s{sLD}, {src}"); e(f"s_add_u32 s{sLD}, s{sLD}, {dst}")
    uid = [0]
    def lin_one(k):
        if k < 8:
            e(f"s_mov_b32 m0, s{sLD}"); e(f"s_add_u32 s{sLD}, s{sLD}, 4096")
            e(f"buffer_load_dwordx4 v{vL16}, s[{SRD_WS}:{SRD_WS+3}], s{sLS} offen lds")
            e(f"s_add_u32 s{sLS}, s{sLS}, 4096")
        else:
            uid[0] += 1; lab = f"L_lin{uid[0]}"
            e(f"s_cmp_lt_u32 s{sD}, 2"); e(f"s_cbranch_scc1 {lab}")
            e("s_mov_b64 exec, 0x1fffff")
            e(f"s_cmp_eq_u32 s{sD}, 2"); e(f"s_cbranch_scc1 {lab}")
            e(f"s_mov_b32 s{sLS}, {BIG}"); e(f"s_mov_b32 s{sLD}, {DUM}")
            a.label(lab)
            e(f"s_mov_b32 m0, s{sLD}"); e("s_nop 0")
            e(f"buffer_load_dwordx4 v{vL16}, s[{SRD_WS}:{SRD_WS+3}], s{sLS} offen lds")
            e("s_mov_b64 exec, -1")
    lin_start(2*35152, W3L)
    for k in range(n3first): lin_one(k)
    e(f"v_and_b32 v{t0}, 1, v{vLane}"); e(f"v_lshlrev_b32 v{t0}, 4, v{t0}")
    def s1_setup():
        e(f"v_lshlrev_b32 v{t4}, 3, v{vG}")
        e(f"v_sub_u32 v{t4}, v{vL15}, v{t4}")
        e(f"v_and_b32 v{t5}, 1, v{t4}")
        e(f"v_lshlrev_b32 v{t5}, 4, v{t5}")
        e(f"v_mov_b32 v{t6}, 0x3f80")
        e(f"v_lshlrev_b32 v{t5}, v{t5}, v{t6}")
        e(f"v_ashrrev_i32 v{t4}, 1, v{t4}")
        e(f"v_add_u32 v{t6}, 8, v{t4}")
        for j in range(4): e(f"v_cmp_eq_u32 s[{88+2*j}:{89+2*j}], {j}, v{t4}")
        for j in range(4): e(f"v_cndmask_b32 v{I0+j}, 0, v{t5}, s[{88+2*j}:{89+2*j}]")
        for j in range(4): e(f"v_cmp_eq_u32 s[{88+2*j}:{89+2*j}], {j}, v{t6}")
        for j in range(4): e(f"v_cndmask_b32 v{I1+j}, 0, v{t5}, s[{88+2*j}:{89+2*j}]")
        scatter_addr(SA1, F1, False, 12, 198)
    late_setup = int(opts.get("lates", "1"))
    if not late_setup: s1_setup()
    e(f"v_mul_u32_u24 v{t7}, 52, v{vL15}")
    e(f"v_lshl_add_u32 v{vW1}, v{vG}, 4, v{t7}")
    e(f"s_mul_i32 s81, s{sD}, 192"); e("s_add_u32 s81, s81, 64")
    e(f"s_mul_i32 s{sDB}, s{sD}, 6144"); e(f"s_add_u32 s{sDB}, s{sDB}, {RING + 8192 - 6144}")
    e(f"s_cmp_eq_u32 s{sD}, 0")
    e("s_cselect_b32 s81, 0, s81"); e(f"s_cselect_b32 s{sDB}, {RING}, s{sDB}")
    e(f"s_cselect_b32 s{sNI}, 8, 6")
    e("s_movk_i32 s74, 5462"); e("s_cselect_b32 s74, 4096, s74")
    e("s_cselect_b32 s75, 16, 12")
    e("s_cselect_b32 s76, -1, 0")
    e("s_cselect_b32 s77, 0, 2")
    e("s_movk_i32 s78, 192"); e("s_cselect_b32 s78, 256, s78")
    for j in range(8):
        m, row, cp, sw = t1, t2, t3, t4
        e(f"v_add_u32 v{m}, {64*j}, v{vLane}")
        e(f"v_mul_u32_u24 v{row}, s74, v{m}"); e(f"v_lshrrev_b32 v{row}, 16, v{row}")
        e(f"v_mul_u32_u24 v{cp}, s75, v{row}"); e(f"v_sub_u32 v{cp}, v{m}, v{cp}")
        e(f"v_and_b32 v{sw}, 3, v{row}"); e(f"v_lshlrev_b32 v{sw}, 1, v{sw}"); e(f"v_and_b32 v{sw}, s76, v{sw}")
        e(f"v_and_b32 v{t5}, 8, v{row}"); e(f"v_lshrrev_b32 v{t5}, s77, v{t5}")
        e(f"v_or_b32 v{sw}, v{sw}, v{t5}")
        e(f"v_xor_b32 v{cp}, v{cp}, v{sw}")
        e(f"v_mul_u32_u24 v{row}, 832, v{row}")
        e(f"v_lshl_add_u32 v{cp}, v{cp}, 4, v{row}")
        e(f"v_add_u32 v{P+j}, s81, v{cp}")
    e(f"v_lshrrev_b32 v{t2}, 2, v{vL15}")
    e(f"v_lshl_add_u32 v{t3}, v{vG}, 3, v{t2}")
    e(f"v_mul_u32_u24 v{t3}, s78, v{t3}")
    e(f"v_and_b32 v{t4}, 3, v{vL15}")
    e(f"v_lshl_add_u32 v{t3}, v{t4}, 3, v{t3}")
    e(f"v_add_u32 v{t3}, s{sDB}, v{t3}")
    e(f"v_and_b32 v{t4}, 1, v{vG}")
    e(f"v_lshl_add_u32 v{t5}, v{t4}, 2, v{t2}")
    e(f"v_and_b32 v{t5}, s76, v{t5}")
    e(f"v_not_b32 v{t6}, s76"); e(f"v_and_b32 v{t4}, v{t6}, v{t4}")
    e(f"v_or_b32 v{t2}, v{t5}, v{t4}")
    for tau in range(8):
        e(f"v_xor_b32 v{t4}, {tau}, v{t2}")
        e(f"v_lshl_add_u32 v{TRA+tau}, v{t4}, 5, v{t3}")
    e(f"v_mul_u32_u24 v{vA}, 832, v{vL15}")
    e(f"v_lshl_add_u32 v{vA}, v{vG}, 4, v{vA}")
    e(f"v_add_u32 v{vA}, {X0}, v{vA}")
    st("w1")
    def w1_loads():
        e(f"s_mul_i32 s63, s{sD}, 1352")
        for k in range(7):
            if k == 6:
                e(f"s_cmp_lt_u32 s{sD}, 2"); e(f"s_cselect_b32 s63, s63, {BIG}")
            e(f"buffer_load_dwordx4 v[{W1R+8*k}:{W1R+8*k+3}], v{vW1}, s[{SRD_WS}:{SRD_WS+3}], s63 offen")
            e(f"buffer_load_dwordx4 v[{W1R+8*k+4}:{W1R+8*k+7}], v{vW1}, s[{SRD_WS}:{SRD_WS+3}], s63 offen offset:832")
            if k < 6: e(f"s_add_u32 s63, s63, {4*1352}")
    def gathers():
        for k in range(4): e(f"v_lshl_add_u32 v{vIdx+k}, v{vIdx+k}, 5, v{t0}")
        e(f"s_mul_i32 s63, s{sD}, {4*832}"); e(f"s_add_u32 s63, s63, {X0}")
        e("s_mov_b32 exec_lo, -1"); e("s_mov_b32 exec_hi, 0xfffff")
        for k in range(4):
            e(f"s_add_u32 m0, s63, {832*k}"); e("s_nop 0")
            e(f"buffer_load_dwordx4 v{vIdx+k}, s[{SRD_TAB}:{SRD_TAB+3}], 0 offen lds")
        e("s_mov_b64 exec, -1")
    def bias_read():
        e(f"v_lshlrev_b32 v{t1}, 1, v{vL15}"); e(f"v_add_u32 v{t1}, s81, v{t1}"); e(f"v_add_u32 v{t1}, {RING}, v{t1}")
        for tau in range(8):
            e(f"v_mov_b32 v{BIAS+tau}, 0"); e(f"v_mov_b32 v{W2R+tau}, 0")
        for tau in range(8):
            e(f"ds_read_u16_d16_hi v{BIAS+tau}, v{t1} offset:{tau*32}")
            e(f"ds_read_u16_d16_hi v{W2R+tau}, v{t1} offset:{1024+tau*32}")
        e("s_waitcnt lgkmcnt(0)")
        for tau in range(8):
            for r in range(4): e(f"v_mov_b32 v{ACC+4*tau+r}, v{BIAS+tau}")
    def kdma(slot, j0=0):
        uid[0] += 1; lab = f"L_k{uid[0]}"
        for j in range(j0, 8):
            if j == 6:
                e(f"s_cmp_eq_u32 s{sNI}, 6"); e(f"s_cbranch_scc1 {lab}")
            e(f"s_add_u32 m0, s{sDB}, {slot*SLOT + j*1024}"); e("s_nop 0")
            e(f"buffer_load_dwordx4 v{P+j}, s[{SRD_WD}:{SRD_WD+3}], s{sK} offen lds")
        a.label(lab)
        e(f"s_add_u32 s{sK}, s{sK}, {SLOT}")
    def S1():
        cvt = lambda k, j: f"v_cvt_pk_bf16_f32 v{CVd[k&1]+j}, v{DSd[k&1]+2*j}, v{DSd[k&1]+2*j+1}"
        wr = lambda k, j: f"ds_write_b32 v{SA1+j}, v{CVd[k&1]+j} offset:{k*64}"
        for k in range(9):
            M = mf6(DSd[k & 1], W1R+8*k, W1R+8*k+4, I0, I1) if k < 7 else [None]*6
            if k == 7: a.nop(4)
            if k == 1: a.nop(5)
            if k == 2: a.nop(1)
            for j in range(6):
                if M[j]: e(M[j])
                if k >= 2: e(wr(k-2, j))
                if 1 <= k <= 7: e(cvt(k-1, j))
    e(f"s_mov_b32 s{sK}, 0")
    if mode == "S":
        e(f"s_cmp_eq_u32 s{sM}, 1"); e("s_cbranch_scc1 L_modeA")
    if mode in ("B", "S"):
        for k in range(n3first, 9): lin_one(k)
        lin_start(35152, W2L)
        for k in range(9): lin_one(k)
        e("s_waitcnt vmcnt(9)")
        e("s_barrier")
        st("bi")
        w1_loads()
        bias_read()
        e("s_waitcnt vmcnt(14)")
        e("s_barrier")
        st("b2")
        gathers()
        nearly = int(opts.get("ke", "0"))
        for j in range(nearly):
            e(f"s_add_u32 m0, s{sDB}, {j*1024}"); e("s_nop 0")
            e(f"buffer_load_dwordx4 v{P+j}, s[{SRD_WD}:{SRD_WD+3}], s{sK} offen lds")
        st("sb1")
        if late_setup: s1_setup()
        e(f"s_waitcnt vmcnt({4+nearly})")
        if mode == "S": e("s_branch L_S1")
    if mode in ("A", "S"):
        a.label("L_modeA")
        for k in range(n3first, 9): lin_one(k)
        e("s_waitcnt vmcnt(9)")
        gathers()
        e("s_waitcnt vmcnt(4)")
        e("s_barrier")
        st("bi")
        lin_start(35152, W2L)
        for k in range(9): lin_one(k)
        bias_read()
        e("s_waitcnt vmcnt(0)")
        e("s_barrier")
        st("b2")
        w1_loads()
        kdma(0); kdma(1)
        st("sb1")
        uid[0] += 1
        e(f"s_cmp_eq_u32 s{sNI}, 6"); e(f"s_cbranch_scc1 L_wa6")
        e("s_waitcnt vmcnt(16)"); e("s_branch L_S1a")
        a.label("L_wa6"); e("s_waitcnt vmcnt(12)")
        a.label("L_S1a")
        if mode == "S": e("s_mov_b32 s64, 1")
    if mode == "S":
        e("s_branch L_S1go")
        a.label("L_S1"); e("s_mov_b32 s64, 0")
        a.label("L_S1go")
    S1()
    k01late = int(opts.get("k01late", "1"))
    if mode == "B" and not k01late:
        kdma(0); kdma(1)
    elif mode == "S":
        e("s_cmp_eq_u32 s64, 1"); e("s_cbranch_scc1 L_nok")
        kdma(0); kdma(1)
        a.label("L_nok")
    st("s1")
    e("s_waitcnt lgkmcnt(0)")
    e("s_barrier")
    if k01late: kdma(0, int(opts.get("ke", "0"))); kdma(1)
    kdma(2)
    st("issued")
    e(f"s_cmp_eq_u32 s{sD}, 0"); e("s_cbranch_scc0 L_D3")
    def emit_D(U):
        tag = f"U{U}"; nI = 2*U; nt = 2*U; RS = 64*U
        e(f"s_waitcnt vmcnt({3*nI})")
        st("s2")
        e("s_barrier")
        st("b3")
        if prio: e(f"s_setprio {prio}")
        def reads(b, slot, astep):
            r = [f"ds_read_b128 v[{AF[b]}:{AF[b]+3}], v{vA} offset:{64*astep}"]
            for tau in range(nt):
                r.append(f"ds_read_b64_tr_b16 v[{BB[b]+4*tau}:{BB[b]+4*tau+1}], v{TRA+tau} offset:{slot*SLOT}")
                r.append(f"ds_read_b64_tr_b16 v[{BB[b]+4*tau+2}:{BB[b]+4*tau+3}], v{TRA+tau} offset:{slot*SLOT+4*RS}")
            return r
        def mfmas(b):
            return [f"v_mfma_f32_16x16x32_bf16 v[{ACC+4*tau}:{ACC+4*tau+3}], v[{AF[b]}:{AF[b]+3}], v[{BB[b]+4*tau}:{BB[b]+4*tau+3}], v[{ACC+4*tau}:{ACC+4*tau+3}]" for tau in range(nt)]
        e(f"s_waitcnt vmcnt({2*nI})")
        for x in reads(0, 0, 0): e(x)
        e("s_waitcnt lgkmcnt(0)")
        e("s_mov_b32 s82, 0")
        st("xld")
        a.label(f"L_dl{tag}")
        for i in range(6):
            e(f"s_waitcnt vmcnt({nI})")
            R = reads((i+1) & 1, (i+1) % 3, i+1)
            ri = 0
            burst = int(opts.get("burst", "0"))
            Ms = mfmas(i & 1)
            for j in range(nI):
                e(f"s_add_u32 m0, s{sDB}, {(i % 3)*SLOT + j*1024}")
                e(R[ri]); ri += 1
                e(f"buffer_load_dwordx4 v{P+j}, s[{SRD_WD}:{SRD_WD+3}], s{sK} offen lds")
                e(R[ri]); ri += 1
                if not burst: e(Ms[j])
            while ri < len(R): e(R[ri]); ri += 1
            e(f"s_add_u32 s{sK}, s{sK}, {SLOT}")
            if burst:
                for x in Ms: e(x)
            e("s_waitcnt lgkmcnt(0)")
        e(f"v_add_u32 v{vA}, {6*64}, v{vA}")
        e("s_add_u32 s82, s82, 1")
        e("s_cmp_lt_u32 s82, 2"); e(f"s_cbranch_scc1 L_dl{tag}")
        for x in mfmas(0): e(x)
        st("main")
        C0 = -2.0*0.7978845608028654*1.4426950408889634; C1 = C0*0.044715
        for r in range(4): e(f"v_mov_b32 v{OUT+r}, 0")
        if pk:
            c0, c1, one = vC0+2, vC0+4, vC0+6
            for r_, val in ((c0, C0), (c1, C1), (one, 1.0)):
                e(f"v_mov_b32 v{r_}, 0x{f32bits(val):08x}"); e(f"v_mov_b32 v{r_+1}, 0x{f32bits(val):08x}")
            a.nop(8)
            pr = lambda r: f"v[{r}:{r+1}]"
            for tau in range(nt):
                x = ACC + 4*tau; Uu, E, Yv = GT, GT+4, GT+8
                for h in (0, 2): e(f"v_pk_mul_f32 {pr(Uu+h)}, {pr(x+h)}, {pr(x+h)}")
                for h in (0, 2): e(f"v_pk_fma_f32 {pr(Uu+h)}, {pr(Uu+h)}, {pr(c1)}, {pr(c0)}")
                for h in (0, 2): e(f"v_pk_mul_f32 {pr(Uu+h)}, {pr(x+h)}, {pr(Uu+h)}")
                for r in range(4): e(f"v_exp_f32 v{E+r}, v{Uu+r}")
                for h in (0, 2): e(f"v_pk_mul_f32 {pr(Yv+h)}, {pr(x+h)}, v[{W2R+(tau&~1)}:{W2R+(tau&~1)+1}] op_sel:[0,{tau&1}] op_sel_hi:[1,{tau&1}]")
                for h in (0, 2): e(f"v_pk_add_f32 {pr(E+h)}, {pr(E+h)}, {pr(one)}")
                for r in range(4): e(f"v_rcp_f32 v{E+r}, v{E+r}")
                e("s_nop 0")
                for h in (0, 2): e(f"v_pk_fma_f32 {pr(OUT+h)}, {pr(Yv+h)}, {pr(E+h)}, {pr(OUT+h)}")
        else:
            e(f"v_mov_b32 v{vC0}, 0x{f32bits(C0):08x}")
            a.nop(8)
            def g_a(tau, o):
                x = ACC + 4*tau; Uu, E, Yv = GT+o, GT+o+4, GT+o+8
                r4 = range(4)
                return ([f"v_mul_f32 v{Uu+r}, v{x+r}, v{x+r}" for r in r4] +
                        [f"v_fmamk_f32 v{Uu+r}, v{Uu+r}, 0x{f32bits(C1):08x}, v{vC0}" for r in r4] +
                        [f"v_mul_f32 v{Uu+r}, v{x+r}, v{Uu+r}" for r in r4] +
                        [f"v_exp_f32 v{E+r}, v{Uu+r}" for r in r4] +
                        [f"v_mul_f32 v{Yv+r}, v{x+r}, v{W2R+tau}" for r in r4] +
                        [f"v_add_f32 v{E+r}, 1.0, v{E+r}" for r in r4] +
                        [f"v_rcp_f32 v{E+r}, v{E+r}" for r in r4] + ["s_nop 0"] +
                        [f"v_fmac_f32 v{OUT+r}, v{Yv+r}, v{E+r}" for r in r4])
            for tau in range(nt):
                for x in g_a(tau, 0): e(x)
        st("gelu")
        for sh in (8, 4, 2, 1):
            a.nop(2)
            for r in range(4): e(f"v_add_f32_dpp v{OUT+r}, v{OUT+r}, v{OUT+r} row_ror:{sh} row_mask:0xf bank_mask:0xf")
        e(f"s_lshl_b32 s63, s{sD}, 6"); e(f"s_add_u32 s63, s63, {RED2}")
        e(f"v_lshlrev_b32 v{GT}, 4, v{vG}"); e(f"v_add_u32 v{GT}, s63, v{GT}")
        e(f"ds_write_b128 v{GT}, v[{OUT}:{OUT+3}]")
    emit_D(4)
    e("s_branch L_final")
    a.label("L_D3")
    emit_D(3)

    a.label("L_final")
    e("s_waitcnt lgkmcnt(0)")
    e("s_barrier")
    st("fin")
    if stamp is not None:
        wg, wv = [int(x) for x in stamp.split("_")]
        e(f"s_cmp_eq_u32 s2, {wg}"); e("s_cbranch_scc0 L_nost")
        e(f"s_cmp_eq_u32 s{sW}, {wv}"); e("s_cbranch_scc0 L_nost")
        e(f"v_lshlrev_b32 v30, 2, v{vLane}")
        e("s_mov_b64 exec, 0xffff")
        e(f"global_store_dword v30, v{vSt}, s[96:97]")
        e("s_mov_b64 exec, -1")
        a.label("L_nost")
    e(f"s_cmp_eq_u32 s{sW}, 0"); e("s_cbranch_scc0 L_end")
    e(f"v_lshlrev_b32 v8, 3, v{vL15}"); e(f"v_add_u32 v8, {RED}, v8")
    e(f"v_lshlrev_b32 v9, 2, v{vL15}"); e(f"v_add_u32 v9, {RED2}, v9")
    e("ds_read_b64 v[10:11], v8")
    for d in range(4): e(f"ds_read_b32 v{12+d}, v9 offset:{d*64}")
    e("s_lshl_b32 s47, s47, 16")
    e("s_mov_b32 s68, s20"); e("s_mov_b32 s69, s21"); e("s_mov_b32 s70, 8192"); e("s_mov_b32 s71, 0x20000")
    e("s_lshl_b32 s63, s2, 5")
    e(f"v_lshlrev_b32 v16, 1, v{vL15}")
    e("s_waitcnt lgkmcnt(0)")
    e("v_add_f32 v10, v10, v11"); e("v_add_f32 v12, v12, v13"); e("v_add_f32 v14, v14, v15")
    e("v_add_f32 v12, v12, v14"); e("v_add_f32 v10, v10, v12"); e("v_add_f32 v10, s47, v10")
    e("v_cvt_pk_bf16_f32 v10, v10, v10")
    e("s_mov_b64 exec, 0xffff")
    e("buffer_store_short v10, v16, s[68:71], s63 offen")
    a.label("L_end")
    e("s_endpgm")
    a.label("CODE_END")
    return a

HEADER = """; xDeepFM (CIN + DNN) fused kernel for gfx950 -- generated by my own script
; @launch grid=(256,1,1) block=(512,1,1) lds=163840
.amdgcn_target "amdgcn-amd-amdhsa--gfx950"
.text
.globl {k}
.p2align 8
.type {k},@function
"""
FOOTER = """
.section .rodata,"a"
.p2align 6
.amdhsa_kernel {k}
  .amdhsa_next_free_vgpr {nv}
  .amdhsa_next_free_sgpr 102
  .amdhsa_accum_offset {nv}
  .amdhsa_group_segment_fixed_size 0
  .amdhsa_kernarg_size 88
  .amdhsa_user_sgpr_count 2
  .amdhsa_user_sgpr_kernarg_segment_ptr 1
  .amdhsa_system_sgpr_workgroup_id_x 1
.end_amdhsa_kernel
"""
if __name__ == "__main__":
    opts = dict(x.split("=") for x in sys.argv[2:])
    a = gen(opts)
    body = a.text()
    probs = check_hazards(body)
    for p in probs: print("HAZARD:", p, file=sys.stderr)
    open(sys.argv[1], "w").write(HEADER.format(k=KNAME) + body + FOOTER.format(k=KNAME, nv=232))
    print("written", sys.argv[1], "hazards:", len(probs), file=sys.stderr)
```

```python
import sys, struct
from asmlib import Asm, check_hazards

KNAME = "standalone__deep_cross_xdeepfm__recsys_kernel"
FS, HS = 1040, 528
F1 = 0; F2 = 23920
W3L = F2
RING = 59072; SLOT = 26624
W2L = 112816
QB = 147968
X0 = 150016
W1F = 163328; RED = W1F + 128; RED2 = RED + 128
DUM = 0x30000
BIG = 0x10000000
def f32bits(x): return struct.unpack("<I", struct.pack("<f", x))[0]

class Track:
    def __init__(self, a, name, cap): self.a, self.name, self.cap, self.l = a, name, cap, []
    def add(self, tag, n=1): self.l.extend([tag]*n)
    def count(self, tag):
        idx = [i for i, t in enumerate(self.l) if t == tag]
        assert idx, tag
        return min(len(self.l) - 1 - idx[-1], self.cap)
    def wait(self, tag): self.a.e(f"s_waitcnt {self.name}({self.count(tag)})")

def gen(opts):
    a = Asm(); e = a.e
    dbg = opts.get("dbg"); stamp = opts.get("stamp"); pf = opts.get("pf", "184")
    prio = int(opts.get("prio", "2")); pk = int(opts.get("pk", "0"))
    n3first = int(opts.get("n3", "3"))
    mode = "B"
    kin = int(opts.get("kin", "4"))
    sM = 23
    sW = 22; sC = 66
    SRD_IDX, SRD_TAB, SRD_WS, SRD_WD, SRD_T = 24, 28, 32, 36, 40
    def srd(base, ptr, nbytes):
        e(f"s_mov_b32 s{base}, s{ptr}"); e(f"s_mov_b32 s{base+1}, s{ptr+1}")
        e(f"s_mov_b32 s{base+2}, {nbytes}"); e(f"s_mov_b32 s{base+3}, 0x20000")
    vLane, vL15, vG = 1, 2, 3
    t0, t1, t2, t3, t4, t5, t6, t7 = 8, 9, 10, 11, 12, 13, 14, 15
    vL16 = 26; vDum = 24
    vSt = 231
    STI = dict(karg=0, issued=1, bi=2, idx=3, w1=4, s1=5, weff=6, b2=7, s2=8, b3=9, xld=10, main=11, gelu=12, fin=13, sb1=14)
    def st(name):
        if stamp is None: return
        e("s_memtime s[84:85]"); e("s_waitcnt lgkmcnt(0)")
        if name == "entry":
            e("s_mov_b32 s86, s84"); e(f"v_mov_b32 v{vSt}, 0")
        else:
            e("s_sub_u32 s84, s84, s86"); e(f"v_writelane_b32 v{vSt}, s84, {STI[name]}")
    combos = [(0,0,0),(0,0,1),(1,0,0),(1,0,1),(1,1,0),(1,1,1)]
    sSh = 62
    def scatter_addr(SA, Fb, shifted, gmax, tb=16):
        g0, gp0, hb, gpv = tb, tb+1, tb+2, tb+3
        q, off, lim, gq = tb+4, tb+5, tb+6, tb+7
        e(f"v_lshlrev_b32 v{g0}, 1, v{vG}")
        e(f"v_lshrrev_b32 v{gp0}, 1, v{vL15}")
        if shifted:
            e(f"v_subrev_u32 v{g0}, s{sSh}, v{g0}"); e(f"v_subrev_u32 v{gp0}, s{sSh}, v{gp0}")
        e(f"v_and_b32 v{hb}, 1, v{vL15}")
        e(f"v_mul_u32_u24 v{hb}, {HS}, v{hb}")
        e(f"s_lshl_b32 s65, s{sC}, 4")
        if Fb: e(f"s_add_u32 s65, s65, {Fb}")
        e(f"v_add_u32 v{hb}, s65, v{hb}")
        for ci, (aa, bb, pp) in enumerate(combos):
            cg = 8*aa + pp; m0_, m1_ = 88 + 4*(ci % 2), 90 + 4*(ci % 2)
            e(f"v_add_u32 v{gq}, {cg}, v{g0}")
            e(f"v_mad_i32_i24 v{q}, v{gq}, v{gq}, v{gq}")
            e(f"v_lshrrev_b32 v{q}, 1, v{q}")
            e(f"v_add3_u32 v{q}, v{q}, v{gp0}, {8*bb}")
            e(f"v_min_u32 v{lim}, 12, v{gq}")
            e(f"v_cmp_ge_u32 s[{m0_}:{m0_+1}], {gmax}, v{gq}")
            e(f"v_add_u32 v{gpv}, {8*bb}, v{gp0}")
            e(f"v_and_b32 v{off}, 0x7c, v{q}")
            e(f"v_cmp_le_u32 s[{m1_}:{m1_+1}], v{gpv}, v{lim}")
            e(f"v_lshlrev_b32 v{off}, 8, v{off}")
            e(f"v_lshl_add_u32 v{off}, v{q}, 2, v{off}")
            e(f"s_and_b64 s[{m0_}:{m0_+1}], s[{m0_}:{m0_+1}], s[{m1_}:{m1_+1}]")
            e(f"v_add_u32 v{off}, v{off}, v{hb}")
            e(f"v_cndmask_b32 v{SA+ci}, v{vDum}, v{off}, s[{m0_}:{m0_+1}]")
    def mf6(D, A0, A1, B0, B1):
        return [
         f"v_mfma_f32_16x16x32_bf16 v[{D}:{D+3}], v[{A0}:{A0+3}], v[{B0}:{B0+3}], 0",
         f"v_mfma_f32_16x16x32_bf16 v[{D+4}:{D+7}], v[{A1}:{A1+3}], v[{B0}:{B0+3}], 0",
         f"v_mfma_f32_16x16x32_bf16 v[{D+8}:{D+11}], v[{A1}:{A1+3}], v[{B1}:{B1+3}], 0",
         f"v_mfma_f32_16x16x32_bf16 v[{D}:{D+3}], v[{B0}:{B0+3}], v[{A0}:{A0+3}], v[{D}:{D+3}]",
         f"v_mfma_f32_16x16x32_bf16 v[{D+4}:{D+7}], v[{B1}:{B1+3}], v[{A0}:{A0+3}], v[{D+4}:{D+7}]",
         f"v_mfma_f32_16x16x32_bf16 v[{D+8}:{D+11}], v[{B1}:{B1+3}], v[{A1}:{A1+3}], v[{D+8}:{D+11}]"]

    tot = opts.get("tot")
    a.label(KNAME)
    if tot:
        e("s_memtime s[100:101]"); e("s_memrealtime s[94:95]") if False else None
    st("entry")
    e("s_cmp_ge_u32 s2, 256")
    e("s_cbranch_scc1 L_end")
    e("s_load_dwordx16 s[4:19], s[0:1], 0")
    e("s_load_dwordx2 s[20:21], s[0:1], 64")
    if dbg or stamp or tot: e("s_load_dwordx4 s[96:99], s[0:1], 72")
    pfd = int(opts.get("pfd", "0"))
    if pf != "0" and not pfd:
        e("s_getpc_b64 s[88:89]")
        e("v_lshlrev_b32 v28, 7, v0")
        e(f"v_min_u32 v28, CODE_END-{KNAME}-256, v28")
        e("v_mov_b32 v29, s89")
        e("v_add_co_u32 v28, vcc, s88, v28")
        e("s_nop 1")
        e("v_addc_co_u32 v29, vcc, 0, v29, vcc")
        e(f"s_movk_i32 s90, {int(pf)}")
        e("v_cmp_gt_u32 vcc, s90, v0")
        e("s_nop 0")
        e("s_and_saveexec_b64 s[92:93], vcc")
        e("s_cbranch_execz L_nopf")
        e("global_load_dword v30, v[28:29], off")
        a.label("L_nopf")
        e("s_mov_b64 exec, -1")
    elif pf != "0":
        e("s_getpc_b64 s[88:89]")
        e("s_lshr_b32 s90, s2, 3"); e("s_and_b32 s90, s90, 31"); e(f"s_mul_i32 s90, s90, {pfd}")
        e("v_add_u32 v28, s90, v0")
        e("v_lshlrev_b32 v28, 7, v28")
        e(f"v_min_u32 v28, CODE_END-{KNAME}-256, v28")
        e("v_mov_b32 v29, s89")
        e("v_add_co_u32 v28, vcc, s88, v28")
        e("s_nop 1")
        e("v_addc_co_u32 v29, vcc, 0, v29, vcc")
        e(f"v_cmp_gt_u32 vcc, {pfd}, v0")
        e("s_nop 0")
        e("s_and_saveexec_b64 s[92:93], vcc")
        e("s_cbranch_execz L_nopf")
        e("global_load_dword v30, v[28:29], off")
        a.label("L_nopf")
        e("s_mov_b64 exec, -1")
    e(f"v_lshrrev_b32 v{t4}, 6, v0")
    e(f"v_and_b32 v{vLane}, 63, v0")
    e(f"v_and_b32 v{vL15}, 15, v0")
    e(f"v_readfirstlane_b32 s{sW}, v{t4}")
    e(f"v_bfe_u32 v{vG}, v0, 4, 2")
    e(f"v_lshrrev_b32 v{t6}, 1, v{vLane}")
    e(f"v_lshlrev_b32 v{t6}, 2, v{t6}")
    e("s_lshl_b32 s61, s2, 4")
    e(f"s_and_b32 s{sC}, s{sW}, 3")
    e(f"s_lshl_b32 s62, s{sC}, 2")
    e("s_add_u32 s61, s61, s62")
    e("s_mul_i32 s61, s61, 104")
    e(f"s_bfe_u32 s{sM}, s2, 0x10003")
    for r in (t0, t1, t2, t3): e(f"v_mov_b32 v{r}, 0")
    e(f"v_lshlrev_b32 v{t4}, 4, v0")
    for k in range(3): e(f"ds_write_b128 v{t4}, v[{t0}:{t3}] offset:{k*8192}")
    e(f"v_and_b32 v{t5}, 127, v0")
    e(f"v_lshlrev_b32 v{t5}, 4, v{t5}")
    e(f"v_add_u32 v{t5}, {QB}, v{t5}")
    e(f"ds_write_b128 v{t5}, v[{t0}:{t3}]")
    e(f"v_lshlrev_b32 v{vL16}, 4, v{vLane}")
    e(f"v_mov_b32 v{vDum}, {DUM}")
    e("s_waitcnt lgkmcnt(0)")
    eidx = int(opts.get("eidx", "1"))
    if not eidx: e("s_barrier")
    st("karg")
    e(f"s_cmp_lt_u32 s{sW}, 4"); e("s_cbranch_scc1 L_touch0")
    vIdx = 4
    srd(SRD_IDX, 4, 4096*26*4)
    for k in range(4):
        e(f"buffer_load_dword v{vIdx+k}, v{t6}, s[{SRD_IDX}:{SRD_IDX+3}], s61 offen offset:{104*k}")
    a.label("L_touch0")
    e("s_lshr_b32 s62, s2, 3"); e("s_and_b32 s62, s62, 31")
    e(f"v_lshlrev_b32 v{t5}, 7, v{vLane}")
    e(f"s_mov_b32 s{SRD_T}, s12"); e(f"s_mov_b32 s{SRD_T+1}, s13"); e(f"s_mov_b32 s{SRD_T+3}, 0x20000")
    e("s_mul_i32 s63, s62, 10880"); e("s_add_u32 s64, s63, 10880"); e("s_min_u32 s64, s64, 346112")
    e(f"s_mov_b32 s{SRD_T+2}, s64")
    e(f"s_cmp_eq_u32 s{sW}, 4"); e("s_cbranch_scc1 L_touch")
    e("s_add_u32 s63, s63, 8192")
    e(f"s_cmp_eq_u32 s{sW}, 5"); e("s_cbranch_scc1 L_touch")
    e(f"s_mov_b32 s{SRD_T}, s8"); e(f"s_mov_b32 s{SRD_T+1}, s9")
    e("s_mul_i32 s63, s62, 3328"); e("s_add_u32 s64, s63, 3328"); e("s_min_u32 s64, s64, 105456")
    e(f"s_mov_b32 s{SRD_T+2}, s64")
    e(f"s_cmp_eq_u32 s{sW}, 6"); e("s_cbranch_scc1 L_touch")
    e(f"s_mov_b32 s{SRD_T}, s6"); e(f"s_mov_b32 s{SRD_T+1}, s7"); e(f"s_mov_b32 s{SRD_T+2}, 3200000")
    e("s_mov_b32 s63, 0")
    e(f"v_lshlrev_b32 v{t5}, 16, v{vLane}")
    e(f"s_cmp_eq_u32 s{sW}, 7"); e("s_cbranch_scc1 L_touch")
    if eidx: e("s_barrier")
    e("s_branch L_C")
    a.label("L_touch")
    e(f"buffer_load_dword v31, v{t5}, s[{SRD_T}:{SRD_T+3}], s63 offen")
    if eidx: e("s_barrier")
    e("s_branch L_D")

    a.label("L_C")
    vm = Track(a, "vmcnt", 63); lg = Track(a, "lgkmcnt", 15)
    SA2 = 154
    DS = [160, 172]; CV = [184, 190]
    vWs = 25; W3F = 32
    e("s_mov_b32 s68, s10"); e("s_mov_b32 s69, s11"); e("s_mov_b32 s70, 156"); e("s_mov_b32 s71, 0x20000")
    e(f"v_lshlrev_b32 v{t6}, 1, v{vLane}")
    e(f"buffer_load_ushort v{vWs}, v{t6}, s[68:71], 0 offen"); vm.add("ws")
    e(f"v_lshlrev_b32 v{t6}, 4, v{vG}")
    e(f"buffer_load_dwordx4 v[{W3F}:{W3F+3}], v{t6}, s[68:71], 0 offen offset:104"); vm.add("w3f")
    e("s_load_dword s47, s[18:19], 0")
    e(f"s_and_b32 s{sSh}, s{sC}, 1")
    scatter_addr(SA2, F2, True, 13)
    vH1, vH2 = 72, 73
    e(f"v_lshrrev_b32 v{t5}, 2, v{vL15}")
    e(f"v_lshl_add_u32 v{t5}, v{vG}, 3, v{t5}")
    e(f"v_add_u32 v{t6}, 4, v{t5}")
    e(f"v_min_u32 v{t5}, 25, v{t5}"); e(f"v_min_u32 v{t6}, 25, v{t6}")
    e(f"v_and_b32 v{t7}, 3, v{vL15}"); e(f"v_lshlrev_b32 v{t7}, 3, v{t7}")
    e("s_movk_i32 s64, 1352")
    e(f"v_mad_u32_u24 v{vH1}, v{t5}, s64, v{t7}"); e(f"v_mad_u32_u24 v{vH2}, v{t6}, s64, v{t7}")
    QA = 76
    for j in range(3):
        ee, h, k_, ad = t4, t5, t6, QA + j
        e(f"s_lshl_b32 s63, s{sC}, 6"); e(f"s_add_u32 s63, s63, {256*j}")
        e(f"v_add_u32 v{ee}, s63, v{vLane}")
        e(f"v_mul_u32_u24 v{h}, 2521, v{ee}"); e(f"v_lshrrev_b32 v{h}, 16, v{h}")
        e(f"v_mul_u32_u24 v{k_}, 26, v{h}"); e(f"v_sub_u32 v{k_}, v{ee}, v{k_}")
        e(f"v_cmp_gt_u32 vcc, 676, v{ee}")
        e(f"v_lshrrev_b32 v{ad}, 4, v{k_}"); e(f"v_lshlrev_b32 v{ad}, 10, v{ad}")
        e(f"v_and_b32 v{k_}, 15, v{k_}"); e(f"v_lshl_add_u32 v{ad}, v{k_}, 4, v{ad}")
        e(f"v_lshrrev_b32 v{k_}, 3, v{h}"); e(f"v_lshl_add_u32 v{ad}, v{k_}, 8, v{ad}")
        e(f"v_and_b32 v{h}, 7, v{h}"); e(f"v_lshl_add_u32 v{ad}, v{h}, 1, v{ad}")
        e(f"v_add_u32 v{ad}, {QB}, v{ad}")
        e(f"v_cndmask_b32 v{ad}, v{vDum}, v{ad}, vcc")
    vT1, vT2 = 37, 38
    e(f"s_lshl_b32 s63, s{sC}, 7"); e(f"s_add_u32 s63, s63, {W3L}")
    e(f"v_add_u32 v{vT1}, s63, v{vH1}"); e(f"v_add_u32 v{vT2}, s63, v{vH2}")
    TA1, TA2, vM = 39, 75, 74
    e(f"s_mul_i32 s63, s{sC}, 52"); e(f"s_lshl_b32 s64, s{sSh}, 2"); e("s_sub_u32 s63, s63, s64"); e(f"s_add_u32 s63, s63, {W2L}")
    e(f"v_add_u32 v{TA1}, s63, v{vH1}"); e(f"v_add_u32 v{TA2}, s63, v{vH2}")
    e(f"s_lshl_b32 s64, s{sSh}, 1"); e("s_add_u32 s64, s64, 10")
    e(f"v_cmp_gt_u32 vcc, s64, v{vL15}")
    QAD = [44, 45]
    e(f"s_lshl_b32 s63, s{sSh}, 1")
    e("s_nop 0")
    e(f"v_cndmask_b32 v{vM}, 0, -1, vcc")
    for aa in range(2):
        e(f"v_subrev_u32 v{t4}, s63, v{vL15}")
        if aa: e(f"v_add_u32 v{t4}, 16, v{t4}")
        e(f"v_min_u32 v{t4}, 31, v{t4}")
        e(f"v_lshrrev_b32 v{t5}, 4, v{t4}"); e(f"v_lshlrev_b32 v{t5}, 10, v{t5}")
        e(f"v_and_b32 v{t4}, 15, v{t4}"); e(f"v_lshl_add_u32 v{t5}, v{t4}, 4, v{t5}")
        e(f"v_lshl_add_u32 v{t5}, v{vG}, 8, v{t5}")
        e(f"v_add_u32 v{QAD[aa]}, {QB}, v{t5}")
    vFa = 226
    e(f"v_lshrrev_b32 v{t5}, 5, v{vLane}")
    e(f"v_mul_u32_u24 v{t6}, {HS}, v{t5}")
    e(f"v_and_b32 v{t7}, 31, v{vLane}")
    e(f"v_lshl_add_u32 v{vFa}, v{t7}, 4, v{t6}")
    st("w1")
    vm.wait("w3f")
    e(f"v_lshlrev_b32 v{t5}, 16, v{vWs}")
    e(f"v_cmp_gt_u32 s[88:89], 26, v{vLane}")
    e(f"v_cmp_gt_u32 s[90:91], 32, v{vLane}")
    e(f"v_lshlrev_b32 v{t6}, 2, v{vLane}")
    e(f"v_add_u32 v{t6}, {W1F}, v{t6}")
    e(f"v_cndmask_b32 v{t5}, 0, v{t5}, s[88:89]")
    e(f"v_cndmask_b32 v{t6}, v{vDum}, v{t6}, s[90:91]")
    e(f"ds_write_b32 v{t6}, v{t5}")
    e(f"v_subrev_u32 v{t5}, 26, v{vLane}")
    e(f"v_cmp_gt_u32 s[88:89], 26, v{t5}")
    e(f"v_lshrrev_b32 v{t6}, 3, v{t5}")
    e(f"v_lshlrev_b32 v{t6}, 8, v{t6}")
    e(f"v_and_b32 v{t7}, 7, v{t5}")
    e(f"v_lshl_add_u32 v{t6}, v{t7}, 1, v{t6}")
    e(f"v_add_u32 v{t6}, {QB+1024+160}, v{t6}")
    e(f"v_cndmask_b32 v{t6}, v{vDum}, v{t6}, s[88:89]")
    e(f"ds_write_b16 v{t6}, v{vWs}")
    AW = 56
    for gq in range(4): e(f"v_cmp_eq_u32 s[{88+2*gq}:{89+2*gq}], {4*gq}, v{vL15}")
    for gq in range(4):
        for j in range(4): e(f"v_cndmask_b32 v{AW+4*gq+j}, 0, v{W3F+j}, s[{88+2*gq}:{89+2*gq}]")
    e("s_waitcnt lgkmcnt(0)")
    e("s_barrier")
    st("bi")
    a.c("Weff")
    WB = 80; WD = 128
    for j in range(3):
        for gq in range(4):
            b = WB + 16*j + 4*gq
            e(f"ds_read_b64_tr_b16 v[{b}:{b+1}], v{vT1} offset:{j*512+32*gq}")
            e(f"ds_read_b64_tr_b16 v[{b+2}:{b+3}], v{vT2} offset:{j*512+32*gq}")
    for j in range(3):
        e(f"s_waitcnt lgkmcnt({min(15, 8*(2-j))})")
        for gq in range(4):
            b = WB + 16*j + 4*gq; d = WD + 4*j
            c = "0" if gq == 0 else f"v[{d}:{d+3}]"
            e(f"v_mfma_f32_16x16x32_bf16 v[{d}:{d+3}], v[{AW+4*gq}:{AW+4*gq+3}], v[{b}:{b+3}], {c}")
    a.nop(8)
    for j in range(3): e(f"v_cvt_pk_bf16_f32 v{t4+j}, v{WD+4*j}, v{WD+4*j}")
    for j in range(3): e(f"ds_write_b16 v{QA+j}, v{t4+j}")
    st("weff")
    e("s_waitcnt vmcnt(0) lgkmcnt(0)")
    e("s_barrier")
    st("b2")
    a.c("S2")
    Q0, Q1 = 140, 144
    lg.l = []
    e(f"ds_read_b128 v[{Q0}:{Q0+3}], v{QAD[0]}"); e(f"ds_read_b128 v[{Q1}:{Q1+3}], v{QAD[1]}"); lg.add("q", 2)
    PS = [48, 56, 64]
    cvt = lambda k, j: f"v_cvt_pk_bf16_f32 v{CV[k&1]+j}, v{DS[k&1]+2*j}, v{DS[k&1]+2*j+1}"
    wr = lambda SA, k, j: f"ds_write_b32 v{SA+j}, v{CV[k&1]+j} offset:{k*64}"
    def p_reads(k):
        P = PS[k % 3]
        return [f"ds_read_b64_tr_b16 v[{P}:{P+1}], v{TA1} offset:{k*208}",
                f"ds_read_b64_tr_b16 v[{P+2}:{P+3}], v{TA2} offset:{k*208}",
                f"ds_read_b64_tr_b16 v[{P+4}:{P+5}], v{TA1} offset:{k*208+32}",
                f"ds_read_b64_tr_b16 v[{P+6}:{P+7}], v{TA2} offset:{k*208+32}"]
    for k in (0, 1):
        for x in p_reads(k): e(x)
        lg.add(f"p{k}", 4)
    def masks(k): return [f"v_and_b32 v{PS[k%3]+4+j}, v{vM}, v{PS[k%3]+4+j}" for j in range(4)]
    lg.wait("p0")
    for x in masks(0): e(x)
    a.nop(1)
    for k in range(9):
        M = mf6(DS[k & 1], PS[k % 3], PS[k % 3]+4, Q0, Q1) if k < 7 else [None]*6
        R = p_reads(k+2) if k + 2 < 7 else []
        if k == 7: a.nop(4)
        if k == 8:
            e(f"s_cmp_lt_u32 s{sC}, 2"); e("s_cbranch_scc1 L_s2v")
            for j in range(6): e(f"v_mov_b32 v{SA2+j}, v{vDum}")
            a.label("L_s2v")
        for j in range(6):
            if j == 4 and k + 1 < 7:
                lg.wait(f"p{k+1}")
                for x in masks(k+1): e(x)
            if M[j]: e(M[j])
            if k >= 2: e(wr(SA2, k-2, j)); lg.add("w")
            if 1 <= k <= 7: e(cvt(k-1, j))
            if j < len(R): e(R[j]); lg.add(f"p{k+2}")
    st("s2")
    e("s_waitcnt lgkmcnt(0)")
    e("s_barrier")
    e("s_barrier")
    st("b3")
    if dbg == "lds":
        e("s_cmp_eq_u32 s2, 0"); e("s_cbranch_scc0 L_nodump")
        e(f"v_lshlrev_b32 v{t4}, 4, v0")
        for k in range(40):
            e(f"v_add_u32 v{t5}, {k*4096}, v{t4}")
            e(f"ds_read_b128 v[{t0}:{t3}], v{t5}")
            e("s_waitcnt lgkmcnt(0)")
            e(f"global_store_dwordx4 v{t5}, v[{t0}:{t3}], s[98:99]")
            e("s_waitcnt vmcnt(0)")
        a.label("L_nodump")
    a.c("C main")
    XA, YA, XB, YB = 8, 34, 47, 73
    D1A, D2A, D1B, D2B = 96, 112, 128, 144
    ZB = [[160, 164], [168, 172]]
    AB = [176, 184, 192]
    TM = [200, 201, 202, 203, 204, 205, 206, 207]
    WI = 208; vXb = 224; PK = 176
    e(f"v_and_b32 v{TM[4]}, 1, v{vG}")
    e(f"s_lshl_b32 s63, s{sC}, 2")
    e(f"v_add_u32 v{TM[4]}, s63, v{TM[4]}")
    e(f"v_mul_u32_u24 v{TM[4]}, 832, v{TM[4]}")
    e(f"v_lshrrev_b32 v{TM[5]}, 2, v{vL15}")
    e(f"v_lshl_add_u32 v{TM[4]}, v{TM[5]}, 5, v{TM[4]}")
    e(f"v_and_b32 v{TM[5]}, 3, v{vL15}")
    e(f"v_lshl_add_u32 v{TM[4]}, v{TM[5]}, 3, v{TM[4]}")
    e(f"v_add_u32 v{vXb}, {X0}, v{TM[4]}")
    safe = int(opts.get("safe", "0"))
    for T in range(2):
        for fb in range(7):
            e(f"ds_read_b64_tr_b16 v[{PK+14*T+2*fb}:{PK+14*T+2*fb+1}], v{vXb} offset:{T*1664 + fb*128}")
    e(f"v_lshrrev_b32 v{TM[5]}, 5, v{vLane}")
    e(f"v_lshlrev_b32 v{TM[6]}, 4, v{TM[5]}")
    e(f"v_add_u32 v{TM[6]}, {W1F}, v{TM[6]}")
    if safe: e("s_waitcnt lgkmcnt(0)")
    for m in range(4): e(f"ds_read_b128 v[{WI+4*m}:{WI+4*m+3}], v{TM[6]} offset:{m*32}")
    e(f"v_cmp_eq_u32 s[72:73], 1, v{TM[5]}")
    for T, (X, Y) in enumerate(((XA, YA), (XB, YB))):
        e(f"s_waitcnt lgkmcnt({11 if T == 0 else 4})")
        for g in range(13):
            p = PK + 14*T + g
            e(f"v_lshlrev_b32 v{X+2*g}, 16, v{p}")
            e(f"v_and_b32 v{X+2*g+1}, 0xffff0000, v{p}")
        for g in range(13): e(f"v_cndmask_b32 v{Y+g}, v{X+2*g}, v{X+2*g+1}, s[72:73]")
    def a_read(t):
        b = AB[t % 3]
        if t <= 22: e(f"ds_read_b128 v[{b}:{b+3}], v{vFa} offset:{F1 + t*FS}")
        if t <= 25: e(f"ds_read_b128 v[{b+4}:{b+7}], v{vFa} offset:{F2 + t*FS}")
    blocks = [(g, gp) for g in range(14) for gp in range(min(g, 12)+1)]
    def zgen(t, T):
        X, Y = ((XA, YA), (XB, YB))[T]
        z = ZB[t & 1][T]; mul = []; cv = []
        for j in range(4):
            g, gp = blocks[4*t + j]
            ta, tb, th = TM[2*j], TM[2*j+1], 228 + T
            if g == 13: cv.append(f"v_cvt_pk_bf16_f32 v{z+j}, v{Y+gp}, 0")
            else:
                y = Y + gp
                if g == gp:
                    mul.append(f"v_mul_f32 v{th}, 0.5, v{Y+gp}"); y = th
                mul.append(f"v_mul_f32 v{ta}, v{X+2*g}, v{y}")
                mul.append(f"v_mul_f32 v{tb}, v{X+2*g+1}, v{y}")
                cv.append(f"v_cvt_pk_bf16_f32 v{z+j}, v{ta}, v{tb}")
        return mul + cv
    st("xld")
    a_read(0); a_read(1)
    for T in range(2):
        for s in zgen(0, T): e(s)
    cnt = {t: (1 if t > 22 else 2) for t in range(26)}
    for t in range(26):
        younger = cnt[t+1] if t+1 <= 25 else 0
        e(f"s_waitcnt lgkmcnt({younger})")
        b = AB[t % 3]; mf = []; rds = []
        if t + 2 <= 25:
            b2 = AB[(t+2) % 3]
            if t + 2 <= 22: rds.append(f"ds_read_b128 v[{b2}:{b2+3}], v{vFa} offset:{F1 + (t+2)*FS}")
            rds.append(f"ds_read_b128 v[{b2+4}:{b2+7}], v{vFa} offset:{F2 + (t+2)*FS}")
        for T, (D1, D2) in enumerate(((D1A, D2A), (D1B, D2B))):
            z = ZB[t & 1][T]
            if t <= 22:
                c = "0" if t == 0 else f"v[{D1}:{D1+15}]"
                mf.append(f"v_mfma_f32_32x32x16_bf16 v[{D1}:{D1+15}], v[{b}:{b+3}], v[{z}:{z+3}], {c}")
            c = f"v[{WI}:{WI+15}]" if t == 0 else f"v[{D2}:{D2+15}]"
            mf.append(f"v_mfma_f32_32x32x16_bf16 v[{D2}:{D2+15}], v[{b+4}:{b+7}], v[{z}:{z+3}], {c}")
        va = (zgen(t+1, 0) + zgen(t+1, 1)) if t < 25 else []
        n = len(mf); per = (len(va) + n - 1)//n if va else 0
        if t == 0: a.nop(2)
        vi = 0
        for mi, m in enumerate(mf):
            e(m)
            if mi < len(rds): e(rds[mi])
            for s in va[vi:vi+per]: e(s)
            vi += per
    a.nop(16)
    st("main")
    for T, (D1, D2) in enumerate(((D1A, D2A), (D1B, D2B))): e(f"v_mul_f32 v{TM[T]}, v{D1}, v{D2}")
    for r in range(1, 14):
        for T, (D1, D2) in enumerate(((D1A, D2A), (D1B, D2B))): e(f"v_fmac_f32 v{TM[T]}, v{D1+r}, v{D2+r}")
    if opts.get("chk"):
        for T in range(2):
            for fb in range(7):
                e(f"ds_read_b64_tr_b16 v[{96+14*T+2*fb}:{96+14*T+2*fb+1}], v{vXb} offset:{T*1664 + fb*128}")
            e("s_waitcnt lgkmcnt(0)")
        e("v_mov_b32 v230, 0x41200000")
        for T, (X, Y) in enumerate(((XA, YA), (XB, YB))):
            for g in range(13):
                p = 96 + 14*T + g
                e(f"v_lshlrev_b32 v228, 16, v{p}")
                e(f"v_cmp_ne_u32 vcc, v228, v{X+2*g}")
                e("s_nop 1")
                e(f"v_cndmask_b32 v229, 0, v230, vcc")
                e(f"v_add_f32 v{TM[T]}, v{TM[T]}, v229")
                e(f"v_and_b32 v228, 0xffff0000, v{p}")
                e(f"v_cmp_ne_u32 vcc, v228, v{X+2*g+1}")
                e("s_nop 1")
                e(f"v_cndmask_b32 v229, 0, v230, vcc")
                e(f"v_add_f32 v{TM[T]}, v{TM[T]}, v229")
    for sh in (8, 4, 2, 1):
        a.nop(2)
        for T in range(2): e(f"v_add_f32_dpp v{TM[T]}, v{TM[T]}, v{TM[T]} row_ror:{sh} row_mask:0xf bank_mask:0xf")
    e(f"v_bfe_u32 v{TM[2]}, v{vLane}, 4, 1")
    e(f"v_lshlrev_b32 v{TM[2]}, 3, v{TM[2]}")
    e(f"v_lshrrev_b32 v{TM[3]}, 5, v{vLane}")
    e(f"v_lshl_add_u32 v{TM[2]}, v{TM[3]}, 2, v{TM[2]}")
    e(f"s_lshl_b32 s63, s{sC}, 5"); e(f"s_add_u32 s63, s63, {RED}")
    e(f"v_add_u32 v{TM[2]}, s63, v{TM[2]}")
    e(f"ds_write_b32 v{TM[2]}, v{TM[0]}")
    e(f"ds_write_b32 v{TM[2]}, v{TM[1]} offset:16")
    e("s_branch L_final")

    a.label("L_D")
    sD, sDB, sK, sNI = 66, 67, 80, 79
    srd(SRD_TAB, 6, 3200000)
    srd(SRD_WD, 12, 346112)
    srd(SRD_WS, 8, 105456)
    P = 16; ACC = 32; BB = [64, 96]; AF = [128, 132]; TRA = 136; W2R = 144; BIAS = 152; OUT = 160; GT = 164; vC0 = 184; vA = 185
    W1R = 64; I0, I1 = 120, 124
    SA1 = 192; DSd = [198, 210]; CVd = [222, 164]
    vW1 = 27
    e(f"s_mul_i32 s81, s{sD}, 224")
    e(f"s_mul_i32 s63, s{sD}, 192"); e("s_add_u32 s63, s63, 64")
    e(f"s_mul_i32 s{sDB}, s{sD}, 7168")
    e(f"s_mul_i32 s64, s{sD}, 6144"); e("s_add_u32 s64, s64, 2048")
    e(f"s_cmp_lt_u32 s{sD}, 2")
    e("s_cselect_b32 s81, s81, s63"); e(f"s_cselect_b32 s{sDB}, s{sDB}, s64")
    e(f"s_cselect_b32 s{sNI}, 7, 6")
    e("s_movk_i32 s74, 5462"); e("s_cselect_b32 s74, 4682, s74")
    e("s_cselect_b32 s75, 14, 12")
    e("s_movk_i32 s78, 192"); e("s_cselect_b32 s78, 224, s78")
    e("s_cselect_b32 s76, -1, 0")
    e(f"s_add_u32 s{sDB}, s{sDB}, {RING}")
    e("s_mov_b64 exec, 0xffff")
    for ptr, off in ((14, 0), (16, 256)):
        e(f"s_mov_b32 s68, s{ptr}"); e(f"s_mov_b32 s69, s{ptr+1}"); e("s_mov_b32 s70, 832"); e("s_mov_b32 s71, 0x20000")
        e(f"s_add_u32 m0, s{sDB}, {off}"); e("s_nop 0")
        e(f"buffer_load_dwordx4 v{vL16}, s[68:71], s81 offen lds")
    e("s_mov_b64 exec, -1")
    sLS, sLD = 72, 73
    def lin_start(src, dst):
        e(f"s_lshl_b32 s{sLD}, s{sD}, 10")
        e(f"s_add_u32 s{sLS}, s{sLD}, {src}"); e(f"s_add_u32 s{sLD}, s{sLD}, {dst}")
    uid = [0]
    def lin_one(k):
        if k < 8:
            e(f"s_mov_b32 m0, s{sLD}"); e(f"s_add_u32 s{sLD}, s{sLD}, 4096")
            e(f"buffer_load_dwordx4 v{vL16}, s[{SRD_WS}:{SRD_WS+3}], s{sLS} offen lds")
            e(f"s_add_u32 s{sLS}, s{sLS}, 4096")
        else:
            uid[0] += 1; lab = f"L_lin{uid[0]}"
            e(f"s_cmp_lt_u32 s{sD}, 2"); e(f"s_cbranch_scc1 {lab}")
            e("s_mov_b64 exec, 0x1fffff")
            e(f"s_cmp_eq_u32 s{sD}, 2"); e(f"s_cbranch_scc1 {lab}")
            e(f"s_mov_b32 s{sLS}, {BIG}"); e(f"s_mov_b32 s{sLD}, {DUM}")
            a.label(lab)
            e(f"s_mov_b32 m0, s{sLD}"); e("s_nop 0")
            e(f"buffer_load_dwordx4 v{vL16}, s[{SRD_WS}:{SRD_WS+3}], s{sLS} offen lds")
            e("s_mov_b64 exec, -1")
    lin_start(2*35152, W3L)
    for k in range(n3first): lin_one(k)
    e(f"v_and_b32 v{t0}, 1, v{vLane}"); e(f"v_lshlrev_b32 v{t0}, 4, v{t0}")
    e(f"v_mul_u32_u24 v{t7}, 52, v{vL15}")
    e(f"v_lshl_add_u32 v{vW1}, v{vG}, 4, v{t7}")
    def patterns():
        for j in range(7):
            m, row, cp, p_, b3 = t1, t2, t3, t4, t5
            e(f"v_add_u32 v{m}, {64*j}, v{vLane}")
            e(f"v_mul_u32_u24 v{row}, s74, v{m}"); e(f"v_lshrrev_b32 v{row}, 16, v{row}")
            e(f"v_mul_u32_u24 v{cp}, s75, v{row}"); e(f"v_sub_u32 v{cp}, v{m}, v{cp}")
            e(f"v_lshrrev_b32 v{p_}, 1, v{cp}")
            e(f"v_bfe_u32 v{b3}, v{row}, 3, 1")
            e(f"v_xor_b32 v{t6}, v{p_}, v{b3}")
            e(f"v_add_u32 v{t7}, 3, v{p_}")
            e(f"v_cmp_lt_u32 vcc, 6, v{t7}")
            e(f"v_subrev_u32 v{m}, 7, v{t7}")
            e(f"v_and_b32 v{cp}, 1, v{cp}")
            e(f"v_cndmask_b32 v{t7}, v{t7}, v{m}, vcc")
            e(f"v_cmp_eq_u32 vcc, 1, v{b3}")
            e(f"v_mul_u32_u24 v{row}, 832, v{row}")
            e(f"v_add_u32 v{row}, s81, v{row}")
            e(f"v_cndmask_b32 v{t7}, v{p_}, v{t7}, vcc")
            e(f"v_and_b32 v{t7}, s76, v{t7}")
            e(f"v_not_b32 v{m}, s76"); e(f"v_and_b32 v{t6}, v{m}, v{t6}")
            e(f"v_or_b32 v{t7}, v{t7}, v{t6}")
            e(f"v_lshl_add_u32 v{cp}, v{t7}, 1, v{cp}")
            e(f"v_lshl_add_u32 v{cp}, v{cp}, 4, v{row}")
            if j & 3: e(f"v_subrev_u32 v{P+j}, {(j & 3)*1024}, v{cp}")
            else: e(f"v_mov_b32 v{P+j}, v{cp}")
        e(f"v_lshrrev_b32 v{t2}, 2, v{vL15}")
        e(f"v_lshl_add_u32 v{t3}, v{vG}, 3, v{t2}")
        e(f"v_mul_u32_u24 v{t3}, s78, v{t3}")
        e(f"v_and_b32 v{t4}, 3, v{vL15}")
        e(f"v_lshl_add_u32 v{t3}, v{t4}, 3, v{t3}")
        e(f"v_add_u32 v{t3}, s{sDB}, v{t3}")
        e(f"v_and_b32 v{t4}, 1, v{vG}")
        e(f"v_cmp_eq_u32 vcc, 1, v{t4}")
        e(f"v_not_b32 v{t6}, s76")
        for tau in range(7):
            e(f"v_mov_b32 v{t5}, {tau}")
            e(f"v_mov_b32 v{t7}, {(tau+4) % 7}")
            e(f"v_xor_b32 v{t2}, {tau}, v{t4}")
            e(f"v_cndmask_b32 v{t5}, v{t5}, v{t7}, vcc")
            e(f"v_and_b32 v{t5}, s76, v{t5}")
            e(f"v_and_b32 v{t2}, v{t6}, v{t2}")
            e(f"v_or_b32 v{t5}, v{t5}, v{t2}")
            e(f"v_lshl_add_u32 v{TRA+tau}, v{t5}, 5, v{t3}")
        e(f"v_mul_u32_u24 v{vA}, 832, v{vL15}")
        e(f"v_lshl_add_u32 v{vA}, v{vG}, 4, v{vA}")
        e(f"v_add_u32 v{vA}, {X0}, v{vA}")
    patearly = int(opts.get("pate", "1"))
    if patearly: patterns()
    st("w1")
    def w1_loads():
        e(f"s_mul_i32 s63, s{sD}, 1352")
        for k in range(7):
            if k == 6:
                e(f"s_cmp_lt_u32 s{sD}, 2"); e(f"s_cselect_b32 s63, s63, {BIG}")
            e(f"buffer_load_dwordx4 v[{W1R+8*k}:{W1R+8*k+3}], v{vW1}, s[{SRD_WS}:{SRD_WS+3}], s63 offen")
            e(f"buffer_load_dwordx4 v[{W1R+8*k+4}:{W1R+8*k+7}], v{vW1}, s[{SRD_WS}:{SRD_WS+3}], s63 offen offset:832")
            if k < 6: e(f"s_add_u32 s63, s63, {4*1352}")
    def gathers():
        for k in range(4): e(f"v_lshl_add_u32 v{vIdx+k}, v{vIdx+k}, 5, v{t0}")
        e(f"s_mul_i32 s63, s{sD}, {4*832}"); e(f"s_add_u32 s63, s63, {X0}")
        e("s_mov_b32 exec_lo, -1"); e("s_mov_b32 exec_hi, 0xfffff")
        for k in range(4):
            e(f"s_add_u32 m0, s63, {832*k}"); e("s_nop 0")
            e(f"buffer_load_dwordx4 v{vIdx+k}, s[{SRD_TAB}:{SRD_TAB+3}], 0 offen lds")
        e("s_mov_b64 exec, -1")
    def bias_read():
        e(f"v_lshlrev_b32 v{t1}, 1, v{vL15}"); e(f"v_add_u32 v{t1}, s{sDB}, v{t1}")
        for tau in range(7):
            e(f"v_mov_b32 v{BIAS+tau}, 0"); e(f"v_mov_b32 v{W2R+tau}, 0")
        for tau in range(7):
            e(f"ds_read_u16_d16_hi v{BIAS+tau}, v{t1} offset:{tau*32}")
            e(f"ds_read_u16_d16_hi v{W2R+tau}, v{t1} offset:{256+tau*32}")
        e("s_waitcnt lgkmcnt(0)")
        for tau in range(7):
            for r in range(4): e(f"v_mov_b32 v{ACC+4*tau+r}, v{BIAS+tau}")
    def kdma(slot):
        uid[0] += 1; lab = f"L_k{uid[0]}"
        for j in range(7):
            if j == 6:
                e(f"s_cmp_eq_u32 s{sNI}, 6"); e(f"s_cbranch_scc1 {lab}")
            if (j & 3) == 0:
                e(f"s_add_u32 m0, s{sDB}, {slot*SLOT + (j >> 2)*4096}"); e("s_nop 0")
            off = f" offset:{(j & 3)*1024}" if j & 3 else ""
            e(f"buffer_load_dwordx4 v{P+j}, s[{SRD_WD}:{SRD_WD+3}], s{sK} offen{off} lds")
        a.label(lab)
        e(f"s_add_u32 s{sK}, s{sK}, {SLOT}")
    def s1_setup():
        e(f"v_lshlrev_b32 v{t4}, 3, v{vG}")
        e(f"v_sub_u32 v{t4}, v{vL15}, v{t4}")
        e(f"v_and_b32 v{t5}, 1, v{t4}")
        e(f"v_lshlrev_b32 v{t5}, 4, v{t5}")
        e(f"v_mov_b32 v{t6}, 0x3f80")
        e(f"v_lshlrev_b32 v{t5}, v{t5}, v{t6}")
        e(f"v_ashrrev_i32 v{t4}, 1, v{t4}")
        e(f"v_add_u32 v{t6}, 8, v{t4}")
        for j in range(4): e(f"v_cmp_eq_u32 s[{88+2*j}:{89+2*j}], {j}, v{t4}")
        for j in range(4): e(f"v_cndmask_b32 v{I0+j}, 0, v{t5}, s[{88+2*j}:{89+2*j}]")
        for j in range(4): e(f"v_cmp_eq_u32 s[{88+2*j}:{89+2*j}], {j}, v{t6}")
        for j in range(4): e(f"v_cndmask_b32 v{I1+j}, 0, v{t5}, s[{88+2*j}:{89+2*j}]")
        scatter_addr(SA1, F1, False, 12, 198)
    def S1():
        cvt = lambda k, j: f"v_cvt_pk_bf16_f32 v{CVd[k&1]+j}, v{DSd[k&1]+2*j}, v{DSd[k&1]+2*j+1}"
        wr = lambda k, j: f"ds_write_b32 v{SA1+j}, v{CVd[k&1]+j} offset:{k*64}"
        for k in range(9):
            M = mf6(DSd[k & 1], W1R+8*k, W1R+8*k+4, I0, I1) if k < 7 else [None]*6
            if k == 7: a.nop(4)
            if k == 1: a.nop(5)
            if k == 2: a.nop(1)
            for j in range(6):
                if M[j]: e(M[j])
                if k >= 2: e(wr(k-2, j))
                if 1 <= k <= 7: e(cvt(k-1, j))
    e(f"s_mov_b32 s{sK}, 0")
    for k in range(n3first, 9): lin_one(k)
    lin_start(35152, W2L)
    for k in range(9): lin_one(k)
    e("s_waitcnt vmcnt(9)")
    e("s_barrier")
    st("bi")
    w1_loads()
    e("s_waitcnt vmcnt(14)")
    e("s_barrier")
    st("b2")
    gathers()
    st("sb1")
    bias_read()
    if not patearly: patterns()
    s1_setup()
    e("s_waitcnt vmcnt(4)")
    S1()
    k01late = int(opts.get("k01late", "0"))
    if not k01late: kdma(0); kdma(1)
    st("s1")
    e("s_waitcnt lgkmcnt(0)")
    e("s_barrier")
    if k01late: kdma(0); kdma(1)
    kdma(2)
    st("issued")
    e(f"s_cmp_lt_u32 s{sD}, 2"); e("s_cbranch_scc0 L_D6")
    def emit_D(NT):
        tag = f"T{NT}"; nI = NT; nt = NT; RS = 32*NT
        e(f"s_waitcnt vmcnt({3*nI})")
        st("s2")
        e("s_barrier")
        st("b3")
        if prio: e(f"s_setprio {prio}")
        def reads(b, slot, astep):
            r = [f"ds_read_b128 v[{AF[b]}:{AF[b]+3}], v{vA} offset:{64*astep}"]
            for tau in range(nt):
                r.append(f"ds_read_b64_tr_b16 v[{BB[b]+4*tau}:{BB[b]+4*tau+1}], v{TRA+tau} offset:{slot*SLOT}")
                r.append(f"ds_read_b64_tr_b16 v[{BB[b]+4*tau+2}:{BB[b]+4*tau+3}], v{TRA+tau} offset:{slot*SLOT+4*RS}")
            return r
        def mfmas(b):
            return [f"v_mfma_f32_16x16x32_bf16 v[{ACC+4*tau}:{ACC+4*tau+3}], v[{AF[b]}:{AF[b]+3}], v[{BB[b]+4*tau}:{BB[b]+4*tau+3}], v[{ACC+4*tau}:{ACC+4*tau+3}]" for tau in range(nt)]
        e(f"s_waitcnt vmcnt({2*nI})")
        for x in reads(0, 0, 0): e(x)
        e("s_waitcnt lgkmcnt(0)")
        e("s_mov_b32 s82, 0")
        st("xld")
        a.label(f"L_dl{tag}")
        for i in range(6):
            e(f"s_waitcnt vmcnt({nI})")
            R = reads((i+1) & 1, (i+1) % 3, i+1)
            Ms = mfmas(i & 1)
            e(f"s_add_u32 m0, s{sDB}, {(i % 3)*SLOT}")
            e(R[0]); ri = 1
            for j in range(nI):
                if j == 4:
                    e(f"s_add_u32 m0, s{sDB}, {(i % 3)*SLOT + 4096}")
                    e(R[ri]); ri += 1
                off = f" offset:{(j & 3)*1024}" if j & 3 else ""
                e(f"buffer_load_dwordx4 v{P+j}, s[{SRD_WD}:{SRD_WD+3}], s{sK} offen{off} lds")
                e(R[ri]); ri += 1
                if ri < len(R) and (len(R) - ri) > (nI - 1 - j) - (1 if j < 4 else 0): e(R[ri]); ri += 1
                e(Ms[j])
            while ri < len(R): e(R[ri]); ri += 1
            e(f"s_add_u32 s{sK}, s{sK}, {SLOT}")
            e("s_waitcnt lgkmcnt(0)")
        e(f"v_add_u32 v{vA}, {6*64}, v{vA}")
        e("s_add_u32 s82, s82, 1")
        e("s_cmp_lt_u32 s82, 2"); e(f"s_cbranch_scc1 L_dl{tag}")
        for x in mfmas(0): e(x)
        st("main")
        C0 = -2.0*0.7978845608028654*1.4426950408889634; C1 = C0*0.044715
        for r in range(4): e(f"v_mov_b32 v{OUT+r}, 0")
        e(f"v_mov_b32 v{vC0}, 0x{f32bits(C0):08x}")
        a.nop(8)
        for tau in range(nt):
            x = ACC + 4*tau; Uu, E, Yv = GT, GT+4, GT+8
            r4 = range(4)
            for r in r4: e(f"v_mul_f32 v{Uu+r}, v{x+r}, v{x+r}")
            for r in r4: e(f"v_fmamk_f32 v{Uu+r}, v{Uu+r}, 0x{f32bits(C1):08x}, v{vC0}")
            for r in r4: e(f"v_mul_f32 v{Uu+r}, v{x+r}, v{Uu+r}")
            for r in r4: e(f"v_exp_f32 v{E+r}, v{Uu+r}")
            for r in r4: e(f"v_mul_f32 v{Yv+r}, v{x+r}, v{W2R+tau}")
            for r in r4: e(f"v_add_f32 v{E+r}, 1.0, v{E+r}")
            for r in r4: e(f"v_rcp_f32 v{E+r}, v{E+r}")
            e("s_nop 0")
            for r in r4: e(f"v_fmac_f32 v{OUT+r}, v{Yv+r}, v{E+r}")
        st("gelu")
        for sh in (8, 4, 2, 1):
            a.nop(2)
            for r in range(4): e(f"v_add_f32_dpp v{OUT+r}, v{OUT+r}, v{OUT+r} row_ror:{sh} row_mask:0xf bank_mask:0xf")
        e(f"s_lshl_b32 s63, s{sD}, 6"); e(f"s_add_u32 s63, s63, {RED2}")
        e(f"v_lshlrev_b32 v{GT}, 4, v{vG}"); e(f"v_add_u32 v{GT}, s63, v{GT}")
        e(f"ds_write_b128 v{GT}, v[{OUT}:{OUT+3}]")
    emit_D(7)
    e("s_branch L_final")
    a.label("L_D6")
    emit_D(6)

    a.label("L_final")
    e("s_waitcnt lgkmcnt(0)")
    e("s_barrier")
    st("fin")
    if stamp is not None:
        wg, wv = [int(x) for x in stamp.split("_")]
        e(f"s_cmp_eq_u32 s2, {wg}"); e("s_cbranch_scc0 L_nost")
        e(f"s_cmp_eq_u32 s{sW}, {wv}"); e("s_cbranch_scc0 L_nost")
        e(f"v_lshlrev_b32 v30, 2, v{vLane}")
        e("s_mov_b64 exec, 0xffff")
        e(f"global_store_dword v30, v{vSt}, s[96:97]")
        e("s_mov_b64 exec, -1")
        a.label("L_nost")
    e(f"s_cmp_eq_u32 s{sW}, 0"); e("s_cbranch_scc0 L_end")
    e(f"v_lshlrev_b32 v8, 3, v{vL15}"); e(f"v_add_u32 v8, {RED}, v8")
    e(f"v_lshlrev_b32 v9, 2, v{vL15}"); e(f"v_add_u32 v9, {RED2}, v9")
    e("ds_read_b64 v[10:11], v8")
    for d in range(4): e(f"ds_read_b32 v{12+d}, v9 offset:{d*64}")
    e("s_lshl_b32 s47, s47, 16")
    e("s_mov_b32 s68, s20"); e("s_mov_b32 s69, s21"); e("s_mov_b32 s70, 8192"); e("s_mov_b32 s71, 0x20000")
    e("s_lshl_b32 s63, s2, 5")
    e(f"v_lshlrev_b32 v16, 1, v{vL15}")
    e("s_waitcnt lgkmcnt(0)")
    e("v_add_f32 v10, v10, v11"); e("v_add_f32 v12, v12, v13"); e("v_add_f32 v14, v14, v15")
    e("v_add_f32 v12, v12, v14"); e("v_add_f32 v10, v10, v12"); e("v_add_f32 v10, s47, v10")
    e("v_cvt_pk_bf16_f32 v10, v10, v10")
    e("s_mov_b64 exec, 0xffff")
    e("buffer_store_short v10, v16, s[68:71], s63 offen")
    if tot:
        e("s_memtime s[84:85]"); e("s_memrealtime s[86:87]"); e("s_waitcnt lgkmcnt(0)")
        e("s_sub_u32 s84, s84, s100")
        e("s_lshl_b32 s63, s2, 2")
        e("v_mov_b32 v20, s84"); e("v_mov_b32 v21, s63"); e("v_mov_b32 v22, s86")
        e("s_mov_b64 exec, 1")
        e("global_store_dword v21, v20, s[96:97]")
        e("global_store_dword v21, v22, s[96:97] offset:1024")
    a.label("L_end")
    e("s_endpgm")
    a.label("CODE_END")
    return a

HEADER = """; xDeepFM (CIN + DNN) fused kernel for gfx950 -- generated by my own script
; @launch grid=(256,1,1) block=(512,1,1) lds=163840
.amdgcn_target "amdgcn-amd-amdhsa--gfx950"
.text
.globl {k}
.p2align 8
.type {k},@function
"""
FOOTER = """
.section .rodata,"a"
.p2align 6
.amdhsa_kernel {k}
  .amdhsa_next_free_vgpr {nv}
  .amdhsa_next_free_sgpr 102
  .amdhsa_accum_offset {nv}
  .amdhsa_group_segment_fixed_size 0
  .amdhsa_kernarg_size 88
  .amdhsa_user_sgpr_count 2
  .amdhsa_user_sgpr_kernarg_segment_ptr 1
  .amdhsa_system_sgpr_workgroup_id_x 1
.end_amdhsa_kernel
"""
if __name__ == "__main__":
    opts = dict(x.split("=") for x in sys.argv[2:])
    a = gen(opts)
    body = a.text()
    probs = check_hazards(body)
    for p in probs: print("HAZARD:", p, file=sys.stderr)
    open(sys.argv[1], "w").write(HEADER.format(k=KNAME) + body + FOOTER.format(k=KNAME, nv=232))
    print("written", sys.argv[1], "hazards:", len(probs), file=sys.stderr)
```

```python
import sys, struct
from asmlib import Asm, check_hazards

KNAME = "standalone__deep_cross_xdeepfm__recsys_kernel"
FS, HS = 1040, 528
F1 = 0; F2 = 23920
W3L = F2
RING = 59072; SLOT = 26624
W2L = 112816
QB = 147968
X0 = 150016
W1F = 163328; RED = W1F + 128; RED2 = RED + 128
DUM = 0x30000
BIG = 0x10000000
def f32bits(x): return struct.unpack("<I", struct.pack("<f", x))[0]

class Track:
    def __init__(self, a, name, cap): self.a, self.name, self.cap, self.l = a, name, cap, []
    def add(self, tag, n=1): self.l.extend([tag]*n)
    def count(self, tag):
        idx = [i for i, t in enumerate(self.l) if t == tag]
        assert idx, tag
        return min(len(self.l) - 1 - idx[-1], self.cap)
    def wait(self, tag): self.a.e(f"s_waitcnt {self.name}({self.count(tag)})")

def gen(opts):
    a = Asm(); e = a.e
    dbg = opts.get("dbg"); stamp = opts.get("stamp"); pf = opts.get("pf", "184")
    prio = int(opts.get("prio", "2")); pk = int(opts.get("pk", "0"))
    n3first = int(opts.get("n3", "3"))
    mode = "B"
    kin = int(opts.get("kin", "4"))
    sM = 23
    sW = 22; sC = 66
    SRD_IDX, SRD_TAB, SRD_WS, SRD_WD, SRD_T = 24, 28, 32, 36, 40
    def srd(base, ptr, nbytes):
        e(f"s_mov_b32 s{base}, s{ptr}"); e(f"s_mov_b32 s{base+1}, s{ptr+1}")
        e(f"s_mov_b32 s{base+2}, {nbytes}"); e(f"s_mov_b32 s{base+3}, 0x20000")
    vLane, vL15, vG = 1, 2, 3
    t0, t1, t2, t3, t4, t5, t6, t7 = 8, 9, 10, 11, 12, 13, 14, 15
    vL16 = 26; vDum = 24
    vSt = 231
    STI = dict(karg=0, issued=1, bi=2, idx=3, w1=4, s1=5, weff=6, b2=7, s2=8, b3=9, xld=10, main=11, gelu=12, fin=13, sb1=14)
    def st(name):
        if stamp is None: return
        e("s_memtime s[84:85]"); e("s_waitcnt lgkmcnt(0)")
        if name == "entry":
            e("s_mov_b32 s86, s84"); e(f"v_mov_b32 v{vSt}, 0")
        else:
            e("s_sub_u32 s84, s84, s86"); e(f"v_writelane_b32 v{vSt}, s84, {STI[name]}")
    combos = [(0,0,0),(0,0,1),(1,0,0),(1,0,1),(1,1,0),(1,1,1)]
    sSh = 62
    def scatter_addr(SA, Fb, shifted, gmax, tb=16):
        g0, gp0, hb, gpv = tb, tb+1, tb+2, tb+3
        q, off, lim, gq = tb+4, tb+5, tb+6, tb+7
        e(f"v_lshlrev_b32 v{g0}, 1, v{vG}")
        e(f"v_lshrrev_b32 v{gp0}, 1, v{vL15}")
        if shifted:
            e(f"v_subrev_u32 v{g0}, s{sSh}, v{g0}"); e(f"v_subrev_u32 v{gp0}, s{sSh}, v{gp0}")
        e(f"v_and_b32 v{hb}, 1, v{vL15}")
        e(f"v_mul_u32_u24 v{hb}, {HS}, v{hb}")
        e(f"s_lshl_b32 s65, s{sC}, 4")
        if Fb: e(f"s_add_u32 s65, s65, {Fb}")
        e(f"v_add_u32 v{hb}, s65, v{hb}")
        for ci, (aa, bb, pp) in enumerate(combos):
            cg = 8*aa + pp; m0_, m1_ = 88 + 4*(ci % 2), 90 + 4*(ci % 2)
            e(f"v_add_u32 v{gq}, {cg}, v{g0}")
            e(f"v_mad_i32_i24 v{q}, v{gq}, v{gq}, v{gq}")
            e(f"v_lshrrev_b32 v{q}, 1, v{q}")
            e(f"v_add3_u32 v{q}, v{q}, v{gp0}, {8*bb}")
            e(f"v_min_u32 v{lim}, 12, v{gq}")
            e(f"v_cmp_ge_u32 s[{m0_}:{m0_+1}], {gmax}, v{gq}")
            e(f"v_add_u32 v{gpv}, {8*bb}, v{gp0}")
            e(f"v_and_b32 v{off}, 0x7c, v{q}")
            e(f"v_cmp_le_u32 s[{m1_}:{m1_+1}], v{gpv}, v{lim}")
            e(f"v_lshlrev_b32 v{off}, 8, v{off}")
            e(f"v_lshl_add_u32 v{off}, v{q}, 2, v{off}")
            e(f"s_and_b64 s[{m0_}:{m0_+1}], s[{m0_}:{m0_+1}], s[{m1_}:{m1_+1}]")
            e(f"v_add_u32 v{off}, v{off}, v{hb}")
            e(f"v_cndmask_b32 v{SA+ci}, v{vDum}, v{off}, s[{m0_}:{m0_+1}]")
    def mf6(D, A0, A1, B0, B1):
        return [
         f"v_mfma_f32_16x16x32_bf16 v[{D}:{D+3}], v[{A0}:{A0+3}], v[{B0}:{B0+3}], 0",
         f"v_mfma_f32_16x16x32_bf16 v[{D+4}:{D+7}], v[{A1}:{A1+3}], v[{B0}:{B0+3}], 0",
         f"v_mfma_f32_16x16x32_bf16 v[{D+8}:{D+11}], v[{A1}:{A1+3}], v[{B1}:{B1+3}], 0",
         f"v_mfma_f32_16x16x32_bf16 v[{D}:{D+3}], v[{B0}:{B0+3}], v[{A0}:{A0+3}], v[{D}:{D+3}]",
         f"v_mfma_f32_16x16x32_bf16 v[{D+4}:{D+7}], v[{B1}:{B1+3}], v[{A0}:{A0+3}], v[{D+4}:{D+7}]",
         f"v_mfma_f32_16x16x32_bf16 v[{D+8}:{D+11}], v[{B1}:{B1+3}], v[{A1}:{A1+3}], v[{D+8}:{D+11}]"]

    tot = opts.get("tot")
    a.label(KNAME)
    if tot:
        e("s_memtime s[100:101]"); e("s_memrealtime s[94:95]") if False else None
    st("entry")
    e("s_cmp_ge_u32 s2, 256")
    e("s_cbranch_scc1 L_end")
    e("s_load_dwordx16 s[4:19], s[0:1], 0")
    e("s_load_dwordx2 s[20:21], s[0:1], 64")
    if dbg or stamp or tot: e("s_load_dwordx4 s[96:99], s[0:1], 72")
    pfd = int(opts.get("pfd", "0"))
    if pf != "0" and not pfd:
        e("s_getpc_b64 s[88:89]")
        e("v_lshlrev_b32 v28, 7, v0")
        e(f"v_min_u32 v28, CODE_END-{KNAME}-256, v28")
        e("v_mov_b32 v29, s89")
        e("v_add_co_u32 v28, vcc, s88, v28")
        e("s_nop 1")
        e("v_addc_co_u32 v29, vcc, 0, v29, vcc")
        e(f"s_movk_i32 s90, {int(pf)}")
        e("v_cmp_gt_u32 vcc, s90, v0")
        e("s_nop 0")
        e("s_and_saveexec_b64 s[92:93], vcc")
        e("s_cbranch_execz L_nopf")
        e("global_load_dword v30, v[28:29], off")
        a.label("L_nopf")
        e("s_mov_b64 exec, -1")
    elif pf != "0":
        e("s_getpc_b64 s[88:89]")
        e("s_lshr_b32 s90, s2, 3"); e("s_and_b32 s90, s90, 31"); e(f"s_mul_i32 s90, s90, {pfd}")
        e("v_add_u32 v28, s90, v0")
        e("v_lshlrev_b32 v28, 7, v28")
        e(f"v_min_u32 v28, CODE_END-{KNAME}-256, v28")
        e("v_mov_b32 v29, s89")
        e("v_add_co_u32 v28, vcc, s88, v28")
        e("s_nop 1")
        e("v_addc_co_u32 v29, vcc, 0, v29, vcc")
        e(f"v_cmp_gt_u32 vcc, {pfd}, v0")
        e("s_nop 0")
        e("s_and_saveexec_b64 s[92:93], vcc")
        e("s_cbranch_execz L_nopf")
        e("global_load_dword v30, v[28:29], off")
        a.label("L_nopf")
        e("s_mov_b64 exec, -1")
    e(f"v_lshrrev_b32 v{t4}, 6, v0")
    e(f"v_and_b32 v{vLane}, 63, v0")
    e(f"v_and_b32 v{vL15}, 15, v0")
    e(f"v_readfirstlane_b32 s{sW}, v{t4}")
    e(f"v_bfe_u32 v{vG}, v0, 4, 2")
    e(f"v_lshrrev_b32 v{t6}, 1, v{vLane}")
    e(f"v_lshlrev_b32 v{t6}, 2, v{t6}")
    e("s_lshl_b32 s61, s2, 4")
    e(f"s_and_b32 s{sC}, s{sW}, 3")
    e(f"s_lshl_b32 s62, s{sC}, 2")
    e("s_add_u32 s61, s61, s62")
    e("s_mul_i32 s61, s61, 104")
    e(f"s_bfe_u32 s{sM}, s2, 0x10003")
    for r in (t0, t1, t2, t3): e(f"v_mov_b32 v{r}, 0")
    e(f"v_lshlrev_b32 v{t4}, 4, v0")
    for k in range(3): e(f"ds_write_b128 v{t4}, v[{t0}:{t3}] offset:{k*8192}")
    e(f"v_and_b32 v{t5}, 127, v0")
    e(f"v_lshlrev_b32 v{t5}, 4, v{t5}")
    e(f"v_add_u32 v{t5}, {QB}, v{t5}")
    e(f"ds_write_b128 v{t5}, v[{t0}:{t3}]")
    e(f"v_lshlrev_b32 v{vL16}, 4, v{vLane}")
    e(f"v_mov_b32 v{vDum}, {DUM}")
    e("s_waitcnt lgkmcnt(0)")
    eidx = int(opts.get("eidx", "1"))
    if not eidx: e("s_barrier")
    st("karg")
    e(f"s_cmp_lt_u32 s{sW}, 4"); e("s_cbranch_scc1 L_touch0")
    vIdx = 4
    srd(SRD_IDX, 4, 4096*26*4)
    for k in range(4):
        e(f"buffer_load_dword v{vIdx+k}, v{t6}, s[{SRD_IDX}:{SRD_IDX+3}], s61 offen offset:{104*k}")
    a.label("L_touch0")
    tmap = opts.get("tmap", "rr")
    if tmap == "rr": e("s_lshr_b32 s62, s2, 3"); e("s_and_b32 s62, s62, 31")
    elif tmap == "ch": e("s_and_b32 s62, s2, 31")
    elif tmap == "hw":
        e("s_getreg_b32 s62, hwreg(HW_REG_HW_ID)")
        e("s_bfe_u32 s63, s62, 0x40008")
        e("s_bfe_u32 s64, s62, 0x3000d")
        e("s_lshl_b32 s64, s64, 3"); e("s_add_u32 s62, s63, s64"); e("s_and_b32 s62, s62, 31")
    elif tmap == "none": e("s_mov_b32 s62, 0x4000")
    e(f"v_lshlrev_b32 v{t5}, 7, v{vLane}")
    e(f"s_mov_b32 s{SRD_T}, s12"); e(f"s_mov_b32 s{SRD_T+1}, s13"); e(f"s_mov_b32 s{SRD_T+3}, 0x20000")
    e("s_mul_i32 s63, s62, 10880"); e("s_add_u32 s64, s63, 10880"); e("s_min_u32 s64, s64, 346112")
    e(f"s_mov_b32 s{SRD_T+2}, s64")
    e(f"s_cmp_eq_u32 s{sW}, 4"); e("s_cbranch_scc1 L_touch")
    e("s_add_u32 s63, s63, 8192")
    e(f"s_cmp_eq_u32 s{sW}, 5"); e("s_cbranch_scc1 L_touch")
    e(f"s_mov_b32 s{SRD_T}, s8"); e(f"s_mov_b32 s{SRD_T+1}, s9")
    e("s_mul_i32 s63, s62, 3328"); e("s_add_u32 s64, s63, 3328"); e("s_min_u32 s64, s64, 105456")
    e(f"s_mov_b32 s{SRD_T+2}, s64")
    e(f"s_cmp_eq_u32 s{sW}, 6"); e("s_cbranch_scc1 L_touch")
    e(f"s_mov_b32 s{SRD_T}, s6"); e(f"s_mov_b32 s{SRD_T+1}, s7"); e(f"s_mov_b32 s{SRD_T+2}, 3200000")
    e("s_mov_b32 s63, 0")
    e(f"v_lshlrev_b32 v{t5}, 16, v{vLane}")
    e(f"s_cmp_eq_u32 s{sW}, 7"); e("s_cbranch_scc1 L_touch")
    if eidx: e("s_barrier")
    e("s_branch L_C")
    a.label("L_touch")
    e(f"buffer_load_dword v31, v{t5}, s[{SRD_T}:{SRD_T+3}], s63 offen")
    if eidx: e("s_barrier")
    e("s_branch L_D")

    a.label("L_C")
    vm = Track(a, "vmcnt", 63); lg = Track(a, "lgkmcnt", 15)
    SA2 = 154
    DS = [160, 172]; CV = [184, 190]
    vWs = 25; W3F = 32
    e("s_mov_b32 s68, s10"); e("s_mov_b32 s69, s11"); e("s_mov_b32 s70, 156"); e("s_mov_b32 s71, 0x20000")
    e(f"v_lshlrev_b32 v{t6}, 1, v{vLane}")
    e(f"buffer_load_ushort v{vWs}, v{t6}, s[68:71], 0 offen"); vm.add("ws")
    e(f"v_lshlrev_b32 v{t6}, 4, v{vG}")
    e(f"buffer_load_dwordx4 v[{W3F}:{W3F+3}], v{t6}, s[68:71], 0 offen offset:104"); vm.add("w3f")
    e("s_load_dword s47, s[18:19], 0")
    e(f"s_and_b32 s{sSh}, s{sC}, 1")
    scatter_addr(SA2, F2, True, 13)
    vH1, vH2 = 72, 73
    e(f"v_lshrrev_b32 v{t5}, 2, v{vL15}")
    e(f"v_lshl_add_u32 v{t5}, v{vG}, 3, v{t5}")
    e(f"v_add_u32 v{t6}, 4, v{t5}")
    e(f"v_min_u32 v{t5}, 25, v{t5}"); e(f"v_min_u32 v{t6}, 25, v{t6}")
    e(f"v_and_b32 v{t7}, 3, v{vL15}"); e(f"v_lshlrev_b32 v{t7}, 3, v{t7}")
    e("s_movk_i32 s64, 1352")
    e(f"v_mad_u32_u24 v{vH1}, v{t5}, s64, v{t7}"); e(f"v_mad_u32_u24 v{vH2}, v{t6}, s64, v{t7}")
    QA = 76
    for j in range(3):
        ee, h, k_, ad = t4, t5, t6, QA + j
        e(f"s_lshl_b32 s63, s{sC}, 6"); e(f"s_add_u32 s63, s63, {256*j}")
        e(f"v_add_u32 v{ee}, s63, v{vLane}")
        e(f"v_mul_u32_u24 v{h}, 2521, v{ee}"); e(f"v_lshrrev_b32 v{h}, 16, v{h}")
        e(f"v_mul_u32_u24 v{k_}, 26, v{h}"); e(f"v_sub_u32 v{k_}, v{ee}, v{k_}")
        e(f"v_cmp_gt_u32 vcc, 676, v{ee}")
        e(f"v_lshrrev_b32 v{ad}, 4, v{k_}"); e(f"v_lshlrev_b32 v{ad}, 10, v{ad}")
        e(f"v_and_b32 v{k_}, 15, v{k_}"); e(f"v_lshl_add_u32 v{ad}, v{k_}, 4, v{ad}")
        e(f"v_lshrrev_b32 v{k_}, 3, v{h}"); e(f"v_lshl_add_u32 v{ad}, v{k_}, 8, v{ad}")
        e(f"v_and_b32 v{h}, 7, v{h}"); e(f"v_lshl_add_u32 v{ad}, v{h}, 1, v{ad}")
        e(f"v_add_u32 v{ad}, {QB}, v{ad}")
        e(f"v_cndmask_b32 v{ad}, v{vDum}, v{ad}, vcc")
    vT1, vT2 = 37, 38
    e(f"s_lshl_b32 s63, s{sC}, 7"); e(f"s_add_u32 s63, s63, {W3L}")
    e(f"v_add_u32 v{vT1}, s63, v{vH1}"); e(f"v_add_u32 v{vT2}, s63, v{vH2}")
    TA1, TA2, vM = 39, 75, 74
    e(f"s_mul_i32 s63, s{sC}, 52"); e(f"s_lshl_b32 s64, s{sSh}, 2"); e("s_sub_u32 s63, s63, s64"); e(f"s_add_u32 s63, s63, {W2L}")
    e(f"v_add_u32 v{TA1}, s63, v{vH1}"); e(f"v_add_u32 v{TA2}, s63, v{vH2}")
    e(f"s_lshl_b32 s64, s{sSh}, 1"); e("s_add_u32 s64, s64, 10")
    e(f"v_cmp_gt_u32 vcc, s64, v{vL15}")
    QAD = [44, 45]
    e(f"s_lshl_b32 s63, s{sSh}, 1")
    e("s_nop 0")
    e(f"v_cndmask_b32 v{vM}, 0, -1, vcc")
    for aa in range(2):
        e(f"v_subrev_u32 v{t4}, s63, v{vL15}")
        if aa: e(f"v_add_u32 v{t4}, 16, v{t4}")
        e(f"v_min_u32 v{t4}, 31, v{t4}")
        e(f"v_lshrrev_b32 v{t5}, 4, v{t4}"); e(f"v_lshlrev_b32 v{t5}, 10, v{t5}")
        e(f"v_and_b32 v{t4}, 15, v{t4}"); e(f"v_lshl_add_u32 v{t5}, v{t4}, 4, v{t5}")
        e(f"v_lshl_add_u32 v{t5}, v{vG}, 8, v{t5}")
        e(f"v_add_u32 v{QAD[aa]}, {QB}, v{t5}")
    vFa = 226
    e(f"v_lshrrev_b32 v{t5}, 5, v{vLane}")
    e(f"v_mul_u32_u24 v{t6}, {HS}, v{t5}")
    e(f"v_and_b32 v{t7}, 31, v{vLane}")
    e(f"v_lshl_add_u32 v{vFa}, v{t7}, 4, v{t6}")
    st("w1")
    vm.wait("w3f")
    e(f"v_lshlrev_b32 v{t5}, 16, v{vWs}")
    e(f"v_cmp_gt_u32 s[88:89], 26, v{vLane}")
    e(f"v_cmp_gt_u32 s[90:91], 32, v{vLane}")
    e(f"v_lshlrev_b32 v{t6}, 2, v{vLane}")
    e(f"v_add_u32 v{t6}, {W1F}, v{t6}")
    e(f"v_cndmask_b32 v{t5}, 0, v{t5}, s[88:89]")
    e(f"v_cndmask_b32 v{t6}, v{vDum}, v{t6}, s[90:91]")
    e(f"ds_write_b32 v{t6}, v{t5}")
    e(f"v_subrev_u32 v{t5}, 26, v{vLane}")
    e(f"v_cmp_gt_u32 s[88:89], 26, v{t5}")
    e(f"v_lshrrev_b32 v{t6}, 3, v{t5}")
    e(f"v_lshlrev_b32 v{t6}, 8, v{t6}")
    e(f"v_and_b32 v{t7}, 7, v{t5}")
    e(f"v_lshl_add_u32 v{t6}, v{t7}, 1, v{t6}")
    e(f"v_add_u32 v{t6}, {QB+1024+160}, v{t6}")
    e(f"v_cndmask_b32 v{t6}, v{vDum}, v{t6}, s[88:89]")
    e(f"ds_write_b16 v{t6}, v{vWs}")
    AW = 56
    for gq in range(4): e(f"v_cmp_eq_u32 s[{88+2*gq}:{89+2*gq}], {4*gq}, v{vL15}")
    for gq in range(4):
        for j in range(4): e(f"v_cndmask_b32 v{AW+4*gq+j}, 0, v{W3F+j}, s[{88+2*gq}:{89+2*gq}]")
    e("s_waitcnt lgkmcnt(0)")
    e("s_barrier")
    st("bi")
    a.c("Weff")
    WB = 80; WD = 128
    for j in range(3):
        for gq in range(4):
            b = WB + 16*j + 4*gq
            e(f"ds_read_b64_tr_b16 v[{b}:{b+1}], v{vT1} offset:{j*512+32*gq}")
            e(f"ds_read_b64_tr_b16 v[{b+2}:{b+3}], v{vT2} offset:{j*512+32*gq}")
    for j in range(3):
        e(f"s_waitcnt lgkmcnt({min(15, 8*(2-j))})")
        for gq in range(4):
            b = WB + 16*j + 4*gq; d = WD + 4*j
            c = "0" if gq == 0 else f"v[{d}:{d+3}]"
            e(f"v_mfma_f32_16x16x32_bf16 v[{d}:{d+3}], v[{AW+4*gq}:{AW+4*gq+3}], v[{b}:{b+3}], {c}")
    a.nop(8)
    for j in range(3): e(f"v_cvt_pk_bf16_f32 v{t4+j}, v{WD+4*j}, v{WD+4*j}")
    for j in range(3): e(f"ds_write_b16 v{QA+j}, v{t4+j}")
    st("weff")
    e("s_waitcnt vmcnt(0) lgkmcnt(0)")
    e("s_barrier")
    st("b2")
    a.c("S2")
    Q0, Q1 = 140, 144
    lg.l = []
    e(f"ds_read_b128 v[{Q0}:{Q0+3}], v{QAD[0]}"); e(f"ds_read_b128 v[{Q1}:{Q1+3}], v{QAD[1]}"); lg.add("q", 2)
    PS = [48, 56, 64]
    cvt = lambda k, j: f"v_cvt_pk_bf16_f32 v{CV[k&1]+j}, v{DS[k&1]+2*j}, v{DS[k&1]+2*j+1}"
    wr = lambda SA, k, j: f"ds_write_b32 v{SA+j}, v{CV[k&1]+j} offset:{k*64}"
    def p_reads(k):
        P = PS[k % 3]
        return [f"ds_read_b64_tr_b16 v[{P}:{P+1}], v{TA1} offset:{k*208}",
                f"ds_read_b64_tr_b16 v[{P+2}:{P+3}], v{TA2} offset:{k*208}",
                f"ds_read_b64_tr_b16 v[{P+4}:{P+5}], v{TA1} offset:{k*208+32}",
                f"ds_read_b64_tr_b16 v[{P+6}:{P+7}], v{TA2} offset:{k*208+32}"]
    for k in (0, 1):
        for x in p_reads(k): e(x)
        lg.add(f"p{k}", 4)
    def masks(k): return [f"v_and_b32 v{PS[k%3]+4+j}, v{vM}, v{PS[k%3]+4+j}" for j in range(4)]
    lg.wait("p0")
    for x in masks(0): e(x)
    a.nop(1)
    for k in range(9):
        M = mf6(DS[k & 1], PS[k % 3], PS[k % 3]+4, Q0, Q1) if k < 7 else [None]*6
        R = p_reads(k+2) if k + 2 < 7 else []
        if k == 7: a.nop(4)
        if k == 8:
            e(f"s_cmp_lt_u32 s{sC}, 2"); e("s_cbranch_scc1 L_s2v")
            for j in range(6): e(f"v_mov_b32 v{SA2+j}, v{vDum}")
            a.label("L_s2v")
        for j in range(6):
            if j == 4 and k + 1 < 7:
                lg.wait(f"p{k+1}")
                for x in masks(k+1): e(x)
            if M[j]: e(M[j])
            if k >= 2: e(wr(SA2, k-2, j)); lg.add("w")
            if 1 <= k <= 7: e(cvt(k-1, j))
            if j < len(R): e(R[j]); lg.add(f"p{k+2}")
    st("s2")
    e("s_waitcnt lgkmcnt(0)")
    e("s_barrier")
    e("s_barrier")
    st("b3")
    if dbg == "lds":
        e("s_cmp_eq_u32 s2, 0"); e("s_cbranch_scc0 L_nodump")
        e(f"v_lshlrev_b32 v{t4}, 4, v0")
        for k in range(40):
            e(f"v_add_u32 v{t5}, {k*4096}, v{t4}")
            e(f"ds_read_b128 v[{t0}:{t3}], v{t5}")
            e("s_waitcnt lgkmcnt(0)")
            e(f"global_store_dwordx4 v{t5}, v[{t0}:{t3}], s[98:99]")
            e("s_waitcnt vmcnt(0)")
        a.label("L_nodump")
    a.c("C main")
    XA, YA, XB, YB = 8, 34, 47, 73
    D1A, D2A, D1B, D2B = 96, 112, 128, 144
    ZB = [[160, 164], [168, 172]]
    AB = [176, 184, 192]
    TM = [200, 201, 202, 203, 204, 205, 206, 207]
    WI = 208; vXb = 224; PK = 176
    e(f"v_and_b32 v{TM[4]}, 1, v{vG}")
    e(f"s_lshl_b32 s63, s{sC}, 2")
    e(f"v_add_u32 v{TM[4]}, s63, v{TM[4]}")
    e(f"v_mul_u32_u24 v{TM[4]}, 832, v{TM[4]}")
    e(f"v_lshrrev_b32 v{TM[5]}, 2, v{vL15}")
    e(f"v_lshl_add_u32 v{TM[4]}, v{TM[5]}, 5, v{TM[4]}")
    e(f"v_and_b32 v{TM[5]}, 3, v{vL15}")
    e(f"v_lshl_add_u32 v{TM[4]}, v{TM[5]}, 3, v{TM[4]}")
    e(f"v_add_u32 v{vXb}, {X0}, v{TM[4]}")
    safe = int(opts.get("safe", "0"))
    for T in range(2):
        for fb in range(7):
            e(f"ds_read_b64_tr_b16 v[{PK+14*T+2*fb}:{PK+14*T+2*fb+1}], v{vXb} offset:{T*1664 + fb*128}")
    e(f"v_lshrrev_b32 v{TM[5]}, 5, v{vLane}")
    e(f"v_lshlrev_b32 v{TM[6]}, 4, v{TM[5]}")
    e(f"v_add_u32 v{TM[6]}, {W1F}, v{TM[6]}")
    if safe: e("s_waitcnt lgkmcnt(0)")
    for m in range(4): e(f"ds_read_b128 v[{WI+4*m}:{WI+4*m+3}], v{TM[6]} offset:{m*32}")
    e(f"v_cmp_eq_u32 s[72:73], 1, v{TM[5]}")
    for T, (X, Y) in enumerate(((XA, YA), (XB, YB))):
        e(f"s_waitcnt lgkmcnt({11 if T == 0 else 4})")
        for g in range(13):
            p = PK + 14*T + g
            e(f"v_lshlrev_b32 v{X+2*g}, 16, v{p}")
            e(f"v_and_b32 v{X+2*g+1}, 0xffff0000, v{p}")
        for g in range(13): e(f"v_cndmask_b32 v{Y+g}, v{X+2*g}, v{X+2*g+1}, s[72:73]")
    def a_read(t):
        b = AB[t % 3]
        if t <= 22: e(f"ds_read_b128 v[{b}:{b+3}], v{vFa} offset:{F1 + t*FS}")
        if t <= 25: e(f"ds_read_b128 v[{b+4}:{b+7}], v{vFa} offset:{F2 + t*FS}")
    blocks = [(g, gp) for g in range(14) for gp in range(min(g, 12)+1)]
    def zgen(t, T):
        X, Y = ((XA, YA), (XB, YB))[T]
        z = ZB[t & 1][T]; mul = []; cv = []
        for j in range(4):
            g, gp = blocks[4*t + j]
            ta, tb, th = TM[2*j], TM[2*j+1], 228 + T
            if g == 13: cv.append(f"v_cvt_pk_bf16_f32 v{z+j}, v{Y+gp}, 0")
            else:
                y = Y + gp
                if g == gp:
                    mul.append(f"v_mul_f32 v{th}, 0.5, v{Y+gp}"); y = th
                mul.append(f"v_mul_f32 v{ta}, v{X+2*g}, v{y}")
                mul.append(f"v_mul_f32 v{tb}, v{X+2*g+1}, v{y}")
                cv.append(f"v_cvt_pk_bf16_f32 v{z+j}, v{ta}, v{tb}")
        return mul + cv
    st("xld")
    a_read(0); a_read(1)
    for T in range(2):
        for s in zgen(0, T): e(s)
    cnt = {t: (1 if t > 22 else 2) for t in range(26)}
    for t in range(26):
        younger = cnt[t+1] if t+1 <= 25 else 0
        e(f"s_waitcnt lgkmcnt({younger})")
        b = AB[t % 3]; mf = []; rds = []
        if t + 2 <= 25:
            b2 = AB[(t+2) % 3]
            if t + 2 <= 22: rds.append(f"ds_read_b128 v[{b2}:{b2+3}], v{vFa} offset:{F1 + (t+2)*FS}")
            rds.append(f"ds_read_b128 v[{b2+4}:{b2+7}], v{vFa} offset:{F2 + (t+2)*FS}")
        for T, (D1, D2) in enumerate(((D1A, D2A), (D1B, D2B))):
            z = ZB[t & 1][T]
            if t <= 22:
                c = "0" if t == 0 else f"v[{D1}:{D1+15}]"
                mf.append(f"v_mfma_f32_32x32x16_bf16 v[{D1}:{D1+15}], v[{b}:{b+3}], v[{z}:{z+3}], {c}")
            c = f"v[{WI}:{WI+15}]" if t == 0 else f"v[{D2}:{D2+15}]"
            mf.append(f"v_mfma_f32_32x32x16_bf16 v[{D2}:{D2+15}], v[{b+4}:{b+7}], v[{z}:{z+3}], {c}")
        va = (zgen(t+1, 0) + zgen(t+1, 1)) if t < 25 else []
        n = len(mf); per = (len(va) + n - 1)//n if va else 0
        if t == 0: a.nop(2)
        vi = 0
        for mi, m in enumerate(mf):
            e(m)
            if mi < len(rds): e(rds[mi])
            for s in va[vi:vi+per]: e(s)
            vi += per
    a.nop(16)
    st("main")
    for T, (D1, D2) in enumerate(((D1A, D2A), (D1B, D2B))): e(f"v_mul_f32 v{TM[T]}, v{D1}, v{D2}")
    for r in range(1, 14):
        for T, (D1, D2) in enumerate(((D1A, D2A), (D1B, D2B))): e(f"v_fmac_f32 v{TM[T]}, v{D1+r}, v{D2+r}")
    if opts.get("chk"):
        for T in range(2):
            for fb in range(7):
                e(f"ds_read_b64_tr_b16 v[{96+14*T+2*fb}:{96+14*T+2*fb+1}], v{vXb} offset:{T*1664 + fb*128}")
            e("s_waitcnt lgkmcnt(0)")
        e("v_mov_b32 v230, 0x41200000")
        for T, (X, Y) in enumerate(((XA, YA), (XB, YB))):
            for g in range(13):
                p = 96 + 14*T + g
                e(f"v_lshlrev_b32 v228, 16, v{p}")
                e(f"v_cmp_ne_u32 vcc, v228, v{X+2*g}")
                e("s_nop 1")
                e(f"v_cndmask_b32 v229, 0, v230, vcc")
                e(f"v_add_f32 v{TM[T]}, v{TM[T]}, v229")
                e(f"v_and_b32 v228, 0xffff0000, v{p}")
                e(f"v_cmp_ne_u32 vcc, v228, v{X+2*g+1}")
                e("s_nop 1")
                e(f"v_cndmask_b32 v229, 0, v230, vcc")
                e(f"v_add_f32 v{TM[T]}, v{TM[T]}, v229")
    for sh in (8, 4, 2, 1):
        a.nop(2)
        for T in range(2): e(f"v_add_f32_dpp v{TM[T]}, v{TM[T]}, v{TM[T]} row_ror:{sh} row_mask:0xf bank_mask:0xf")
    e(f"v_bfe_u32 v{TM[2]}, v{vLane}, 4, 1")
    e(f"v_lshlrev_b32 v{TM[2]}, 3, v{TM[2]}")
    e(f"v_lshrrev_b32 v{TM[3]}, 5, v{vLane}")
    e(f"v_lshl_add_u32 v{TM[2]}, v{TM[3]}, 2, v{TM[2]}")
    e(f"s_lshl_b32 s63, s{sC}, 5"); e(f"s_add_u32 s63, s63, {RED}")
    e(f"v_add_u32 v{TM[2]}, s63, v{TM[2]}")
    e(f"ds_write_b32 v{TM[2]}, v{TM[0]}")
    e(f"ds_write_b32 v{TM[2]}, v{TM[1]} offset:16")
    e("s_branch L_final")

    a.label("L_D")
    sD, sDB, sK, sNI = 66, 67, 80, 79
    srd(SRD_TAB, 6, 3200000)
    srd(SRD_WD, 12, 346112)
    srd(SRD_WS, 8, 105456)
    P = 16; ACC = 32; BB = [64, 96]; AF = [128, 132]; TRA = 136; W2R = 144; BIAS = 152; OUT = 160; GT = 164; vC0 = 184; vA = 185
    W1R = 64; I0, I1 = 120, 124
    SA1 = 192; DSd = [198, 210]; CVd = [222, 164]
    vW1 = 27
    e(f"s_mul_i32 s81, s{sD}, 224")
    e(f"s_mul_i32 s63, s{sD}, 192"); e("s_add_u32 s63, s63, 64")
    e(f"s_mul_i32 s{sDB}, s{sD}, 7168")
    e(f"s_mul_i32 s64, s{sD}, 6144"); e("s_add_u32 s64, s64, 2048")
    e(f"s_cmp_lt_u32 s{sD}, 2")
    e("s_cselect_b32 s81, s81, s63"); e(f"s_cselect_b32 s{sDB}, s{sDB}, s64")
    e(f"s_cselect_b32 s{sNI}, 7, 6")
    e("s_movk_i32 s74, 5462"); e("s_cselect_b32 s74, 4682, s74")
    e("s_cselect_b32 s75, 14, 12")
    e("s_movk_i32 s78, 192"); e("s_cselect_b32 s78, 224, s78")
    e("s_cselect_b32 s76, -1, 0")
    e(f"s_add_u32 s{sDB}, s{sDB}, {RING}")
    e("s_mov_b64 exec, 0xffff")
    for ptr, off in ((14, 0), (16, 256)):
        e(f"s_mov_b32 s68, s{ptr}"); e(f"s_mov_b32 s69, s{ptr+1}"); e("s_mov_b32 s70, 832"); e("s_mov_b32 s71, 0x20000")
        e(f"s_add_u32 m0, s{sDB}, {off}"); e("s_nop 0")
        e(f"buffer_load_dwordx4 v{vL16}, s[68:71], s81 offen lds")
    e("s_mov_b64 exec, -1")
    sLS, sLD = 72, 73
    def lin_start(src, dst):
        e(f"s_lshl_b32 s{sLD}, s{sD}, 10")
        e(f"s_add_u32 s{sLS}, s{sLD}, {src}"); e(f"s_add_u32 s{sLD}, s{sLD}, {dst}")
    uid = [0]
    def lin_one(k):
        if k < 8:
            e(f"s_mov_b32 m0, s{sLD}"); e(f"s_add_u32 s{sLD}, s{sLD}, 4096")
            e(f"buffer_load_dwordx4 v{vL16}, s[{SRD_WS}:{SRD_WS+3}], s{sLS} offen lds")
            e(f"s_add_u32 s{sLS}, s{sLS}, 4096")
        else:
            uid[0] += 1; lab = f"L_lin{uid[0]}"
            e(f"s_cmp_lt_u32 s{sD}, 2"); e(f"s_cbranch_scc1 {lab}")
            e("s_mov_b64 exec, 0x1fffff")
            e(f"s_cmp_eq_u32 s{sD}, 2"); e(f"s_cbranch_scc1 {lab}")
            e(f"s_mov_b32 s{sLS}, {BIG}"); e(f"s_mov_b32 s{sLD}, {DUM}")
            a.label(lab)
            e(f"s_mov_b32 m0, s{sLD}"); e("s_nop 0")
            e(f"buffer_load_dwordx4 v{vL16}, s[{SRD_WS}:{SRD_WS+3}], s{sLS} offen lds")
            e("s_mov_b64 exec, -1")
    lin_start(2*35152, W3L)
    for k in range(n3first): lin_one(k)
    e(f"v_and_b32 v{t0}, 1, v{vLane}"); e(f"v_lshlrev_b32 v{t0}, 4, v{t0}")
    e(f"v_mul_u32_u24 v{t7}, 52, v{vL15}")
    e(f"v_lshl_add_u32 v{vW1}, v{vG}, 4, v{t7}")
    def patterns():
        for j in range(7):
            m, row, cp, p_, b3 = t1, t2, t3, t4, t5
            e(f"v_add_u32 v{m}, {64*j}, v{vLane}")
            e(f"v_mul_u32_u24 v{row}, s74, v{m}"); e(f"v_lshrrev_b32 v{row}, 16, v{row}")
            e(f"v_mul_u32_u24 v{cp}, s75, v{row}"); e(f"v_sub_u32 v{cp}, v{m}, v{cp}")
            e(f"v_lshrrev_b32 v{p_}, 1, v{cp}")
            e(f"v_bfe_u32 v{b3}, v{row}, 3, 1")
            e(f"v_xor_b32 v{t6}, v{p_}, v{b3}")
            e(f"v_add_u32 v{t7}, 3, v{p_}")
            e(f"v_cmp_lt_u32 vcc, 6, v{t7}")
            e(f"v_subrev_u32 v{m}, 7, v{t7}")
            e(f"v_and_b32 v{cp}, 1, v{cp}")
            e(f"v_cndmask_b32 v{t7}, v{t7}, v{m}, vcc")
            e(f"v_cmp_eq_u32 vcc, 1, v{b3}")
            e(f"v_mul_u32_u24 v{row}, 832, v{row}")
            e(f"v_add_u32 v{row}, s81, v{row}")
            e(f"v_cndmask_b32 v{t7}, v{p_}, v{t7}, vcc")
            e(f"v_and_b32 v{t7}, s76, v{t7}")
            e(f"v_not_b32 v{m}, s76"); e(f"v_and_b32 v{t6}, v{m}, v{t6}")
            e(f"v_or_b32 v{t7}, v{t7}, v{t6}")
            e(f"v_lshl_add_u32 v{cp}, v{t7}, 1, v{cp}")
            e(f"v_lshl_add_u32 v{cp}, v{cp}, 4, v{row}")
            if j & 3: e(f"v_subrev_u32 v{P+j}, {(j & 3)*1024}, v{cp}")
            else: e(f"v_mov_b32 v{P+j}, v{cp}")
        e(f"v_lshrrev_b32 v{t2}, 2, v{vL15}")
        e(f"v_lshl_add_u32 v{t3}, v{vG}, 3, v{t2}")
        e(f"v_mul_u32_u24 v{t3}, s78, v{t3}")
        e(f"v_and_b32 v{t4}, 3, v{vL15}")
        e(f"v_lshl_add_u32 v{t3}, v{t4}, 3, v{t3}")
        e(f"v_add_u32 v{t3}, s{sDB}, v{t3}")
        e(f"v_and_b32 v{t4}, 1, v{vG}")
        e(f"v_cmp_eq_u32 vcc, 1, v{t4}")
        e(f"v_not_b32 v{t6}, s76")
        for tau in range(7):
            e(f"v_mov_b32 v{t5}, {tau}")
            e(f"v_mov_b32 v{t7}, {(tau+4) % 7}")
            e(f"v_xor_b32 v{t2}, {tau}, v{t4}")
            e(f"v_cndmask_b32 v{t5}, v{t5}, v{t7}, vcc")
            e(f"v_and_b32 v{t5}, s76, v{t5}")
            e(f"v_and_b32 v{t2}, v{t6}, v{t2}")
            e(f"v_or_b32 v{t5}, v{t5}, v{t2}")
            e(f"v_lshl_add_u32 v{TRA+tau}, v{t5}, 5, v{t3}")
        e(f"v_mul_u32_u24 v{vA}, 832, v{vL15}")
        e(f"v_lshl_add_u32 v{vA}, v{vG}, 4, v{vA}")
        e(f"v_add_u32 v{vA}, {X0}, v{vA}")
    patearly = int(opts.get("pate", "1"))
    if patearly: patterns()
    st("w1")
    def w1_loads():
        e(f"s_mul_i32 s63, s{sD}, 1352")
        for k in range(7):
            if k == 6:
                e(f"s_cmp_lt_u32 s{sD}, 2"); e(f"s_cselect_b32 s63, s63, {BIG}")
            e(f"buffer_load_dwordx4 v[{W1R+8*k}:{W1R+8*k+3}], v{vW1}, s[{SRD_WS}:{SRD_WS+3}], s63 offen")
            e(f"buffer_load_dwordx4 v[{W1R+8*k+4}:{W1R+8*k+7}], v{vW1}, s[{SRD_WS}:{SRD_WS+3}], s63 offen offset:832")
            if k < 6: e(f"s_add_u32 s63, s63, {4*1352}")
    def gathers():
        for k in range(4): e(f"v_lshl_add_u32 v{vIdx+k}, v{vIdx+k}, 5, v{t0}")
        e(f"s_mul_i32 s63, s{sD}, {4*832}"); e(f"s_add_u32 s63, s63, {X0}")
        e("s_mov_b32 exec_lo, -1"); e("s_mov_b32 exec_hi, 0xfffff")
        for k in range(4):
            e(f"s_add_u32 m0, s63, {832*k}"); e("s_nop 0")
            e(f"buffer_load_dwordx4 v{vIdx+k}, s[{SRD_TAB}:{SRD_TAB+3}], 0 offen lds")
        e("s_mov_b64 exec, -1")
    def bias_read():
        e(f"v_lshlrev_b32 v{t1}, 1, v{vL15}"); e(f"v_add_u32 v{t1}, s{sDB}, v{t1}")
        for tau in range(7):
            e(f"v_mov_b32 v{BIAS+tau}, 0"); e(f"v_mov_b32 v{W2R+tau}, 0")
        for tau in range(7):
            e(f"ds_read_u16_d16_hi v{BIAS+tau}, v{t1} offset:{tau*32}")
            e(f"ds_read_u16_d16_hi v{W2R+tau}, v{t1} offset:{256+tau*32}")
        e("s_waitcnt lgkmcnt(0)")
        for tau in range(7):
            for r in range(4): e(f"v_mov_b32 v{ACC+4*tau+r}, v{BIAS+tau}")
    def kdma(slot):
        uid[0] += 1; lab = f"L_k{uid[0]}"
        for j in range(7):
            if j == 6:
                e(f"s_cmp_eq_u32 s{sNI}, 6"); e(f"s_cbranch_scc1 {lab}")
            if (j & 3) == 0:
                e(f"s_add_u32 m0, s{sDB}, {slot*SLOT + (j >> 2)*4096}"); e("s_nop 0")
            off = f" offset:{(j & 3)*1024}" if j & 3 else ""
            e(f"buffer_load_dwordx4 v{P+j}, s[{SRD_WD}:{SRD_WD+3}], s{sK} offen{off} lds")
        a.label(lab)
        e(f"s_add_u32 s{sK}, s{sK}, {SLOT}")
    def s1_setup():
        e(f"v_lshlrev_b32 v{t4}, 3, v{vG}")
        e(f"v_sub_u32 v{t4}, v{vL15}, v{t4}")
        e(f"v_and_b32 v{t5}, 1, v{t4}")
        e(f"v_lshlrev_b32 v{t5}, 4, v{t5}")
        e(f"v_mov_b32 v{t6}, 0x3f80")
        e(f"v_lshlrev_b32 v{t5}, v{t5}, v{t6}")
        e(f"v_ashrrev_i32 v{t4}, 1, v{t4}")
        e(f"v_add_u32 v{t6}, 8, v{t4}")
        for j in range(4): e(f"v_cmp_eq_u32 s[{88+2*j}:{89+2*j}], {j}, v{t4}")
        for j in range(4): e(f"v_cndmask_b32 v{I0+j}, 0, v{t5}, s[{88+2*j}:{89+2*j}]")
        for j in range(4): e(f"v_cmp_eq_u32 s[{88+2*j}:{89+2*j}], {j}, v{t6}")
        for j in range(4): e(f"v_cndmask_b32 v{I1+j}, 0, v{t5}, s[{88+2*j}:{89+2*j}]")
        scatter_addr(SA1, F1, False, 12, 198)
    def S1():
        cvt = lambda k, j: f"v_cvt_pk_bf16_f32 v{CVd[k&1]+j}, v{DSd[k&1]+2*j}, v{DSd[k&1]+2*j+1}"
        wr = lambda k, j: f"ds_write_b32 v{SA1+j}, v{CVd[k&1]+j} offset:{k*64}"
        for k in range(9):
            M = mf6(DSd[k & 1], W1R+8*k, W1R+8*k+4, I0, I1) if k < 7 else [None]*6
            if k == 7: a.nop(4)
            if k == 1: a.nop(5)
            if k == 2: a.nop(1)
            for j in range(6):
                if M[j]: e(M[j])
                if k >= 2: e(wr(k-2, j))
                if 1 <= k <= 7: e(cvt(k-1, j))
    e(f"s_mov_b32 s{sK}, 0")
    for k in range(n3first, 9): lin_one(k)
    lin_start(35152, W2L)
    for k in range(9): lin_one(k)
    e("s_waitcnt vmcnt(9)")
    e("s_barrier")
    st("bi")
    w1_loads()
    e("s_waitcnt vmcnt(14)")
    e("s_barrier")
    st("b2")
    gathers()
    st("sb1")
    bias_read()
    if not patearly: patterns()
    s1_setup()
    e("s_waitcnt vmcnt(4)")
    S1()
    k01late = int(opts.get("k01late", "0"))
    if not k01late: kdma(0); kdma(1)
    st("s1")
    e("s_waitcnt lgkmcnt(0)")
    e("s_barrier")
    if k01late: kdma(0); kdma(1)
    kdma(2)
    st("issued")
    e(f"s_cmp_lt_u32 s{sD}, 2"); e("s_cbranch_scc0 L_D6")
    def emit_D(NT):
        tag = f"T{NT}"; nI = NT; nt = NT; RS = 32*NT
        e(f"s_waitcnt vmcnt({3*nI})")
        st("s2")
        e("s_barrier")
        st("b3")
        if prio: e(f"s_setprio {prio}")
        def reads(b, slot, astep):
            r = [f"ds_read_b128 v[{AF[b]}:{AF[b]+3}], v{vA} offset:{64*astep}"]
            for tau in range(nt):
                r.append(f"ds_read_b64_tr_b16 v[{BB[b]+4*tau}:{BB[b]+4*tau+1}], v{TRA+tau} offset:{slot*SLOT}")
                r.append(f"ds_read_b64_tr_b16 v[{BB[b]+4*tau+2}:{BB[b]+4*tau+3}], v{TRA+tau} offset:{slot*SLOT+4*RS}")
            return r
        def mfmas(b):
            return [f"v_mfma_f32_16x16x32_bf16 v[{ACC+4*tau}:{ACC+4*tau+3}], v[{AF[b]}:{AF[b]+3}], v[{BB[b]+4*tau}:{BB[b]+4*tau+3}], v[{ACC+4*tau}:{ACC+4*tau+3}]" for tau in range(nt)]
        e(f"s_waitcnt vmcnt({2*nI})")
        for x in reads(0, 0, 0): e(x)
        e("s_waitcnt lgkmcnt(0)")
        e("s_mov_b32 s82, 0")
        st("xld")
        a.label(f"L_dl{tag}")
        for i in range(6):
            e(f"s_waitcnt vmcnt({nI})")
            R = reads((i+1) & 1, (i+1) % 3, i+1)
            Ms = mfmas(i & 1)
            e(f"s_add_u32 m0, s{sDB}, {(i % 3)*SLOT}")
            e(R[0]); ri = 1
            for j in range(nI):
                if j == 4:
                    e(f"s_add_u32 m0, s{sDB}, {(i % 3)*SLOT + 4096}")
                    e(R[ri]); ri += 1
                off = f" offset:{(j & 3)*1024}" if j & 3 else ""
                e(f"buffer_load_dwordx4 v{P+j}, s[{SRD_WD}:{SRD_WD+3}], s{sK} offen{off} lds")
                e(R[ri]); ri += 1
                if ri < len(R) and (len(R) - ri) > (nI - 1 - j) - (1 if j < 4 else 0): e(R[ri]); ri += 1
                e(Ms[j])
            while ri < len(R): e(R[ri]); ri += 1
            e(f"s_add_u32 s{sK}, s{sK}, {SLOT}")
            e("s_waitcnt lgkmcnt(0)")
        e(f"v_add_u32 v{vA}, {6*64}, v{vA}")
        e("s_add_u32 s82, s82, 1")
        e("s_cmp_lt_u32 s82, 2"); e(f"s_cbranch_scc1 L_dl{tag}")
        for x in mfmas(0): e(x)
        st("main")
        C0 = -2.0*0.7978845608028654*1.4426950408889634; C1 = C0*0.044715
        for r in range(4): e(f"v_mov_b32 v{OUT+r}, 0")
        e(f"v_mov_b32 v{vC0}, 0x{f32bits(C0):08x}")
        a.nop(8)
        for tau in range(nt):
            x = ACC + 4*tau; Uu, E, Yv = GT, GT+4, GT+8
            r4 = range(4)
            for r in r4: e(f"v_mul_f32 v{Uu+r}, v{x+r}, v{x+r}")
            for r in r4: e(f"v_fmamk_f32 v{Uu+r}, v{Uu+r}, 0x{f32bits(C1):08x}, v{vC0}")
            for r in r4: e(f"v_mul_f32 v{Uu+r}, v{x+r}, v{Uu+r}")
            for r in r4: e(f"v_exp_f32 v{E+r}, v{Uu+r}")
            for r in r4: e(f"v_mul_f32 v{Yv+r}, v{x+r}, v{W2R+tau}")
            for r in r4: e(f"v_add_f32 v{E+r}, 1.0, v{E+r}")
            for r in r4: e(f"v_rcp_f32 v{E+r}, v{E+r}")
            e("s_nop 0")
            for r in r4: e(f"v_fmac_f32 v{OUT+r}, v{Yv+r}, v{E+r}")
        st("gelu")
        for sh in (8, 4, 2, 1):
            a.nop(2)
            for r in range(4): e(f"v_add_f32_dpp v{OUT+r}, v{OUT+r}, v{OUT+r} row_ror:{sh} row_mask:0xf bank_mask:0xf")
        e(f"s_lshl_b32 s63, s{sD}, 6"); e(f"s_add_u32 s63, s63, {RED2}")
        e(f"v_lshlrev_b32 v{GT}, 4, v{vG}"); e(f"v_add_u32 v{GT}, s63, v{GT}")
        e(f"ds_write_b128 v{GT}, v[{OUT}:{OUT+3}]")
    emit_D(7)
    e("s_branch L_final")
    a.label("L_D6")
    emit_D(6)

    a.label("L_final")
    e("s_waitcnt lgkmcnt(0)")
    e("s_barrier")
    st("fin")
    if stamp is not None:
        wg, wv = [int(x) for x in stamp.split("_")]
        e(f"s_cmp_eq_u32 s2, {wg}"); e("s_cbranch_scc0 L_nost")
        e(f"s_cmp_eq_u32 s{sW}, {wv}"); e("s_cbranch_scc0 L_nost")
        e(f"v_lshlrev_b32 v30, 2, v{vLane}")
        e("s_mov_b64 exec, 0xffff")
        e(f"global_store_dword v30, v{vSt}, s[96:97]")
        e("s_mov_b64 exec, -1")
        a.label("L_nost")
    e(f"s_cmp_eq_u32 s{sW}, 0"); e("s_cbranch_scc0 L_end")
    e(f"v_lshlrev_b32 v8, 3, v{vL15}"); e(f"v_add_u32 v8, {RED}, v8")
    e(f"v_lshlrev_b32 v9, 2, v{vL15}"); e(f"v_add_u32 v9, {RED2}, v9")
    e("ds_read_b64 v[10:11], v8")
    for d in range(4): e(f"ds_read_b32 v{12+d}, v9 offset:{d*64}")
    e("s_lshl_b32 s47, s47, 16")
    e("s_mov_b32 s68, s20"); e("s_mov_b32 s69, s21"); e("s_mov_b32 s70, 8192"); e("s_mov_b32 s71, 0x20000")
    e("s_lshl_b32 s63, s2, 5")
    e(f"v_lshlrev_b32 v16, 1, v{vL15}")
    e("s_waitcnt lgkmcnt(0)")
    e("v_add_f32 v10, v10, v11"); e("v_add_f32 v12, v12, v13"); e("v_add_f32 v14, v14, v15")
    e("v_add_f32 v12, v12, v14"); e("v_add_f32 v10, v10, v12"); e("v_add_f32 v10, s47, v10")
    e("v_cvt_pk_bf16_f32 v10, v10, v10")
    e("s_mov_b64 exec, 0xffff")
    e("buffer_store_short v10, v16, s[68:71], s63 offen")
    if tot:
        e("s_memtime s[84:85]"); e("s_memrealtime s[86:87]"); e("s_waitcnt lgkmcnt(0)")
        e("s_sub_u32 s84, s84, s100")
        e("s_lshl_b32 s63, s2, 2")
        e("v_mov_b32 v20, s84"); e("v_mov_b32 v21, s63"); e("v_mov_b32 v22, s86")
        e("s_mov_b64 exec, 1")
        e("global_store_dword v21, v20, s[96:97]")
        e("global_store_dword v21, v22, s[96:97] offset:1024")
    a.label("L_end")
    e("s_endpgm")
    a.label("CODE_END")
    return a

HEADER = """; xDeepFM (CIN + DNN) fused kernel for gfx950 -- generated by my own script
; @launch grid=(256,1,1) block=(512,1,1) lds=163840
.amdgcn_target "amdgcn-amd-amdhsa--gfx950"
.text
.globl {k}
.p2align 8
.type {k},@function
"""
FOOTER = """
.section .rodata,"a"
.p2align 6
.amdhsa_kernel {k}
  .amdhsa_next_free_vgpr {nv}
  .amdhsa_next_free_sgpr 102
  .amdhsa_accum_offset {nv}
  .amdhsa_group_segment_fixed_size 0
  .amdhsa_kernarg_size 88
  .amdhsa_user_sgpr_count 2
  .amdhsa_user_sgpr_kernarg_segment_ptr 1
  .amdhsa_system_sgpr_workgroup_id_x 1
.end_amdhsa_kernel
"""
if __name__ == "__main__":
    opts = dict(x.split("=") for x in sys.argv[2:])
    a = gen(opts)
    body = a.text()
    probs = check_hazards(body)
    for p in probs: print("HAZARD:", p, file=sys.stderr)
    open(sys.argv[1], "w").write(HEADER.format(k=KNAME) + body + FOOTER.format(k=KNAME, nv=232))
    print("written", sys.argv[1], "hazards:", len(probs), file=sys.stderr)
```

```python
import sys, struct
from asmlib import Asm, check_hazards

KNAME = "standalone__deep_cross_xdeepfm__recsys_kernel"
FS, HS = 1040, 528
F1 = 0; F2 = 23920
W3L = F2
RING = 59072; SLOT = 26624
W2L = 112816
QB = 147968
X0 = 150016
W1F = 163328; RED = W1F + 128; RED2 = RED + 128
DUM = 0x30000
BIG = 0x10000000
def f32bits(x): return struct.unpack("<I", struct.pack("<f", x))[0]

class Track:
    def __init__(self, a, name, cap): self.a, self.name, self.cap, self.l = a, name, cap, []
    def add(self, tag, n=1): self.l.extend([tag]*n)
    def count(self, tag):
        idx = [i for i, t in enumerate(self.l) if t == tag]
        assert idx, tag
        return min(len(self.l) - 1 - idx[-1], self.cap)
    def wait(self, tag): self.a.e(f"s_waitcnt {self.name}({self.count(tag)})")

def gen(opts):
    a = Asm(); e = a.e
    dbg = opts.get("dbg"); stamp = opts.get("stamp"); pf = opts.get("pf", "184")
    prio = int(opts.get("prio", "2")); pk = int(opts.get("pk", "0"))
    n3first = int(opts.get("n3", "3"))
    mode = "B"
    kin = int(opts.get("kin", "4"))
    sM = 23
    sW = 22; sC = 66
    SRD_IDX, SRD_TAB, SRD_WS, SRD_WD, SRD_T = 24, 28, 32, 36, 40
    def srd(base, ptr, nbytes):
        e(f"s_mov_b32 s{base}, s{ptr}"); e(f"s_mov_b32 s{base+1}, s{ptr+1}")
        e(f"s_mov_b32 s{base+2}, {nbytes}"); e(f"s_mov_b32 s{base+3}, 0x20000")
    vLane, vL15, vG = 1, 2, 3
    t0, t1, t2, t3, t4, t5, t6, t7 = 8, 9, 10, 11, 12, 13, 14, 15
    vL16 = 26; vDum = 24
    vSt = 231
    STI = dict(karg=0, issued=1, bi=2, idx=3, w1=4, s1=5, weff=6, b2=7, s2=8, b3=9, xld=10, main=11, gelu=12, fin=13, sb1=14)
    def st(name):
        if stamp is None: return
        e("s_memtime s[84:85]"); e("s_waitcnt lgkmcnt(0)")
        if name == "entry":
            e("s_mov_b32 s86, s84"); e(f"v_mov_b32 v{vSt}, 0")
        else:
            e("s_sub_u32 s84, s84, s86"); e(f"v_writelane_b32 v{vSt}, s84, {STI[name]}")
    combos = [(0,0,0),(0,0,1),(1,0,0),(1,0,1),(1,1,0),(1,1,1)]
    sSh = 62
    def scatter_addr(SA, Fb, shifted, gmax, tb=16):
        g0, gp0, hb, gpv = tb, tb+1, tb+2, tb+3
        q, off, lim, gq = tb+4, tb+5, tb+6, tb+7
        e(f"v_lshlrev_b32 v{g0}, 1, v{vG}")
        e(f"v_lshrrev_b32 v{gp0}, 1, v{vL15}")
        if shifted:
            e(f"v_subrev_u32 v{g0}, s{sSh}, v{g0}"); e(f"v_subrev_u32 v{gp0}, s{sSh}, v{gp0}")
        e(f"v_and_b32 v{hb}, 1, v{vL15}")
        e(f"v_mul_u32_u24 v{hb}, {HS}, v{hb}")
        e(f"s_lshl_b32 s65, s{sC}, 4")
        if Fb: e(f"s_add_u32 s65, s65, {Fb}")
        e(f"v_add_u32 v{hb}, s65, v{hb}")
        for ci, (aa, bb, pp) in enumerate(combos):
            cg = 8*aa + pp; m0_, m1_ = 88 + 4*(ci % 2), 90 + 4*(ci % 2)
            e(f"v_add_u32 v{gq}, {cg}, v{g0}")
            e(f"v_mad_i32_i24 v{q}, v{gq}, v{gq}, v{gq}")
            e(f"v_lshrrev_b32 v{q}, 1, v{q}")
            e(f"v_add3_u32 v{q}, v{q}, v{gp0}, {8*bb}")
            e(f"v_min_u32 v{lim}, 12, v{gq}")
            e(f"v_cmp_ge_u32 s[{m0_}:{m0_+1}], {gmax}, v{gq}")
            e(f"v_add_u32 v{gpv}, {8*bb}, v{gp0}")
            e(f"v_and_b32 v{off}, 0x7c, v{q}")
            e(f"v_cmp_le_u32 s[{m1_}:{m1_+1}], v{gpv}, v{lim}")
            e(f"v_lshlrev_b32 v{off}, 8, v{off}")
            e(f"v_lshl_add_u32 v{off}, v{q}, 2, v{off}")
            e(f"s_and_b64 s[{m0_}:{m0_+1}], s[{m0_}:{m0_+1}], s[{m1_}:{m1_+1}]")
            e(f"v_add_u32 v{off}, v{off}, v{hb}")
            e(f"v_cndmask_b32 v{SA+ci}, v{vDum}, v{off}, s[{m0_}:{m0_+1}]")
    def mf6(D, A0, A1, B0, B1):
        return [
         f"v_mfma_f32_16x16x32_bf16 v[{D}:{D+3}], v[{A0}:{A0+3}], v[{B0}:{B0+3}], 0",
         f"v_mfma_f32_16x16x32_bf16 v[{D+4}:{D+7}], v[{A1}:{A1+3}], v[{B0}:{B0+3}], 0",
         f"v_mfma_f32_16x16x32_bf16 v[{D+8}:{D+11}], v[{A1}:{A1+3}], v[{B1}:{B1+3}], 0",
         f"v_mfma_f32_16x16x32_bf16 v[{D}:{D+3}], v[{B0}:{B0+3}], v[{A0}:{A0+3}], v[{D}:{D+3}]",
         f"v_mfma_f32_16x16x32_bf16 v[{D+4}:{D+7}], v[{B1}:{B1+3}], v[{A0}:{A0+3}], v[{D+4}:{D+7}]",
         f"v_mfma_f32_16x16x32_bf16 v[{D+8}:{D+11}], v[{B1}:{B1+3}], v[{A1}:{A1+3}], v[{D+8}:{D+11}]"]

    tot = opts.get("tot")
    a.label(KNAME)
    if tot:
        e("s_memtime s[100:101]"); e("s_memrealtime s[94:95]") if False else None
    st("entry")
    e("s_cmp_ge_u32 s2, 256")
    e("s_cbranch_scc1 L_end")
    e("s_load_dwordx16 s[4:19], s[0:1], 0")
    e("s_load_dwordx2 s[20:21], s[0:1], 64")
    if dbg or stamp or tot: e("s_load_dwordx4 s[96:99], s[0:1], 72")
    pfd = int(opts.get("pfd", "0"))
    if pf != "0" and not pfd:
        e("s_getpc_b64 s[88:89]")
        e("v_lshlrev_b32 v28, 7, v0")
        e(f"v_min_u32 v28, CODE_END-{KNAME}-256, v28")
        e("v_mov_b32 v29, s89")
        e("v_add_co_u32 v28, vcc, s88, v28")
        e("s_nop 1")
        e("v_addc_co_u32 v29, vcc, 0, v29, vcc")
        e(f"s_movk_i32 s90, {int(pf)}")
        e("v_cmp_gt_u32 vcc, s90, v0")
        e("s_nop 0")
        e("s_and_saveexec_b64 s[92:93], vcc")
        e("s_cbranch_execz L_nopf")
        e("global_load_dword v30, v[28:29], off")
        a.label("L_nopf")
        e("s_mov_b64 exec, -1")
    elif pf != "0":
        e("s_getpc_b64 s[88:89]")
        e("s_lshr_b32 s90, s2, 3"); e("s_and_b32 s90, s90, 31"); e(f"s_mul_i32 s90, s90, {pfd}")
        e("v_add_u32 v28, s90, v0")
        e("v_lshlrev_b32 v28, 7, v28")
        e(f"v_min_u32 v28, CODE_END-{KNAME}-256, v28")
        e("v_mov_b32 v29, s89")
        e("v_add_co_u32 v28, vcc, s88, v28")
        e("s_nop 1")
        e("v_addc_co_u32 v29, vcc, 0, v29, vcc")
        e(f"v_cmp_gt_u32 vcc, {pfd}, v0")
        e("s_nop 0")
        e("s_and_saveexec_b64 s[92:93], vcc")
        e("s_cbranch_execz L_nopf")
        e("global_load_dword v30, v[28:29], off")
        a.label("L_nopf")
        e("s_mov_b64 exec, -1")
    e(f"v_lshrrev_b32 v{t4}, 6, v0")
    e(f"v_and_b32 v{vLane}, 63, v0")
    e(f"v_and_b32 v{vL15}, 15, v0")
    e(f"v_readfirstlane_b32 s{sW}, v{t4}")
    e(f"v_bfe_u32 v{vG}, v0, 4, 2")
    e(f"v_lshrrev_b32 v{t6}, 1, v{vLane}")
    e(f"v_lshlrev_b32 v{t6}, 2, v{t6}")
    e("s_lshl_b32 s61, s2, 4")
    e(f"s_and_b32 s{sC}, s{sW}, 3")
    e(f"s_lshl_b32 s62, s{sC}, 2")
    e("s_add_u32 s61, s61, s62")
    e("s_mul_i32 s61, s61, 104")
    e(f"s_bfe_u32 s{sM}, s2, 0x10003")
    for r in (t0, t1, t2, t3): e(f"v_mov_b32 v{r}, 0")
    e(f"v_lshlrev_b32 v{t4}, 4, v0")
    for k in range(3): e(f"ds_write_b128 v{t4}, v[{t0}:{t3}] offset:{k*8192}")
    e(f"v_and_b32 v{t5}, 127, v0")
    e(f"v_lshlrev_b32 v{t5}, 4, v{t5}")
    e(f"v_add_u32 v{t5}, {QB}, v{t5}")
    e(f"ds_write_b128 v{t5}, v[{t0}:{t3}]")
    e(f"v_lshlrev_b32 v{vL16}, 4, v{vLane}")
    e(f"v_mov_b32 v{vDum}, {DUM}")
    e("s_waitcnt lgkmcnt(0)")
    eidx = int(opts.get("eidx", "1"))
    if not eidx: e("s_barrier")
    st("karg")
    e(f"s_cmp_lt_u32 s{sW}, 4"); e("s_cbranch_scc1 L_touch0")
    vIdx = 4
    srd(SRD_IDX, 4, 4096*26*4)
    for k in range(4):
        e(f"buffer_load_dword v{vIdx+k}, v{t6}, s[{SRD_IDX}:{SRD_IDX+3}], s61 offen offset:{104*k}")
    a.label("L_touch0")
    tmap = opts.get("tmap", "rr")
    if tmap == "rr": e("s_lshr_b32 s62, s2, 3"); e("s_and_b32 s62, s62, 31")
    elif tmap == "ch": e("s_and_b32 s62, s2, 31")
    elif tmap == "hw":
        e("s_getreg_b32 s62, hwreg(HW_REG_HW_ID)")
        e("s_bfe_u32 s63, s62, 0x40008")
        e("s_bfe_u32 s64, s62, 0x3000d")
        e("s_lshl_b32 s64, s64, 3"); e("s_add_u32 s62, s63, s64"); e("s_and_b32 s62, s62, 31")
    elif tmap == "none": e("s_mov_b32 s62, 0x4000")
    e(f"v_lshlrev_b32 v{t5}, 7, v{vLane}")
    e(f"s_mov_b32 s{SRD_T}, s12"); e(f"s_mov_b32 s{SRD_T+1}, s13"); e(f"s_mov_b32 s{SRD_T+3}, 0x20000")
    e("s_mul_i32 s63, s62, 10880"); e("s_add_u32 s64, s63, 10880"); e("s_min_u32 s64, s64, 346112")
    e(f"s_mov_b32 s{SRD_T+2}, s64")
    e(f"s_cmp_eq_u32 s{sW}, 4"); e("s_cbranch_scc1 L_touch")
    e("s_add_u32 s63, s63, 8192")
    e(f"s_cmp_eq_u32 s{sW}, 5"); e("s_cbranch_scc1 L_touch")
    e(f"s_mov_b32 s{SRD_T}, s8"); e(f"s_mov_b32 s{SRD_T+1}, s9")
    e("s_mul_i32 s63, s62, 3328"); e("s_add_u32 s64, s63, 3328"); e("s_min_u32 s64, s64, 105456")
    e(f"s_mov_b32 s{SRD_T+2}, s64")
    e(f"s_cmp_eq_u32 s{sW}, 6"); e("s_cbranch_scc1 L_touch")
    e(f"s_mov_b32 s{SRD_T}, s6"); e(f"s_mov_b32 s{SRD_T+1}, s7"); e(f"s_mov_b32 s{SRD_T+2}, 3200000")
    e("s_mov_b32 s63, 0")
    e(f"v_lshlrev_b32 v{t5}, 16, v{vLane}")
    e(f"s_cmp_eq_u32 s{sW}, 7"); e("s_cbranch_scc1 L_touch")
    if eidx: e("s_barrier")
    e("s_branch L_C")
    a.label("L_touch")
    e(f"buffer_load_dword v31, v{t5}, s[{SRD_T}:{SRD_T+3}], s63 offen")
    if eidx: e("s_barrier")
    e("s_branch L_D")

    a.label("L_C")
    pf2 = int(opts.get("pf2", "0"))
    if pf2:
        e("s_getpc_b64 s[88:89]")
        a.label("L_pc2")
        e(f"v_add_u32 v28, {int(pf)}, v0")
        e("v_lshlrev_b32 v28, 7, v28")
        e(f"v_min_u32 v28, CODE_END-{KNAME}-256, v28")
        e(f"s_sub_u32 s88, s88, L_pc2-{KNAME}"); e("s_subb_u32 s89, s89, 0")
        e("v_mov_b32 v29, s89")
        e("v_add_co_u32 v28, vcc, s88, v28")
        e("s_nop 1")
        e("v_addc_co_u32 v29, vcc, 0, v29, vcc")
        e(f"s_movk_i32 s90, {pf2}")
        e("v_cmp_gt_u32 vcc, s90, v0")
        e("s_nop 0")
        e("s_and_saveexec_b64 s[92:93], vcc")
        e("s_cbranch_execz L_nopf2")
        e("global_load_dword v30, v[28:29], off")
        a.label("L_nopf2")
        e("s_mov_b64 exec, -1")
    vm = Track(a, "vmcnt", 63); lg = Track(a, "lgkmcnt", 15)
    SA2 = 154
    DS = [160, 172]; CV = [184, 190]
    vWs = 25; W3F = 32
    e("s_mov_b32 s68, s10"); e("s_mov_b32 s69, s11"); e("s_mov_b32 s70, 156"); e("s_mov_b32 s71, 0x20000")
    e(f"v_lshlrev_b32 v{t6}, 1, v{vLane}")
    e(f"buffer_load_ushort v{vWs}, v{t6}, s[68:71], 0 offen"); vm.add("ws")
    e(f"v_lshlrev_b32 v{t6}, 4, v{vG}")
    e(f"buffer_load_dwordx4 v[{W3F}:{W3F+3}], v{t6}, s[68:71], 0 offen offset:104"); vm.add("w3f")
    e("s_load_dword s47, s[18:19], 0")
    e(f"s_and_b32 s{sSh}, s{sC}, 1")
    scatter_addr(SA2, F2, True, 13)
    vH1, vH2 = 72, 73
    e(f"v_lshrrev_b32 v{t5}, 2, v{vL15}")
    e(f"v_lshl_add_u32 v{t5}, v{vG}, 3, v{t5}")
    e(f"v_add_u32 v{t6}, 4, v{t5}")
    e(f"v_min_u32 v{t5}, 25, v{t5}"); e(f"v_min_u32 v{t6}, 25, v{t6}")
    e(f"v_and_b32 v{t7}, 3, v{vL15}"); e(f"v_lshlrev_b32 v{t7}, 3, v{t7}")
    e("s_movk_i32 s64, 1352")
    e(f"v_mad_u32_u24 v{vH1}, v{t5}, s64, v{t7}"); e(f"v_mad_u32_u24 v{vH2}, v{t6}, s64, v{t7}")
    QA = 76
    for j in range(3):
        ee, h, k_, ad = t4, t5, t6, QA + j
        e(f"s_lshl_b32 s63, s{sC}, 6"); e(f"s_add_u32 s63, s63, {256*j}")
        e(f"v_add_u32 v{ee}, s63, v{vLane}")
        e(f"v_mul_u32_u24 v{h}, 2521, v{ee}"); e(f"v_lshrrev_b32 v{h}, 16, v{h}")
        e(f"v_mul_u32_u24 v{k_}, 26, v{h}"); e(f"v_sub_u32 v{k_}, v{ee}, v{k_}")
        e(f"v_cmp_gt_u32 vcc, 676, v{ee}")
        e(f"v_lshrrev_b32 v{ad}, 4, v{k_}"); e(f"v_lshlrev_b32 v{ad}, 10, v{ad}")
        e(f"v_and_b32 v{k_}, 15, v{k_}"); e(f"v_lshl_add_u32 v{ad}, v{k_}, 4, v{ad}")
        e(f"v_lshrrev_b32 v{k_}, 3, v{h}"); e(f"v_lshl_add_u32 v{ad}, v{k_}, 8, v{ad}")
        e(f"v_and_b32 v{h}, 7, v{h}"); e(f"v_lshl_add_u32 v{ad}, v{h}, 1, v{ad}")
        e(f"v_add_u32 v{ad}, {QB}, v{ad}")
        e(f"v_cndmask_b32 v{ad}, v{vDum}, v{ad}, vcc")
    vT1, vT2 = 37, 38
    e(f"s_lshl_b32 s63, s{sC}, 7"); e(f"s_add_u32 s63, s63, {W3L}")
    e(f"v_add_u32 v{vT1}, s63, v{vH1}"); e(f"v_add_u32 v{vT2}, s63, v{vH2}")
    TA1, TA2, vM = 39, 75, 74
    e(f"s_mul_i32 s63, s{sC}, 52"); e(f"s_lshl_b32 s64, s{sSh}, 2"); e("s_sub_u32 s63, s63, s64"); e(f"s_add_u32 s63, s63, {W2L}")
    e(f"v_add_u32 v{TA1}, s63, v{vH1}"); e(f"v_add_u32 v{TA2}, s63, v{vH2}")
    e(f"s_lshl_b32 s64, s{sSh}, 1"); e("s_add_u32 s64, s64, 10")
    e(f"v_cmp_gt_u32 vcc, s64, v{vL15}")
    QAD = [44, 45]
    e(f"s_lshl_b32 s63, s{sSh}, 1")
    e("s_nop 0")
    e(f"v_cndmask_b32 v{vM}, 0, -1, vcc")
    for aa in range(2):
        e(f"v_subrev_u32 v{t4}, s63, v{vL15}")
        if aa: e(f"v_add_u32 v{t4}, 16, v{t4}")
        e(f"v_min_u32 v{t4}, 31, v{t4}")
        e(f"v_lshrrev_b32 v{t5}, 4, v{t4}"); e(f"v_lshlrev_b32 v{t5}, 10, v{t5}")
        e(f"v_and_b32 v{t4}, 15, v{t4}"); e(f"v_lshl_add_u32 v{t5}, v{t4}, 4, v{t5}")
        e(f"v_lshl_add_u32 v{t5}, v{vG}, 8, v{t5}")
        e(f"v_add_u32 v{QAD[aa]}, {QB}, v{t5}")
    vFa = 226
    e(f"v_lshrrev_b32 v{t5}, 5, v{vLane}")
    e(f"v_mul_u32_u24 v{t6}, {HS}, v{t5}")
    e(f"v_and_b32 v{t7}, 31, v{vLane}")
    e(f"v_lshl_add_u32 v{vFa}, v{t7}, 4, v{t6}")
    st("w1")
    vm.wait("w3f")
    e(f"v_lshlrev_b32 v{t5}, 16, v{vWs}")
    e(f"v_cmp_gt_u32 s[88:89], 26, v{vLane}")
    e(f"v_cmp_gt_u32 s[90:91], 32, v{vLane}")
    e(f"v_lshlrev_b32 v{t6}, 2, v{vLane}")
    e(f"v_add_u32 v{t6}, {W1F}, v{t6}")
    e(f"v_cndmask_b32 v{t5}, 0, v{t5}, s[88:89]")
    e(f"v_cndmask_b32 v{t6}, v{vDum}, v{t6}, s[90:91]")
    e(f"ds_write_b32 v{t6}, v{t5}")
    e(f"v_subrev_u32 v{t5}, 26, v{vLane}")
    e(f"v_cmp_gt_u32 s[88:89], 26, v{t5}")
    e(f"v_lshrrev_b32 v{t6}, 3, v{t5}")
    e(f"v_lshlrev_b32 v{t6}, 8, v{t6}")
    e(f"v_and_b32 v{t7}, 7, v{t5}")
    e(f"v_lshl_add_u32 v{t6}, v{t7}, 1, v{t6}")
    e(f"v_add_u32 v{t6}, {QB+1024+160}, v{t6}")
    e(f"v_cndmask_b32 v{t6}, v{vDum}, v{t6}, s[88:89]")
    e(f"ds_write_b16 v{t6}, v{vWs}")
    AW = 56
    for gq in range(4): e(f"v_cmp_eq_u32 s[{88+2*gq}:{89+2*gq}], {4*gq}, v{vL15}")
    for gq in range(4):
        for j in range(4): e(f"v_cndmask_b32 v{AW+4*gq+j}, 0, v{W3F+j}, s[{88+2*gq}:{89+2*gq}]")
    e("s_waitcnt lgkmcnt(0)")
    e("s_barrier")
    st("bi")
    a.c("Weff")
    WB = 80; WD = 128
    for j in range(3):
        for gq in range(4):
            b = WB + 16*j + 4*gq
            e(f"ds_read_b64_tr_b16 v[{b}:{b+1}], v{vT1} offset:{j*512+32*gq}")
            e(f"ds_read_b64_tr_b16 v[{b+2}:{b+3}], v{vT2} offset:{j*512+32*gq}")
    for j in range(3):
        e(f"s_waitcnt lgkmcnt({min(15, 8*(2-j))})")
        for gq in range(4):
            b = WB + 16*j + 4*gq; d = WD + 4*j
            c = "0" if gq == 0 else f"v[{d}:{d+3}]"
            e(f"v_mfma_f32_16x16x32_bf16 v[{d}:{d+3}], v[{AW+4*gq}:{AW+4*gq+3}], v[{b}:{b+3}], {c}")
    a.nop(8)
    for j in range(3): e(f"v_cvt_pk_bf16_f32 v{t4+j}, v{WD+4*j}, v{WD+4*j}")
    for j in range(3): e(f"ds_write_b16 v{QA+j}, v{t4+j}")
    st("weff")
    e("s_waitcnt vmcnt(0) lgkmcnt(0)")
    e("s_barrier")
    st("b2")
    a.c("S2")
    Q0, Q1 = 140, 144
    lg.l = []
    e(f"ds_read_b128 v[{Q0}:{Q0+3}], v{QAD[0]}"); e(f"ds_read_b128 v[{Q1}:{Q1+3}], v{QAD[1]}"); lg.add("q", 2)
    PS = [48, 56, 64]
    cvt = lambda k, j: f"v_cvt_pk_bf16_f32 v{CV[k&1]+j}, v{DS[k&1]+2*j}, v{DS[k&1]+2*j+1}"
    wr = lambda SA, k, j: f"ds_write_b32 v{SA+j}, v{CV[k&1]+j} offset:{k*64}"
    def p_reads(k):
        P = PS[k % 3]
        return [f"ds_read_b64_tr_b16 v[{P}:{P+1}], v{TA1} offset:{k*208}",
                f"ds_read_b64_tr_b16 v[{P+2}:{P+3}], v{TA2} offset:{k*208}",
                f"ds_read_b64_tr_b16 v[{P+4}:{P+5}], v{TA1} offset:{k*208+32}",
                f"ds_read_b64_tr_b16 v[{P+6}:{P+7}], v{TA2} offset:{k*208+32}"]
    for k in (0, 1):
        for x in p_reads(k): e(x)
        lg.add(f"p{k}", 4)
    def masks(k): return [f"v_and_b32 v{PS[k%3]+4+j}, v{vM}, v{PS[k%3]+4+j}" for j in range(4)]
    lg.wait("p0")
    for x in masks(0): e(x)
    a.nop(1)
    for k in range(9):
        M = mf6(DS[k & 1], PS[k % 3], PS[k % 3]+4, Q0, Q1) if k < 7 else [None]*6
        R = p_reads(k+2) if k + 2 < 7 else []
        if k == 7: a.nop(4)
        if k == 8:
            e(f"s_cmp_lt_u32 s{sC}, 2"); e("s_cbranch_scc1 L_s2v")
            for j in range(6): e(f"v_mov_b32 v{SA2+j}, v{vDum}")
            a.label("L_s2v")
        for j in range(6):
            if j == 4 and k + 1 < 7:
                lg.wait(f"p{k+1}")
                for x in masks(k+1): e(x)
            if M[j]: e(M[j])
            if k >= 2: e(wr(SA2, k-2, j)); lg.add("w")
            if 1 <= k <= 7: e(cvt(k-1, j))
            if j < len(R): e(R[j]); lg.add(f"p{k+2}")
    st("s2")
    e("s_waitcnt lgkmcnt(0)")
    e("s_barrier")
    e("s_barrier")
    st("b3")
    if dbg == "lds":
        e("s_cmp_eq_u32 s2, 0"); e("s_cbranch_scc0 L_nodump")
        e(f"v_lshlrev_b32 v{t4}, 4, v0")
        for k in range(40):
            e(f"v_add_u32 v{t5}, {k*4096}, v{t4}")
            e(f"ds_read_b128 v[{t0}:{t3}], v{t5}")
            e("s_waitcnt lgkmcnt(0)")
            e(f"global_store_dwordx4 v{t5}, v[{t0}:{t3}], s[98:99]")
            e("s_waitcnt vmcnt(0)")
        a.label("L_nodump")
    a.c("C main")
    XA, YA, XB, YB = 8, 34, 47, 73
    D1A, D2A, D1B, D2B = 96, 112, 128, 144
    ZB = [[160, 164], [168, 172]]
    AB = [176, 184, 192]
    TM = [200, 201, 202, 203, 204, 205, 206, 207]
    WI = 208; vXb = 224; PK = 176
    e(f"v_and_b32 v{TM[4]}, 1, v{vG}")
    e(f"s_lshl_b32 s63, s{sC}, 2")
    e(f"v_add_u32 v{TM[4]}, s63, v{TM[4]}")
    e(f"v_mul_u32_u24 v{TM[4]}, 832, v{TM[4]}")
    e(f"v_lshrrev_b32 v{TM[5]}, 2, v{vL15}")
    e(f"v_lshl_add_u32 v{TM[4]}, v{TM[5]}, 5, v{TM[4]}")
    e(f"v_and_b32 v{TM[5]}, 3, v{vL15}")
    e(f"v_lshl_add_u32 v{TM[4]}, v{TM[5]}, 3, v{TM[4]}")
    e(f"v_add_u32 v{vXb}, {X0}, v{TM[4]}")
    safe = int(opts.get("safe", "0"))
    for T in range(2):
        for fb in range(7):
            e(f"ds_read_b64_tr_b16 v[{PK+14*T+2*fb}:{PK+14*T+2*fb+1}], v{vXb} offset:{T*1664 + fb*128}")
    e(f"v_lshrrev_b32 v{TM[5]}, 5, v{vLane}")
    e(f"v_lshlrev_b32 v{TM[6]}, 4, v{TM[5]}")
    e(f"v_add_u32 v{TM[6]}, {W1F}, v{TM[6]}")
    if safe: e("s_waitcnt lgkmcnt(0)")
    for m in range(4): e(f"ds_read_b128 v[{WI+4*m}:{WI+4*m+3}], v{TM[6]} offset:{m*32}")
    e(f"v_cmp_eq_u32 s[72:73], 1, v{TM[5]}")
    for T, (X, Y) in enumerate(((XA, YA), (XB, YB))):
        e(f"s_waitcnt lgkmcnt({11 if T == 0 else 4})")
        for g in range(13):
            p = PK + 14*T + g
            e(f"v_lshlrev_b32 v{X+2*g}, 16, v{p}")
            e(f"v_and_b32 v{X+2*g+1}, 0xffff0000, v{p}")
        for g in range(13): e(f"v_cndmask_b32 v{Y+g}, v{X+2*g}, v{X+2*g+1}, s[72:73]")
    def a_read(t):
        b = AB[t % 3]
        if t <= 22: e(f"ds_read_b128 v[{b}:{b+3}], v{vFa} offset:{F1 + t*FS}")
        if t <= 25: e(f"ds_read_b128 v[{b+4}:{b+7}], v{vFa} offset:{F2 + t*FS}")
    blocks = [(g, gp) for g in range(14) for gp in range(min(g, 12)+1)]
    def zgen(t, T):
        X, Y = ((XA, YA), (XB, YB))[T]
        z = ZB[t & 1][T]; mul = []; cv = []
        for j in range(4):
            g, gp = blocks[4*t + j]
            ta, tb, th = TM[2*j], TM[2*j+1], 228 + T
            if g == 13: cv.append(f"v_cvt_pk_bf16_f32 v{z+j}, v{Y+gp}, 0")
            else:
                y = Y + gp
                if g == gp:
                    mul.append(f"v_mul_f32 v{th}, 0.5, v{Y+gp}"); y = th
                mul.append(f"v_mul_f32 v{ta}, v{X+2*g}, v{y}")
                mul.append(f"v_mul_f32 v{tb}, v{X+2*g+1}, v{y}")
                cv.append(f"v_cvt_pk_bf16_f32 v{z+j}, v{ta}, v{tb}")
        return mul + cv
    st("xld")
    a_read(0); a_read(1)
    for T in range(2):
        for s in zgen(0, T): e(s)
    cnt = {t: (1 if t > 22 else 2) for t in range(26)}
    for t in range(26):
        younger = cnt[t+1] if t+1 <= 25 else 0
        e(f"s_waitcnt lgkmcnt({younger})")
        b = AB[t % 3]; mf = []; rds = []
        if t + 2 <= 25:
            b2 = AB[(t+2) % 3]
            if t + 2 <= 22: rds.append(f"ds_read_b128 v[{b2}:{b2+3}], v{vFa} offset:{F1 + (t+2)*FS}")
            rds.append(f"ds_read_b128 v[{b2+4}:{b2+7}], v{vFa} offset:{F2 + (t+2)*FS}")
        for T, (D1, D2) in enumerate(((D1A, D2A), (D1B, D2B))):
            z = ZB[t & 1][T]
            if t <= 22:
                c = "0" if t == 0 else f"v[{D1}:{D1+15}]"
                mf.append(f"v_mfma_f32_32x32x16_bf16 v[{D1}:{D1+15}], v[{b}:{b+3}], v[{z}:{z+3}], {c}")
            c = f"v[{WI}:{WI+15}]" if t == 0 else f"v[{D2}:{D2+15}]"
            mf.append(f"v_mfma_f32_32x32x16_bf16 v[{D2}:{D2+15}], v[{b+4}:{b+7}], v[{z}:{z+3}], {c}")
        va = (zgen(t+1, 0) + zgen(t+1, 1)) if t < 25 else []
        n = len(mf); per = (len(va) + n - 1)//n if va else 0
        if t == 0: a.nop(2)
        vi = 0
        for mi, m in enumerate(mf):
            e(m)
            if mi < len(rds): e(rds[mi])
            for s in va[vi:vi+per]: e(s)
            vi += per
    a.nop(16)
    st("main")
    for T, (D1, D2) in enumerate(((D1A, D2A), (D1B, D2B))): e(f"v_mul_f32 v{TM[T]}, v{D1}, v{D2}")
    for r in range(1, 14):
        for T, (D1, D2) in enumerate(((D1A, D2A), (D1B, D2B))): e(f"v_fmac_f32 v{TM[T]}, v{D1+r}, v{D2+r}")
    if opts.get("chk"):
        for T in range(2):
            for fb in range(7):
                e(f"ds_read_b64_tr_b16 v[{96+14*T+2*fb}:{96+14*T+2*fb+1}], v{vXb} offset:{T*1664 + fb*128}")
            e("s_waitcnt lgkmcnt(0)")
        e("v_mov_b32 v230, 0x41200000")
        for T, (X, Y) in enumerate(((XA, YA), (XB, YB))):
            for g in range(13):
                p = 96 + 14*T + g
                e(f"v_lshlrev_b32 v228, 16, v{p}")
                e(f"v_cmp_ne_u32 vcc, v228, v{X+2*g}")
                e("s_nop 1")
                e(f"v_cndmask_b32 v229, 0, v230, vcc")
                e(f"v_add_f32 v{TM[T]}, v{TM[T]}, v229")
                e(f"v_and_b32 v228, 0xffff0000, v{p}")
                e(f"v_cmp_ne_u32 vcc, v228, v{X+2*g+1}")
                e("s_nop 1")
                e(f"v_cndmask_b32 v229, 0, v230, vcc")
                e(f"v_add_f32 v{TM[T]}, v{TM[T]}, v229")
    for sh in (8, 4, 2, 1):
        a.nop(2)
        for T in range(2): e(f"v_add_f32_dpp v{TM[T]}, v{TM[T]}, v{TM[T]} row_ror:{sh} row_mask:0xf bank_mask:0xf")
    e(f"v_bfe_u32 v{TM[2]}, v{vLane}, 4, 1")
    e(f"v_lshlrev_b32 v{TM[2]}, 3, v{TM[2]}")
    e(f"v_lshrrev_b32 v{TM[3]}, 5, v{vLane}")
    e(f"v_lshl_add_u32 v{TM[2]}, v{TM[3]}, 2, v{TM[2]}")
    e(f"s_lshl_b32 s63, s{sC}, 5"); e(f"s_add_u32 s63, s63, {RED}")
    e(f"v_add_u32 v{TM[2]}, s63, v{TM[2]}")
    e(f"ds_write_b32 v{TM[2]}, v{TM[0]}")
    e(f"ds_write_b32 v{TM[2]}, v{TM[1]} offset:16")
    e("s_branch L_final")

    a.label("L_D")
    sD, sDB, sK, sNI = 66, 67, 80, 79
    srd(SRD_TAB, 6, 3200000)
    srd(SRD_WD, 12, 346112)
    srd(SRD_WS, 8, 105456)
    P = 16; ACC = 32; BB = [64, 96]; AF = [128, 132]; TRA = 136; W2R = 144; BIAS = 152; OUT = 160; GT = 164; vC0 = 184; vA = 185
    W1R = 64; I0, I1 = 120, 124
    SA1 = 192; DSd = [198, 210]; CVd = [222, 164]
    vW1 = 27
    e(f"s_mul_i32 s81, s{sD}, 224")
    e(f"s_mul_i32 s63, s{sD}, 192"); e("s_add_u32 s63, s63, 64")
    e(f"s_mul_i32 s{sDB}, s{sD}, 7168")
    e(f"s_mul_i32 s64, s{sD}, 6144"); e("s_add_u32 s64, s64, 2048")
    e(f"s_cmp_lt_u32 s{sD}, 2")
    e("s_cselect_b32 s81, s81, s63"); e(f"s_cselect_b32 s{sDB}, s{sDB}, s64")
    e(f"s_cselect_b32 s{sNI}, 7, 6")
    e("s_movk_i32 s74, 5462"); e("s_cselect_b32 s74, 4682, s74")
    e("s_cselect_b32 s75, 14, 12")
    e("s_movk_i32 s78, 192"); e("s_cselect_b32 s78, 224, s78")
    e("s_cselect_b32 s76, -1, 0")
    e(f"s_add_u32 s{sDB}, s{sDB}, {RING}")
    e("s_mov_b64 exec, 0xffff")
    for ptr, off in ((14, 0), (16, 256)):
        e(f"s_mov_b32 s68, s{ptr}"); e(f"s_mov_b32 s69, s{ptr+1}"); e("s_mov_b32 s70, 832"); e("s_mov_b32 s71, 0x20000")
        e(f"s_add_u32 m0, s{sDB}, {off}"); e("s_nop 0")
        e(f"buffer_load_dwordx4 v{vL16}, s[68:71], s81 offen lds")
    e("s_mov_b64 exec, -1")
    sLS, sLD = 72, 73
    def lin_start(src, dst):
        e(f"s_lshl_b32 s{sLD}, s{sD}, 10")
        e(f"s_add_u32 s{sLS}, s{sLD}, {src}"); e(f"s_add_u32 s{sLD}, s{sLD}, {dst}")
    uid = [0]
    def lin_one(k):
        if k < 8:
            e(f"s_mov_b32 m0, s{sLD}"); e(f"s_add_u32 s{sLD}, s{sLD}, 4096")
            e(f"buffer_load_dwordx4 v{vL16}, s[{SRD_WS}:{SRD_WS+3}], s{sLS} offen lds")
            e(f"s_add_u32 s{sLS}, s{sLS}, 4096")
        else:
            uid[0] += 1; lab = f"L_lin{uid[0]}"
            e(f"s_cmp_lt_u32 s{sD}, 2"); e(f"s_cbranch_scc1 {lab}")
            e("s_mov_b64 exec, 0x1fffff")
            e(f"s_cmp_eq_u32 s{sD}, 2"); e(f"s_cbranch_scc1 {lab}")
            e(f"s_mov_b32 s{sLS}, {BIG}"); e(f"s_mov_b32 s{sLD}, {DUM}")
            a.label(lab)
            e(f"s_mov_b32 m0, s{sLD}"); e("s_nop 0")
            e(f"buffer_load_dwordx4 v{vL16}, s[{SRD_WS}:{SRD_WS+3}], s{sLS} offen lds")
            e("s_mov_b64 exec, -1")
    lin_start(2*35152, W3L)
    for k in range(n3first): lin_one(k)
    e(f"v_and_b32 v{t0}, 1, v{vLane}"); e(f"v_lshlrev_b32 v{t0}, 4, v{t0}")
    e(f"v_mul_u32_u24 v{t7}, 52, v{vL15}")
    e(f"v_lshl_add_u32 v{vW1}, v{vG}, 4, v{t7}")
    def patterns():
        for j in range(7):
            m, row, cp, p_, b3 = t1, t2, t3, t4, t5
            e(f"v_add_u32 v{m}, {64*j}, v{vLane}")
            e(f"v_mul_u32_u24 v{row}, s74, v{m}"); e(f"v_lshrrev_b32 v{row}, 16, v{row}")
            e(f"v_mul_u32_u24 v{cp}, s75, v{row}"); e(f"v_sub_u32 v{cp}, v{m}, v{cp}")
            e(f"v_lshrrev_b32 v{p_}, 1, v{cp}")
            e(f"v_bfe_u32 v{b3}, v{row}, 3, 1")
            e(f"v_xor_b32 v{t6}, v{p_}, v{b3}")
            e(f"v_add_u32 v{t7}, 3, v{p_}")
            e(f"v_cmp_lt_u32 vcc, 6, v{t7}")
            e(f"v_subrev_u32 v{m}, 7, v{t7}")
            e(f"v_and_b32 v{cp}, 1, v{cp}")
            e(f"v_cndmask_b32 v{t7}, v{t7}, v{m}, vcc")
            e(f"v_cmp_eq_u32 vcc, 1, v{b3}")
            e(f"v_mul_u32_u24 v{row}, 832, v{row}")
            e(f"v_add_u32 v{row}, s81, v{row}")
            e(f"v_cndmask_b32 v{t7}, v{p_}, v{t7}, vcc")
            e(f"v_and_b32 v{t7}, s76, v{t7}")
            e(f"v_not_b32 v{m}, s76"); e(f"v_and_b32 v{t6}, v{m}, v{t6}")
            e(f"v_or_b32 v{t7}, v{t7}, v{t6}")
            e(f"v_lshl_add_u32 v{cp}, v{t7}, 1, v{cp}")
            e(f"v_lshl_add_u32 v{cp}, v{cp}, 4, v{row}")
            if j & 3: e(f"v_subrev_u32 v{P+j}, {(j & 3)*1024}, v{cp}")
            else: e(f"v_mov_b32 v{P+j}, v{cp}")
        e(f"v_lshrrev_b32 v{t2}, 2, v{vL15}")
        e(f"v_lshl_add_u32 v{t3}, v{vG}, 3, v{t2}")
        e(f"v_mul_u32_u24 v{t3}, s78, v{t3}")
        e(f"v_and_b32 v{t4}, 3, v{vL15}")
        e(f"v_lshl_add_u32 v{t3}, v{t4}, 3, v{t3}")
        e(f"v_add_u32 v{t3}, s{sDB}, v{t3}")
        e(f"v_and_b32 v{t4}, 1, v{vG}")
        e(f"v_cmp_eq_u32 vcc, 1, v{t4}")
        e(f"v_not_b32 v{t6}, s76")
        for tau in range(7):
            e(f"v_mov_b32 v{t5}, {tau}")
            e(f"v_mov_b32 v{t7}, {(tau+4) % 7}")
            e(f"v_xor_b32 v{t2}, {tau}, v{t4}")
            e(f"v_cndmask_b32 v{t5}, v{t5}, v{t7}, vcc")
            e(f"v_and_b32 v{t5}, s76, v{t5}")
            e(f"v_and_b32 v{t2}, v{t6}, v{t2}")
            e(f"v_or_b32 v{t5}, v{t5}, v{t2}")
            e(f"v_lshl_add_u32 v{TRA+tau}, v{t5}, 5, v{t3}")
        e(f"v_mul_u32_u24 v{vA}, 832, v{vL15}")
        e(f"v_lshl_add_u32 v{vA}, v{vG}, 4, v{vA}")
        e(f"v_add_u32 v{vA}, {X0}, v{vA}")
    patearly = int(opts.get("pate", "1"))
    if patearly: patterns()
    st("w1")
    def w1_loads():
        e(f"s_mul_i32 s63, s{sD}, 1352")
        for k in range(7):
            if k == 6:
                e(f"s_cmp_lt_u32 s{sD}, 2"); e(f"s_cselect_b32 s63, s63, {BIG}")
            e(f"buffer_load_dwordx4 v[{W1R+8*k}:{W1R+8*k+3}], v{vW1}, s[{SRD_WS}:{SRD_WS+3}], s63 offen")
            e(f"buffer_load_dwordx4 v[{W1R+8*k+4}:{W1R+8*k+7}], v{vW1}, s[{SRD_WS}:{SRD_WS+3}], s63 offen offset:832")
            if k < 6: e(f"s_add_u32 s63, s63, {4*1352}")
    def gathers():
        for k in range(4): e(f"v_lshl_add_u32 v{vIdx+k}, v{vIdx+k}, 5, v{t0}")
        e(f"s_mul_i32 s63, s{sD}, {4*832}"); e(f"s_add_u32 s63, s63, {X0}")
        e("s_mov_b32 exec_lo, -1"); e("s_mov_b32 exec_hi, 0xfffff")
        for k in range(4):
            e(f"s_add_u32 m0, s63, {832*k}"); e("s_nop 0")
            e(f"buffer_load_dwordx4 v{vIdx+k}, s[{SRD_TAB}:{SRD_TAB+3}], 0 offen lds")
        e("s_mov_b64 exec, -1")
    def bias_read():
        e(f"v_lshlrev_b32 v{t1}, 1, v{vL15}"); e(f"v_add_u32 v{t1}, s{sDB}, v{t1}")
        for tau in range(7):
            e(f"v_mov_b32 v{BIAS+tau}, 0"); e(f"v_mov_b32 v{W2R+tau}, 0")
        for tau in range(7):
            e(f"ds_read_u16_d16_hi v{BIAS+tau}, v{t1} offset:{tau*32}")
            e(f"ds_read_u16_d16_hi v{W2R+tau}, v{t1} offset:{256+tau*32}")
        e("s_waitcnt lgkmcnt(0)")
        for tau in range(7):
            for r in range(4): e(f"v_mov_b32 v{ACC+4*tau+r}, v{BIAS+tau}")
    def kdma(slot):
        uid[0] += 1; lab = f"L_k{uid[0]}"
        for j in range(7):
            if j == 6:
                e(f"s_cmp_eq_u32 s{sNI}, 6"); e(f"s_cbranch_scc1 {lab}")
            if (j & 3) == 0:
                e(f"s_add_u32 m0, s{sDB}, {slot*SLOT + (j >> 2)*4096}"); e("s_nop 0")
            off = f" offset:{(j & 3)*1024}" if j & 3 else ""
            e(f"buffer_load_dwordx4 v{P+j}, s[{SRD_WD}:{SRD_WD+3}], s{sK} offen{off} lds")
        a.label(lab)
        e(f"s_add_u32 s{sK}, s{sK}, {SLOT}")
    def s1_setup():
        e(f"v_lshlrev_b32 v{t4}, 3, v{vG}")
        e(f"v_sub_u32 v{t4}, v{vL15}, v{t4}")
        e(f"v_and_b32 v{t5}, 1, v{t4}")
        e(f"v_lshlrev_b32 v{t5}, 4, v{t5}")
        e(f"v_mov_b32 v{t6}, 0x3f80")
        e(f"v_lshlrev_b32 v{t5}, v{t5}, v{t6}")
        e(f"v_ashrrev_i32 v{t4}, 1, v{t4}")
        e(f"v_add_u32 v{t6}, 8, v{t4}")
        for j in range(4): e(f"v_cmp_eq_u32 s[{88+2*j}:{89+2*j}], {j}, v{t4}")
        for j in range(4): e(f"v_cndmask_b32 v{I0+j}, 0, v{t5}, s[{88+2*j}:{89+2*j}]")
        for j in range(4): e(f"v_cmp_eq_u32 s[{88+2*j}:{89+2*j}], {j}, v{t6}")
        for j in range(4): e(f"v_cndmask_b32 v{I1+j}, 0, v{t5}, s[{88+2*j}:{89+2*j}]")
        scatter_addr(SA1, F1, False, 12, 198)
    def S1():
        cvt = lambda k, j: f"v_cvt_pk_bf16_f32 v{CVd[k&1]+j}, v{DSd[k&1]+2*j}, v{DSd[k&1]+2*j+1}"
        wr = lambda k, j: f"ds_write_b32 v{SA1+j}, v{CVd[k&1]+j} offset:{k*64}"
        for k in range(9):
            M = mf6(DSd[k & 1], W1R+8*k, W1R+8*k+4, I0, I1) if k < 7 else [None]*6
            if k == 7: a.nop(4)
            if k == 1: a.nop(5)
            if k == 2: a.nop(1)
            for j in range(6):
                if M[j]: e(M[j])
                if k >= 2: e(wr(k-2, j))
                if 1 <= k <= 7: e(cvt(k-1, j))
    e(f"s_mov_b32 s{sK}, 0")
    for k in range(n3first, 9): lin_one(k)
    lin_start(35152, W2L)
    for k in range(9): lin_one(k)
    e("s_waitcnt vmcnt(9)")
    e("s_barrier")
    st("bi")
    w1_loads()
    e("s_waitcnt vmcnt(14)")
    e("s_barrier")
    st("b2")
    gathers()
    st("sb1")
    bias_read()
    if not patearly: patterns()
    s1_setup()
    e("s_waitcnt vmcnt(4)")
    S1()
    k01late = int(opts.get("k01late", "0"))
    if not k01late: kdma(0); kdma(1)
    st("s1")
    e("s_waitcnt lgkmcnt(0)")
    e("s_barrier")
    if k01late: kdma(0); kdma(1)
    kdma(2)
    st("issued")
    e(f"s_cmp_lt_u32 s{sD}, 2"); e("s_cbranch_scc0 L_D6")
    def emit_D(NT):
        tag = f"T{NT}"; nI = NT; nt = NT; RS = 32*NT
        e(f"s_waitcnt vmcnt({3*nI})")
        st("s2")
        e("s_barrier")
        st("b3")
        if prio: e(f"s_setprio {prio}")
        def reads(b, slot, astep):
            r = [f"ds_read_b128 v[{AF[b]}:{AF[b]+3}], v{vA} offset:{64*astep}"]
            for tau in range(nt):
                r.append(f"ds_read_b64_tr_b16 v[{BB[b]+4*tau}:{BB[b]+4*tau+1}], v{TRA+tau} offset:{slot*SLOT}")
                r.append(f"ds_read_b64_tr_b16 v[{BB[b]+4*tau+2}:{BB[b]+4*tau+3}], v{TRA+tau} offset:{slot*SLOT+4*RS}")
            return r
        def mfmas(b):
            return [f"v_mfma_f32_16x16x32_bf16 v[{ACC+4*tau}:{ACC+4*tau+3}], v[{AF[b]}:{AF[b]+3}], v[{BB[b]+4*tau}:{BB[b]+4*tau+3}], v[{ACC+4*tau}:{ACC+4*tau+3}]" for tau in range(nt)]
        e(f"s_waitcnt vmcnt({2*nI})")
        for x in reads(0, 0, 0): e(x)
        e("s_waitcnt lgkmcnt(0)")
        e("s_mov_b32 s82, 0")
        st("xld")
        a.label(f"L_dl{tag}")
        for i in range(6):
            e(f"s_waitcnt vmcnt({nI})")
            R = reads((i+1) & 1, (i+1) % 3, i+1)
            Ms = mfmas(i & 1)
            e(f"s_add_u32 m0, s{sDB}, {(i % 3)*SLOT}")
            e(R[0]); ri = 1
            for j in range(nI):
                if j == 4:
                    e(f"s_add_u32 m0, s{sDB}, {(i % 3)*SLOT + 4096}")
                    e(R[ri]); ri += 1
                off = f" offset:{(j & 3)*1024}" if j & 3 else ""
                e(f"buffer_load_dwordx4 v{P+j}, s[{SRD_WD}:{SRD_WD+3}], s{sK} offen{off} lds")
                e(R[ri]); ri += 1
                if ri < len(R) and (len(R) - ri) > (nI - 1 - j) - (1 if j < 4 else 0): e(R[ri]); ri += 1
                e(Ms[j])
            while ri < len(R): e(R[ri]); ri += 1
            e(f"s_add_u32 s{sK}, s{sK}, {SLOT}")
            e("s_waitcnt lgkmcnt(0)")
        e(f"v_add_u32 v{vA}, {6*64}, v{vA}")
        e("s_add_u32 s82, s82, 1")
        e("s_cmp_lt_u32 s82, 2"); e(f"s_cbranch_scc1 L_dl{tag}")
        for x in mfmas(0): e(x)
        st("main")
        C0 = -2.0*0.7978845608028654*1.4426950408889634; C1 = C0*0.044715
        for r in range(4): e(f"v_mov_b32 v{OUT+r}, 0")
        e(f"v_mov_b32 v{vC0}, 0x{f32bits(C0):08x}")
        a.nop(8)
        for tau in range(nt):
            x = ACC + 4*tau; Uu, E, Yv = GT, GT+4, GT+8
            r4 = range(4)
            for r in r4: e(f"v_mul_f32 v{Uu+r}, v{x+r}, v{x+r}")
            for r in r4: e(f"v_fmamk_f32 v{Uu+r}, v{Uu+r}, 0x{f32bits(C1):08x}, v{vC0}")
            for r in r4: e(f"v_mul_f32 v{Uu+r}, v{x+r}, v{Uu+r}")
            for r in r4: e(f"v_exp_f32 v{E+r}, v{Uu+r}")
            for r in r4: e(f"v_mul_f32 v{Yv+r}, v{x+r}, v{W2R+tau}")
            for r in r4: e(f"v_add_f32 v{E+r}, 1.0, v{E+r}")
            for r in r4: e(f"v_rcp_f32 v{E+r}, v{E+r}")
            e("s_nop 0")
            for r in r4: e(f"v_fmac_f32 v{OUT+r}, v{Yv+r}, v{E+r}")
        st("gelu")
        for sh in (8, 4, 2, 1):
            a.nop(2)
            for r in range(4): e(f"v_add_f32_dpp v{OUT+r}, v{OUT+r}, v{OUT+r} row_ror:{sh} row_mask:0xf bank_mask:0xf")
        e(f"s_lshl_b32 s63, s{sD}, 6"); e(f"s_add_u32 s63, s63, {RED2}")
        e(f"v_lshlrev_b32 v{GT}, 4, v{vG}"); e(f"v_add_u32 v{GT}, s63, v{GT}")
        e(f"ds_write_b128 v{GT}, v[{OUT}:{OUT+3}]")
    emit_D(7)
    e("s_branch L_final")
    a.label("L_D6")
    emit_D(6)

    a.label("L_final")
    e("s_waitcnt lgkmcnt(0)")
    e("s_barrier")
    st("fin")
    if stamp is not None:
        wg, wv = [int(x) for x in stamp.split("_")]
        e(f"s_cmp_eq_u32 s2, {wg}"); e("s_cbranch_scc0 L_nost")
        e(f"s_cmp_eq_u32 s{sW}, {wv}"); e("s_cbranch_scc0 L_nost")
        e(f"v_lshlrev_b32 v30, 2, v{vLane}")
        e("s_mov_b64 exec, 0xffff")
        e(f"global_store_dword v30, v{vSt}, s[96:97]")
        e("s_mov_b64 exec, -1")
        a.label("L_nost")
    e(f"s_cmp_eq_u32 s{sW}, 0"); e("s_cbranch_scc0 L_end")
    e(f"v_lshlrev_b32 v8, 3, v{vL15}"); e(f"v_add_u32 v8, {RED}, v8")
    e(f"v_lshlrev_b32 v9, 2, v{vL15}"); e(f"v_add_u32 v9, {RED2}, v9")
    e("ds_read_b64 v[10:11], v8")
    for d in range(4): e(f"ds_read_b32 v{12+d}, v9 offset:{d*64}")
    e("s_lshl_b32 s47, s47, 16")
    e("s_mov_b32 s68, s20"); e("s_mov_b32 s69, s21"); e("s_mov_b32 s70, 8192"); e("s_mov_b32 s71, 0x20000")
    e("s_lshl_b32 s63, s2, 5")
    e(f"v_lshlrev_b32 v16, 1, v{vL15}")
    e("s_waitcnt lgkmcnt(0)")
    e("v_add_f32 v10, v10, v11"); e("v_add_f32 v12, v12, v13"); e("v_add_f32 v14, v14, v15")
    e("v_add_f32 v12, v12, v14"); e("v_add_f32 v10, v10, v12"); e("v_add_f32 v10, s47, v10")
    e("v_cvt_pk_bf16_f32 v10, v10, v10")
    e("s_mov_b64 exec, 0xffff")
    e("buffer_store_short v10, v16, s[68:71], s63 offen")
    if tot:
        e("s_memtime s[84:85]"); e("s_memrealtime s[86:87]"); e("s_waitcnt lgkmcnt(0)")
        e("s_sub_u32 s84, s84, s100")
        e("s_lshl_b32 s63, s2, 2")
        e("v_mov_b32 v20, s84"); e("v_mov_b32 v21, s63"); e("v_mov_b32 v22, s86")
        e("s_mov_b64 exec, 1")
        e("global_store_dword v21, v20, s[96:97]")
        e("global_store_dword v21, v22, s[96:97] offset:1024")
    a.label("L_end")
    e("s_endpgm")
    a.label("CODE_END")
    return a

HEADER = """; xDeepFM (CIN + DNN) fused kernel for gfx950 -- generated by my own script
; @launch grid=(256,1,1) block=(512,1,1) lds=163840
.amdgcn_target "amdgcn-amd-amdhsa--gfx950"
.text
.globl {k}
.p2align 8
.type {k},@function
"""
FOOTER = """
.section .rodata,"a"
.p2align 6
.amdhsa_kernel {k}
  .amdhsa_next_free_vgpr {nv}
  .amdhsa_next_free_sgpr 102
  .amdhsa_accum_offset {nv}
  .amdhsa_group_segment_fixed_size 0
  .amdhsa_kernarg_size 88
  .amdhsa_user_sgpr_count 2
  .amdhsa_user_sgpr_kernarg_segment_ptr 1
  .amdhsa_system_sgpr_workgroup_id_x 1
.end_amdhsa_kernel
"""
if __name__ == "__main__":
    opts = dict(x.split("=") for x in sys.argv[2:])
    a = gen(opts)
    body = a.text()
    probs = check_hazards(body)
    for p in probs: print("HAZARD:", p, file=sys.stderr)
    open(sys.argv[1], "w").write(HEADER.format(k=KNAME) + body + FOOTER.format(k=KNAME, nv=232))
    print("written", sys.argv[1], "hazards:", len(probs), file=sys.stderr)
```

```python
import sys, struct
from asmlib import Asm, check_hazards

KNAME = "standalone__deep_cross_xdeepfm__recsys_kernel"
FS, HS = 1040, 528
F1 = 0; F2 = 23920
W3L = F2
RING = 59072; SLOT = 26624
W2L = 112816
QB = 147968
X0 = 150016
W1F = 163328; RED = W1F + 128; RED2 = RED + 128
DUM = 0x30000
BIG = 0x10000000
def f32bits(x): return struct.unpack("<I", struct.pack("<f", x))[0]

class Track:
    def __init__(self, a, name, cap): self.a, self.name, self.cap, self.l = a, name, cap, []
    def add(self, tag, n=1): self.l.extend([tag]*n)
    def count(self, tag):
        idx = [i for i, t in enumerate(self.l) if t == tag]
        assert idx, tag
        return min(len(self.l) - 1 - idx[-1], self.cap)
    def wait(self, tag): self.a.e(f"s_waitcnt {self.name}({self.count(tag)})")

def gen(opts):
    a = Asm(); e = a.e
    dbg = opts.get("dbg"); stamp = opts.get("stamp"); pf = opts.get("pf", "184")
    prio = int(opts.get("prio", "2")); pk = int(opts.get("pk", "0"))
    n3first = int(opts.get("n3", "3"))
    mode = "B"
    kin = int(opts.get("kin", "4"))
    sM = 23
    sW = 22; sC = 66
    SRD_IDX, SRD_TAB, SRD_WS, SRD_WD, SRD_T = 24, 28, 32, 36, 40
    def srd(base, ptr, nbytes):
        e(f"s_mov_b32 s{base}, s{ptr}"); e(f"s_mov_b32 s{base+1}, s{ptr+1}")
        e(f"s_mov_b32 s{base+2}, {nbytes}"); e(f"s_mov_b32 s{base+3}, 0x20000")
    vLane, vL15, vG = 1, 2, 3
    t0, t1, t2, t3, t4, t5, t6, t7 = 8, 9, 10, 11, 12, 13, 14, 15
    vL16 = 26; vDum = 24
    vSt = 231
    STI = dict(karg=0, issued=1, bi=2, idx=3, w1=4, s1=5, weff=6, b2=7, s2=8, b3=9, xld=10, main=11, gelu=12, fin=13, sb1=14)
    def st(name):
        if stamp is None: return
        e("s_memtime s[84:85]"); e("s_waitcnt lgkmcnt(0)")
        if name == "entry":
            e("s_mov_b32 s86, s84"); e(f"v_mov_b32 v{vSt}, 0")
        else:
            e("s_sub_u32 s84, s84, s86"); e(f"v_writelane_b32 v{vSt}, s84, {STI[name]}")
    combos = [(0,0,0),(0,0,1),(1,0,0),(1,0,1),(1,1,0),(1,1,1)]
    sSh = 62
    def scatter_addr(SA, Fb, shifted, gmax, tb=16):
        g0, gp0, hb, gpv = tb, tb+1, tb+2, tb+3
        q, off, lim, gq = tb+4, tb+5, tb+6, tb+7
        e(f"v_lshlrev_b32 v{g0}, 1, v{vG}")
        e(f"v_lshrrev_b32 v{gp0}, 1, v{vL15}")
        if shifted:
            e(f"v_subrev_u32 v{g0}, s{sSh}, v{g0}"); e(f"v_subrev_u32 v{gp0}, s{sSh}, v{gp0}")
        e(f"v_and_b32 v{hb}, 1, v{vL15}")
        e(f"v_mul_u32_u24 v{hb}, {HS}, v{hb}")
        e(f"s_lshl_b32 s65, s{sC}, 4")
        if Fb: e(f"s_add_u32 s65, s65, {Fb}")
        e(f"v_add_u32 v{hb}, s65, v{hb}")
        for ci, (aa, bb, pp) in enumerate(combos):
            cg = 8*aa + pp; m0_, m1_ = 88 + 4*(ci % 2), 90 + 4*(ci % 2)
            e(f"v_add_u32 v{gq}, {cg}, v{g0}")
            e(f"v_mad_i32_i24 v{q}, v{gq}, v{gq}, v{gq}")
            e(f"v_lshrrev_b32 v{q}, 1, v{q}")
            e(f"v_add3_u32 v{q}, v{q}, v{gp0}, {8*bb}")
            e(f"v_min_u32 v{lim}, 12, v{gq}")
            e(f"v_cmp_ge_u32 s[{m0_}:{m0_+1}], {gmax}, v{gq}")
            e(f"v_add_u32 v{gpv}, {8*bb}, v{gp0}")
            e(f"v_and_b32 v{off}, 0x7c, v{q}")
            e(f"v_cmp_le_u32 s[{m1_}:{m1_+1}], v{gpv}, v{lim}")
            e(f"v_lshlrev_b32 v{off}, 8, v{off}")
            e(f"v_lshl_add_u32 v{off}, v{q}, 2, v{off}")
            e(f"s_and_b64 s[{m0_}:{m0_+1}], s[{m0_}:{m0_+1}], s[{m1_}:{m1_+1}]")
            e(f"v_add_u32 v{off}, v{off}, v{hb}")
            e(f"v_cndmask_b32 v{SA+ci}, v{vDum}, v{off}, s[{m0_}:{m0_+1}]")
    def mf6(D, A0, A1, B0, B1):
        return [
         f"v_mfma_f32_16x16x32_bf16 v[{D}:{D+3}], v[{A0}:{A0+3}], v[{B0}:{B0+3}], 0",
         f"v_mfma_f32_16x16x32_bf16 v[{D+4}:{D+7}], v[{A1}:{A1+3}], v[{B0}:{B0+3}], 0",
         f"v_mfma_f32_16x16x32_bf16 v[{D+8}:{D+11}], v[{A1}:{A1+3}], v[{B1}:{B1+3}], 0",
         f"v_mfma_f32_16x16x32_bf16 v[{D}:{D+3}], v[{B0}:{B0+3}], v[{A0}:{A0+3}], v[{D}:{D+3}]",
         f"v_mfma_f32_16x16x32_bf16 v[{D+4}:{D+7}], v[{B1}:{B1+3}], v[{A0}:{A0+3}], v[{D+4}:{D+7}]",
         f"v_mfma_f32_16x16x32_bf16 v[{D+8}:{D+11}], v[{B1}:{B1+3}], v[{A1}:{A1+3}], v[{D+8}:{D+11}]"]

    tot = opts.get("tot")
    a.label(KNAME)
    if tot:
        e("s_memtime s[100:101]"); e("s_memrealtime s[94:95]") if False else None
    st("entry")
    e("s_cmp_ge_u32 s2, 256")
    e("s_cbranch_scc1 L_end")
    e("s_load_dwordx16 s[4:19], s[0:1], 0")
    e("s_load_dwordx2 s[20:21], s[0:1], 64")
    if dbg or stamp or tot: e("s_load_dwordx4 s[96:99], s[0:1], 72")
    pfd = int(opts.get("pfd", "0"))
    if pf != "0" and not pfd:
        e("s_getpc_b64 s[88:89]")
        e("v_lshlrev_b32 v28, 7, v0")
        e(f"v_min_u32 v28, CODE_END-{KNAME}-256, v28")
        e("v_mov_b32 v29, s89")
        e("v_add_co_u32 v28, vcc, s88, v28")
        e("s_nop 1")
        e("v_addc_co_u32 v29, vcc, 0, v29, vcc")
        e(f"s_movk_i32 s90, {int(pf)}")
        e("v_cmp_gt_u32 vcc, s90, v0")
        e("s_nop 0")
        e("s_and_saveexec_b64 s[92:93], vcc")
        e("s_cbranch_execz L_nopf")
        e("global_load_dword v30, v[28:29], off")
        a.label("L_nopf")
        e("s_mov_b64 exec, -1")
    elif pf != "0":
        e("s_getpc_b64 s[88:89]")
        e("s_lshr_b32 s90, s2, 3"); e("s_and_b32 s90, s90, 31"); e(f"s_mul_i32 s90, s90, {pfd}")
        e("v_add_u32 v28, s90, v0")
        e("v_lshlrev_b32 v28, 7, v28")
        e(f"v_min_u32 v28, CODE_END-{KNAME}-256, v28")
        e("v_mov_b32 v29, s89")
        e("v_add_co_u32 v28, vcc, s88, v28")
        e("s_nop 1")
        e("v_addc_co_u32 v29, vcc, 0, v29, vcc")
        e(f"v_cmp_gt_u32 vcc, {pfd}, v0")
        e("s_nop 0")
        e("s_and_saveexec_b64 s[92:93], vcc")
        e("s_cbranch_execz L_nopf")
        e("global_load_dword v30, v[28:29], off")
        a.label("L_nopf")
        e("s_mov_b64 exec, -1")
    e(f"v_lshrrev_b32 v{t4}, 6, v0")
    e(f"v_and_b32 v{vLane}, 63, v0")
    e(f"v_and_b32 v{vL15}, 15, v0")
    e(f"v_readfirstlane_b32 s{sW}, v{t4}")
    e(f"v_bfe_u32 v{vG}, v0, 4, 2")
    e(f"v_lshrrev_b32 v{t6}, 1, v{vLane}")
    e(f"v_lshlrev_b32 v{t6}, 2, v{t6}")
    e("s_lshl_b32 s61, s2, 4")
    e(f"s_and_b32 s{sC}, s{sW}, 3")
    e(f"s_lshl_b32 s62, s{sC}, 2")
    e("s_add_u32 s61, s61, s62")
    e("s_mul_i32 s61, s61, 104")
    e(f"s_bfe_u32 s{sM}, s2, 0x10003")
    for r in (t0, t1, t2, t3): e(f"v_mov_b32 v{r}, 0")
    e(f"v_lshlrev_b32 v{t4}, 4, v0")
    for k in range(3): e(f"ds_write_b128 v{t4}, v[{t0}:{t3}] offset:{k*8192}")
    e(f"v_and_b32 v{t5}, 127, v0")
    e(f"v_lshlrev_b32 v{t5}, 4, v{t5}")
    e(f"v_add_u32 v{t5}, {QB}, v{t5}")
    e(f"ds_write_b128 v{t5}, v[{t0}:{t3}]")
    e(f"v_lshlrev_b32 v{vL16}, 4, v{vLane}")
    e(f"v_mov_b32 v{vDum}, {DUM}")
    e("s_waitcnt lgkmcnt(0)")
    eidx = int(opts.get("eidx", "1"))
    if not eidx: e("s_barrier")
    st("karg")
    e(f"s_cmp_lt_u32 s{sW}, 4"); e("s_cbranch_scc1 L_touch0")
    vIdx = 4
    srd(SRD_IDX, 4, 4096*26*4)
    for k in range(4):
        e(f"buffer_load_dword v{vIdx+k}, v{t6}, s[{SRD_IDX}:{SRD_IDX+3}], s61 offen offset:{104*k}")
    a.label("L_touch0")
    tmap = opts.get("tmap", "rr")
    if tmap == "rr": e("s_lshr_b32 s62, s2, 3"); e("s_and_b32 s62, s62, 31")
    elif tmap == "ch": e("s_and_b32 s62, s2, 31")
    elif tmap == "hw":
        e("s_getreg_b32 s62, hwreg(HW_REG_HW_ID)")
        e("s_bfe_u32 s63, s62, 0x40008")
        e("s_bfe_u32 s64, s62, 0x3000d")
        e("s_lshl_b32 s64, s64, 3"); e("s_add_u32 s62, s63, s64"); e("s_and_b32 s62, s62, 31")
    elif tmap == "none": e("s_mov_b32 s62, 0x4000")
    e(f"v_lshlrev_b32 v{t5}, 7, v{vLane}")
    e(f"s_mov_b32 s{SRD_T}, s12"); e(f"s_mov_b32 s{SRD_T+1}, s13"); e(f"s_mov_b32 s{SRD_T+3}, 0x20000")
    e("s_mul_i32 s63, s62, 10880"); e("s_add_u32 s64, s63, 10880"); e("s_min_u32 s64, s64, 346112")
    e(f"s_mov_b32 s{SRD_T+2}, s64")
    e(f"s_cmp_eq_u32 s{sW}, 4"); e("s_cbranch_scc1 L_touch")
    e("s_add_u32 s63, s63, 8192")
    e(f"s_cmp_eq_u32 s{sW}, 5"); e("s_cbranch_scc1 L_touch")
    e(f"s_mov_b32 s{SRD_T}, s8"); e(f"s_mov_b32 s{SRD_T+1}, s9")
    e("s_mul_i32 s63, s62, 3328"); e("s_add_u32 s64, s63, 3328"); e("s_min_u32 s64, s64, 105456")
    e(f"s_mov_b32 s{SRD_T+2}, s64")
    e(f"s_cmp_eq_u32 s{sW}, 6"); e("s_cbranch_scc1 L_touch")
    e(f"s_mov_b32 s{SRD_T}, s6"); e(f"s_mov_b32 s{SRD_T+1}, s7"); e(f"s_mov_b32 s{SRD_T+2}, 3200000")
    e("s_mov_b32 s63, 0")
    e(f"v_lshlrev_b32 v{t5}, 16, v{vLane}")
    e(f"s_cmp_eq_u32 s{sW}, 7"); e("s_cbranch_scc1 L_touch")
    if eidx: e("s_barrier")
    e("s_branch L_C")
    a.label("L_touch")
    e(f"buffer_load_dword v31, v{t5}, s[{SRD_T}:{SRD_T+3}], s63 offen")
    if eidx: e("s_barrier")
    e("s_branch L_D")

    a.label("L_C")
    pf2 = int(opts.get("pf2", "0"))
    if pf2:
        e("s_getpc_b64 s[88:89]")
        a.label("L_pc2")
        e(f"v_add_u32 v28, {int(pf)}, v0")
        e("v_lshlrev_b32 v28, 7, v28")
        e(f"v_min_u32 v28, CODE_END-{KNAME}-256, v28")
        e(f"s_sub_u32 s88, s88, L_pc2-{KNAME}"); e("s_subb_u32 s89, s89, 0")
        e("v_mov_b32 v29, s89")
        e("v_add_co_u32 v28, vcc, s88, v28")
        e("s_nop 1")
        e("v_addc_co_u32 v29, vcc, 0, v29, vcc")
        e(f"s_movk_i32 s90, {pf2}")
        e("v_cmp_gt_u32 vcc, s90, v0")
        e("s_nop 0")
        e("s_and_saveexec_b64 s[92:93], vcc")
        e("s_cbranch_execz L_nopf2")
        e("global_load_dword v30, v[28:29], off")
        a.label("L_nopf2")
        e("s_mov_b64 exec, -1")
    vm = Track(a, "vmcnt", 63); lg = Track(a, "lgkmcnt", 15)
    SA2 = 154
    DS = [160, 172]; CV = [184, 190]
    vWs = 25; W3F = 32
    e("s_mov_b32 s68, s10"); e("s_mov_b32 s69, s11"); e("s_mov_b32 s70, 156"); e("s_mov_b32 s71, 0x20000")
    e(f"v_lshlrev_b32 v{t6}, 1, v{vLane}")
    e(f"buffer_load_ushort v{vWs}, v{t6}, s[68:71], 0 offen"); vm.add("ws")
    e(f"v_lshlrev_b32 v{t6}, 4, v{vG}")
    e(f"buffer_load_dwordx4 v[{W3F}:{W3F+3}], v{t6}, s[68:71], 0 offen offset:104"); vm.add("w3f")
    e("s_load_dword s47, s[18:19], 0")
    nsp = int(opts.get("nsp", "0"))
    if nsp:
        e(f"s_mul_i32 s63, s2, 1664"); e(f"s_mul_i32 s64, s{sC}, 416"); e("s_add_u32 s63, s63, s64")
        e("s_add_u32 s74, s4, s63"); e("s_addc_u32 s75, s5, 0")
        e("s_load_dwordx16 s[48:63], s[74:75], 0") if False else e("s_load_dwordx8 s[48:55], s[74:75], 0")
        e("s_load_dwordx8 s[76:83], s[74:75], 32")
    e(f"s_and_b32 s{sSh}, s{sC}, 1")
    scatter_addr(SA2, F2, True, 13)
    vH1, vH2 = 72, 73
    e(f"v_lshrrev_b32 v{t5}, 2, v{vL15}")
    e(f"v_lshl_add_u32 v{t5}, v{vG}, 3, v{t5}")
    e(f"v_add_u32 v{t6}, 4, v{t5}")
    e(f"v_min_u32 v{t5}, 25, v{t5}"); e(f"v_min_u32 v{t6}, 25, v{t6}")
    e(f"v_and_b32 v{t7}, 3, v{vL15}"); e(f"v_lshlrev_b32 v{t7}, 3, v{t7}")
    e("s_movk_i32 s64, 1352")
    e(f"v_mad_u32_u24 v{vH1}, v{t5}, s64, v{t7}"); e(f"v_mad_u32_u24 v{vH2}, v{t6}, s64, v{t7}")
    QA = 76
    for j in range(3):
        ee, h, k_, ad = t4, t5, t6, QA + j
        e(f"s_lshl_b32 s63, s{sC}, 6"); e(f"s_add_u32 s63, s63, {256*j}")
        e(f"v_add_u32 v{ee}, s63, v{vLane}")
        e(f"v_mul_u32_u24 v{h}, 2521, v{ee}"); e(f"v_lshrrev_b32 v{h}, 16, v{h}")
        e(f"v_mul_u32_u24 v{k_}, 26, v{h}"); e(f"v_sub_u32 v{k_}, v{ee}, v{k_}")
        e(f"v_cmp_gt_u32 vcc, 676, v{ee}")
        e(f"v_lshrrev_b32 v{ad}, 4, v{k_}"); e(f"v_lshlrev_b32 v{ad}, 10, v{ad}")
        e(f"v_and_b32 v{k_}, 15, v{k_}"); e(f"v_lshl_add_u32 v{ad}, v{k_}, 4, v{ad}")
        e(f"v_lshrrev_b32 v{k_}, 3, v{h}"); e(f"v_lshl_add_u32 v{ad}, v{k_}, 8, v{ad}")
        e(f"v_and_b32 v{h}, 7, v{h}"); e(f"v_lshl_add_u32 v{ad}, v{h}, 1, v{ad}")
        e(f"v_add_u32 v{ad}, {QB}, v{ad}")
        e(f"v_cndmask_b32 v{ad}, v{vDum}, v{ad}, vcc")
    vT1, vT2 = 37, 38
    e(f"s_lshl_b32 s63, s{sC}, 7"); e(f"s_add_u32 s63, s63, {W3L}")
    e(f"v_add_u32 v{vT1}, s63, v{vH1}"); e(f"v_add_u32 v{vT2}, s63, v{vH2}")
    TA1, TA2, vM = 39, 75, 74
    e(f"s_mul_i32 s63, s{sC}, 52"); e(f"s_lshl_b32 s64, s{sSh}, 2"); e("s_sub_u32 s63, s63, s64"); e(f"s_add_u32 s63, s63, {W2L}")
    e(f"v_add_u32 v{TA1}, s63, v{vH1}"); e(f"v_add_u32 v{TA2}, s63, v{vH2}")
    e(f"s_lshl_b32 s64, s{sSh}, 1"); e("s_add_u32 s64, s64, 10")
    e(f"v_cmp_gt_u32 vcc, s64, v{vL15}")
    QAD = [44, 45]
    e(f"s_lshl_b32 s63, s{sSh}, 1")
    e("s_nop 0")
    e(f"v_cndmask_b32 v{vM}, 0, -1, vcc")
    for aa in range(2):
        e(f"v_subrev_u32 v{t4}, s63, v{vL15}")
        if aa: e(f"v_add_u32 v{t4}, 16, v{t4}")
        e(f"v_min_u32 v{t4}, 31, v{t4}")
        e(f"v_lshrrev_b32 v{t5}, 4, v{t4}"); e(f"v_lshlrev_b32 v{t5}, 10, v{t5}")
        e(f"v_and_b32 v{t4}, 15, v{t4}"); e(f"v_lshl_add_u32 v{t5}, v{t4}, 4, v{t5}")
        e(f"v_lshl_add_u32 v{t5}, v{vG}, 8, v{t5}")
        e(f"v_add_u32 v{QAD[aa]}, {QB}, v{t5}")
    vFa = 226
    e(f"v_lshrrev_b32 v{t5}, 5, v{vLane}")
    e(f"v_mul_u32_u24 v{t6}, {HS}, v{t5}")
    e(f"v_and_b32 v{t7}, 31, v{vLane}")
    e(f"v_lshl_add_u32 v{vFa}, v{t7}, 4, v{t6}")
    if nsp:
        e("s_waitcnt lgkmcnt(0)")
        regs = list(range(48, 56)) + list(range(76, 84))
        for i in range(nsp):
            r = regs[i]
            e(f"s_lshl_b32 s{r}, s{r}, 5")
            e(f"s_load_dword s{r}, s[6:7], s{r}")
    st("w1")
    vm.wait("w3f")
    e(f"v_lshlrev_b32 v{t5}, 16, v{vWs}")
    e(f"v_cmp_gt_u32 s[88:89], 26, v{vLane}")
    e(f"v_cmp_gt_u32 s[90:91], 32, v{vLane}")
    e(f"v_lshlrev_b32 v{t6}, 2, v{vLane}")
    e(f"v_add_u32 v{t6}, {W1F}, v{t6}")
    e(f"v_cndmask_b32 v{t5}, 0, v{t5}, s[88:89]")
    e(f"v_cndmask_b32 v{t6}, v{vDum}, v{t6}, s[90:91]")
    e(f"ds_write_b32 v{t6}, v{t5}")
    e(f"v_subrev_u32 v{t5}, 26, v{vLane}")
    e(f"v_cmp_gt_u32 s[88:89], 26, v{t5}")
    e(f"v_lshrrev_b32 v{t6}, 3, v{t5}")
    e(f"v_lshlrev_b32 v{t6}, 8, v{t6}")
    e(f"v_and_b32 v{t7}, 7, v{t5}")
    e(f"v_lshl_add_u32 v{t6}, v{t7}, 1, v{t6}")
    e(f"v_add_u32 v{t6}, {QB+1024+160}, v{t6}")
    e(f"v_cndmask_b32 v{t6}, v{vDum}, v{t6}, s[88:89]")
    e(f"ds_write_b16 v{t6}, v{vWs}")
    AW = 56
    for gq in range(4): e(f"v_cmp_eq_u32 s[{88+2*gq}:{89+2*gq}], {4*gq}, v{vL15}")
    for gq in range(4):
        for j in range(4): e(f"v_cndmask_b32 v{AW+4*gq+j}, 0, v{W3F+j}, s[{88+2*gq}:{89+2*gq}]")
    e("s_waitcnt lgkmcnt(0)")
    e("s_barrier")
    st("bi")
    a.c("Weff")
    WB = 80; WD = 128
    for j in range(3):
        for gq in range(4):
            b = WB + 16*j + 4*gq
            e(f"ds_read_b64_tr_b16 v[{b}:{b+1}], v{vT1} offset:{j*512+32*gq}")
            e(f"ds_read_b64_tr_b16 v[{b+2}:{b+3}], v{vT2} offset:{j*512+32*gq}")
    for j in range(3):
        e(f"s_waitcnt lgkmcnt({min(15, 8*(2-j))})")
        for gq in range(4):
            b = WB + 16*j + 4*gq; d = WD + 4*j
            c = "0" if gq == 0 else f"v[{d}:{d+3}]"
            e(f"v_mfma_f32_16x16x32_bf16 v[{d}:{d+3}], v[{AW+4*gq}:{AW+4*gq+3}], v[{b}:{b+3}], {c}")
    a.nop(8)
    for j in range(3): e(f"v_cvt_pk_bf16_f32 v{t4+j}, v{WD+4*j}, v{WD+4*j}")
    for j in range(3): e(f"ds_write_b16 v{QA+j}, v{t4+j}")
    st("weff")
    e("s_waitcnt vmcnt(0) lgkmcnt(0)")
    e("s_barrier")
    st("b2")
    a.c("S2")
    Q0, Q1 = 140, 144
    lg.l = []
    e(f"ds_read_b128 v[{Q0}:{Q0+3}], v{QAD[0]}"); e(f"ds_read_b128 v[{Q1}:{Q1+3}], v{QAD[1]}"); lg.add("q", 2)
    PS = [48, 56, 64]
    cvt = lambda k, j: f"v_cvt_pk_bf16_f32 v{CV[k&1]+j}, v{DS[k&1]+2*j}, v{DS[k&1]+2*j+1}"
    wr = lambda SA, k, j: f"ds_write_b32 v{SA+j}, v{CV[k&1]+j} offset:{k*64}"
    def p_reads(k):
        P = PS[k % 3]
        return [f"ds_read_b64_tr_b16 v[{P}:{P+1}], v{TA1} offset:{k*208}",
                f"ds_read_b64_tr_b16 v[{P+2}:{P+3}], v{TA2} offset:{k*208}",
                f"ds_read_b64_tr_b16 v[{P+4}:{P+5}], v{TA1} offset:{k*208+32}",
                f"ds_read_b64_tr_b16 v[{P+6}:{P+7}], v{TA2} offset:{k*208+32}"]
    for k in (0, 1):
        for x in p_reads(k): e(x)
        lg.add(f"p{k}", 4)
    def masks(k): return [f"v_and_b32 v{PS[k%3]+4+j}, v{vM}, v{PS[k%3]+4+j}" for j in range(4)]
    lg.wait("p0")
    for x in masks(0): e(x)
    a.nop(1)
    for k in range(9):
        M = mf6(DS[k & 1], PS[k % 3], PS[k % 3]+4, Q0, Q1) if k < 7 else [None]*6
        R = p_reads(k+2) if k + 2 < 7 else []
        if k == 7: a.nop(4)
        if k == 8:
            e(f"s_cmp_lt_u32 s{sC}, 2"); e("s_cbranch_scc1 L_s2v")
            for j in range(6): e(f"v_mov_b32 v{SA2+j}, v{vDum}")
            a.label("L_s2v")
        for j in range(6):
            if j == 4 and k + 1 < 7:
                lg.wait(f"p{k+1}")
                for x in masks(k+1): e(x)
            if M[j]: e(M[j])
            if k >= 2: e(wr(SA2, k-2, j)); lg.add("w")
            if 1 <= k <= 7: e(cvt(k-1, j))
            if j < len(R): e(R[j]); lg.add(f"p{k+2}")
    st("s2")
    e("s_waitcnt lgkmcnt(0)")
    e("s_barrier")
    e("s_barrier")
    st("b3")
    if dbg == "lds":
        e("s_cmp_eq_u32 s2, 0"); e("s_cbranch_scc0 L_nodump")
        e(f"v_lshlrev_b32 v{t4}, 4, v0")
        for k in range(40):
            e(f"v_add_u32 v{t5}, {k*4096}, v{t4}")
            e(f"ds_read_b128 v[{t0}:{t3}], v{t5}")
            e("s_waitcnt lgkmcnt(0)")
            e(f"global_store_dwordx4 v{t5}, v[{t0}:{t3}], s[98:99]")
            e("s_waitcnt vmcnt(0)")
        a.label("L_nodump")
    a.c("C main")
    XA, YA, XB, YB = 8, 34, 47, 73
    D1A, D2A, D1B, D2B = 96, 112, 128, 144
    ZB = [[160, 164], [168, 172]]
    AB = [176, 184, 192]
    TM = [200, 201, 202, 203, 204, 205, 206, 207]
    WI = 208; vXb = 224; PK = 176
    e(f"v_and_b32 v{TM[4]}, 1, v{vG}")
    e(f"s_lshl_b32 s63, s{sC}, 2")
    e(f"v_add_u32 v{TM[4]}, s63, v{TM[4]}")
    e(f"v_mul_u32_u24 v{TM[4]}, 832, v{TM[4]}")
    e(f"v_lshrrev_b32 v{TM[5]}, 2, v{vL15}")
    e(f"v_lshl_add_u32 v{TM[4]}, v{TM[5]}, 5, v{TM[4]}")
    e(f"v_and_b32 v{TM[5]}, 3, v{vL15}")
    e(f"v_lshl_add_u32 v{TM[4]}, v{TM[5]}, 3, v{TM[4]}")
    e(f"v_add_u32 v{vXb}, {X0}, v{TM[4]}")
    safe = int(opts.get("safe", "0"))
    for T in range(2):
        for fb in range(7):
            e(f"ds_read_b64_tr_b16 v[{PK+14*T+2*fb}:{PK+14*T+2*fb+1}], v{vXb} offset:{T*1664 + fb*128}")
    e(f"v_lshrrev_b32 v{TM[5]}, 5, v{vLane}")
    e(f"v_lshlrev_b32 v{TM[6]}, 4, v{TM[5]}")
    e(f"v_add_u32 v{TM[6]}, {W1F}, v{TM[6]}")
    if safe: e("s_waitcnt lgkmcnt(0)")
    for m in range(4): e(f"ds_read_b128 v[{WI+4*m}:{WI+4*m+3}], v{TM[6]} offset:{m*32}")
    e(f"v_cmp_eq_u32 s[72:73], 1, v{TM[5]}")
    for T, (X, Y) in enumerate(((XA, YA), (XB, YB))):
        e(f"s_waitcnt lgkmcnt({11 if T == 0 else 4})")
        for g in range(13):
            p = PK + 14*T + g
            e(f"v_lshlrev_b32 v{X+2*g}, 16, v{p}")
            e(f"v_and_b32 v{X+2*g+1}, 0xffff0000, v{p}")
        for g in range(13): e(f"v_cndmask_b32 v{Y+g}, v{X+2*g}, v{X+2*g+1}, s[72:73]")
    def a_read(t):
        b = AB[t % 3]
        if t <= 22: e(f"ds_read_b128 v[{b}:{b+3}], v{vFa} offset:{F1 + t*FS}")
        if t <= 25: e(f"ds_read_b128 v[{b+4}:{b+7}], v{vFa} offset:{F2 + t*FS}")
    blocks = [(g, gp) for g in range(14) for gp in range(min(g, 12)+1)]
    def zgen(t, T):
        X, Y = ((XA, YA), (XB, YB))[T]
        z = ZB[t & 1][T]; mul = []; cv = []
        for j in range(4):
            g, gp = blocks[4*t + j]
            ta, tb, th = TM[2*j], TM[2*j+1], 228 + T
            if g == 13: cv.append(f"v_cvt_pk_bf16_f32 v{z+j}, v{Y+gp}, 0")
            else:
                y = Y + gp
                if g == gp:
                    mul.append(f"v_mul_f32 v{th}, 0.5, v{Y+gp}"); y = th
                mul.append(f"v_mul_f32 v{ta}, v{X+2*g}, v{y}")
                mul.append(f"v_mul_f32 v{tb}, v{X+2*g+1}, v{y}")
                cv.append(f"v_cvt_pk_bf16_f32 v{z+j}, v{ta}, v{tb}")
        return mul + cv
    st("xld")
    a_read(0); a_read(1)
    for T in range(2):
        for s in zgen(0, T): e(s)
    cnt = {t: (1 if t > 22 else 2) for t in range(26)}
    for t in range(26):
        younger = cnt[t+1] if t+1 <= 25 else 0
        e(f"s_waitcnt lgkmcnt({younger})")
        b = AB[t % 3]; mf = []; rds = []
        if t + 2 <= 25:
            b2 = AB[(t+2) % 3]
            if t + 2 <= 22: rds.append(f"ds_read_b128 v[{b2}:{b2+3}], v{vFa} offset:{F1 + (t+2)*FS}")
            rds.append(f"ds_read_b128 v[{b2+4}:{b2+7}], v{vFa} offset:{F2 + (t+2)*FS}")
        for T, (D1, D2) in enumerate(((D1A, D2A), (D1B, D2B))):
            z = ZB[t & 1][T]
            if t <= 22:
                c = "0" if t == 0 else f"v[{D1}:{D1+15}]"
                mf.append(f"v_mfma_f32_32x32x16_bf16 v[{D1}:{D1+15}], v[{b}:{b+3}], v[{z}:{z+3}], {c}")
            c = f"v[{WI}:{WI+15}]" if t == 0 else f"v[{D2}:{D2+15}]"
            mf.append(f"v_mfma_f32_32x32x16_bf16 v[{D2}:{D2+15}], v[{b+4}:{b+7}], v[{z}:{z+3}], {c}")
        va = (zgen(t+1, 0) + zgen(t+1, 1)) if t < 25 else []
        n = len(mf); per = (len(va) + n - 1)//n if va else 0
        if t == 0: a.nop(2)
        vi = 0
        for mi, m in enumerate(mf):
            e(m)
            if mi < len(rds): e(rds[mi])
            for s in va[vi:vi+per]: e(s)
            vi += per
    a.nop(16)
    st("main")
    for T, (D1, D2) in enumerate(((D1A, D2A), (D1B, D2B))): e(f"v_mul_f32 v{TM[T]}, v{D1}, v{D2}")
    for r in range(1, 14):
        for T, (D1, D2) in enumerate(((D1A, D2A), (D1B, D2B))): e(f"v_fmac_f32 v{TM[T]}, v{D1+r}, v{D2+r}")
    if opts.get("chk"):
        for T in range(2):
            for fb in range(7):
                e(f"ds_read_b64_tr_b16 v[{96+14*T+2*fb}:{96+14*T+2*fb+1}], v{vXb} offset:{T*1664 + fb*128}")
            e("s_waitcnt lgkmcnt(0)")
        e("v_mov_b32 v230, 0x41200000")
        for T, (X, Y) in enumerate(((XA, YA), (XB, YB))):
            for g in range(13):
                p = 96 + 14*T + g
                e(f"v_lshlrev_b32 v228, 16, v{p}")
                e(f"v_cmp_ne_u32 vcc, v228, v{X+2*g}")
                e("s_nop 1")
                e(f"v_cndmask_b32 v229, 0, v230, vcc")
                e(f"v_add_f32 v{TM[T]}, v{TM[T]}, v229")
                e(f"v_and_b32 v228, 0xffff0000, v{p}")
                e(f"v_cmp_ne_u32 vcc, v228, v{X+2*g+1}")
                e("s_nop 1")
                e(f"v_cndmask_b32 v229, 0, v230, vcc")
                e(f"v_add_f32 v{TM[T]}, v{TM[T]}, v229")
    for sh in (8, 4, 2, 1):
        a.nop(2)
        for T in range(2): e(f"v_add_f32_dpp v{TM[T]}, v{TM[T]}, v{TM[T]} row_ror:{sh} row_mask:0xf bank_mask:0xf")
    e(f"v_bfe_u32 v{TM[2]}, v{vLane}, 4, 1")
    e(f"v_lshlrev_b32 v{TM[2]}, 3, v{TM[2]}")
    e(f"v_lshrrev_b32 v{TM[3]}, 5, v{vLane}")
    e(f"v_lshl_add_u32 v{TM[2]}, v{TM[3]}, 2, v{TM[2]}")
    e(f"s_lshl_b32 s63, s{sC}, 5"); e(f"s_add_u32 s63, s63, {RED}")
    e(f"v_add_u32 v{TM[2]}, s63, v{TM[2]}")
    e(f"ds_write_b32 v{TM[2]}, v{TM[0]}")
    e(f"ds_write_b32 v{TM[2]}, v{TM[1]} offset:16")
    e("s_branch L_final")

    a.label("L_D")
    sD, sDB, sK, sNI = 66, 67, 80, 79
    srd(SRD_TAB, 6, 3200000)
    srd(SRD_WD, 12, 346112)
    srd(SRD_WS, 8, 105456)
    P = 16; ACC = 32; BB = [64, 96]; AF = [128, 132]; TRA = 136; W2R = 144; BIAS = 152; OUT = 160; GT = 164; vC0 = 184; vA = 185
    W1R = 64; I0, I1 = 120, 124
    SA1 = 192; DSd = [198, 210]; CVd = [222, 164]
    vW1 = 27
    e(f"s_mul_i32 s81, s{sD}, 224")
    e(f"s_mul_i32 s63, s{sD}, 192"); e("s_add_u32 s63, s63, 64")
    e(f"s_mul_i32 s{sDB}, s{sD}, 7168")
    e(f"s_mul_i32 s64, s{sD}, 6144"); e("s_add_u32 s64, s64, 2048")
    e(f"s_cmp_lt_u32 s{sD}, 2")
    e("s_cselect_b32 s81, s81, s63"); e(f"s_cselect_b32 s{sDB}, s{sDB}, s64")
    e(f"s_cselect_b32 s{sNI}, 7, 6")
    e("s_movk_i32 s74, 5462"); e("s_cselect_b32 s74, 4682, s74")
    e("s_cselect_b32 s75, 14, 12")
    e("s_movk_i32 s78, 192"); e("s_cselect_b32 s78, 224, s78")
    e("s_cselect_b32 s76, -1, 0")
    e(f"s_add_u32 s{sDB}, s{sDB}, {RING}")
    e("s_mov_b64 exec, 0xffff")
    for ptr, off in ((14, 0), (16, 256)):
        e(f"s_mov_b32 s68, s{ptr}"); e(f"s_mov_b32 s69, s{ptr+1}"); e("s_mov_b32 s70, 832"); e("s_mov_b32 s71, 0x20000")
        e(f"s_add_u32 m0, s{sDB}, {off}"); e("s_nop 0")
        e(f"buffer_load_dwordx4 v{vL16}, s[68:71], s81 offen lds")
    e("s_mov_b64 exec, -1")
    sLS, sLD = 72, 73
    def lin_start(src, dst):
        e(f"s_lshl_b32 s{sLD}, s{sD}, 10")
        e(f"s_add_u32 s{sLS}, s{sLD}, {src}"); e(f"s_add_u32 s{sLD}, s{sLD}, {dst}")
    uid = [0]
    def lin_one(k):
        if k < 8:
            e(f"s_mov_b32 m0, s{sLD}"); e(f"s_add_u32 s{sLD}, s{sLD}, 4096")
            e(f"buffer_load_dwordx4 v{vL16}, s[{SRD_WS}:{SRD_WS+3}], s{sLS} offen lds")
            e(f"s_add_u32 s{sLS}, s{sLS}, 4096")
        else:
            uid[0] += 1; lab = f"L_lin{uid[0]}"
            e(f"s_cmp_lt_u32 s{sD}, 2"); e(f"s_cbranch_scc1 {lab}")
            e("s_mov_b64 exec, 0x1fffff")
            e(f"s_cmp_eq_u32 s{sD}, 2"); e(f"s_cbranch_scc1 {lab}")
            e(f"s_mov_b32 s{sLS}, {BIG}"); e(f"s_mov_b32 s{sLD}, {DUM}")
            a.label(lab)
            e(f"s_mov_b32 m0, s{sLD}"); e("s_nop 0")
            e(f"buffer_load_dwordx4 v{vL16}, s[{SRD_WS}:{SRD_WS+3}], s{sLS} offen lds")
            e("s_mov_b64 exec, -1")
    lin_start(2*35152, W3L)
    for k in range(n3first): lin_one(k)
    e(f"v_and_b32 v{t0}, 1, v{vLane}"); e(f"v_lshlrev_b32 v{t0}, 4, v{t0}")
    e(f"v_mul_u32_u24 v{t7}, 52, v{vL15}")
    e(f"v_lshl_add_u32 v{vW1}, v{vG}, 4, v{t7}")
    def patterns():
        for j in range(7):
            m, row, cp, p_, b3 = t1, t2, t3, t4, t5
            e(f"v_add_u32 v{m}, {64*j}, v{vLane}")
            e(f"v_mul_u32_u24 v{row}, s74, v{m}"); e(f"v_lshrrev_b32 v{row}, 16, v{row}")
            e(f"v_mul_u32_u24 v{cp}, s75, v{row}"); e(f"v_sub_u32 v{cp}, v{m}, v{cp}")
            e(f"v_lshrrev_b32 v{p_}, 1, v{cp}")
            e(f"v_bfe_u32 v{b3}, v{row}, 3, 1")
            e(f"v_xor_b32 v{t6}, v{p_}, v{b3}")
            e(f"v_add_u32 v{t7}, 3, v{p_}")
            e(f"v_cmp_lt_u32 vcc, 6, v{t7}")
            e(f"v_subrev_u32 v{m}, 7, v{t7}")
            e(f"v_and_b32 v{cp}, 1, v{cp}")
            e(f"v_cndmask_b32 v{t7}, v{t7}, v{m}, vcc")
            e(f"v_cmp_eq_u32 vcc, 1, v{b3}")
            e(f"v_mul_u32_u24 v{row}, 832, v{row}")
            e(f"v_add_u32 v{row}, s81, v{row}")
            e(f"v_cndmask_b32 v{t7}, v{p_}, v{t7}, vcc")
            e(f"v_and_b32 v{t7}, s76, v{t7}")
            e(f"v_not_b32 v{m}, s76"); e(f"v_and_b32 v{t6}, v{m}, v{t6}")
            e(f"v_or_b32 v{t7}, v{t7}, v{t6}")
            e(f"v_lshl_add_u32 v{cp}, v{t7}, 1, v{cp}")
            e(f"v_lshl_add_u32 v{cp}, v{cp}, 4, v{row}")
            if j & 3: e(f"v_subrev_u32 v{P+j}, {(j & 3)*1024}, v{cp}")
            else: e(f"v_mov_b32 v{P+j}, v{cp}")
        e(f"v_lshrrev_b32 v{t2}, 2, v{vL15}")
        e(f"v_lshl_add_u32 v{t3}, v{vG}, 3, v{t2}")
        e(f"v_mul_u32_u24 v{t3}, s78, v{t3}")
        e(f"v_and_b32 v{t4}, 3, v{vL15}")
        e(f"v_lshl_add_u32 v{t3}, v{t4}, 3, v{t3}")
        e(f"v_add_u32 v{t3}, s{sDB}, v{t3}")
        e(f"v_and_b32 v{t4}, 1, v{vG}")
        e(f"v_cmp_eq_u32 vcc, 1, v{t4}")
        e(f"v_not_b32 v{t6}, s76")
        for tau in range(7):
            e(f"v_mov_b32 v{t5}, {tau}")
            e(f"v_mov_b32 v{t7}, {(tau+4) % 7}")
            e(f"v_xor_b32 v{t2}, {tau}, v{t4}")
            e(f"v_cndmask_b32 v{t5}, v{t5}, v{t7}, vcc")
            e(f"v_and_b32 v{t5}, s76, v{t5}")
            e(f"v_and_b32 v{t2}, v{t6}, v{t2}")
            e(f"v_or_b32 v{t5}, v{t5}, v{t2}")
            e(f"v_lshl_add_u32 v{TRA+tau}, v{t5}, 5, v{t3}")
        e(f"v_mul_u32_u24 v{vA}, 832, v{vL15}")
        e(f"v_lshl_add_u32 v{vA}, v{vG}, 4, v{vA}")
        e(f"v_add_u32 v{vA}, {X0}, v{vA}")
    patearly = int(opts.get("pate", "1"))
    if patearly: patterns()
    st("w1")
    def w1_loads():
        e(f"s_mul_i32 s63, s{sD}, 1352")
        for k in range(7):
            if k == 6:
                e(f"s_cmp_lt_u32 s{sD}, 2"); e(f"s_cselect_b32 s63, s63, {BIG}")
            e(f"buffer_load_dwordx4 v[{W1R+8*k}:{W1R+8*k+3}], v{vW1}, s[{SRD_WS}:{SRD_WS+3}], s63 offen")
            e(f"buffer_load_dwordx4 v[{W1R+8*k+4}:{W1R+8*k+7}], v{vW1}, s[{SRD_WS}:{SRD_WS+3}], s63 offen offset:832")
            if k < 6: e(f"s_add_u32 s63, s63, {4*1352}")
    def gathers():
        for k in range(4): e(f"v_lshl_add_u32 v{vIdx+k}, v{vIdx+k}, 5, v{t0}")
        e(f"s_mul_i32 s63, s{sD}, {4*832}"); e(f"s_add_u32 s63, s63, {X0}")
        e("s_mov_b32 exec_lo, -1"); e("s_mov_b32 exec_hi, 0xfffff")
        for k in range(4):
            e(f"s_add_u32 m0, s63, {832*k}"); e("s_nop 0")
            e(f"buffer_load_dwordx4 v{vIdx+k}, s[{SRD_TAB}:{SRD_TAB+3}], 0 offen lds")
        e("s_mov_b64 exec, -1")
    def bias_read():
        e(f"v_lshlrev_b32 v{t1}, 1, v{vL15}"); e(f"v_add_u32 v{t1}, s{sDB}, v{t1}")
        for tau in range(7):
            e(f"v_mov_b32 v{BIAS+tau}, 0"); e(f"v_mov_b32 v{W2R+tau}, 0")
        for tau in range(7):
            e(f"ds_read_u16_d16_hi v{BIAS+tau}, v{t1} offset:{tau*32}")
            e(f"ds_read_u16_d16_hi v{W2R+tau}, v{t1} offset:{256+tau*32}")
        e("s_waitcnt lgkmcnt(0)")
        for tau in range(7):
            for r in range(4): e(f"v_mov_b32 v{ACC+4*tau+r}, v{BIAS+tau}")
    def kdma(slot):
        uid[0] += 1; lab = f"L_k{uid[0]}"
        for j in range(7):
            if j == 6:
                e(f"s_cmp_eq_u32 s{sNI}, 6"); e(f"s_cbranch_scc1 {lab}")
            if (j & 3) == 0:
                e(f"s_add_u32 m0, s{sDB}, {slot*SLOT + (j >> 2)*4096}"); e("s_nop 0")
            off = f" offset:{(j & 3)*1024}" if j & 3 else ""
            e(f"buffer_load_dwordx4 v{P+j}, s[{SRD_WD}:{SRD_WD+3}], s{sK} offen{off} lds")
        a.label(lab)
        e(f"s_add_u32 s{sK}, s{sK}, {SLOT}")
    def s1_setup():
        e(f"v_lshlrev_b32 v{t4}, 3, v{vG}")
        e(f"v_sub_u32 v{t4}, v{vL15}, v{t4}")
        e(f"v_and_b32 v{t5}, 1, v{t4}")
        e(f"v_lshlrev_b32 v{t5}, 4, v{t5}")
        e(f"v_mov_b32 v{t6}, 0x3f80")
        e(f"v_lshlrev_b32 v{t5}, v{t5}, v{t6}")
        e(f"v_ashrrev_i32 v{t4}, 1, v{t4}")
        e(f"v_add_u32 v{t6}, 8, v{t4}")
        for j in range(4): e(f"v_cmp_eq_u32 s[{88+2*j}:{89+2*j}], {j}, v{t4}")
        for j in range(4): e(f"v_cndmask_b32 v{I0+j}, 0, v{t5}, s[{88+2*j}:{89+2*j}]")
        for j in range(4): e(f"v_cmp_eq_u32 s[{88+2*j}:{89+2*j}], {j}, v{t6}")
        for j in range(4): e(f"v_cndmask_b32 v{I1+j}, 0, v{t5}, s[{88+2*j}:{89+2*j}]")
        scatter_addr(SA1, F1, False, 12, 198)
    def S1():
        cvt = lambda k, j: f"v_cvt_pk_bf16_f32 v{CVd[k&1]+j}, v{DSd[k&1]+2*j}, v{DSd[k&1]+2*j+1}"
        wr = lambda k, j: f"ds_write_b32 v{SA1+j}, v{CVd[k&1]+j} offset:{k*64}"
        for k in range(9):
            M = mf6(DSd[k & 1], W1R+8*k, W1R+8*k+4, I0, I1) if k < 7 else [None]*6
            if k == 7: a.nop(4)
            if k == 1: a.nop(5)
            if k == 2: a.nop(1)
            for j in range(6):
                if M[j]: e(M[j])
                if k >= 2: e(wr(k-2, j))
                if 1 <= k <= 7: e(cvt(k-1, j))
    e(f"s_mov_b32 s{sK}, 0")
    for k in range(n3first, 9): lin_one(k)
    lin_start(35152, W2L)
    for k in range(9): lin_one(k)
    e("s_waitcnt vmcnt(9)")
    e("s_barrier")
    st("bi")
    w1_loads()
    e("s_waitcnt vmcnt(14)")
    e("s_barrier")
    st("b2")
    gathers()
    st("sb1")
    bias_read()
    if not patearly: patterns()
    s1_setup()
    e("s_waitcnt vmcnt(4)")
    S1()
    k01late = int(opts.get("k01late", "0"))
    if not k01late: kdma(0); kdma(1)
    st("s1")
    e("s_waitcnt lgkmcnt(0)")
    e("s_barrier")
    if k01late: kdma(0); kdma(1)
    kdma(2)
    st("issued")
    e(f"s_cmp_lt_u32 s{sD}, 2"); e("s_cbranch_scc0 L_D6")
    def emit_D(NT):
        tag = f"T{NT}"; nI = NT; nt = NT; RS = 32*NT
        e(f"s_waitcnt vmcnt({3*nI})")
        st("s2")
        e("s_barrier")
        st("b3")
        if prio: e(f"s_setprio {prio}")
        def reads(b, slot, astep):
            r = [f"ds_read_b128 v[{AF[b]}:{AF[b]+3}], v{vA} offset:{64*astep}"]
            for tau in range(nt):
                r.append(f"ds_read_b64_tr_b16 v[{BB[b]+4*tau}:{BB[b]+4*tau+1}], v{TRA+tau} offset:{slot*SLOT}")
                r.append(f"ds_read_b64_tr_b16 v[{BB[b]+4*tau+2}:{BB[b]+4*tau+3}], v{TRA+tau} offset:{slot*SLOT+4*RS}")
            return r
        def mfmas(b):
            return [f"v_mfma_f32_16x16x32_bf16 v[{ACC+4*tau}:{ACC+4*tau+3}], v[{AF[b]}:{AF[b]+3}], v[{BB[b]+4*tau}:{BB[b]+4*tau+3}], v[{ACC+4*tau}:{ACC+4*tau+3}]" for tau in range(nt)]
        e(f"s_waitcnt vmcnt({2*nI})")
        for x in reads(0, 0, 0): e(x)
        e("s_waitcnt lgkmcnt(0)")
        e("s_mov_b32 s82, 0")
        st("xld")
        a.label(f"L_dl{tag}")
        for i in range(6):
            e(f"s_waitcnt vmcnt({nI})")
            R = reads((i+1) & 1, (i+1) % 3, i+1)
            Ms = mfmas(i & 1)
            e(f"s_add_u32 m0, s{sDB}, {(i % 3)*SLOT}")
            e(R[0]); ri = 1
            for j in range(nI):
                if j == 4:
                    e(f"s_add_u32 m0, s{sDB}, {(i % 3)*SLOT + 4096}")
                    e(R[ri]); ri += 1
                off = f" offset:{(j & 3)*1024}" if j & 3 else ""
                e(f"buffer_load_dwordx4 v{P+j}, s[{SRD_WD}:{SRD_WD+3}], s{sK} offen{off} lds")
                e(R[ri]); ri += 1
                if ri < len(R) and (len(R) - ri) > (nI - 1 - j) - (1 if j < 4 else 0): e(R[ri]); ri += 1
                e(Ms[j])
            while ri < len(R): e(R[ri]); ri += 1
            e(f"s_add_u32 s{sK}, s{sK}, {SLOT}")
            e("s_waitcnt lgkmcnt(0)")
        e(f"v_add_u32 v{vA}, {6*64}, v{vA}")
        e("s_add_u32 s82, s82, 1")
        e("s_cmp_lt_u32 s82, 2"); e(f"s_cbranch_scc1 L_dl{tag}")
        C0 = -2.0*0.7978845608028654*1.4426950408889634; C1 = C0*0.044715
        ML = mfmas(0)
        def gelu_ops(tau):
            x = ACC + 4*tau; Uu, E, Yv = GT, GT+4, GT+8
            r4 = range(4)
            return ([f"v_mul_f32 v{Uu+r}, v{x+r}, v{x+r}" for r in r4] +
                    [f"v_fmamk_f32 v{Uu+r}, v{Uu+r}, 0x{f32bits(C1):08x}, v{vC0}" for r in r4] +
                    [f"v_mul_f32 v{Uu+r}, v{x+r}, v{Uu+r}" for r in r4] +
                    [f"v_exp_f32 v{E+r}, v{Uu+r}" for r in r4] +
                    [f"v_mul_f32 v{Yv+r}, v{x+r}, v{W2R+tau}" for r in r4] +
                    [f"v_add_f32 v{E+r}, 1.0, v{E+r}" for r in r4] +
                    [f"v_rcp_f32 v{E+r}, v{E+r}" for r in r4] + ["s_nop 0"] +
                    [f"v_fmac_f32 v{OUT+r}, v{Yv+r}, v{E+r}" for r in r4])
        if int(opts.get("tailov", "1")):
            e(ML[0]); e(ML[1]); e(ML[2])
            for r in range(4): e(f"v_mov_b32 v{OUT+r}, 0")
            e(f"v_mov_b32 v{vC0}, 0x{f32bits(C0):08x}")
            a.nop(2)
            G0 = gelu_ops(0); gi = 0
            for m in ML[3:]:
                for x in G0[gi:gi+6]: e(x)
                gi += 6
                e(m)
            for x in G0[gi:]: e(x)
            st("main")
            for tau in range(1, nt):
                for x in gelu_ops(tau): e(x)
        else:
            for x in ML: e(x)
            st("main")
            for r in range(4): e(f"v_mov_b32 v{OUT+r}, 0")
            e(f"v_mov_b32 v{vC0}, 0x{f32bits(C0):08x}")
            a.nop(8)
            for tau in range(nt):
                for x in gelu_ops(tau): e(x)
        st("gelu")
        for sh in (8, 4, 2, 1):
            a.nop(2)
            for r in range(4): e(f"v_add_f32_dpp v{OUT+r}, v{OUT+r}, v{OUT+r} row_ror:{sh} row_mask:0xf bank_mask:0xf")
        e(f"s_lshl_b32 s63, s{sD}, 6"); e(f"s_add_u32 s63, s63, {RED2}")
        e(f"v_lshlrev_b32 v{GT}, 4, v{vG}"); e(f"v_add_u32 v{GT}, s63, v{GT}")
        e(f"ds_write_b128 v{GT}, v[{OUT}:{OUT+3}]")
    emit_D(7)
    e("s_branch L_final")
    a.label("L_D6")
    emit_D(6)

    a.label("L_final")
    e(f"v_lshlrev_b32 v8, 3, v{vL15}"); e(f"v_add_u32 v8, {RED}, v8")
    e(f"v_lshlrev_b32 v9, 2, v{vL15}"); e(f"v_add_u32 v9, {RED2}, v9")
    e("s_mov_b32 s68, s20"); e("s_mov_b32 s69, s21"); e("s_mov_b32 s70, 8192"); e("s_mov_b32 s71, 0x20000")
    e("s_lshl_b32 s63, s2, 5")
    e(f"v_lshlrev_b32 v16, 1, v{vL15}")
    e("s_waitcnt lgkmcnt(0)")
    e("s_barrier")
    st("fin")
    if stamp is not None:
        wg, wv = [int(x) for x in stamp.split("_")]
        e(f"s_cmp_eq_u32 s2, {wg}"); e("s_cbranch_scc0 L_nost")
        e(f"s_cmp_eq_u32 s{sW}, {wv}"); e("s_cbranch_scc0 L_nost")
        e(f"v_lshlrev_b32 v30, 2, v{vLane}")
        e("s_mov_b64 exec, 0xffff")
        e(f"global_store_dword v30, v{vSt}, s[96:97]")
        e("s_mov_b64 exec, -1")
        a.label("L_nost")
    e(f"s_cmp_eq_u32 s{sW}, 0"); e("s_cbranch_scc0 L_end")
    e("ds_read_b64 v[10:11], v8")
    for d in range(4): e(f"ds_read_b32 v{12+d}, v9 offset:{d*64}")
    e("s_lshl_b32 s47, s47, 16")
    e("s_mov_b64 exec, 0xffff")
    e("s_waitcnt lgkmcnt(0)")
    e("v_add_f32 v10, v10, v11"); e("v_add_f32 v12, v12, v13"); e("v_add_f32 v14, v14, v15")
    e("v_add_f32 v10, s47, v10"); e("v_add_f32 v12, v12, v14"); e("v_add_f32 v10, v10, v12")
    e("v_cvt_pk_bf16_f32 v10, v10, v10")
    e("buffer_store_short v10, v16, s[68:71], s63 offen")
    if tot:
        e("s_memtime s[84:85]"); e("s_memrealtime s[86:87]"); e("s_waitcnt lgkmcnt(0)")
        e("s_sub_u32 s84, s84, s100")
        e("s_lshl_b32 s63, s2, 2")
        e("v_mov_b32 v20, s84"); e("v_mov_b32 v21, s63"); e("v_mov_b32 v22, s86")
        e("s_mov_b64 exec, 1")
        e("global_store_dword v21, v20, s[96:97]")
        e("global_store_dword v21, v22, s[96:97] offset:1024")
    a.label("L_end")
    e("s_endpgm")
    a.label("CODE_END")
    return a

HEADER = """; xDeepFM (CIN + DNN) fused kernel for gfx950 -- generated by my own script
; @launch grid=(256,1,1) block=(512,1,1) lds=163840
.amdgcn_target "amdgcn-amd-amdhsa--gfx950"
.text
.globl {k}
.p2align 8
.type {k},@function
"""
FOOTER = """
.section .rodata,"a"
.p2align 6
.amdhsa_kernel {k}
  .amdhsa_next_free_vgpr {nv}
  .amdhsa_next_free_sgpr 102
  .amdhsa_accum_offset {nv}
  .amdhsa_group_segment_fixed_size 0
  .amdhsa_kernarg_size 88
  .amdhsa_user_sgpr_count 2
  .amdhsa_user_sgpr_kernarg_segment_ptr 1
  .amdhsa_system_sgpr_workgroup_id_x 1
.end_amdhsa_kernel
"""
if __name__ == "__main__":
    opts = dict(x.split("=") for x in sys.argv[2:])
    a = gen(opts)
    body = a.text()
    probs = check_hazards(body)
    for p in probs: print("HAZARD:", p, file=sys.stderr)
    open(sys.argv[1], "w").write(HEADER.format(k=KNAME) + body + FOOTER.format(k=KNAME, nv=232))
    print("written", sys.argv[1], "hazards:", len(probs), file=sys.stderr)
```

```python
import sys, struct
from asmlib import Asm, check_hazards

KNAME = "standalone__deep_cross_xdeepfm__recsys_kernel"
FS, HS = 1040, 528
F1 = 0; F2 = 23920
W3L = F2
RING = 59072; SLOT = 26624
W2L = 112816
QB = 147968
X0 = 150016
W1F = 163328; RED = W1F + 128; RED2 = RED + 128
DUM = 0x30000
BIG = 0x10000000
def f32bits(x): return struct.unpack("<I", struct.pack("<f", x))[0]

class Track:
    def __init__(self, a, name, cap): self.a, self.name, self.cap, self.l = a, name, cap, []
    def add(self, tag, n=1): self.l.extend([tag]*n)
    def count(self, tag):
        idx = [i for i, t in enumerate(self.l) if t == tag]
        assert idx, tag
        return min(len(self.l) - 1 - idx[-1], self.cap)
    def wait(self, tag): self.a.e(f"s_waitcnt {self.name}({self.count(tag)})")

def gen(opts):
    a = Asm(); e = a.e
    dbg = opts.get("dbg"); stamp = opts.get("stamp"); pf = opts.get("pf", "184")
    prio = int(opts.get("prio", "2")); pk = int(opts.get("pk", "0"))
    n3first = int(opts.get("n3", "3"))
    mode = "B"
    kin = int(opts.get("kin", "4"))
    sM = 23
    sW = 22; sC = 66
    SRD_IDX, SRD_TAB, SRD_WS, SRD_WD, SRD_T = 24, 28, 32, 36, 40
    def srd(base, ptr, nbytes):
        e(f"s_mov_b32 s{base}, s{ptr}"); e(f"s_mov_b32 s{base+1}, s{ptr+1}")
        e(f"s_mov_b32 s{base+2}, {nbytes}"); e(f"s_mov_b32 s{base+3}, 0x20000")
    vLane, vL15, vG = 1, 2, 3
    t0, t1, t2, t3, t4, t5, t6, t7 = 8, 9, 10, 11, 12, 13, 14, 15
    vL16 = 26; vDum = 24
    vSt = 231
    STI = dict(karg=0, issued=1, bi=2, idx=3, w1=4, s1=5, weff=6, b2=7, s2=8, b3=9, xld=10, main=11, gelu=12, fin=13, sb1=14)
    def st(name):
        if stamp is None: return
        e("s_memtime s[84:85]"); e("s_waitcnt lgkmcnt(0)")
        if name == "entry":
            e("s_mov_b32 s86, s84"); e(f"v_mov_b32 v{vSt}, 0")
        else:
            e("s_sub_u32 s84, s84, s86"); e(f"v_writelane_b32 v{vSt}, s84, {STI[name]}")
    combos = [(0,0,0),(0,0,1),(1,0,0),(1,0,1),(1,1,0),(1,1,1)]
    sSh = 62
    def scatter_addr(SA, Fb, shifted, gmax, tb=16):
        g0, gp0, hb, gpv = tb, tb+1, tb+2, tb+3
        q, off, lim, gq = tb+4, tb+5, tb+6, tb+7
        e(f"v_lshlrev_b32 v{g0}, 1, v{vG}")
        e(f"v_lshrrev_b32 v{gp0}, 1, v{vL15}")
        if shifted:
            e(f"v_subrev_u32 v{g0}, s{sSh}, v{g0}"); e(f"v_subrev_u32 v{gp0}, s{sSh}, v{gp0}")
        e(f"v_and_b32 v{hb}, 1, v{vL15}")
        e(f"v_mul_u32_u24 v{hb}, {HS}, v{hb}")
        e(f"s_lshl_b32 s65, s{sC}, 4")
        if Fb: e(f"s_add_u32 s65, s65, {Fb}")
        e(f"v_add_u32 v{hb}, s65, v{hb}")
        for ci, (aa, bb, pp) in enumerate(combos):
            cg = 8*aa + pp; m0_, m1_ = 88 + 4*(ci % 2), 90 + 4*(ci % 2)
            e(f"v_add_u32 v{gq}, {cg}, v{g0}")
            e(f"v_mad_i32_i24 v{q}, v{gq}, v{gq}, v{gq}")
            e(f"v_lshrrev_b32 v{q}, 1, v{q}")
            e(f"v_add3_u32 v{q}, v{q}, v{gp0}, {8*bb}")
            e(f"v_min_u32 v{lim}, 12, v{gq}")
            e(f"v_cmp_ge_u32 s[{m0_}:{m0_+1}], {gmax}, v{gq}")
            e(f"v_add_u32 v{gpv}, {8*bb}, v{gp0}")
            e(f"v_and_b32 v{off}, 0x7c, v{q}")
            e(f"v_cmp_le_u32 s[{m1_}:{m1_+1}], v{gpv}, v{lim}")
            e(f"v_lshlrev_b32 v{off}, 8, v{off}")
            e(f"v_lshl_add_u32 v{off}, v{q}, 2, v{off}")
            e(f"s_and_b64 s[{m0_}:{m0_+1}], s[{m0_}:{m0_+1}], s[{m1_}:{m1_+1}]")
            e(f"v_add_u32 v{off}, v{off}, v{hb}")
            e(f"v_cndmask_b32 v{SA+ci}, v{vDum}, v{off}, s[{m0_}:{m0_+1}]")
    def mf6(D, A0, A1, B0, B1):
        return [
         f"v_mfma_f32_16x16x32_bf16 v[{D}:{D+3}], v[{A0}:{A0+3}], v[{B0}:{B0+3}], 0",
         f"v_mfma_f32_16x16x32_bf16 v[{D+4}:{D+7}], v[{A1}:{A1+3}], v[{B0}:{B0+3}], 0",
         f"v_mfma_f32_16x16x32_bf16 v[{D+8}:{D+11}], v[{A1}:{A1+3}], v[{B1}:{B1+3}], 0",
         f"v_mfma_f32_16x16x32_bf16 v[{D}:{D+3}], v[{B0}:{B0+3}], v[{A0}:{A0+3}], v[{D}:{D+3}]",
         f"v_mfma_f32_16x16x32_bf16 v[{D+4}:{D+7}], v[{B1}:{B1+3}], v[{A0}:{A0+3}], v[{D+4}:{D+7}]",
         f"v_mfma_f32_16x16x32_bf16 v[{D+8}:{D+11}], v[{B1}:{B1+3}], v[{A1}:{A1+3}], v[{D+8}:{D+11}]"]

    tot = opts.get("tot")
    a.label(KNAME)
    if tot:
        e("s_memtime s[100:101]"); e("s_memrealtime s[94:95]") if False else None
    st("entry")
    e("s_cmp_ge_u32 s2, 256")
    e("s_cbranch_scc1 L_end")
    e("s_load_dwordx16 s[4:19], s[0:1], 0")
    e("s_load_dwordx2 s[20:21], s[0:1], 64")
    if dbg or stamp or tot: e("s_load_dwordx4 s[96:99], s[0:1], 72")
    pfd = int(opts.get("pfd", "0"))
    if pf != "0" and not pfd:
        e("s_getpc_b64 s[88:89]")
        e("v_lshlrev_b32 v28, 7, v0")
        e(f"v_min_u32 v28, CODE_END-{KNAME}-256, v28")
        e("v_mov_b32 v29, s89")
        e("v_add_co_u32 v28, vcc, s88, v28")
        e("s_nop 1")
        e("v_addc_co_u32 v29, vcc, 0, v29, vcc")
        e(f"s_movk_i32 s90, {int(pf)}")
        e("v_cmp_gt_u32 vcc, s90, v0")
        e("s_nop 0")
        e("s_and_saveexec_b64 s[92:93], vcc")
        e("s_cbranch_execz L_nopf")
        e("global_load_dword v30, v[28:29], off")
        a.label("L_nopf")
        e("s_mov_b64 exec, -1")
    elif pf != "0":
        e("s_getpc_b64 s[88:89]")
        e("s_lshr_b32 s90, s2, 3"); e("s_and_b32 s90, s90, 31"); e(f"s_mul_i32 s90, s90, {pfd}")
        e("v_add_u32 v28, s90, v0")
        e("v_lshlrev_b32 v28, 7, v28")
        e(f"v_min_u32 v28, CODE_END-{KNAME}-256, v28")
        e("v_mov_b32 v29, s89")
        e("v_add_co_u32 v28, vcc, s88, v28")
        e("s_nop 1")
        e("v_addc_co_u32 v29, vcc, 0, v29, vcc")
        e(f"v_cmp_gt_u32 vcc, {pfd}, v0")
        e("s_nop 0")
        e("s_and_saveexec_b64 s[92:93], vcc")
        e("s_cbranch_execz L_nopf")
        e("global_load_dword v30, v[28:29], off")
        a.label("L_nopf")
        e("s_mov_b64 exec, -1")
    e(f"v_lshrrev_b32 v{t4}, 6, v0")
    e(f"v_and_b32 v{vLane}, 63, v0")
    e(f"v_and_b32 v{vL15}, 15, v0")
    e(f"v_readfirstlane_b32 s{sW}, v{t4}")
    e(f"v_bfe_u32 v{vG}, v0, 4, 2")
    e(f"v_lshrrev_b32 v{t6}, 1, v{vLane}")
    e(f"v_lshlrev_b32 v{t6}, 2, v{t6}")
    e("s_lshl_b32 s61, s2, 4")
    e(f"s_and_b32 s{sC}, s{sW}, 3")
    e(f"s_lshl_b32 s62, s{sC}, 2")
    e("s_add_u32 s61, s61, s62")
    e("s_mul_i32 s61, s61, 104")
    e(f"s_bfe_u32 s{sM}, s2, 0x10003")
    for r in (t0, t1, t2, t3): e(f"v_mov_b32 v{r}, 0")
    e(f"v_lshlrev_b32 v{t4}, 4, v0")
    for k in range(3): e(f"ds_write_b128 v{t4}, v[{t0}:{t3}] offset:{k*8192}")
    e(f"v_and_b32 v{t5}, 127, v0")
    e(f"v_lshlrev_b32 v{t5}, 4, v{t5}")
    e(f"v_add_u32 v{t5}, {QB}, v{t5}")
    e(f"ds_write_b128 v{t5}, v[{t0}:{t3}]")
    e(f"v_lshlrev_b32 v{vL16}, 4, v{vLane}")
    e(f"v_mov_b32 v{vDum}, {DUM}")
    e("s_waitcnt lgkmcnt(0)")
    eidx = int(opts.get("eidx", "1"))
    if not eidx: e("s_barrier")
    st("karg")
    e(f"s_cmp_lt_u32 s{sW}, 4"); e("s_cbranch_scc1 L_touch0")
    vIdx = 4
    srd(SRD_IDX, 4, 4096*26*4)
    for k in range(4):
        e(f"buffer_load_dword v{vIdx+k}, v{t6}, s[{SRD_IDX}:{SRD_IDX+3}], s61 offen offset:{104*k}")
    a.label("L_touch0")
    tmap = opts.get("tmap", "rr")
    if tmap == "rr": e("s_lshr_b32 s62, s2, 3"); e("s_and_b32 s62, s62, 31")
    elif tmap == "ch": e("s_and_b32 s62, s2, 31")
    elif tmap == "hw":
        e("s_getreg_b32 s62, hwreg(HW_REG_HW_ID)")
        e("s_bfe_u32 s63, s62, 0x40008")
        e("s_bfe_u32 s64, s62, 0x3000d")
        e("s_lshl_b32 s64, s64, 3"); e("s_add_u32 s62, s63, s64"); e("s_and_b32 s62, s62, 31")
    elif tmap == "none": e("s_mov_b32 s62, 0x4000")
    e(f"v_lshlrev_b32 v{t5}, 7, v{vLane}")
    e(f"s_mov_b32 s{SRD_T}, s12"); e(f"s_mov_b32 s{SRD_T+1}, s13"); e(f"s_mov_b32 s{SRD_T+3}, 0x20000")
    e("s_mul_i32 s63, s62, 10880"); e("s_add_u32 s64, s63, 10880"); e("s_min_u32 s64, s64, 346112")
    e(f"s_mov_b32 s{SRD_T+2}, s64")
    e(f"s_cmp_eq_u32 s{sW}, 4"); e("s_cbranch_scc1 L_touch")
    e("s_add_u32 s63, s63, 8192")
    e(f"s_cmp_eq_u32 s{sW}, 5"); e("s_cbranch_scc1 L_touch")
    e(f"s_mov_b32 s{SRD_T}, s8"); e(f"s_mov_b32 s{SRD_T+1}, s9")
    e("s_mul_i32 s63, s62, 3328"); e("s_add_u32 s64, s63, 3328"); e("s_min_u32 s64, s64, 105456")
    e(f"s_mov_b32 s{SRD_T+2}, s64")
    e(f"s_cmp_eq_u32 s{sW}, 6"); e("s_cbranch_scc1 L_touch")
    e(f"s_mov_b32 s{SRD_T}, s6"); e(f"s_mov_b32 s{SRD_T+1}, s7"); e(f"s_mov_b32 s{SRD_T+2}, 3200000")
    e("s_mov_b32 s63, 0")
    e(f"v_lshlrev_b32 v{t5}, {int(opts.get('tlbs', '16'))}, v{vLane}")
    e(f"s_cmp_eq_u32 s{sW}, 7"); e("s_cbranch_scc1 L_touch")
    if eidx: e("s_barrier")
    e("s_branch L_C")
    a.label("L_touch")
    e(f"buffer_load_dword v31, v{t5}, s[{SRD_T}:{SRD_T+3}], s63 offen")
    if eidx: e("s_barrier")
    e("s_branch L_D")

    a.label("L_C")
    pf2 = int(opts.get("pf2", "0"))
    if pf2:
        e("s_getpc_b64 s[88:89]")
        a.label("L_pc2")
        e(f"v_add_u32 v28, {int(pf)}, v0")
        e("v_lshlrev_b32 v28, 7, v28")
        e(f"v_min_u32 v28, CODE_END-{KNAME}-256, v28")
        e(f"s_sub_u32 s88, s88, L_pc2-{KNAME}"); e("s_subb_u32 s89, s89, 0")
        e("v_mov_b32 v29, s89")
        e("v_add_co_u32 v28, vcc, s88, v28")
        e("s_nop 1")
        e("v_addc_co_u32 v29, vcc, 0, v29, vcc")
        e(f"s_movk_i32 s90, {pf2}")
        e("v_cmp_gt_u32 vcc, s90, v0")
        e("s_nop 0")
        e("s_and_saveexec_b64 s[92:93], vcc")
        e("s_cbranch_execz L_nopf2")
        e("global_load_dword v30, v[28:29], off")
        a.label("L_nopf2")
        e("s_mov_b64 exec, -1")
    vm = Track(a, "vmcnt", 63); lg = Track(a, "lgkmcnt", 15)
    SA2 = 154
    DS = [160, 172]; CV = [184, 190]
    vWs = 25; W3F = 32
    e("s_mov_b32 s68, s10"); e("s_mov_b32 s69, s11"); e("s_mov_b32 s70, 156"); e("s_mov_b32 s71, 0x20000")
    e(f"v_lshlrev_b32 v{t6}, 1, v{vLane}")
    e(f"buffer_load_ushort v{vWs}, v{t6}, s[68:71], 0 offen"); vm.add("ws")
    e(f"v_lshlrev_b32 v{t6}, 4, v{vG}")
    e(f"buffer_load_dwordx4 v[{W3F}:{W3F+3}], v{t6}, s[68:71], 0 offen offset:104"); vm.add("w3f")
    e("s_load_dword s47, s[18:19], 0")
    nsp = int(opts.get("nsp", "0"))
    if nsp:
        e(f"s_mul_i32 s63, s2, 1664"); e(f"s_mul_i32 s64, s{sC}, 416"); e("s_add_u32 s63, s63, s64")
        e("s_add_u32 s74, s4, s63"); e("s_addc_u32 s75, s5, 0")
        e("s_load_dwordx16 s[48:63], s[74:75], 0") if False else e("s_load_dwordx8 s[48:55], s[74:75], 0")
        e("s_load_dwordx8 s[76:83], s[74:75], 32")
        if int(opts.get("nsp2", "0")): e("s_load_dwordx16 s[24:39], s[74:75], 312")
    e(f"s_and_b32 s{sSh}, s{sC}, 1")
    scatter_addr(SA2, F2, True, 13)
    vH1, vH2 = 72, 73
    e(f"v_lshrrev_b32 v{t5}, 2, v{vL15}")
    e(f"v_lshl_add_u32 v{t5}, v{vG}, 3, v{t5}")
    e(f"v_add_u32 v{t6}, 4, v{t5}")
    e(f"v_min_u32 v{t5}, 25, v{t5}"); e(f"v_min_u32 v{t6}, 25, v{t6}")
    e(f"v_and_b32 v{t7}, 3, v{vL15}"); e(f"v_lshlrev_b32 v{t7}, 3, v{t7}")
    e("s_movk_i32 s64, 1352")
    e(f"v_mad_u32_u24 v{vH1}, v{t5}, s64, v{t7}"); e(f"v_mad_u32_u24 v{vH2}, v{t6}, s64, v{t7}")
    QA = 76
    for j in range(3):
        ee, h, k_, ad = t4, t5, t6, QA + j
        e(f"s_lshl_b32 s63, s{sC}, 6"); e(f"s_add_u32 s63, s63, {256*j}")
        e(f"v_add_u32 v{ee}, s63, v{vLane}")
        e(f"v_mul_u32_u24 v{h}, 2521, v{ee}"); e(f"v_lshrrev_b32 v{h}, 16, v{h}")
        e(f"v_mul_u32_u24 v{k_}, 26, v{h}"); e(f"v_sub_u32 v{k_}, v{ee}, v{k_}")
        e(f"v_cmp_gt_u32 vcc, 676, v{ee}")
        e(f"v_lshrrev_b32 v{ad}, 4, v{k_}"); e(f"v_lshlrev_b32 v{ad}, 10, v{ad}")
        e(f"v_and_b32 v{k_}, 15, v{k_}"); e(f"v_lshl_add_u32 v{ad}, v{k_}, 4, v{ad}")
        e(f"v_lshrrev_b32 v{k_}, 3, v{h}"); e(f"v_lshl_add_u32 v{ad}, v{k_}, 8, v{ad}")
        e(f"v_and_b32 v{h}, 7, v{h}"); e(f"v_lshl_add_u32 v{ad}, v{h}, 1, v{ad}")
        e(f"v_add_u32 v{ad}, {QB}, v{ad}")
        e(f"v_cndmask_b32 v{ad}, v{vDum}, v{ad}, vcc")
    vT1, vT2 = 37, 38
    e(f"s_lshl_b32 s63, s{sC}, 7"); e(f"s_add_u32 s63, s63, {W3L}")
    e(f"v_add_u32 v{vT1}, s63, v{vH1}"); e(f"v_add_u32 v{vT2}, s63, v{vH2}")
    TA1, TA2, vM = 39, 75, 74
    e(f"s_mul_i32 s63, s{sC}, 52"); e(f"s_lshl_b32 s64, s{sSh}, 2"); e("s_sub_u32 s63, s63, s64"); e(f"s_add_u32 s63, s63, {W2L}")
    e(f"v_add_u32 v{TA1}, s63, v{vH1}"); e(f"v_add_u32 v{TA2}, s63, v{vH2}")
    e(f"s_lshl_b32 s64, s{sSh}, 1"); e("s_add_u32 s64, s64, 10")
    e(f"v_cmp_gt_u32 vcc, s64, v{vL15}")
    QAD = [44, 45]
    e(f"s_lshl_b32 s63, s{sSh}, 1")
    e("s_nop 0")
    e(f"v_cndmask_b32 v{vM}, 0, -1, vcc")
    for aa in range(2):
        e(f"v_subrev_u32 v{t4}, s63, v{vL15}")
        if aa: e(f"v_add_u32 v{t4}, 16, v{t4}")
        e(f"v_min_u32 v{t4}, 31, v{t4}")
        e(f"v_lshrrev_b32 v{t5}, 4, v{t4}"); e(f"v_lshlrev_b32 v{t5}, 10, v{t5}")
        e(f"v_and_b32 v{t4}, 15, v{t4}"); e(f"v_lshl_add_u32 v{t5}, v{t4}, 4, v{t5}")
        e(f"v_lshl_add_u32 v{t5}, v{vG}, 8, v{t5}")
        e(f"v_add_u32 v{QAD[aa]}, {QB}, v{t5}")
    vFa = 226
    e(f"v_lshrrev_b32 v{t5}, 5, v{vLane}")
    e(f"v_mul_u32_u24 v{t6}, {HS}, v{t5}")
    e(f"v_and_b32 v{t7}, 31, v{vLane}")
    e(f"v_lshl_add_u32 v{vFa}, v{t7}, 4, v{t6}")
    if nsp:
        e("s_waitcnt lgkmcnt(0)")
        regs = list(range(48, 56)) + list(range(76, 84))
        for i in range(nsp):
            r = regs[i]
            e(f"s_lshl_b32 s{r}, s{r}, 5")
            e(f"s_load_dword s{r}, s[6:7], s{r}")
    st("w1")
    vm.wait("w3f")
    e(f"v_lshlrev_b32 v{t5}, 16, v{vWs}")
    e(f"v_cmp_gt_u32 s[88:89], 26, v{vLane}")
    e(f"v_cmp_gt_u32 s[90:91], 32, v{vLane}")
    e(f"v_lshlrev_b32 v{t6}, 2, v{vLane}")
    e(f"v_add_u32 v{t6}, {W1F}, v{t6}")
    e(f"v_cndmask_b32 v{t5}, 0, v{t5}, s[88:89]")
    e(f"v_cndmask_b32 v{t6}, v{vDum}, v{t6}, s[90:91]")
    e(f"ds_write_b32 v{t6}, v{t5}")
    e(f"v_subrev_u32 v{t5}, 26, v{vLane}")
    e(f"v_cmp_gt_u32 s[88:89], 26, v{t5}")
    e(f"v_lshrrev_b32 v{t6}, 3, v{t5}")
    e(f"v_lshlrev_b32 v{t6}, 8, v{t6}")
    e(f"v_and_b32 v{t7}, 7, v{t5}")
    e(f"v_lshl_add_u32 v{t6}, v{t7}, 1, v{t6}")
    e(f"v_add_u32 v{t6}, {QB+1024+160}, v{t6}")
    e(f"v_cndmask_b32 v{t6}, v{vDum}, v{t6}, s[88:89]")
    e(f"ds_write_b16 v{t6}, v{vWs}")
    AW = 56
    for gq in range(4): e(f"v_cmp_eq_u32 s[{88+2*gq}:{89+2*gq}], {4*gq}, v{vL15}")
    for gq in range(4):
        for j in range(4): e(f"v_cndmask_b32 v{AW+4*gq+j}, 0, v{W3F+j}, s[{88+2*gq}:{89+2*gq}]")
    e("s_waitcnt lgkmcnt(0)")
    e("s_barrier")
    st("bi")
    a.c("Weff")
    WB = 80; WD = 128
    for j in range(3):
        for gq in range(4):
            b = WB + 16*j + 4*gq
            e(f"ds_read_b64_tr_b16 v[{b}:{b+1}], v{vT1} offset:{j*512+32*gq}")
            e(f"ds_read_b64_tr_b16 v[{b+2}:{b+3}], v{vT2} offset:{j*512+32*gq}")
    for j in range(3):
        e(f"s_waitcnt lgkmcnt({min(15, 8*(2-j))})")
        for gq in range(4):
            b = WB + 16*j + 4*gq; d = WD + 4*j
            c = "0" if gq == 0 else f"v[{d}:{d+3}]"
            e(f"v_mfma_f32_16x16x32_bf16 v[{d}:{d+3}], v[{AW+4*gq}:{AW+4*gq+3}], v[{b}:{b+3}], {c}")
    a.nop(8)
    for j in range(3): e(f"v_cvt_pk_bf16_f32 v{t4+j}, v{WD+4*j}, v{WD+4*j}")
    for j in range(3): e(f"ds_write_b16 v{QA+j}, v{t4+j}")
    st("weff")
    e("s_waitcnt vmcnt(0) lgkmcnt(0)")
    nsp2 = int(opts.get("nsp2", "0"))
    if nsp2:
        regs2 = list(range(24, 40))
        for i in range(nsp2):
            r = regs2[i]
            e(f"s_lshl_b32 s{r}, s{r}, 5")
            e(f"s_load_dword s{r}, s[6:7], s{r}")
    e("s_barrier")
    st("b2")
    a.c("S2")
    Q0, Q1 = 140, 144
    lg.l = []
    e(f"ds_read_b128 v[{Q0}:{Q0+3}], v{QAD[0]}"); e(f"ds_read_b128 v[{Q1}:{Q1+3}], v{QAD[1]}"); lg.add("q", 2)
    PS = [48, 56, 64]
    cvt = lambda k, j: f"v_cvt_pk_bf16_f32 v{CV[k&1]+j}, v{DS[k&1]+2*j}, v{DS[k&1]+2*j+1}"
    wr = lambda SA, k, j: f"ds_write_b32 v{SA+j}, v{CV[k&1]+j} offset:{k*64}"
    def p_reads(k):
        P = PS[k % 3]
        return [f"ds_read_b64_tr_b16 v[{P}:{P+1}], v{TA1} offset:{k*208}",
                f"ds_read_b64_tr_b16 v[{P+2}:{P+3}], v{TA2} offset:{k*208}",
                f"ds_read_b64_tr_b16 v[{P+4}:{P+5}], v{TA1} offset:{k*208+32}",
                f"ds_read_b64_tr_b16 v[{P+6}:{P+7}], v{TA2} offset:{k*208+32}"]
    for k in (0, 1):
        for x in p_reads(k): e(x)
        lg.add(f"p{k}", 4)
    def masks(k): return [f"v_and_b32 v{PS[k%3]+4+j}, v{vM}, v{PS[k%3]+4+j}" for j in range(4)]
    lg.wait("p0")
    for x in masks(0): e(x)
    a.nop(1)
    for k in range(9):
        M = mf6(DS[k & 1], PS[k % 3], PS[k % 3]+4, Q0, Q1) if k < 7 else [None]*6
        R = p_reads(k+2) if k + 2 < 7 else []
        if k == 7: a.nop(4)
        if k == 8:
            e(f"s_cmp_lt_u32 s{sC}, 2"); e("s_cbranch_scc1 L_s2v")
            for j in range(6): e(f"v_mov_b32 v{SA2+j}, v{vDum}")
            a.label("L_s2v")
        for j in range(6):
            if j == 4 and k + 1 < 7:
                lg.wait(f"p{k+1}")
                for x in masks(k+1): e(x)
            if M[j]: e(M[j])
            if k >= 2: e(wr(SA2, k-2, j)); lg.add("w")
            if 1 <= k <= 7: e(cvt(k-1, j))
            if j < len(R): e(R[j]); lg.add(f"p{k+2}")
    st("s2")
    e("s_waitcnt lgkmcnt(0)")
    e("s_barrier")
    e("s_barrier")
    st("b3")
    if dbg == "lds":
        e("s_cmp_eq_u32 s2, 0"); e("s_cbranch_scc0 L_nodump")
        e(f"v_lshlrev_b32 v{t4}, 4, v0")
        for k in range(40):
            e(f"v_add_u32 v{t5}, {k*4096}, v{t4}")
            e(f"ds_read_b128 v[{t0}:{t3}], v{t5}")
            e("s_waitcnt lgkmcnt(0)")
            e(f"global_store_dwordx4 v{t5}, v[{t0}:{t3}], s[98:99]")
            e("s_waitcnt vmcnt(0)")
        a.label("L_nodump")
    a.c("C main")
    XA, YA, XB, YB = 8, 34, 47, 73
    D1A, D2A, D1B, D2B = 96, 112, 128, 144
    ZB = [[160, 164], [168, 172]]
    AB = [176, 184, 192]
    TM = [200, 201, 202, 203, 204, 205, 206, 207]
    WI = 208; vXb = 224; PK = 176
    e(f"v_and_b32 v{TM[4]}, 1, v{vG}")
    e(f"s_lshl_b32 s63, s{sC}, 2")
    e(f"v_add_u32 v{TM[4]}, s63, v{TM[4]}")
    e(f"v_mul_u32_u24 v{TM[4]}, 832, v{TM[4]}")
    e(f"v_lshrrev_b32 v{TM[5]}, 2, v{vL15}")
    e(f"v_lshl_add_u32 v{TM[4]}, v{TM[5]}, 5, v{TM[4]}")
    e(f"v_and_b32 v{TM[5]}, 3, v{vL15}")
    e(f"v_lshl_add_u32 v{TM[4]}, v{TM[5]}, 3, v{TM[4]}")
    e(f"v_add_u32 v{vXb}, {X0}, v{TM[4]}")
    safe = int(opts.get("safe", "0"))
    for T in range(2):
        for fb in range(7):
            e(f"ds_read_b64_tr_b16 v[{PK+14*T+2*fb}:{PK+14*T+2*fb+1}], v{vXb} offset:{T*1664 + fb*128}")
    e(f"v_lshrrev_b32 v{TM[5]}, 5, v{vLane}")
    e(f"v_lshlrev_b32 v{TM[6]}, 4, v{TM[5]}")
    e(f"v_add_u32 v{TM[6]}, {W1F}, v{TM[6]}")
    if safe: e("s_waitcnt lgkmcnt(0)")
    for m in range(4): e(f"ds_read_b128 v[{WI+4*m}:{WI+4*m+3}], v{TM[6]} offset:{m*32}")
    e(f"v_cmp_eq_u32 s[72:73], 1, v{TM[5]}")
    for T, (X, Y) in enumerate(((XA, YA), (XB, YB))):
        e(f"s_waitcnt lgkmcnt({11 if T == 0 else 4})")
        for g in range(13):
            p = PK + 14*T + g
            e(f"v_lshlrev_b32 v{X+2*g}, 16, v{p}")
            e(f"v_and_b32 v{X+2*g+1}, 0xffff0000, v{p}")
        for g in range(13): e(f"v_cndmask_b32 v{Y+g}, v{X+2*g}, v{X+2*g+1}, s[72:73]")
    def a_read(t):
        b = AB[t % 3]
        if t <= 22: e(f"ds_read_b128 v[{b}:{b+3}], v{vFa} offset:{F1 + t*FS}")
        if t <= 25: e(f"ds_read_b128 v[{b+4}:{b+7}], v{vFa} offset:{F2 + t*FS}")
    blocks = [(g, gp) for g in range(14) for gp in range(min(g, 12)+1)]
    def zgen(t, T):
        X, Y = ((XA, YA), (XB, YB))[T]
        z = ZB[t & 1][T]; mul = []; cv = []
        for j in range(4):
            g, gp = blocks[4*t + j]
            ta, tb, th = TM[2*j], TM[2*j+1], 228 + T
            if g == 13: cv.append(f"v_cvt_pk_bf16_f32 v{z+j}, v{Y+gp}, 0")
            else:
                y = Y + gp
                if g == gp and int(opts.get("omod", "0")):
                    mul.append(f"v_mul_f32_e64 v{ta}, v{X+2*g}, v{y} div:2")
                    mul.append(f"v_mul_f32_e64 v{tb}, v{X+2*g+1}, v{y} div:2")
                else:
                    if g == gp:
                        mul.append(f"v_mul_f32 v{th}, 0.5, v{Y+gp}"); y = th
                    mul.append(f"v_mul_f32 v{ta}, v{X+2*g}, v{y}")
                    mul.append(f"v_mul_f32 v{tb}, v{X+2*g+1}, v{y}")
                cv.append(f"v_cvt_pk_bf16_f32 v{z+j}, v{ta}, v{tb}")
        return mul + cv
    st("xld")
    a_read(0); a_read(1)
    for T in range(2):
        for s in zgen(0, T): e(s)
    cnt = {t: (1 if t > 22 else 2) for t in range(26)}
    for t in range(26):
        younger = cnt[t+1] if t+1 <= 25 else 0
        e(f"s_waitcnt lgkmcnt({younger})")
        b = AB[t % 3]; mf = []; rds = []
        if t + 2 <= 25:
            b2 = AB[(t+2) % 3]
            if t + 2 <= 22: rds.append(f"ds_read_b128 v[{b2}:{b2+3}], v{vFa} offset:{F1 + (t+2)*FS}")
            rds.append(f"ds_read_b128 v[{b2+4}:{b2+7}], v{vFa} offset:{F2 + (t+2)*FS}")
        for T, (D1, D2) in enumerate(((D1A, D2A), (D1B, D2B))):
            z = ZB[t & 1][T]
            if t <= 22:
                c = "0" if t == 0 else f"v[{D1}:{D1+15}]"
                mf.append(f"v_mfma_f32_32x32x16_bf16 v[{D1}:{D1+15}], v[{b}:{b+3}], v[{z}:{z+3}], {c}")
            c = f"v[{WI}:{WI+15}]" if t == 0 else f"v[{D2}:{D2+15}]"
            mf.append(f"v_mfma_f32_32x32x16_bf16 v[{D2}:{D2+15}], v[{b+4}:{b+7}], v[{z}:{z+3}], {c}")
        va = (zgen(t+1, 0) + zgen(t+1, 1)) if t < 25 else []
        n = len(mf); per = (len(va) + n - 1)//n if va else 0
        if t == 0: a.nop(2)
        vi = 0
        for mi, m in enumerate(mf):
            e(m)
            if mi < len(rds): e(rds[mi])
            for s in va[vi:vi+per]: e(s)
            vi += per
    a.nop(16)
    st("main")
    for T, (D1, D2) in enumerate(((D1A, D2A), (D1B, D2B))): e(f"v_mul_f32 v{TM[T]}, v{D1}, v{D2}")
    for r in range(1, 14):
        for T, (D1, D2) in enumerate(((D1A, D2A), (D1B, D2B))): e(f"v_fmac_f32 v{TM[T]}, v{D1+r}, v{D2+r}")
    if opts.get("chk"):
        for T in range(2):
            for fb in range(7):
                e(f"ds_read_b64_tr_b16 v[{96+14*T+2*fb}:{96+14*T+2*fb+1}], v{vXb} offset:{T*1664 + fb*128}")
            e("s_waitcnt lgkmcnt(0)")
        e("v_mov_b32 v230, 0x41200000")
        for T, (X, Y) in enumerate(((XA, YA), (XB, YB))):
            for g in range(13):
                p = 96 + 14*T + g
                e(f"v_lshlrev_b32 v228, 16, v{p}")
                e(f"v_cmp_ne_u32 vcc, v228, v{X+2*g}")
                e("s_nop 1")
                e(f"v_cndmask_b32 v229, 0, v230, vcc")
                e(f"v_add_f32 v{TM[T]}, v{TM[T]}, v229")
                e(f"v_and_b32 v228, 0xffff0000, v{p}")
                e(f"v_cmp_ne_u32 vcc, v228, v{X+2*g+1}")
                e("s_nop 1")
                e(f"v_cndmask_b32 v229, 0, v230, vcc")
                e(f"v_add_f32 v{TM[T]}, v{TM[T]}, v229")
    for sh in (8, 4, 2, 1):
        a.nop(2)
        for T in range(2): e(f"v_add_f32_dpp v{TM[T]}, v{TM[T]}, v{TM[T]} row_ror:{sh} row_mask:0xf bank_mask:0xf")
    e(f"v_bfe_u32 v{TM[2]}, v{vLane}, 4, 1")
    e(f"v_lshlrev_b32 v{TM[2]}, 3, v{TM[2]}")
    e(f"v_lshrrev_b32 v{TM[3]}, 5, v{vLane}")
    e(f"v_lshl_add_u32 v{TM[2]}, v{TM[3]}, 2, v{TM[2]}")
    e(f"s_lshl_b32 s63, s{sC}, 5"); e(f"s_add_u32 s63, s63, {RED}")
    e(f"v_add_u32 v{TM[2]}, s63, v{TM[2]}")
    e(f"ds_write_b32 v{TM[2]}, v{TM[0]}")
    e(f"ds_write_b32 v{TM[2]}, v{TM[1]} offset:16")
    e("s_branch L_final")

    a.label("L_D")
    sD, sDB, sK, sNI = 66, 67, 80, 79
    srd(SRD_TAB, 6, 3200000)
    srd(SRD_WD, 12, 346112)
    srd(SRD_WS, 8, 105456)
    P = 16; ACC = 32; BB = [64, 96]; AF = [128, 132]; TRA = 136; W2R = 144; BIAS = 152; OUT = 160; GT = 164; vC0 = 184; vA = 185
    W1R = 64; I0, I1 = 120, 124
    SA1 = 192; DSd = [198, 210]; CVd = [222, 164]
    vW1 = 27
    e(f"s_mul_i32 s81, s{sD}, 224")
    e(f"s_mul_i32 s63, s{sD}, 192"); e("s_add_u32 s63, s63, 64")
    e(f"s_mul_i32 s{sDB}, s{sD}, 7168")
    e(f"s_mul_i32 s64, s{sD}, 6144"); e("s_add_u32 s64, s64, 2048")
    e(f"s_cmp_lt_u32 s{sD}, 2")
    e("s_cselect_b32 s81, s81, s63"); e(f"s_cselect_b32 s{sDB}, s{sDB}, s64")
    e(f"s_cselect_b32 s{sNI}, 7, 6")
    e("s_movk_i32 s74, 5462"); e("s_cselect_b32 s74, 4682, s74")
    e("s_cselect_b32 s75, 14, 12")
    e("s_movk_i32 s78, 192"); e("s_cselect_b32 s78, 224, s78")
    e("s_cselect_b32 s76, -1, 0")
    e(f"s_add_u32 s{sDB}, s{sDB}, {RING}")
    e("s_mov_b64 exec, 0xffff")
    for ptr, off in ((14, 0), (16, 256)):
        e(f"s_mov_b32 s68, s{ptr}"); e(f"s_mov_b32 s69, s{ptr+1}"); e("s_mov_b32 s70, 832"); e("s_mov_b32 s71, 0x20000")
        e(f"s_add_u32 m0, s{sDB}, {off}"); e("s_nop 0")
        e(f"buffer_load_dwordx4 v{vL16}, s[68:71], s81 offen lds")
    e("s_mov_b64 exec, -1")
    sLS, sLD = 72, 73
    def lin_start(src, dst):
        e(f"s_lshl_b32 s{sLD}, s{sD}, 10")
        e(f"s_add_u32 s{sLS}, s{sLD}, {src}"); e(f"s_add_u32 s{sLD}, s{sLD}, {dst}")
    uid = [0]
    def lin_one(k):
        if k < 8:
            e(f"s_mov_b32 m0, s{sLD}"); e(f"s_add_u32 s{sLD}, s{sLD}, 4096")
            e(f"buffer_load_dwordx4 v{vL16}, s[{SRD_WS}:{SRD_WS+3}], s{sLS} offen lds")
            e(f"s_add_u32 s{sLS}, s{sLS}, 4096")
        else:
            uid[0] += 1; lab = f"L_lin{uid[0]}"
            e(f"s_cmp_lt_u32 s{sD}, 2"); e(f"s_cbranch_scc1 {lab}")
            e("s_mov_b64 exec, 0x1fffff")
            e(f"s_cmp_eq_u32 s{sD}, 2"); e(f"s_cbranch_scc1 {lab}")
            e(f"s_mov_b32 s{sLS}, {BIG}"); e(f"s_mov_b32 s{sLD}, {DUM}")
            a.label(lab)
            e(f"s_mov_b32 m0, s{sLD}"); e("s_nop 0")
            e(f"buffer_load_dwordx4 v{vL16}, s[{SRD_WS}:{SRD_WS+3}], s{sLS} offen lds")
            e("s_mov_b64 exec, -1")
    lin_start(2*35152, W3L)
    for k in range(n3first): lin_one(k)
    e(f"v_and_b32 v{t0}, 1, v{vLane}"); e(f"v_lshlrev_b32 v{t0}, 4, v{t0}")
    e(f"v_mul_u32_u24 v{t7}, 52, v{vL15}")
    e(f"v_lshl_add_u32 v{vW1}, v{vG}, 4, v{t7}")
    def patterns():
        for j in range(7):
            m, row, cp, p_, b3 = t1, t2, t3, t4, t5
            e(f"v_add_u32 v{m}, {64*j}, v{vLane}")
            e(f"v_mul_u32_u24 v{row}, s74, v{m}"); e(f"v_lshrrev_b32 v{row}, 16, v{row}")
            e(f"v_mul_u32_u24 v{cp}, s75, v{row}"); e(f"v_sub_u32 v{cp}, v{m}, v{cp}")
            e(f"v_lshrrev_b32 v{p_}, 1, v{cp}")
            e(f"v_bfe_u32 v{b3}, v{row}, 3, 1")
            e(f"v_xor_b32 v{t6}, v{p_}, v{b3}")
            e(f"v_add_u32 v{t7}, 3, v{p_}")
            e(f"v_cmp_lt_u32 vcc, 6, v{t7}")
            e(f"v_subrev_u32 v{m}, 7, v{t7}")
            e(f"v_and_b32 v{cp}, 1, v{cp}")
            e(f"v_cndmask_b32 v{t7}, v{t7}, v{m}, vcc")
            e(f"v_cmp_eq_u32 vcc, 1, v{b3}")
            e(f"v_mul_u32_u24 v{row}, 832, v{row}")
            e(f"v_add_u32 v{row}, s81, v{row}")
            e(f"v_cndmask_b32 v{t7}, v{p_}, v{t7}, vcc")
            e(f"v_and_b32 v{t7}, s76, v{t7}")
            e(f"v_not_b32 v{m}, s76"); e(f"v_and_b32 v{t6}, v{m}, v{t6}")
            e(f"v_or_b32 v{t7}, v{t7}, v{t6}")
            e(f"v_lshl_add_u32 v{cp}, v{t7}, 1, v{cp}")
            e(f"v_lshl_add_u32 v{cp}, v{cp}, 4, v{row}")
            if j & 3: e(f"v_subrev_u32 v{P+j}, {(j & 3)*1024}, v{cp}")
            else: e(f"v_mov_b32 v{P+j}, v{cp}")
        e(f"v_lshrrev_b32 v{t2}, 2, v{vL15}")
        e(f"v_lshl_add_u32 v{t3}, v{vG}, 3, v{t2}")
        e(f"v_mul_u32_u24 v{t3}, s78, v{t3}")
        e(f"v_and_b32 v{t4}, 3, v{vL15}")
        e(f"v_lshl_add_u32 v{t3}, v{t4}, 3, v{t3}")
        e(f"v_add_u32 v{t3}, s{sDB}, v{t3}")
        e(f"v_and_b32 v{t4}, 1, v{vG}")
        e(f"v_cmp_eq_u32 vcc, 1, v{t4}")
        e(f"v_not_b32 v{t6}, s76")
        for tau in range(7):
            e(f"v_mov_b32 v{t5}, {tau}")
            e(f"v_mov_b32 v{t7}, {(tau+4) % 7}")
            e(f"v_xor_b32 v{t2}, {tau}, v{t4}")
            e(f"v_cndmask_b32 v{t5}, v{t5}, v{t7}, vcc")
            e(f"v_and_b32 v{t5}, s76, v{t5}")
            e(f"v_and_b32 v{t2}, v{t6}, v{t2}")
            e(f"v_or_b32 v{t5}, v{t5}, v{t2}")
            e(f"v_lshl_add_u32 v{TRA+tau}, v{t5}, 5, v{t3}")
        e(f"v_mul_u32_u24 v{vA}, 832, v{vL15}")
        e(f"v_lshl_add_u32 v{vA}, v{vG}, 4, v{vA}")
        e(f"v_add_u32 v{vA}, {X0}, v{vA}")
    patearly = int(opts.get("pate", "1"))
    if patearly: patterns()
    st("w1")
    def w1_loads():
        e(f"s_mul_i32 s63, s{sD}, 1352")
        for k in range(7):
            if k == 6:
                e(f"s_cmp_lt_u32 s{sD}, 2"); e(f"s_cselect_b32 s63, s63, {BIG}")
            e(f"buffer_load_dwordx4 v[{W1R+8*k}:{W1R+8*k+3}], v{vW1}, s[{SRD_WS}:{SRD_WS+3}], s63 offen")
            e(f"buffer_load_dwordx4 v[{W1R+8*k+4}:{W1R+8*k+7}], v{vW1}, s[{SRD_WS}:{SRD_WS+3}], s63 offen offset:832")
            if k < 6: e(f"s_add_u32 s63, s63, {4*1352}")
    def gathers():
        for k in range(4): e(f"v_lshl_add_u32 v{vIdx+k}, v{vIdx+k}, 5, v{t0}")
        e(f"s_mul_i32 s63, s{sD}, {4*832}"); e(f"s_add_u32 s63, s63, {X0}")
        e("s_mov_b32 exec_lo, -1"); e("s_mov_b32 exec_hi, 0xfffff")
        for k in range(4):
            e(f"s_add_u32 m0, s63, {832*k}"); e("s_nop 0")
            e(f"buffer_load_dwordx4 v{vIdx+k}, s[{SRD_TAB}:{SRD_TAB+3}], 0 offen lds")
        e("s_mov_b64 exec, -1")
    def bias_read():
        e(f"v_lshlrev_b32 v{t1}, 1, v{vL15}"); e(f"v_add_u32 v{t1}, s{sDB}, v{t1}")
        for tau in range(7):
            e(f"v_mov_b32 v{BIAS+tau}, 0"); e(f"v_mov_b32 v{W2R+tau}, 0")
        for tau in range(7):
            e(f"ds_read_u16_d16_hi v{BIAS+tau}, v{t1} offset:{tau*32}")
            e(f"ds_read_u16_d16_hi v{W2R+tau}, v{t1} offset:{256+tau*32}")
        e("s_waitcnt lgkmcnt(0)")
        for tau in range(7):
            for r in range(4): e(f"v_mov_b32 v{ACC+4*tau+r}, v{BIAS+tau}")
    def kdma(slot):
        uid[0] += 1; lab = f"L_k{uid[0]}"
        for j in range(7):
            if j == 6:
                e(f"s_cmp_eq_u32 s{sNI}, 6"); e(f"s_cbranch_scc1 {lab}")
            if (j & 3) == 0:
                e(f"s_add_u32 m0, s{sDB}, {slot*SLOT + (j >> 2)*4096}"); e("s_nop 0")
            off = f" offset:{(j & 3)*1024}" if j & 3 else ""
            e(f"buffer_load_dwordx4 v{P+j}, s[{SRD_WD}:{SRD_WD+3}], s{sK} offen{off} lds")
        a.label(lab)
        e(f"s_add_u32 s{sK}, s{sK}, {SLOT}")
    def s1_setup():
        e(f"v_lshlrev_b32 v{t4}, 3, v{vG}")
        e(f"v_sub_u32 v{t4}, v{vL15}, v{t4}")
        e(f"v_and_b32 v{t5}, 1, v{t4}")
        e(f"v_lshlrev_b32 v{t5}, 4, v{t5}")
        e(f"v_mov_b32 v{t6}, 0x3f80")
        e(f"v_lshlrev_b32 v{t5}, v{t5}, v{t6}")
        e(f"v_ashrrev_i32 v{t4}, 1, v{t4}")
        e(f"v_add_u32 v{t6}, 8, v{t4}")
        for j in range(4): e(f"v_cmp_eq_u32 s[{88+2*j}:{89+2*j}], {j}, v{t4}")
        for j in range(4): e(f"v_cndmask_b32 v{I0+j}, 0, v{t5}, s[{88+2*j}:{89+2*j}]")
        for j in range(4): e(f"v_cmp_eq_u32 s[{88+2*j}:{89+2*j}], {j}, v{t6}")
        for j in range(4): e(f"v_cndmask_b32 v{I1+j}, 0, v{t5}, s[{88+2*j}:{89+2*j}]")
        scatter_addr(SA1, F1, False, 12, 198)
    def S1():
        cvt = lambda k, j: f"v_cvt_pk_bf16_f32 v{CVd[k&1]+j}, v{DSd[k&1]+2*j}, v{DSd[k&1]+2*j+1}"
        wr = lambda k, j: f"ds_write_b32 v{SA1+j}, v{CVd[k&1]+j} offset:{k*64}"
        for k in range(9):
            M = mf6(DSd[k & 1], W1R+8*k, W1R+8*k+4, I0, I1) if k < 7 else [None]*6
            if k == 7: a.nop(4)
            if k == 1: a.nop(5)
            if k == 2: a.nop(1)
            for j in range(6):
                if M[j]: e(M[j])
                if k >= 2: e(wr(k-2, j))
                if 1 <= k <= 7: e(cvt(k-1, j))
    e(f"s_mov_b32 s{sK}, 0")
    for k in range(n3first, 9): lin_one(k)
    lin_start(35152, W2L)
    for k in range(9): lin_one(k)
    e("s_waitcnt vmcnt(9)")
    e("s_barrier")
    st("bi")
    w1_loads()
    e("s_waitcnt vmcnt(14)")
    e("s_barrier")
    st("b2")
    gathers()
    st("sb1")
    bias_read()
    if not patearly: patterns()
    s1_setup()
    e("s_waitcnt vmcnt(4)")
    S1()
    k01late = int(opts.get("k01late", "0"))
    if not k01late: kdma(0); kdma(1)
    st("s1")
    e("s_waitcnt lgkmcnt(0)")
    e("s_barrier")
    if k01late: kdma(0); kdma(1)
    kdma(2)
    st("issued")
    e(f"s_cmp_lt_u32 s{sD}, 2"); e("s_cbranch_scc0 L_D6")
    def emit_D(NT):
        tag = f"T{NT}"; nI = NT; nt = NT; RS = 32*NT
        e(f"s_waitcnt vmcnt({3*nI})")
        st("s2")
        e("s_barrier")
        st("b3")
        if prio: e(f"s_setprio {prio}")
        def reads(b, slot, astep):
            r = [f"ds_read_b128 v[{AF[b]}:{AF[b]+3}], v{vA} offset:{64*astep}"]
            for tau in range(nt):
                r.append(f"ds_read_b64_tr_b16 v[{BB[b]+4*tau}:{BB[b]+4*tau+1}], v{TRA+tau} offset:{slot*SLOT}")
                r.append(f"ds_read_b64_tr_b16 v[{BB[b]+4*tau+2}:{BB[b]+4*tau+3}], v{TRA+tau} offset:{slot*SLOT+4*RS}")
            return r
        def mfmas(b):
            return [f"v_mfma_f32_16x16x32_bf16 v[{ACC+4*tau}:{ACC+4*tau+3}], v[{AF[b]}:{AF[b]+3}], v[{BB[b]+4*tau}:{BB[b]+4*tau+3}], v[{ACC+4*tau}:{ACC+4*tau+3}]" for tau in range(nt)]
        e(f"s_waitcnt vmcnt({2*nI})")
        for x in reads(0, 0, 0): e(x)
        e("s_waitcnt lgkmcnt(0)")
        e("s_mov_b32 s82, 0")
        st("xld")
        a.label(f"L_dl{tag}")
        for i in range(6):
            e(f"s_waitcnt vmcnt({nI})")
            R = reads((i+1) & 1, (i+1) % 3, i+1)
            Ms = mfmas(i & 1)
            e(f"s_add_u32 m0, s{sDB}, {(i % 3)*SLOT}")
            e(R[0]); ri = 1
            for j in range(nI):
                if j == 4:
                    e(f"s_add_u32 m0, s{sDB}, {(i % 3)*SLOT + 4096}")
                    e(R[ri]); ri += 1
                off = f" offset:{(j & 3)*1024}" if j & 3 else ""
                e(f"buffer_load_dwordx4 v{P+j}, s[{SRD_WD}:{SRD_WD+3}], s{sK} offen{off} lds")
                e(R[ri]); ri += 1
                if ri < len(R) and (len(R) - ri) > (nI - 1 - j) - (1 if j < 4 else 0): e(R[ri]); ri += 1
                e(Ms[j])
            while ri < len(R): e(R[ri]); ri += 1
            e(f"s_add_u32 s{sK}, s{sK}, {SLOT}")
            e("s_waitcnt lgkmcnt(0)")
        e(f"v_add_u32 v{vA}, {6*64}, v{vA}")
        e("s_add_u32 s82, s82, 1")
        e("s_cmp_lt_u32 s82, 2"); e(f"s_cbranch_scc1 L_dl{tag}")
        C0 = -2.0*0.7978845608028654*1.4426950408889634; C1 = C0*0.044715
        ML = mfmas(0)
        def gelu_ops(tau):
            x = ACC + 4*tau; Uu, E, Yv = GT, GT+4, GT+8
            r4 = range(4)
            return ([f"v_mul_f32 v{Uu+r}, v{x+r}, v{x+r}" for r in r4] +
                    [f"v_fmamk_f32 v{Uu+r}, v{Uu+r}, 0x{f32bits(C1):08x}, v{vC0}" for r in r4] +
                    [f"v_mul_f32 v{Uu+r}, v{x+r}, v{Uu+r}" for r in r4] +
                    [f"v_exp_f32 v{E+r}, v{Uu+r}" for r in r4] +
                    [f"v_mul_f32 v{Yv+r}, v{x+r}, v{W2R+tau}" for r in r4] +
                    [f"v_add_f32 v{E+r}, 1.0, v{E+r}" for r in r4] +
                    [f"v_rcp_f32 v{E+r}, v{E+r}" for r in r4] + ["s_nop 0"] +
                    [f"v_fmac_f32 v{OUT+r}, v{Yv+r}, v{E+r}" for r in r4])
        if int(opts.get("tailov", "1")):
            e(ML[0]); e(ML[1]); e(ML[2])
            for r in range(4): e(f"v_mov_b32 v{OUT+r}, 0")
            e(f"v_mov_b32 v{vC0}, 0x{f32bits(C0):08x}")
            a.nop(2)
            G0 = gelu_ops(0); gi = 0
            for m in ML[3:]:
                for x in G0[gi:gi+6]: e(x)
                gi += 6
                e(m)
            for x in G0[gi:]: e(x)
            st("main")
            for tau in range(1, nt):
                for x in gelu_ops(tau): e(x)
        else:
            for x in ML: e(x)
            st("main")
            for r in range(4): e(f"v_mov_b32 v{OUT+r}, 0")
            e(f"v_mov_b32 v{vC0}, 0x{f32bits(C0):08x}")
            a.nop(8)
            for tau in range(nt):
                for x in gelu_ops(tau): e(x)
        st("gelu")
        for sh in (8, 4, 2, 1):
            a.nop(2)
            for r in range(4): e(f"v_add_f32_dpp v{OUT+r}, v{OUT+r}, v{OUT+r} row_ror:{sh} row_mask:0xf bank_mask:0xf")
        e(f"s_lshl_b32 s63, s{sD}, 6"); e(f"s_add_u32 s63, s63, {RED2}")
        e(f"v_lshlrev_b32 v{GT}, 4, v{vG}"); e(f"v_add_u32 v{GT}, s63, v{GT}")
        e(f"ds_write_b128 v{GT}, v[{OUT}:{OUT+3}]")
    emit_D(7)
    e("s_branch L_final")
    a.label("L_D6")
    emit_D(6)

    a.label("L_final")
    e(f"v_lshlrev_b32 v8, 3, v{vL15}"); e(f"v_add_u32 v8, {RED}, v8")
    e(f"v_lshlrev_b32 v9, 2, v{vL15}"); e(f"v_add_u32 v9, {RED2}, v9")
    e("s_mov_b32 s68, s20"); e("s_mov_b32 s69, s21"); e("s_mov_b32 s70, 8192"); e("s_mov_b32 s71, 0x20000")
    e("s_lshl_b32 s63, s2, 5")
    e(f"v_lshlrev_b32 v16, 1, v{vL15}")
    e("s_waitcnt lgkmcnt(0)")
    e("s_barrier")
    st("fin")
    if stamp is not None:
        wg, wv = [int(x) for x in stamp.split("_")]
        e(f"s_cmp_eq_u32 s2, {wg}"); e("s_cbranch_scc0 L_nost")
        e(f"s_cmp_eq_u32 s{sW}, {wv}"); e("s_cbranch_scc0 L_nost")
        e(f"v_lshlrev_b32 v30, 2, v{vLane}")
        e("s_mov_b64 exec, 0xffff")
        e(f"global_store_dword v30, v{vSt}, s[96:97]")
        e("s_mov_b64 exec, -1")
        a.label("L_nost")
    e(f"s_cmp_eq_u32 s{sW}, 0"); e("s_cbranch_scc0 L_end")
    e("ds_read_b64 v[10:11], v8")
    for d in range(4): e(f"ds_read_b32 v{12+d}, v9 offset:{d*64}")
    e("s_lshl_b32 s47, s47, 16")
    e("s_mov_b64 exec, 0xffff")
    e("s_waitcnt lgkmcnt(0)")
    e("v_add_f32 v10, v10, v11"); e("v_add_f32 v12, v12, v13"); e("v_add_f32 v14, v14, v15")
    e("v_add_f32 v10, s47, v10"); e("v_add_f32 v12, v12, v14"); e("v_add_f32 v10, v10, v12")
    e("v_cvt_pk_bf16_f32 v10, v10, v10")
    e("buffer_store_short v10, v16, s[68:71], s63 offen")
    if tot:
        e("s_memtime s[84:85]"); e("s_memrealtime s[86:87]"); e("s_waitcnt lgkmcnt(0)")
        e("s_sub_u32 s84, s84, s100")
        e("s_lshl_b32 s63, s2, 2")
        e("v_mov_b32 v20, s84"); e("v_mov_b32 v21, s63"); e("v_mov_b32 v22, s86")
        e("s_mov_b64 exec, 1")
        e("global_store_dword v21, v20, s[96:97]")
        e("global_store_dword v21, v22, s[96:97] offset:1024")
    a.label("L_end")
    e("s_endpgm")
    a.label("CODE_END")
    return a

HEADER = """; xDeepFM (CIN + DNN) fused kernel for gfx950 -- generated by my own script
; @launch grid=(256,1,1) block=(512,1,1) lds=163840
.amdgcn_target "amdgcn-amd-amdhsa--gfx950"
.text
.globl {k}
.p2align 8
.type {k},@function
"""
FOOTER = """
.section .rodata,"a"
.p2align 6
.amdhsa_kernel {k}
  .amdhsa_next_free_vgpr {nv}
  .amdhsa_next_free_sgpr 102
  .amdhsa_accum_offset {nv}
  .amdhsa_group_segment_fixed_size 0
  .amdhsa_kernarg_size 88
  .amdhsa_user_sgpr_count 2
  .amdhsa_user_sgpr_kernarg_segment_ptr 1
  .amdhsa_system_sgpr_workgroup_id_x 1
.end_amdhsa_kernel
"""
if __name__ == "__main__":
    opts = dict(x.split("=") for x in sys.argv[2:])
    a = gen(opts)
    body = a.text()
    probs = check_hazards(body)
    for p in probs: print("HAZARD:", p, file=sys.stderr)
    foot = FOOTER.format(k=KNAME, nv=232)
    if int(opts.get("omod", "0")): foot = foot.replace("  .amdhsa_kernarg_size 88", "  .amdhsa_ieee_mode 0\n  .amdhsa_kernarg_size 88")
    open(sys.argv[1], "w").write(HEADER.format(k=KNAME) + body + foot)
    print("written", sys.argv[1], "hazards:", len(probs), file=sys.stderr)
```

```python
import sys, struct
from asmlib import Asm, check_hazards

KNAME = "standalone__deep_cross_xdeepfm__recsys_kernel"
FS, HS = 1040, 528
F1 = 0; F2 = 23920
W3L = F2
RING = 59072; SLOT = 26624
W2L = 112816
QB = 147968
X0 = 150016
W1F = 163328; RED = W1F + 128; RED2 = RED + 128
DUM = 0x30000
BIG = 0x10000000
def f32bits(x): return struct.unpack("<I", struct.pack("<f", x))[0]

class Track:
    def __init__(self, a, name, cap): self.a, self.name, self.cap, self.l = a, name, cap, []
    def add(self, tag, n=1): self.l.extend([tag]*n)
    def count(self, tag):
        idx = [i for i, t in enumerate(self.l) if t == tag]
        assert idx, tag
        return min(len(self.l) - 1 - idx[-1], self.cap)
    def wait(self, tag): self.a.e(f"s_waitcnt {self.name}({self.count(tag)})")

def gen(opts):
    a = Asm(); e = a.e
    dbg = opts.get("dbg"); stamp = opts.get("stamp"); pf = opts.get("pf", "184")
    prio = int(opts.get("prio", "2")); pk = int(opts.get("pk", "0"))
    n3first = int(opts.get("n3", "9"))
    mode = "B"
    kin = int(opts.get("kin", "4"))
    sM = 23
    sW = 22; sC = 66
    SRD_IDX, SRD_TAB, SRD_WS, SRD_WD, SRD_T = 24, 28, 32, 36, 40
    def srd(base, ptr, nbytes):
        e(f"s_mov_b32 s{base}, s{ptr}"); e(f"s_mov_b32 s{base+1}, s{ptr+1}")
        e(f"s_mov_b32 s{base+2}, {nbytes}"); e(f"s_mov_b32 s{base+3}, 0x20000")
    vLane, vL15, vG = 1, 2, 3
    t0, t1, t2, t3, t4, t5, t6, t7 = 8, 9, 10, 11, 12, 13, 14, 15
    vL16 = 26; vDum = 24
    vSt = 231
    STI = dict(karg=0, issued=1, bi=2, idx=3, w1=4, s1=5, weff=6, b2=7, s2=8, b3=9, xld=10, main=11, gelu=12, fin=13, sb1=14)
    def st(name):
        if stamp is None: return
        e("s_memtime s[84:85]"); e("s_waitcnt lgkmcnt(0)")
        if name == "entry":
            e("s_mov_b32 s86, s84"); e(f"v_mov_b32 v{vSt}, 0")
        else:
            e("s_sub_u32 s84, s84, s86"); e(f"v_writelane_b32 v{vSt}, s84, {STI[name]}")
    combos = [(0,0,0),(0,0,1),(1,0,0),(1,0,1),(1,1,0),(1,1,1)]
    sSh = 62
    def scatter_addr(SA, Fb, shifted, gmax, tb=16):
        g0, gp0, hb, gpv = tb, tb+1, tb+2, tb+3
        q, off, lim, gq = tb+4, tb+5, tb+6, tb+7
        e(f"v_lshlrev_b32 v{g0}, 1, v{vG}")
        e(f"v_lshrrev_b32 v{gp0}, 1, v{vL15}")
        if shifted:
            e(f"v_subrev_u32 v{g0}, s{sSh}, v{g0}"); e(f"v_subrev_u32 v{gp0}, s{sSh}, v{gp0}")
        e(f"v_and_b32 v{hb}, 1, v{vL15}")
        e(f"v_mul_u32_u24 v{hb}, {HS}, v{hb}")
        e(f"s_lshl_b32 s65, s{sC}, 4")
        if Fb: e(f"s_add_u32 s65, s65, {Fb}")
        e(f"v_add_u32 v{hb}, s65, v{hb}")
        for ci, (aa, bb, pp) in enumerate(combos):
            cg = 8*aa + pp; m0_, m1_ = 88 + 4*(ci % 2), 90 + 4*(ci % 2)
            e(f"v_add_u32 v{gq}, {cg}, v{g0}")
            e(f"v_mad_i32_i24 v{q}, v{gq}, v{gq}, v{gq}")
            e(f"v_lshrrev_b32 v{q}, 1, v{q}")
            e(f"v_add3_u32 v{q}, v{q}, v{gp0}, {8*bb}")
            e(f"v_min_u32 v{lim}, 12, v{gq}")
            e(f"v_cmp_ge_u32 s[{m0_}:{m0_+1}], {gmax}, v{gq}")
            e(f"v_add_u32 v{gpv}, {8*bb}, v{gp0}")
            e(f"v_and_b32 v{off}, 0x7c, v{q}")
            e(f"v_cmp_le_u32 s[{m1_}:{m1_+1}], v{gpv}, v{lim}")
            e(f"v_lshlrev_b32 v{off}, 8, v{off}")
            e(f"v_lshl_add_u32 v{off}, v{q}, 2, v{off}")
            e(f"s_and_b64 s[{m0_}:{m0_+1}], s[{m0_}:{m0_+1}], s[{m1_}:{m1_+1}]")
            e(f"v_add_u32 v{off}, v{off}, v{hb}")
            e(f"v_cndmask_b32 v{SA+ci}, v{vDum}, v{off}, s[{m0_}:{m0_+1}]")
    def mf6(D, A0, A1, B0, B1):
        return [
         f"v_mfma_f32_16x16x32_bf16 v[{D}:{D+3}], v[{A0}:{A0+3}], v[{B0}:{B0+3}], 0",
         f"v_mfma_f32_16x16x32_bf16 v[{D+4}:{D+7}], v[{A1}:{A1+3}], v[{B0}:{B0+3}], 0",
         f"v_mfma_f32_16x16x32_bf16 v[{D+8}:{D+11}], v[{A1}:{A1+3}], v[{B1}:{B1+3}], 0",
         f"v_mfma_f32_16x16x32_bf16 v[{D}:{D+3}], v[{B0}:{B0+3}], v[{A0}:{A0+3}], v[{D}:{D+3}]",
         f"v_mfma_f32_16x16x32_bf16 v[{D+4}:{D+7}], v[{B1}:{B1+3}], v[{A0}:{A0+3}], v[{D+4}:{D+7}]",
         f"v_mfma_f32_16x16x32_bf16 v[{D+8}:{D+11}], v[{B1}:{B1+3}], v[{A1}:{A1+3}], v[{D+8}:{D+11}]"]

    tot = opts.get("tot")
    a.label(KNAME)
    if tot:
        e("s_memtime s[100:101]"); e("s_memrealtime s[94:95]") if False else None
    st("entry")
    e("s_cmp_ge_u32 s2, 256")
    e("s_cbranch_scc1 L_end")
    e("s_load_dwordx16 s[4:19], s[0:1], 0")
    e("s_load_dwordx2 s[20:21], s[0:1], 64")
    if dbg or stamp or tot: e("s_load_dwordx4 s[96:99], s[0:1], 72")
    pfd = int(opts.get("pfd", "10"))
    if pf != "0" and not pfd:
        e("s_getpc_b64 s[88:89]")
        e("v_lshlrev_b32 v28, 7, v0")
        e(f"v_min_u32 v28, CODE_END-{KNAME}-256, v28")
        e("v_mov_b32 v29, s89")
        e("v_add_co_u32 v28, vcc, s88, v28")
        e("s_nop 1")
        e("v_addc_co_u32 v29, vcc, 0, v29, vcc")
        e(f"s_movk_i32 s90, {int(pf)}")
        e("v_cmp_gt_u32 vcc, s90, v0")
        e("s_nop 0")
        e("s_and_saveexec_b64 s[92:93], vcc")
        e("s_cbranch_execz L_nopf")
        e("global_load_dword v30, v[28:29], off")
        a.label("L_nopf")
        e("s_mov_b64 exec, -1")
    elif pf != "0":
        e("s_getpc_b64 s[88:89]")
        e("s_lshr_b32 s90, s2, 3"); e("s_and_b32 s90, s90, 31"); e(f"s_mul_i32 s90, s90, {pfd}")
        e("v_add_u32 v28, s90, v0")
        e("v_lshlrev_b32 v28, 7, v28")
        e(f"v_min_u32 v28, CODE_END-{KNAME}-256, v28")
        e("v_mov_b32 v29, s89")
        e("v_add_co_u32 v28, vcc, s88, v28")
        e("s_nop 1")
        e("v_addc_co_u32 v29, vcc, 0, v29, vcc")
        e(f"v_cmp_gt_u32 vcc, {pfd}, v0")
        e("s_nop 0")
        e("s_and_saveexec_b64 s[92:93], vcc")
        e("s_cbranch_execz L_nopf")
        e("global_load_dword v30, v[28:29], off")
        a.label("L_nopf")
        e("s_mov_b64 exec, -1")
    e(f"v_lshrrev_b32 v{t4}, 6, v0")
    e(f"v_and_b32 v{vLane}, 63, v0")
    e(f"v_and_b32 v{vL15}, 15, v0")
    e(f"v_readfirstlane_b32 s{sW}, v{t4}")
    e(f"v_bfe_u32 v{vG}, v0, 4, 2")
    e(f"v_lshrrev_b32 v{t6}, 1, v{vLane}")
    e(f"v_lshlrev_b32 v{t6}, 2, v{t6}")
    e("s_lshl_b32 s61, s2, 4")
    e(f"s_and_b32 s{sC}, s{sW}, 3")
    e(f"s_lshl_b32 s62, s{sC}, 2")
    e("s_add_u32 s61, s61, s62")
    e("s_mul_i32 s61, s61, 104")
    e(f"s_bfe_u32 s{sM}, s2, 0x10003")
    for r in (t0, t1, t2, t3): e(f"v_mov_b32 v{r}, 0")
    e(f"v_lshlrev_b32 v{t4}, 4, v0")
    for k in range(3): e(f"ds_write_b128 v{t4}, v[{t0}:{t3}] offset:{k*8192}")
    e(f"v_and_b32 v{t5}, 127, v0")
    e(f"v_lshlrev_b32 v{t5}, 4, v{t5}")
    e(f"v_add_u32 v{t5}, {QB}, v{t5}")
    e(f"ds_write_b128 v{t5}, v[{t0}:{t3}]")
    e(f"v_lshlrev_b32 v{vL16}, 4, v{vLane}")
    e(f"v_mov_b32 v{vDum}, {DUM}")
    e("s_waitcnt lgkmcnt(0)")
    eidx = int(opts.get("eidx", "1"))
    if not eidx: e("s_barrier")
    st("karg")
    e(f"s_cmp_lt_u32 s{sW}, 4"); e("s_cbranch_scc1 L_touch0")
    vIdx = 4
    srd(SRD_IDX, 4, 4096*26*4)
    for k in range(4):
        e(f"buffer_load_dword v{vIdx+k}, v{t6}, s[{SRD_IDX}:{SRD_IDX+3}], s61 offen offset:{104*k}")
    a.label("L_touch0")
    tmap = opts.get("tmap", "rr"); tlbs = int(opts.get("tlbs", "20"))
    if tmap == "rr": e("s_lshr_b32 s62, s2, 3"); e("s_and_b32 s62, s62, 31")
    elif tmap == "ch": e("s_and_b32 s62, s2, 31")
    elif tmap == "hw":
        e("s_getreg_b32 s62, hwreg(HW_REG_HW_ID)")
        e("s_bfe_u32 s63, s62, 0x40008")
        e("s_bfe_u32 s64, s62, 0x3000d")
        e("s_lshl_b32 s64, s64, 3"); e("s_add_u32 s62, s63, s64"); e("s_and_b32 s62, s62, 31")
    elif tmap == "none": e("s_mov_b32 s62, 0x4000")
    e(f"v_lshlrev_b32 v{t5}, 7, v{vLane}")
    e(f"s_mov_b32 s{SRD_T}, s12"); e(f"s_mov_b32 s{SRD_T+1}, s13"); e(f"s_mov_b32 s{SRD_T+3}, 0x20000")
    e("s_mul_i32 s63, s62, 10880"); e("s_add_u32 s64, s63, 10880"); e("s_min_u32 s64, s64, 346112")
    e(f"s_mov_b32 s{SRD_T+2}, s64")
    e(f"s_cmp_eq_u32 s{sW}, 4"); e("s_cbranch_scc1 L_touch")
    e("s_add_u32 s63, s63, 8192")
    e(f"s_cmp_eq_u32 s{sW}, 5"); e("s_cbranch_scc1 L_touch")
    e(f"s_mov_b32 s{SRD_T}, s8"); e(f"s_mov_b32 s{SRD_T+1}, s9")
    e("s_mul_i32 s63, s62, 3328"); e("s_add_u32 s64, s63, 3328"); e("s_min_u32 s64, s64, 105456")
    e(f"s_mov_b32 s{SRD_T+2}, s64")
    e(f"s_cmp_eq_u32 s{sW}, 6"); e("s_cbranch_scc1 L_touch")
    e(f"s_mov_b32 s{SRD_T}, s6"); e(f"s_mov_b32 s{SRD_T+1}, s7"); e(f"s_mov_b32 s{SRD_T+2}, 3200000")
    e("s_mov_b32 s63, 0")
    e(f"v_lshlrev_b32 v{t5}, {tlbs}, v{vLane}")
    e(f"s_cmp_eq_u32 s{sW}, 7"); e("s_cbranch_scc1 L_touch")
    if eidx: e("s_barrier")
    e("s_branch L_C")
    a.label("L_touch")
    e(f"buffer_load_dword v31, v{t5}, s[{SRD_T}:{SRD_T+3}], s63 offen")
    if eidx: e("s_barrier")
    e("s_branch L_D")

    a.label("L_C")
    pf2 = int(opts.get("pf2", "0"))
    if pf2:
        e("s_getpc_b64 s[88:89]")
        a.label("L_pc2")
        e(f"v_add_u32 v28, {int(pf)}, v0")
        e("v_lshlrev_b32 v28, 7, v28")
        e(f"v_min_u32 v28, CODE_END-{KNAME}-256, v28")
        e(f"s_sub_u32 s88, s88, L_pc2-{KNAME}"); e("s_subb_u32 s89, s89, 0")
        e("v_mov_b32 v29, s89")
        e("v_add_co_u32 v28, vcc, s88, v28")
        e("s_nop 1")
        e("v_addc_co_u32 v29, vcc, 0, v29, vcc")
        e(f"s_movk_i32 s90, {pf2}")
        e("v_cmp_gt_u32 vcc, s90, v0")
        e("s_nop 0")
        e("s_and_saveexec_b64 s[92:93], vcc")
        e("s_cbranch_execz L_nopf2")
        e("global_load_dword v30, v[28:29], off")
        a.label("L_nopf2")
        e("s_mov_b64 exec, -1")
    vm = Track(a, "vmcnt", 63); lg = Track(a, "lgkmcnt", 15)
    SA2 = 154
    DS = [160, 172]; CV = [184, 190]
    vWs = 25; W3F = 32
    e("s_mov_b32 s68, s10"); e("s_mov_b32 s69, s11"); e("s_mov_b32 s70, 156"); e("s_mov_b32 s71, 0x20000")
    e(f"v_lshlrev_b32 v{t6}, 1, v{vLane}")
    e(f"buffer_load_ushort v{vWs}, v{t6}, s[68:71], 0 offen"); vm.add("ws")
    e(f"v_lshlrev_b32 v{t6}, 4, v{vG}")
    e(f"buffer_load_dwordx4 v[{W3F}:{W3F+3}], v{t6}, s[68:71], 0 offen offset:104"); vm.add("w3f")
    e("s_load_dword s47, s[18:19], 0")
    nsp = int(opts.get("nsp", "0"))
    if nsp:
        e(f"s_mul_i32 s63, s2, 1664"); e(f"s_mul_i32 s64, s{sC}, 416"); e("s_add_u32 s63, s63, s64")
        e("s_add_u32 s74, s4, s63"); e("s_addc_u32 s75, s5, 0")
        e("s_load_dwordx16 s[48:63], s[74:75], 0") if False else e("s_load_dwordx8 s[48:55], s[74:75], 0")
        e("s_load_dwordx8 s[76:83], s[74:75], 32")
        if int(opts.get("nsp2", "0")): e("s_load_dwordx16 s[24:39], s[74:75], 312")
    e(f"s_and_b32 s{sSh}, s{sC}, 1")
    scatter_addr(SA2, F2, True, 13)
    vH1, vH2 = 72, 73
    e(f"v_lshrrev_b32 v{t5}, 2, v{vL15}")
    e(f"v_lshl_add_u32 v{t5}, v{vG}, 3, v{t5}")
    e(f"v_add_u32 v{t6}, 4, v{t5}")
    e(f"v_min_u32 v{t5}, 25, v{t5}"); e(f"v_min_u32 v{t6}, 25, v{t6}")
    e(f"v_and_b32 v{t7}, 3, v{vL15}"); e(f"v_lshlrev_b32 v{t7}, 3, v{t7}")
    e("s_movk_i32 s64, 1352")
    e(f"v_mad_u32_u24 v{vH1}, v{t5}, s64, v{t7}"); e(f"v_mad_u32_u24 v{vH2}, v{t6}, s64, v{t7}")
    QA = 76
    for j in range(3):
        ee, h, k_, ad = t4, t5, t6, QA + j
        e(f"s_lshl_b32 s63, s{sC}, 6"); e(f"s_add_u32 s63, s63, {256*j}")
        e(f"v_add_u32 v{ee}, s63, v{vLane}")
        e(f"v_mul_u32_u24 v{h}, 2521, v{ee}"); e(f"v_lshrrev_b32 v{h}, 16, v{h}")
        e(f"v_mul_u32_u24 v{k_}, 26, v{h}"); e(f"v_sub_u32 v{k_}, v{ee}, v{k_}")
        e(f"v_cmp_gt_u32 vcc, 676, v{ee}")
        e(f"v_lshrrev_b32 v{ad}, 4, v{k_}"); e(f"v_lshlrev_b32 v{ad}, 10, v{ad}")
        e(f"v_and_b32 v{k_}, 15, v{k_}"); e(f"v_lshl_add_u32 v{ad}, v{k_}, 4, v{ad}")
        e(f"v_lshrrev_b32 v{k_}, 3, v{h}"); e(f"v_lshl_add_u32 v{ad}, v{k_}, 8, v{ad}")
        e(f"v_and_b32 v{h}, 7, v{h}"); e(f"v_lshl_add_u32 v{ad}, v{h}, 1, v{ad}")
        e(f"v_add_u32 v{ad}, {QB}, v{ad}")
        e(f"v_cndmask_b32 v{ad}, v{vDum}, v{ad}, vcc")
    vT1, vT2 = 37, 38
    e(f"s_lshl_b32 s63, s{sC}, 7"); e(f"s_add_u32 s63, s63, {W3L}")
    e(f"v_add_u32 v{vT1}, s63, v{vH1}"); e(f"v_add_u32 v{vT2}, s63, v{vH2}")
    TA1, TA2, vM = 39, 75, 74
    e(f"s_mul_i32 s63, s{sC}, 52"); e(f"s_lshl_b32 s64, s{sSh}, 2"); e("s_sub_u32 s63, s63, s64"); e(f"s_add_u32 s63, s63, {W2L}")
    e(f"v_add_u32 v{TA1}, s63, v{vH1}"); e(f"v_add_u32 v{TA2}, s63, v{vH2}")
    e(f"s_lshl_b32 s64, s{sSh}, 1"); e("s_add_u32 s64, s64, 10")
    e(f"v_cmp_gt_u32 vcc, s64, v{vL15}")
    QAD = [44, 45]
    e(f"s_lshl_b32 s63, s{sSh}, 1")
    e("s_nop 0")
    e(f"v_cndmask_b32 v{vM}, 0, -1, vcc")
    for aa in range(2):
        e(f"v_subrev_u32 v{t4}, s63, v{vL15}")
        if aa: e(f"v_add_u32 v{t4}, 16, v{t4}")
        e(f"v_min_u32 v{t4}, 31, v{t4}")
        e(f"v_lshrrev_b32 v{t5}, 4, v{t4}"); e(f"v_lshlrev_b32 v{t5}, 10, v{t5}")
        e(f"v_and_b32 v{t4}, 15, v{t4}"); e(f"v_lshl_add_u32 v{t5}, v{t4}, 4, v{t5}")
        e(f"v_lshl_add_u32 v{t5}, v{vG}, 8, v{t5}")
        e(f"v_add_u32 v{QAD[aa]}, {QB}, v{t5}")
    vFa = 226
    e(f"v_lshrrev_b32 v{t5}, 5, v{vLane}")
    e(f"v_mul_u32_u24 v{t6}, {HS}, v{t5}")
    e(f"v_and_b32 v{t7}, 31, v{vLane}")
    e(f"v_lshl_add_u32 v{vFa}, v{t7}, 4, v{t6}")
    if nsp:
        e("s_waitcnt lgkmcnt(0)")
        regs = list(range(48, 56)) + list(range(76, 84))
        for i in range(nsp):
            r = regs[i]
            e(f"s_lshl_b32 s{r}, s{r}, 5")
            e(f"s_load_dword s{r}, s[6:7], s{r}")
    st("w1")
    vm.wait("w3f")
    e(f"v_lshlrev_b32 v{t5}, 16, v{vWs}")
    e(f"v_cmp_gt_u32 s[88:89], 26, v{vLane}")
    e(f"v_cmp_gt_u32 s[90:91], 32, v{vLane}")
    e(f"v_lshlrev_b32 v{t6}, 2, v{vLane}")
    e(f"v_add_u32 v{t6}, {W1F}, v{t6}")
    e(f"v_cndmask_b32 v{t5}, 0, v{t5}, s[88:89]")
    e(f"v_cndmask_b32 v{t6}, v{vDum}, v{t6}, s[90:91]")
    e(f"ds_write_b32 v{t6}, v{t5}")
    e(f"v_subrev_u32 v{t5}, 26, v{vLane}")
    e(f"v_cmp_gt_u32 s[88:89], 26, v{t5}")
    e(f"v_lshrrev_b32 v{t6}, 3, v{t5}")
    e(f"v_lshlrev_b32 v{t6}, 8, v{t6}")
    e(f"v_and_b32 v{t7}, 7, v{t5}")
    e(f"v_lshl_add_u32 v{t6}, v{t7}, 1, v{t6}")
    e(f"v_add_u32 v{t6}, {QB+1024+160}, v{t6}")
    e(f"v_cndmask_b32 v{t6}, v{vDum}, v{t6}, s[88:89]")
    e(f"ds_write_b16 v{t6}, v{vWs}")
    AW = 56
    for gq in range(4): e(f"v_cmp_eq_u32 s[{88+2*gq}:{89+2*gq}], {4*gq}, v{vL15}")
    for gq in range(4):
        for j in range(4): e(f"v_cndmask_b32 v{AW+4*gq+j}, 0, v{W3F+j}, s[{88+2*gq}:{89+2*gq}]")
    e("s_waitcnt lgkmcnt(0)")
    e("s_barrier")
    st("bi")
    a.c("Weff")
    WB = 80; WD = 128
    for j in range(3):
        for gq in range(4):
            b = WB + 16*j + 4*gq
            e(f"ds_read_b64_tr_b16 v[{b}:{b+1}], v{vT1} offset:{j*512+32*gq}")
            e(f"ds_read_b64_tr_b16 v[{b+2}:{b+3}], v{vT2} offset:{j*512+32*gq}")
    for j in range(3):
        e(f"s_waitcnt lgkmcnt({min(15, 8*(2-j))})")
        for gq in range(4):
            b = WB + 16*j + 4*gq; d = WD + 4*j
            c = "0" if gq == 0 else f"v[{d}:{d+3}]"
            e(f"v_mfma_f32_16x16x32_bf16 v[{d}:{d+3}], v[{AW+4*gq}:{AW+4*gq+3}], v[{b}:{b+3}], {c}")
    a.nop(8)
    for j in range(3): e(f"v_cvt_pk_bf16_f32 v{t4+j}, v{WD+4*j}, v{WD+4*j}")
    for j in range(3): e(f"ds_write_b16 v{QA+j}, v{t4+j}")
    st("weff")
    e("s_waitcnt vmcnt(0) lgkmcnt(0)")
    nsp2 = int(opts.get("nsp2", "0"))
    if nsp2:
        regs2 = list(range(24, 40))
        for i in range(nsp2):
            r = regs2[i]
            e(f"s_lshl_b32 s{r}, s{r}, 5")
            e(f"s_load_dword s{r}, s[6:7], s{r}")
    e("s_barrier")
    st("b2")
    a.c("S2")
    Q0, Q1 = 140, 144
    lg.l = []
    e(f"ds_read_b128 v[{Q0}:{Q0+3}], v{QAD[0]}"); e(f"ds_read_b128 v[{Q1}:{Q1+3}], v{QAD[1]}"); lg.add("q", 2)
    PS = [48, 56, 64]
    cvt = lambda k, j: f"v_cvt_pk_bf16_f32 v{CV[k&1]+j}, v{DS[k&1]+2*j}, v{DS[k&1]+2*j+1}"
    wr = lambda SA, k, j: f"ds_write_b32 v{SA+j}, v{CV[k&1]+j} offset:{k*64}"
    def p_reads(k):
        P = PS[k % 3]
        return [f"ds_read_b64_tr_b16 v[{P}:{P+1}], v{TA1} offset:{k*208}",
                f"ds_read_b64_tr_b16 v[{P+2}:{P+3}], v{TA2} offset:{k*208}",
                f"ds_read_b64_tr_b16 v[{P+4}:{P+5}], v{TA1} offset:{k*208+32}",
                f"ds_read_b64_tr_b16 v[{P+6}:{P+7}], v{TA2} offset:{k*208+32}"]
    for k in (0, 1):
        for x in p_reads(k): e(x)
        lg.add(f"p{k}", 4)
    def masks(k): return [f"v_and_b32 v{PS[k%3]+4+j}, v{vM}, v{PS[k%3]+4+j}" for j in range(4)]
    lg.wait("p0")
    for x in masks(0): e(x)
    a.nop(1)
    for k in range(9):
        M = mf6(DS[k & 1], PS[k % 3], PS[k % 3]+4, Q0, Q1) if k < 7 else [None]*6
        R = p_reads(k+2) if k + 2 < 7 else []
        if k == 7: a.nop(4)
        if k == 8:
            e(f"s_cmp_lt_u32 s{sC}, 2"); e("s_cbranch_scc1 L_s2v")
            for j in range(6): e(f"v_mov_b32 v{SA2+j}, v{vDum}")
            a.label("L_s2v")
        for j in range(6):
            if j == 4 and k + 1 < 7:
                lg.wait(f"p{k+1}")
                for x in masks(k+1): e(x)
            if M[j]: e(M[j])
            if k >= 2: e(wr(SA2, k-2, j)); lg.add("w")
            if 1 <= k <= 7: e(cvt(k-1, j))
            if j < len(R): e(R[j]); lg.add(f"p{k+2}")
    st("s2")
    e("s_waitcnt lgkmcnt(0)")
    e("s_barrier")
    e("s_barrier")
    st("b3")
    if dbg == "lds":
        e("s_cmp_eq_u32 s2, 0"); e("s_cbranch_scc0 L_nodump")
        e(f"v_lshlrev_b32 v{t4}, 4, v0")
        for k in range(40):
            e(f"v_add_u32 v{t5}, {k*4096}, v{t4}")
            e(f"ds_read_b128 v[{t0}:{t3}], v{t5}")
            e("s_waitcnt lgkmcnt(0)")
            e(f"global_store_dwordx4 v{t5}, v[{t0}:{t3}], s[98:99]")
            e("s_waitcnt vmcnt(0)")
        a.label("L_nodump")
    a.c("C main")
    XA, YA, XB, YB = 8, 34, 47, 73
    D1A, D2A, D1B, D2B = 96, 112, 128, 144
    ZB = [[160, 164], [168, 172]]
    AB = [176, 184, 192]
    TM = [200, 201, 202, 203, 204, 205, 206, 207]
    WI = 208; vXb = 224; PK = 176
    e(f"v_and_b32 v{TM[4]}, 1, v{vG}")
    e(f"s_lshl_b32 s63, s{sC}, 2")
    e(f"v_add_u32 v{TM[4]}, s63, v{TM[4]}")
    e(f"v_mul_u32_u24 v{TM[4]}, 832, v{TM[4]}")
    e(f"v_lshrrev_b32 v{TM[5]}, 2, v{vL15}")
    e(f"v_lshl_add_u32 v{TM[4]}, v{TM[5]}, 5, v{TM[4]}")
    e(f"v_and_b32 v{TM[5]}, 3, v{vL15}")
    e(f"v_lshl_add_u32 v{TM[4]}, v{TM[5]}, 3, v{TM[4]}")
    e(f"v_add_u32 v{vXb}, {X0}, v{TM[4]}")
    safe = int(opts.get("safe", "0"))
    for T in range(2):
        for fb in range(7):
            e(f"ds_read_b64_tr_b16 v[{PK+14*T+2*fb}:{PK+14*T+2*fb+1}], v{vXb} offset:{T*1664 + fb*128}")
    e(f"v_lshrrev_b32 v{TM[5]}, 5, v{vLane}")
    e(f"v_lshlrev_b32 v{TM[6]}, 4, v{TM[5]}")
    e(f"v_add_u32 v{TM[6]}, {W1F}, v{TM[6]}")
    if safe: e("s_waitcnt lgkmcnt(0)")
    for m in range(4): e(f"ds_read_b128 v[{WI+4*m}:{WI+4*m+3}], v{TM[6]} offset:{m*32}")
    e(f"v_cmp_eq_u32 s[72:73], 1, v{TM[5]}")
    for T, (X, Y) in enumerate(((XA, YA), (XB, YB))):
        e(f"s_waitcnt lgkmcnt({11 if T == 0 else 4})")
        for g in range(13):
            p = PK + 14*T + g
            e(f"v_lshlrev_b32 v{X+2*g}, 16, v{p}")
            e(f"v_and_b32 v{X+2*g+1}, 0xffff0000, v{p}")
        for g in range(13): e(f"v_cndmask_b32 v{Y+g}, v{X+2*g}, v{X+2*g+1}, s[72:73]")
    def a_read(t):
        b = AB[t % 3]
        if t <= 22: e(f"ds_read_b128 v[{b}:{b+3}], v{vFa} offset:{F1 + t*FS}")
        if t <= 25: e(f"ds_read_b128 v[{b+4}:{b+7}], v{vFa} offset:{F2 + t*FS}")
    blocks = [(g, gp) for g in range(14) for gp in range(min(g, 12)+1)]
    def zgen(t, T):
        X, Y = ((XA, YA), (XB, YB))[T]
        z = ZB[t & 1][T]; mul = []; cv = []
        for j in range(4):
            g, gp = blocks[4*t + j]
            ta, tb, th = TM[2*j], TM[2*j+1], 228 + T
            if g == 13: cv.append(f"v_cvt_pk_bf16_f32 v{z+j}, v{Y+gp}, 0")
            else:
                y = Y + gp
                if g == gp and int(opts.get("omod", "0")):
                    mul.append(f"v_mul_f32_e64 v{ta}, v{X+2*g}, v{y} div:2")
                    mul.append(f"v_mul_f32_e64 v{tb}, v{X+2*g+1}, v{y} div:2")
                else:
                    if g == gp:
                        mul.append(f"v_mul_f32 v{th}, 0.5, v{Y+gp}"); y = th
                    mul.append(f"v_mul_f32 v{ta}, v{X+2*g}, v{y}")
                    mul.append(f"v_mul_f32 v{tb}, v{X+2*g+1}, v{y}")
                cv.append(f"v_cvt_pk_bf16_f32 v{z+j}, v{ta}, v{tb}")
        return mul + cv
    st("xld")
    a_read(0); a_read(1)
    for T in range(2):
        for s in zgen(0, T): e(s)
    cnt = {t: (1 if t > 22 else 2) for t in range(26)}
    for t in range(26):
        younger = cnt[t+1] if t+1 <= 25 else 0
        e(f"s_waitcnt lgkmcnt({younger})")
        b = AB[t % 3]; mf = []; rds = []
        if t + 2 <= 25:
            b2 = AB[(t+2) % 3]
            if t + 2 <= 22: rds.append(f"ds_read_b128 v[{b2}:{b2+3}], v{vFa} offset:{F1 + (t+2)*FS}")
            rds.append(f"ds_read_b128 v[{b2+4}:{b2+7}], v{vFa} offset:{F2 + (t+2)*FS}")
        for T, (D1, D2) in enumerate(((D1A, D2A), (D1B, D2B))):
            z = ZB[t & 1][T]
            if t <= 22:
                c = "0" if t == 0 else f"v[{D1}:{D1+15}]"
                mf.append(f"v_mfma_f32_32x32x16_bf16 v[{D1}:{D1+15}], v[{b}:{b+3}], v[{z}:{z+3}], {c}")
            c = f"v[{WI}:{WI+15}]" if t == 0 else f"v[{D2}:{D2+15}]"
            mf.append(f"v_mfma_f32_32x32x16_bf16 v[{D2}:{D2+15}], v[{b+4}:{b+7}], v[{z}:{z+3}], {c}")
        va = (zgen(t+1, 0) + zgen(t+1, 1)) if t < 25 else []
        n = len(mf); per = (len(va) + n - 1)//n if va else 0
        if t == 0: a.nop(2)
        vi = 0
        for mi, m in enumerate(mf):
            e(m)
            if mi < len(rds): e(rds[mi])
            for s in va[vi:vi+per]: e(s)
            vi += per
    a.nop(16)
    st("main")
    for T, (D1, D2) in enumerate(((D1A, D2A), (D1B, D2B))): e(f"v_mul_f32 v{TM[T]}, v{D1}, v{D2}")
    for r in range(1, 14):
        for T, (D1, D2) in enumerate(((D1A, D2A), (D1B, D2B))): e(f"v_fmac_f32 v{TM[T]}, v{D1+r}, v{D2+r}")
    if opts.get("chk"):
        for T in range(2):
            for fb in range(7):
                e(f"ds_read_b64_tr_b16 v[{96+14*T+2*fb}:{96+14*T+2*fb+1}], v{vXb} offset:{T*1664 + fb*128}")
            e("s_waitcnt lgkmcnt(0)")
        e("v_mov_b32 v230, 0x41200000")
        for T, (X, Y) in enumerate(((XA, YA), (XB, YB))):
            for g in range(13):
                p = 96 + 14*T + g
                e(f"v_lshlrev_b32 v228, 16, v{p}")
                e(f"v_cmp_ne_u32 vcc, v228, v{X+2*g}")
                e("s_nop 1")
                e(f"v_cndmask_b32 v229, 0, v230, vcc")
                e(f"v_add_f32 v{TM[T]}, v{TM[T]}, v229")
                e(f"v_and_b32 v228, 0xffff0000, v{p}")
                e(f"v_cmp_ne_u32 vcc, v228, v{X+2*g+1}")
                e("s_nop 1")
                e(f"v_cndmask_b32 v229, 0, v230, vcc")
                e(f"v_add_f32 v{TM[T]}, v{TM[T]}, v229")
    for sh in (8, 4, 2, 1):
        a.nop(2)
        for T in range(2): e(f"v_add_f32_dpp v{TM[T]}, v{TM[T]}, v{TM[T]} row_ror:{sh} row_mask:0xf bank_mask:0xf")
    e(f"v_bfe_u32 v{TM[2]}, v{vLane}, 4, 1")
    e(f"v_lshlrev_b32 v{TM[2]}, 3, v{TM[2]}")
    e(f"v_lshrrev_b32 v{TM[3]}, 5, v{vLane}")
    e(f"v_lshl_add_u32 v{TM[2]}, v{TM[3]}, 2, v{TM[2]}")
    e(f"s_lshl_b32 s63, s{sC}, 5"); e(f"s_add_u32 s63, s63, {RED}")
    e(f"v_add_u32 v{TM[2]}, s63, v{TM[2]}")
    e(f"ds_write_b32 v{TM[2]}, v{TM[0]}")
    e(f"ds_write_b32 v{TM[2]}, v{TM[1]} offset:16")
    e("s_branch L_final")

    a.label("L_D")
    sD, sDB, sK, sNI = 66, 67, 80, 79
    srd(SRD_TAB, 6, 3200000)
    srd(SRD_WD, 12, 346112)
    srd(SRD_WS, 8, 105456)
    P = 16; ACC = 32; BB = [64, 96]; AF = [128, 132]; TRA = 136; W2R = 144; BIAS = 152; OUT = 160; GT = 164; vC0 = 184; vA = 185
    W1R = 64; I0, I1 = 120, 124
    SA1 = 192; DSd = [198, 210]; CVd = [222, 164]
    vW1 = 27
    e(f"s_mul_i32 s81, s{sD}, 224")
    e(f"s_mul_i32 s63, s{sD}, 192"); e("s_add_u32 s63, s63, 64")
    e(f"s_mul_i32 s{sDB}, s{sD}, 7168")
    e(f"s_mul_i32 s64, s{sD}, 6144"); e("s_add_u32 s64, s64, 2048")
    e(f"s_cmp_lt_u32 s{sD}, 2")
    e("s_cselect_b32 s81, s81, s63"); e(f"s_cselect_b32 s{sDB}, s{sDB}, s64")
    e(f"s_cselect_b32 s{sNI}, 7, 6")
    e("s_movk_i32 s74, 5462"); e("s_cselect_b32 s74, 4682, s74")
    e("s_cselect_b32 s75, 14, 12")
    e("s_movk_i32 s78, 192"); e("s_cselect_b32 s78, 224, s78")
    e("s_cselect_b32 s76, -1, 0")
    e(f"s_add_u32 s{sDB}, s{sDB}, {RING}")
    e("s_mov_b64 exec, 0xffff")
    for ptr, off in ((14, 0), (16, 256)):
        e(f"s_mov_b32 s68, s{ptr}"); e(f"s_mov_b32 s69, s{ptr+1}"); e("s_mov_b32 s70, 832"); e("s_mov_b32 s71, 0x20000")
        e(f"s_add_u32 m0, s{sDB}, {off}"); e("s_nop 0")
        e(f"buffer_load_dwordx4 v{vL16}, s[68:71], s81 offen lds")
    e("s_mov_b64 exec, -1")
    sLS, sLD = 72, 73
    def lin_start(src, dst):
        e(f"s_lshl_b32 s{sLD}, s{sD}, 10")
        e(f"s_add_u32 s{sLS}, s{sLD}, {src}"); e(f"s_add_u32 s{sLD}, s{sLD}, {dst}")
    uid = [0]
    def lin_one(k):
        if k < 8:
            e(f"s_mov_b32 m0, s{sLD}"); e(f"s_add_u32 s{sLD}, s{sLD}, 4096")
            e(f"buffer_load_dwordx4 v{vL16}, s[{SRD_WS}:{SRD_WS+3}], s{sLS} offen lds")
            e(f"s_add_u32 s{sLS}, s{sLS}, 4096")
        else:
            uid[0] += 1; lab = f"L_lin{uid[0]}"
            e(f"s_cmp_lt_u32 s{sD}, 2"); e(f"s_cbranch_scc1 {lab}")
            e("s_mov_b64 exec, 0x1fffff")
            e(f"s_cmp_eq_u32 s{sD}, 2"); e(f"s_cbranch_scc1 {lab}")
            e(f"s_mov_b32 s{sLS}, {BIG}"); e(f"s_mov_b32 s{sLD}, {DUM}")
            a.label(lab)
            e(f"s_mov_b32 m0, s{sLD}"); e("s_nop 0")
            e(f"buffer_load_dwordx4 v{vL16}, s[{SRD_WS}:{SRD_WS+3}], s{sLS} offen lds")
            e("s_mov_b64 exec, -1")
    lin_start(2*35152, W3L)
    for k in range(n3first): lin_one(k)
    e(f"v_and_b32 v{t0}, 1, v{vLane}"); e(f"v_lshlrev_b32 v{t0}, 4, v{t0}")
    e(f"v_mul_u32_u24 v{t7}, 52, v{vL15}")
    e(f"v_lshl_add_u32 v{vW1}, v{vG}, 4, v{t7}")
    def patterns():
        for j in range(7):
            m, row, cp, p_, b3 = t1, t2, t3, t4, t5
            e(f"v_add_u32 v{m}, {64*j}, v{vLane}")
            e(f"v_mul_u32_u24 v{row}, s74, v{m}"); e(f"v_lshrrev_b32 v{row}, 16, v{row}")
            e(f"v_mul_u32_u24 v{cp}, s75, v{row}"); e(f"v_sub_u32 v{cp}, v{m}, v{cp}")
            e(f"v_lshrrev_b32 v{p_}, 1, v{cp}")
            e(f"v_bfe_u32 v{b3}, v{row}, 3, 1")
            e(f"v_xor_b32 v{t6}, v{p_}, v{b3}")
            e(f"v_add_u32 v{t7}, 3, v{p_}")
            e(f"v_cmp_lt_u32 vcc, 6, v{t7}")
            e(f"v_subrev_u32 v{m}, 7, v{t7}")
            e(f"v_and_b32 v{cp}, 1, v{cp}")
            e(f"v_cndmask_b32 v{t7}, v{t7}, v{m}, vcc")
            e(f"v_cmp_eq_u32 vcc, 1, v{b3}")
            e(f"v_mul_u32_u24 v{row}, 832, v{row}")
            e(f"v_add_u32 v{row}, s81, v{row}")
            e(f"v_cndmask_b32 v{t7}, v{p_}, v{t7}, vcc")
            e(f"v_and_b32 v{t7}, s76, v{t7}")
            e(f"v_not_b32 v{m}, s76"); e(f"v_and_b32 v{t6}, v{m}, v{t6}")
            e(f"v_or_b32 v{t7}, v{t7}, v{t6}")
            e(f"v_lshl_add_u32 v{cp}, v{t7}, 1, v{cp}")
            e(f"v_lshl_add_u32 v{cp}, v{cp}, 4, v{row}")
            if j & 3: e(f"v_subrev_u32 v{P+j}, {(j & 3)*1024}, v{cp}")
            else: e(f"v_mov_b32 v{P+j}, v{cp}")
        e(f"v_lshrrev_b32 v{t2}, 2, v{vL15}")
        e(f"v_lshl_add_u32 v{t3}, v{vG}, 3, v{t2}")
        e(f"v_mul_u32_u24 v{t3}, s78, v{t3}")
        e(f"v_and_b32 v{t4}, 3, v{vL15}")
        e(f"v_lshl_add_u32 v{t3}, v{t4}, 3, v{t3}")
        e(f"v_add_u32 v{t3}, s{sDB}, v{t3}")
        e(f"v_and_b32 v{t4}, 1, v{vG}")
        e(f"v_cmp_eq_u32 vcc, 1, v{t4}")
        e(f"v_not_b32 v{t6}, s76")
        for tau in range(7):
            e(f"v_mov_b32 v{t5}, {tau}")
            e(f"v_mov_b32 v{t7}, {(tau+4) % 7}")
            e(f"v_xor_b32 v{t2}, {tau}, v{t4}")
            e(f"v_cndmask_b32 v{t5}, v{t5}, v{t7}, vcc")
            e(f"v_and_b32 v{t5}, s76, v{t5}")
            e(f"v_and_b32 v{t2}, v{t6}, v{t2}")
            e(f"v_or_b32 v{t5}, v{t5}, v{t2}")
            e(f"v_lshl_add_u32 v{TRA+tau}, v{t5}, 5, v{t3}")
        e(f"v_mul_u32_u24 v{vA}, 832, v{vL15}")
        e(f"v_lshl_add_u32 v{vA}, v{vG}, 4, v{vA}")
        e(f"v_add_u32 v{vA}, {X0}, v{vA}")
    patearly = int(opts.get("pate", "1"))
    if patearly: patterns()
    st("w1")
    def w1_loads():
        e(f"s_mul_i32 s63, s{sD}, 1352")
        for k in range(7):
            if k == 6:
                e(f"s_cmp_lt_u32 s{sD}, 2"); e(f"s_cselect_b32 s63, s63, {BIG}")
            e(f"buffer_load_dwordx4 v[{W1R+8*k}:{W1R+8*k+3}], v{vW1}, s[{SRD_WS}:{SRD_WS+3}], s63 offen")
            e(f"buffer_load_dwordx4 v[{W1R+8*k+4}:{W1R+8*k+7}], v{vW1}, s[{SRD_WS}:{SRD_WS+3}], s63 offen offset:832")
            if k < 6: e(f"s_add_u32 s63, s63, {4*1352}")
    def gathers():
        for k in range(4): e(f"v_lshl_add_u32 v{vIdx+k}, v{vIdx+k}, 5, v{t0}")
        e(f"s_mul_i32 s63, s{sD}, {4*832}"); e(f"s_add_u32 s63, s63, {X0}")
        e("s_mov_b32 exec_lo, -1"); e("s_mov_b32 exec_hi, 0xfffff")
        for k in range(4):
            e(f"s_add_u32 m0, s63, {832*k}"); e("s_nop 0")
            e(f"buffer_load_dwordx4 v{vIdx+k}, s[{SRD_TAB}:{SRD_TAB+3}], 0 offen lds")
        e("s_mov_b64 exec, -1")
    def bias_read():
        e(f"v_lshlrev_b32 v{t1}, 1, v{vL15}"); e(f"v_add_u32 v{t1}, s{sDB}, v{t1}")
        for tau in range(7):
            e(f"v_mov_b32 v{BIAS+tau}, 0"); e(f"v_mov_b32 v{W2R+tau}, 0")
        for tau in range(7):
            e(f"ds_read_u16_d16_hi v{BIAS+tau}, v{t1} offset:{tau*32}")
            e(f"ds_read_u16_d16_hi v{W2R+tau}, v{t1} offset:{256+tau*32}")
        e("s_waitcnt lgkmcnt(0)")
        for tau in range(7):
            for r in range(4): e(f"v_mov_b32 v{ACC+4*tau+r}, v{BIAS+tau}")
    def kdma(slot):
        uid[0] += 1; lab = f"L_k{uid[0]}"
        for j in range(7):
            if j == 6:
                e(f"s_cmp_eq_u32 s{sNI}, 6"); e(f"s_cbranch_scc1 {lab}")
            if (j & 3) == 0:
                e(f"s_add_u32 m0, s{sDB}, {slot*SLOT + (j >> 2)*4096}"); e("s_nop 0")
            off = f" offset:{(j & 3)*1024}" if j & 3 else ""
            e(f"buffer_load_dwordx4 v{P+j}, s[{SRD_WD}:{SRD_WD+3}], s{sK} offen{off} lds")
        a.label(lab)
        e(f"s_add_u32 s{sK}, s{sK}, {SLOT}")
    def s1_setup():
        e(f"v_lshlrev_b32 v{t4}, 3, v{vG}")
        e(f"v_sub_u32 v{t4}, v{vL15}, v{t4}")
        e(f"v_and_b32 v{t5}, 1, v{t4}")
        e(f"v_lshlrev_b32 v{t5}, 4, v{t5}")
        e(f"v_mov_b32 v{t6}, 0x3f80")
        e(f"v_lshlrev_b32 v{t5}, v{t5}, v{t6}")
        e(f"v_ashrrev_i32 v{t4}, 1, v{t4}")
        e(f"v_add_u32 v{t6}, 8, v{t4}")
        for j in range(4): e(f"v_cmp_eq_u32 s[{88+2*j}:{89+2*j}], {j}, v{t4}")
        for j in range(4): e(f"v_cndmask_b32 v{I0+j}, 0, v{t5}, s[{88+2*j}:{89+2*j}]")
        for j in range(4): e(f"v_cmp_eq_u32 s[{88+2*j}:{89+2*j}], {j}, v{t6}")
        for j in range(4): e(f"v_cndmask_b32 v{I1+j}, 0, v{t5}, s[{88+2*j}:{89+2*j}]")
        scatter_addr(SA1, F1, False, 12, 198)
    def S1():
        cvt = lambda k, j: f"v_cvt_pk_bf16_f32 v{CVd[k&1]+j}, v{DSd[k&1]+2*j}, v{DSd[k&1]+2*j+1}"
        wr = lambda k, j: f"ds_write_b32 v{SA1+j}, v{CVd[k&1]+j} offset:{k*64}"
        for k in range(9):
            M = mf6(DSd[k & 1], W1R+8*k, W1R+8*k+4, I0, I1) if k < 7 else [None]*6
            if k == 7: a.nop(4)
            if k == 1: a.nop(5)
            if k == 2: a.nop(1)
            for j in range(6):
                if M[j]: e(M[j])
                if k >= 2: e(wr(k-2, j))
                if 1 <= k <= 7: e(cvt(k-1, j))
    e(f"s_mov_b32 s{sK}, 0")
    for k in range(n3first, 9): lin_one(k)
    lin_start(35152, W2L)
    for k in range(9): lin_one(k)
    e("s_waitcnt vmcnt(9)")
    e("s_barrier")
    st("bi")
    w1_loads()
    e("s_waitcnt vmcnt(14)")
    e("s_barrier")
    st("b2")
    gathers()
    st("sb1")
    bias_read()
    if not patearly: patterns()
    s1_setup()
    e("s_waitcnt vmcnt(4)")
    S1()
    k01late = int(opts.get("k01late", "0"))
    if not k01late: kdma(0); kdma(1)
    st("s1")
    e("s_waitcnt lgkmcnt(0)")
    e("s_barrier")
    if k01late: kdma(0); kdma(1)
    kdma(2)
    st("issued")
    e(f"s_cmp_lt_u32 s{sD}, 2"); e("s_cbranch_scc0 L_D6")
    def emit_D(NT):
        tag = f"T{NT}"; nI = NT; nt = NT; RS = 32*NT
        e(f"s_waitcnt vmcnt({3*nI})")
        st("s2")
        e("s_barrier")
        st("b3")
        if prio: e(f"s_setprio {prio}")
        def reads(b, slot, astep):
            r = [f"ds_read_b128 v[{AF[b]}:{AF[b]+3}], v{vA} offset:{64*astep}"]
            for tau in range(nt):
                r.append(f"ds_read_b64_tr_b16 v[{BB[b]+4*tau}:{BB[b]+4*tau+1}], v{TRA+tau} offset:{slot*SLOT}")
                r.append(f"ds_read_b64_tr_b16 v[{BB[b]+4*tau+2}:{BB[b]+4*tau+3}], v{TRA+tau} offset:{slot*SLOT+4*RS}")
            return r
        def mfmas(b):
            return [f"v_mfma_f32_16x16x32_bf16 v[{ACC+4*tau}:{ACC+4*tau+3}], v[{AF[b]}:{AF[b]+3}], v[{BB[b]+4*tau}:{BB[b]+4*tau+3}], v[{ACC+4*tau}:{ACC+4*tau+3}]" for tau in range(nt)]
        e(f"s_waitcnt vmcnt({2*nI})")
        for x in reads(0, 0, 0): e(x)
        e("s_waitcnt lgkmcnt(0)")
        e("s_mov_b32 s82, 0")
        st("xld")
        a.label(f"L_dl{tag}")
        for i in range(6):
            e(f"s_waitcnt vmcnt({nI})")
            R = reads((i+1) & 1, (i+1) % 3, i+1)
            Ms = mfmas(i & 1)
            e(f"s_add_u32 m0, s{sDB}, {(i % 3)*SLOT}")
            e(R[0]); ri = 1
            for j in range(nI):
                if j == 4:
                    e(f"s_add_u32 m0, s{sDB}, {(i % 3)*SLOT + 4096}")
                    e(R[ri]); ri += 1
                off = f" offset:{(j & 3)*1024}" if j & 3 else ""
                e(f"buffer_load_dwordx4 v{P+j}, s[{SRD_WD}:{SRD_WD+3}], s{sK} offen{off} lds")
                e(R[ri]); ri += 1
                if ri < len(R) and (len(R) - ri) > (nI - 1 - j) - (1 if j < 4 else 0): e(R[ri]); ri += 1
                e(Ms[j])
            while ri < len(R): e(R[ri]); ri += 1
            e(f"s_add_u32 s{sK}, s{sK}, {SLOT}")
            e("s_waitcnt lgkmcnt(0)")
        e(f"v_add_u32 v{vA}, {6*64}, v{vA}")
        e("s_add_u32 s82, s82, 1")
        e("s_cmp_lt_u32 s82, 2"); e(f"s_cbranch_scc1 L_dl{tag}")
        C0 = -2.0*0.7978845608028654*1.4426950408889634; C1 = C0*0.044715
        ML = mfmas(0)
        def gelu_ops(tau):
            x = ACC + 4*tau; Uu, E, Yv = GT, GT+4, GT+8
            r4 = range(4)
            return ([f"v_mul_f32 v{Uu+r}, v{x+r}, v{x+r}" for r in r4] +
                    [f"v_fmamk_f32 v{Uu+r}, v{Uu+r}, 0x{f32bits(C1):08x}, v{vC0}" for r in r4] +
                    [f"v_mul_f32 v{Uu+r}, v{x+r}, v{Uu+r}" for r in r4] +
                    [f"v_exp_f32 v{E+r}, v{Uu+r}" for r in r4] +
                    [f"v_mul_f32 v{Yv+r}, v{x+r}, v{W2R+tau}" for r in r4] +
                    [f"v_add_f32 v{E+r}, 1.0, v{E+r}" for r in r4] +
                    [f"v_rcp_f32 v{E+r}, v{E+r}" for r in r4] + ["s_nop 0"] +
                    [f"v_fmac_f32 v{OUT+r}, v{Yv+r}, v{E+r}" for r in r4])
        if int(opts.get("tailov", "1")):
            e(ML[0]); e(ML[1]); e(ML[2])
            for r in range(4): e(f"v_mov_b32 v{OUT+r}, 0")
            e(f"v_mov_b32 v{vC0}, 0x{f32bits(C0):08x}")
            a.nop(2)
            G0 = gelu_ops(0); gi = 0
            for m in ML[3:]:
                for x in G0[gi:gi+6]: e(x)
                gi += 6
                e(m)
            for x in G0[gi:]: e(x)
            st("main")
            for tau in range(1, nt):
                for x in gelu_ops(tau): e(x)
        else:
            for x in ML: e(x)
            st("main")
            for r in range(4): e(f"v_mov_b32 v{OUT+r}, 0")
            e(f"v_mov_b32 v{vC0}, 0x{f32bits(C0):08x}")
            a.nop(8)
            for tau in range(nt):
                for x in gelu_ops(tau): e(x)
        st("gelu")
        for sh in (8, 4, 2, 1):
            a.nop(2)
            for r in range(4): e(f"v_add_f32_dpp v{OUT+r}, v{OUT+r}, v{OUT+r} row_ror:{sh} row_mask:0xf bank_mask:0xf")
        e(f"s_lshl_b32 s63, s{sD}, 6"); e(f"s_add_u32 s63, s63, {RED2}")
        e(f"v_lshlrev_b32 v{GT}, 4, v{vG}"); e(f"v_add_u32 v{GT}, s63, v{GT}")
        e(f"ds_write_b128 v{GT}, v[{OUT}:{OUT+3}]")
    emit_D(7)
    e("s_branch L_final")
    a.label("L_D6")
    emit_D(6)

    a.label("L_final")
    e(f"v_lshlrev_b32 v8, 3, v{vL15}"); e(f"v_add_u32 v8, {RED}, v8")
    e(f"v_lshlrev_b32 v9, 2, v{vL15}"); e(f"v_add_u32 v9, {RED2}, v9")
    e("s_mov_b32 s68, s20"); e("s_mov_b32 s69, s21"); e("s_mov_b32 s70, 8192"); e("s_mov_b32 s71, 0x20000")
    e("s_lshl_b32 s63, s2, 5")
    e(f"v_lshlrev_b32 v16, 1, v{vL15}")
    e("s_waitcnt lgkmcnt(0)")
    e("s_barrier")
    st("fin")
    if stamp is not None:
        wg, wv = [int(x) for x in stamp.split("_")]
        e(f"s_cmp_eq_u32 s2, {wg}"); e("s_cbranch_scc0 L_nost")
        e(f"s_cmp_eq_u32 s{sW}, {wv}"); e("s_cbranch_scc0 L_nost")
        e(f"v_lshlrev_b32 v30, 2, v{vLane}")
        e("s_mov_b64 exec, 0xffff")
        e(f"global_store_dword v30, v{vSt}, s[96:97]")
        e("s_mov_b64 exec, -1")
        a.label("L_nost")
    e(f"s_cmp_eq_u32 s{sW}, 0"); e("s_cbranch_scc0 L_end")
    e("ds_read_b64 v[10:11], v8")
    for d in range(4): e(f"ds_read_b32 v{12+d}, v9 offset:{d*64}")
    e("s_lshl_b32 s47, s47, 16")
    e("s_mov_b64 exec, 0xffff")
    e("s_waitcnt lgkmcnt(0)")
    e("v_add_f32 v10, v10, v11"); e("v_add_f32 v12, v12, v13"); e("v_add_f32 v14, v14, v15")
    e("v_add_f32 v10, s47, v10"); e("v_add_f32 v12, v12, v14"); e("v_add_f32 v10, v10, v12")
    e("v_cvt_pk_bf16_f32 v10, v10, v10")
    e("buffer_store_short v10, v16, s[68:71], s63 offen")
    if tot:
        e("s_memtime s[84:85]"); e("s_memrealtime s[86:87]"); e("s_waitcnt lgkmcnt(0)")
        e("s_sub_u32 s84, s84, s100")
        e("s_lshl_b32 s63, s2, 2")
        e("v_mov_b32 v20, s84"); e("v_mov_b32 v21, s63"); e("v_mov_b32 v22, s86")
        e("s_mov_b64 exec, 1")
        e("global_store_dword v21, v20, s[96:97]")
        e("global_store_dword v21, v22, s[96:97] offset:1024")
    a.label("L_end")
    e("s_endpgm")
    a.label("CODE_END")
    return a

HEADER = """; xDeepFM (CIN + DNN) fused kernel for gfx950 -- generated by my own script
; @launch grid=(256,1,1) block=(512,1,1) lds=163840
.amdgcn_target "amdgcn-amd-amdhsa--gfx950"
.text
.globl {k}
.p2align 8
.type {k},@function
"""
FOOTER = """
.section .rodata,"a"
.p2align 6
.amdhsa_kernel {k}
  .amdhsa_next_free_vgpr {nv}
  .amdhsa_next_free_sgpr 102
  .amdhsa_accum_offset {nv}
  .amdhsa_group_segment_fixed_size 0
  .amdhsa_kernarg_size 88
  .amdhsa_user_sgpr_count 2
  .amdhsa_user_sgpr_kernarg_segment_ptr 1
  .amdhsa_system_sgpr_workgroup_id_x 1
.end_amdhsa_kernel
"""
if __name__ == "__main__":
    opts = dict(x.split("=") for x in sys.argv[2:])
    a = gen(opts)
    body = a.text()
    probs = check_hazards(body)
    for p in probs: print("HAZARD:", p, file=sys.stderr)
    foot = FOOTER.format(k=KNAME, nv=232)
    if int(opts.get("omod", "0")): foot = foot.replace("  .amdhsa_kernarg_size 88", "  .amdhsa_ieee_mode 0\n  .amdhsa_kernarg_size 88")
    open(sys.argv[1], "w").write(HEADER.format(k=KNAME) + body + foot)
    print("written", sys.argv[1], "hazards:", len(probs), file=sys.stderr)
```

```python
import sys, struct
from asmlib import Asm, check_hazards

KNAME = "standalone__deep_cross_xdeepfm__recsys_kernel"
FS, HS = 1040, 528
F1 = 0; F2 = 23920
W3L = F2
RING = 59072; SLOT = 26624
W2L = 112816
QB = 147968
X0 = 150016
W1F = 163328; RED = W1F + 128; RED2 = RED + 128
DUM = 0x30000
BIG = 0x10000000
def f32bits(x): return struct.unpack("<I", struct.pack("<f", x))[0]

class Track:
    def __init__(self, a, name, cap): self.a, self.name, self.cap, self.l = a, name, cap, []
    def add(self, tag, n=1): self.l.extend([tag]*n)
    def count(self, tag):
        idx = [i for i, t in enumerate(self.l) if t == tag]
        assert idx, tag
        return min(len(self.l) - 1 - idx[-1], self.cap)
    def wait(self, tag): self.a.e(f"s_waitcnt {self.name}({self.count(tag)})")

def gen(opts):
    a = Asm(); e = a.e
    dbg = opts.get("dbg"); stamp = opts.get("stamp"); pf = opts.get("pf", "184")
    prio = int(opts.get("prio", "2")); pk = int(opts.get("pk", "0"))
    n3first = int(opts.get("n3", "9"))
    mode = "B"
    kin = int(opts.get("kin", "4"))
    sM = 23
    sW = 22; sC = 66
    SRD_IDX, SRD_TAB, SRD_WS, SRD_WD, SRD_T = 24, 28, 32, 36, 40
    def srd(base, ptr, nbytes):
        e(f"s_mov_b32 s{base}, s{ptr}"); e(f"s_mov_b32 s{base+1}, s{ptr+1}")
        e(f"s_mov_b32 s{base+2}, {nbytes}"); e(f"s_mov_b32 s{base+3}, 0x20000")
    vLane, vL15, vG = 1, 2, 3
    t0, t1, t2, t3, t4, t5, t6, t7 = 8, 9, 10, 11, 12, 13, 14, 15
    vL16 = 26; vDum = 24
    vSt = 231
    STI = dict(karg=0, issued=1, bi=2, idx=3, w1=4, s1=5, weff=6, b2=7, s2=8, b3=9, xld=10, main=11, gelu=12, fin=13, sb1=14)
    def st(name):
        if stamp is None: return
        e("s_memtime s[84:85]"); e("s_waitcnt lgkmcnt(0)")
        if name == "entry":
            e("s_mov_b32 s86, s84"); e(f"v_mov_b32 v{vSt}, 0")
        else:
            e("s_sub_u32 s84, s84, s86"); e(f"v_writelane_b32 v{vSt}, s84, {STI[name]}")
    combos = [(0,0,0),(0,0,1),(1,0,0),(1,0,1),(1,1,0),(1,1,1)]
    sSh = 62
    def scatter_addr(SA, Fb, shifted, gmax, tb=16):
        g0, gp0, hb, gpv = tb, tb+1, tb+2, tb+3
        q, off, lim, gq = tb+4, tb+5, tb+6, tb+7
        e(f"v_lshlrev_b32 v{g0}, 1, v{vG}")
        e(f"v_lshrrev_b32 v{gp0}, 1, v{vL15}")
        if shifted:
            e(f"v_subrev_u32 v{g0}, s{sSh}, v{g0}"); e(f"v_subrev_u32 v{gp0}, s{sSh}, v{gp0}")
        e(f"v_and_b32 v{hb}, 1, v{vL15}")
        e(f"v_mul_u32_u24 v{hb}, {HS}, v{hb}")
        e(f"s_lshl_b32 s65, s{sC}, 4")
        if Fb: e(f"s_add_u32 s65, s65, {Fb}")
        e(f"v_add_u32 v{hb}, s65, v{hb}")
        for ci, (aa, bb, pp) in enumerate(combos):
            cg = 8*aa + pp; m0_, m1_ = 88 + 4*(ci % 2), 90 + 4*(ci % 2)
            e(f"v_add_u32 v{gq}, {cg}, v{g0}")
            e(f"v_mad_i32_i24 v{q}, v{gq}, v{gq}, v{gq}")
            e(f"v_lshrrev_b32 v{q}, 1, v{q}")
            e(f"v_add3_u32 v{q}, v{q}, v{gp0}, {8*bb}")
            e(f"v_min_u32 v{lim}, 12, v{gq}")
            e(f"v_cmp_ge_u32 s[{m0_}:{m0_+1}], {gmax}, v{gq}")
            e(f"v_add_u32 v{gpv}, {8*bb}, v{gp0}")
            e(f"v_and_b32 v{off}, 0x7c, v{q}")
            e(f"v_cmp_le_u32 s[{m1_}:{m1_+1}], v{gpv}, v{lim}")
            e(f"v_lshlrev_b32 v{off}, 8, v{off}")
            e(f"v_lshl_add_u32 v{off}, v{q}, 2, v{off}")
            e(f"s_and_b64 s[{m0_}:{m0_+1}], s[{m0_}:{m0_+1}], s[{m1_}:{m1_+1}]")
            e(f"v_add_u32 v{off}, v{off}, v{hb}")
            e(f"v_cndmask_b32 v{SA+ci}, v{vDum}, v{off}, s[{m0_}:{m0_+1}]")
    def mf6(D, A0, A1, B0, B1):
        return [
         f"v_mfma_f32_16x16x32_bf16 v[{D}:{D+3}], v[{A0}:{A0+3}], v[{B0}:{B0+3}], 0",
         f"v_mfma_f32_16x16x32_bf16 v[{D+4}:{D+7}], v[{A1}:{A1+3}], v[{B0}:{B0+3}], 0",
         f"v_mfma_f32_16x16x32_bf16 v[{D+8}:{D+11}], v[{A1}:{A1+3}], v[{B1}:{B1+3}], 0",
         f"v_mfma_f32_16x16x32_bf16 v[{D}:{D+3}], v[{B0}:{B0+3}], v[{A0}:{A0+3}], v[{D}:{D+3}]",
         f"v_mfma_f32_16x16x32_bf16 v[{D+4}:{D+7}], v[{B1}:{B1+3}], v[{A0}:{A0+3}], v[{D+4}:{D+7}]",
         f"v_mfma_f32_16x16x32_bf16 v[{D+8}:{D+11}], v[{B1}:{B1+3}], v[{A1}:{A1+3}], v[{D+8}:{D+11}]"]

    tot = opts.get("tot")
    a.label(KNAME)
    if tot:
        e("s_memtime s[100:101]"); e("s_memrealtime s[94:95]") if False else None
    st("entry")
    e("s_cmp_ge_u32 s2, 256")
    e("s_cbranch_scc1 L_end")
    e("s_load_dwordx16 s[4:19], s[0:1], 0")
    e("s_load_dwordx2 s[20:21], s[0:1], 64")
    if dbg or stamp or tot: e("s_load_dwordx4 s[96:99], s[0:1], 72")
    pfd = int(opts.get("pfd", "10"))
    if pf != "0" and not pfd:
        e("s_getpc_b64 s[88:89]")
        e("v_lshlrev_b32 v28, 7, v0")
        e(f"v_min_u32 v28, CODE_END-{KNAME}-256, v28")
        e("v_mov_b32 v29, s89")
        e("v_add_co_u32 v28, vcc, s88, v28")
        e("s_nop 1")
        e("v_addc_co_u32 v29, vcc, 0, v29, vcc")
        e(f"s_movk_i32 s90, {int(pf)}")
        e("v_cmp_gt_u32 vcc, s90, v0")
        e("s_nop 0")
        e("s_and_saveexec_b64 s[92:93], vcc")
        e("s_cbranch_execz L_nopf")
        e("global_load_dword v30, v[28:29], off")
        a.label("L_nopf")
        e("s_mov_b64 exec, -1")
    elif pf != "0":
        e("s_getpc_b64 s[88:89]")
        e("s_lshr_b32 s90, s2, 3"); e("s_and_b32 s90, s90, 31"); e(f"s_mul_i32 s90, s90, {pfd}")
        e("v_add_u32 v28, s90, v0")
        e("v_lshlrev_b32 v28, 7, v28")
        e(f"v_min_u32 v28, CODE_END-{KNAME}-256, v28")
        e("v_mov_b32 v29, s89")
        e("v_add_co_u32 v28, vcc, s88, v28")
        e("s_nop 1")
        e("v_addc_co_u32 v29, vcc, 0, v29, vcc")
        e(f"v_cmp_gt_u32 vcc, {pfd}, v0")
        e("s_nop 0")
        e("s_and_saveexec_b64 s[92:93], vcc")
        e("s_cbranch_execz L_nopf")
        e("global_load_dword v30, v[28:29], off")
        a.label("L_nopf")
        e("s_mov_b64 exec, -1")
    e(f"v_lshrrev_b32 v{t4}, 6, v0")
    e(f"v_and_b32 v{vLane}, 63, v0")
    e(f"v_and_b32 v{vL15}, 15, v0")
    e(f"v_readfirstlane_b32 s{sW}, v{t4}")
    e(f"v_bfe_u32 v{vG}, v0, 4, 2")
    e(f"v_lshrrev_b32 v{t6}, 1, v{vLane}")
    e(f"v_lshlrev_b32 v{t6}, 2, v{t6}")
    e("s_lshl_b32 s61, s2, 4")
    e(f"s_and_b32 s{sC}, s{sW}, 3")
    e(f"s_lshl_b32 s62, s{sC}, 2")
    e("s_add_u32 s61, s61, s62")
    e("s_mul_i32 s61, s61, 104")
    e(f"s_bfe_u32 s{sM}, s2, 0x10003")
    for r in (t0, t1, t2, t3): e(f"v_mov_b32 v{r}, 0")
    e(f"v_lshlrev_b32 v{t4}, 4, v0")
    for k in range(3): e(f"ds_write_b128 v{t4}, v[{t0}:{t3}] offset:{k*8192}")
    e(f"v_and_b32 v{t5}, 127, v0")
    e(f"v_lshlrev_b32 v{t5}, 4, v{t5}")
    e(f"v_add_u32 v{t5}, {QB}, v{t5}")
    e(f"ds_write_b128 v{t5}, v[{t0}:{t3}]")
    e(f"v_lshlrev_b32 v{vL16}, 4, v{vLane}")
    e(f"v_mov_b32 v{vDum}, {DUM}")
    e("s_waitcnt lgkmcnt(0)")
    eidx = int(opts.get("eidx", "1"))
    if not eidx: e("s_barrier")
    st("karg")
    e(f"s_cmp_lt_u32 s{sW}, 4"); e("s_cbranch_scc1 L_touch0")
    vIdx = 4
    srd(SRD_IDX, 4, 4096*26*4)
    for k in range(4):
        e(f"buffer_load_dword v{vIdx+k}, v{t6}, s[{SRD_IDX}:{SRD_IDX+3}], s61 offen offset:{104*k}")
    a.label("L_touch0")
    tmap = opts.get("tmap", "rr"); tlbs = int(opts.get("tlbs", "20"))
    if tmap == "rr": e("s_lshr_b32 s62, s2, 3"); e("s_and_b32 s62, s62, 31")
    elif tmap == "ch": e("s_and_b32 s62, s2, 31")
    elif tmap == "hw":
        e("s_getreg_b32 s62, hwreg(HW_REG_HW_ID)")
        e("s_bfe_u32 s63, s62, 0x40008")
        e("s_bfe_u32 s64, s62, 0x3000d")
        e("s_lshl_b32 s64, s64, 3"); e("s_add_u32 s62, s63, s64"); e("s_and_b32 s62, s62, 31")
    elif tmap == "none": e("s_mov_b32 s62, 0x4000")
    e(f"v_lshlrev_b32 v{t5}, 7, v{vLane}")
    e(f"s_mov_b32 s{SRD_T}, s12"); e(f"s_mov_b32 s{SRD_T+1}, s13"); e(f"s_mov_b32 s{SRD_T+3}, 0x20000")
    e("s_mul_i32 s63, s62, 10880"); e("s_add_u32 s64, s63, 10880"); e("s_min_u32 s64, s64, 346112")
    e(f"s_mov_b32 s{SRD_T+2}, s64")
    e(f"s_cmp_eq_u32 s{sW}, 4"); e("s_cbranch_scc1 L_touch")
    e("s_add_u32 s63, s63, 8192")
    e(f"s_cmp_eq_u32 s{sW}, 5"); e("s_cbranch_scc1 L_touch")
    e(f"s_mov_b32 s{SRD_T}, s8"); e(f"s_mov_b32 s{SRD_T+1}, s9")
    e("s_mul_i32 s63, s62, 3328"); e("s_add_u32 s64, s63, 3328"); e("s_min_u32 s64, s64, 105456")
    e(f"s_mov_b32 s{SRD_T+2}, s64")
    e(f"s_cmp_eq_u32 s{sW}, 6"); e("s_cbranch_scc1 L_touch")
    e(f"s_mov_b32 s{SRD_T}, s6"); e(f"s_mov_b32 s{SRD_T+1}, s7"); e(f"s_mov_b32 s{SRD_T+2}, 3200000")
    e("s_mov_b32 s63, 0")
    e(f"v_lshlrev_b32 v{t5}, {tlbs}, v{vLane}")
    e(f"s_cmp_eq_u32 s{sW}, 7"); e("s_cbranch_scc1 L_touch")
    if eidx: e("s_barrier")
    e("s_branch L_C")
    a.label("L_touch")
    e(f"buffer_load_dword v31, v{t5}, s[{SRD_T}:{SRD_T+3}], s63 offen")
    if eidx: e("s_barrier")
    e("s_branch L_D")

    a.label("L_C")
    pf2 = int(opts.get("pf2", "0"))
    if pf2:
        e("s_getpc_b64 s[88:89]")
        a.label("L_pc2")
        e(f"v_add_u32 v28, {int(pf)}, v0")
        e("v_lshlrev_b32 v28, 7, v28")
        e(f"v_min_u32 v28, CODE_END-{KNAME}-256, v28")
        e(f"s_sub_u32 s88, s88, L_pc2-{KNAME}"); e("s_subb_u32 s89, s89, 0")
        e("v_mov_b32 v29, s89")
        e("v_add_co_u32 v28, vcc, s88, v28")
        e("s_nop 1")
        e("v_addc_co_u32 v29, vcc, 0, v29, vcc")
        e(f"s_movk_i32 s90, {pf2}")
        e("v_cmp_gt_u32 vcc, s90, v0")
        e("s_nop 0")
        e("s_and_saveexec_b64 s[92:93], vcc")
        e("s_cbranch_execz L_nopf2")
        e("global_load_dword v30, v[28:29], off")
        a.label("L_nopf2")
        e("s_mov_b64 exec, -1")
    vm = Track(a, "vmcnt", 63); lg = Track(a, "lgkmcnt", 15)
    SA2 = 154
    DS = [160, 172]; CV = [184, 190]
    vWs = 25; W3F = 32
    e("s_mov_b32 s68, s10"); e("s_mov_b32 s69, s11"); e("s_mov_b32 s70, 156"); e("s_mov_b32 s71, 0x20000")
    e(f"v_lshlrev_b32 v{t6}, 1, v{vLane}")
    e(f"buffer_load_ushort v{vWs}, v{t6}, s[68:71], 0 offen"); vm.add("ws")
    e(f"v_lshlrev_b32 v{t6}, 4, v{vG}")
    e(f"buffer_load_dwordx4 v[{W3F}:{W3F+3}], v{t6}, s[68:71], 0 offen offset:104"); vm.add("w3f")
    e("s_load_dword s47, s[18:19], 0")
    nsp = int(opts.get("nsp", "0"))
    if nsp:
        e(f"s_mul_i32 s63, s2, 1664"); e(f"s_mul_i32 s64, s{sC}, 416"); e("s_add_u32 s63, s63, s64")
        e("s_add_u32 s74, s4, s63"); e("s_addc_u32 s75, s5, 0")
        e("s_load_dwordx16 s[48:63], s[74:75], 0") if False else e("s_load_dwordx8 s[48:55], s[74:75], 0")
        e("s_load_dwordx8 s[76:83], s[74:75], 32")
        if int(opts.get("nsp2", "0")): e("s_load_dwordx16 s[24:39], s[74:75], 312")
    e(f"s_and_b32 s{sSh}, s{sC}, 1")
    scatter_addr(SA2, F2, True, 13)
    vH1, vH2 = 72, 73
    e(f"v_lshrrev_b32 v{t5}, 2, v{vL15}")
    e(f"v_lshl_add_u32 v{t5}, v{vG}, 3, v{t5}")
    e(f"v_add_u32 v{t6}, 4, v{t5}")
    e(f"v_min_u32 v{t5}, 25, v{t5}"); e(f"v_min_u32 v{t6}, 25, v{t6}")
    e(f"v_and_b32 v{t7}, 3, v{vL15}"); e(f"v_lshlrev_b32 v{t7}, 3, v{t7}")
    e("s_movk_i32 s64, 1352")
    e(f"v_mad_u32_u24 v{vH1}, v{t5}, s64, v{t7}"); e(f"v_mad_u32_u24 v{vH2}, v{t6}, s64, v{t7}")
    QA = 76
    for j in range(3):
        ee, h, k_, ad = t4, t5, t6, QA + j
        e(f"s_lshl_b32 s63, s{sC}, 6"); e(f"s_add_u32 s63, s63, {256*j}")
        e(f"v_add_u32 v{ee}, s63, v{vLane}")
        e(f"v_mul_u32_u24 v{h}, 2521, v{ee}"); e(f"v_lshrrev_b32 v{h}, 16, v{h}")
        e(f"v_mul_u32_u24 v{k_}, 26, v{h}"); e(f"v_sub_u32 v{k_}, v{ee}, v{k_}")
        e(f"v_cmp_gt_u32 vcc, 676, v{ee}")
        e(f"v_lshrrev_b32 v{ad}, 4, v{k_}"); e(f"v_lshlrev_b32 v{ad}, 10, v{ad}")
        e(f"v_and_b32 v{k_}, 15, v{k_}"); e(f"v_lshl_add_u32 v{ad}, v{k_}, 4, v{ad}")
        e(f"v_lshrrev_b32 v{k_}, 3, v{h}"); e(f"v_lshl_add_u32 v{ad}, v{k_}, 8, v{ad}")
        e(f"v_and_b32 v{h}, 7, v{h}"); e(f"v_lshl_add_u32 v{ad}, v{h}, 1, v{ad}")
        e(f"v_add_u32 v{ad}, {QB}, v{ad}")
        e(f"v_cndmask_b32 v{ad}, v{vDum}, v{ad}, vcc")
    vT1, vT2 = 37, 38
    e(f"s_lshl_b32 s63, s{sC}, 7"); e(f"s_add_u32 s63, s63, {W3L}")
    e(f"v_add_u32 v{vT1}, s63, v{vH1}"); e(f"v_add_u32 v{vT2}, s63, v{vH2}")
    TA1, TA2, vM = 39, 75, 74
    e(f"s_mul_i32 s63, s{sC}, 52"); e(f"s_lshl_b32 s64, s{sSh}, 2"); e("s_sub_u32 s63, s63, s64"); e(f"s_add_u32 s63, s63, {W2L}")
    e(f"v_add_u32 v{TA1}, s63, v{vH1}"); e(f"v_add_u32 v{TA2}, s63, v{vH2}")
    e(f"s_lshl_b32 s64, s{sSh}, 1"); e("s_add_u32 s64, s64, 10")
    e(f"v_cmp_gt_u32 vcc, s64, v{vL15}")
    QAD = [44, 45]
    e(f"s_lshl_b32 s63, s{sSh}, 1")
    e("s_nop 0")
    e(f"v_cndmask_b32 v{vM}, 0, -1, vcc")
    for aa in range(2):
        e(f"v_subrev_u32 v{t4}, s63, v{vL15}")
        if aa: e(f"v_add_u32 v{t4}, 16, v{t4}")
        e(f"v_min_u32 v{t4}, 31, v{t4}")
        e(f"v_lshrrev_b32 v{t5}, 4, v{t4}"); e(f"v_lshlrev_b32 v{t5}, 10, v{t5}")
        e(f"v_and_b32 v{t4}, 15, v{t4}"); e(f"v_lshl_add_u32 v{t5}, v{t4}, 4, v{t5}")
        e(f"v_lshl_add_u32 v{t5}, v{vG}, 8, v{t5}")
        e(f"v_add_u32 v{QAD[aa]}, {QB}, v{t5}")
    vFa = 226
    e(f"v_lshrrev_b32 v{t5}, 5, v{vLane}")
    e(f"v_mul_u32_u24 v{t6}, {HS}, v{t5}")
    e(f"v_and_b32 v{t7}, 31, v{vLane}")
    e(f"v_lshl_add_u32 v{vFa}, v{t7}, 4, v{t6}")
    if nsp:
        e("s_waitcnt lgkmcnt(0)")
        regs = list(range(48, 56)) + list(range(76, 84))
        for i in range(nsp):
            r = regs[i]
            e(f"s_lshl_b32 s{r}, s{r}, 5")
            e(f"s_load_dword s{r}, s[6:7], s{r}")
    st("w1")
    vm.wait("w3f")
    e(f"v_lshlrev_b32 v{t5}, 16, v{vWs}")
    e(f"v_cmp_gt_u32 s[88:89], 26, v{vLane}")
    e(f"v_cmp_gt_u32 s[90:91], 32, v{vLane}")
    e(f"v_lshlrev_b32 v{t6}, 2, v{vLane}")
    e(f"v_add_u32 v{t6}, {W1F}, v{t6}")
    e(f"v_cndmask_b32 v{t5}, 0, v{t5}, s[88:89]")
    e(f"v_cndmask_b32 v{t6}, v{vDum}, v{t6}, s[90:91]")
    e(f"ds_write_b32 v{t6}, v{t5}")
    e(f"v_subrev_u32 v{t5}, 26, v{vLane}")
    e(f"v_cmp_gt_u32 s[88:89], 26, v{t5}")
    e(f"v_lshrrev_b32 v{t6}, 3, v{t5}")
    e(f"v_lshlrev_b32 v{t6}, 8, v{t6}")
    e(f"v_and_b32 v{t7}, 7, v{t5}")
    e(f"v_lshl_add_u32 v{t6}, v{t7}, 1, v{t6}")
    e(f"v_add_u32 v{t6}, {QB+1024+160}, v{t6}")
    e(f"v_cndmask_b32 v{t6}, v{vDum}, v{t6}, s[88:89]")
    e(f"ds_write_b16 v{t6}, v{vWs}")
    AW = 56
    for gq in range(4): e(f"v_cmp_eq_u32 s[{88+2*gq}:{89+2*gq}], {4*gq}, v{vL15}")
    for gq in range(4):
        for j in range(4): e(f"v_cndmask_b32 v{AW+4*gq+j}, 0, v{W3F+j}, s[{88+2*gq}:{89+2*gq}]")
    e("s_waitcnt lgkmcnt(0)")
    e("s_barrier")
    st("bi")
    a.c("Weff")
    WB = 80; WD = 128
    for j in range(3):
        for gq in range(4):
            b = WB + 16*j + 4*gq
            e(f"ds_read_b64_tr_b16 v[{b}:{b+1}], v{vT1} offset:{j*512+32*gq}")
            e(f"ds_read_b64_tr_b16 v[{b+2}:{b+3}], v{vT2} offset:{j*512+32*gq}")
    for j in range(3):
        e(f"s_waitcnt lgkmcnt({min(15, 8*(2-j))})")
        for gq in range(4):
            b = WB + 16*j + 4*gq; d = WD + 4*j
            c = "0" if gq == 0 else f"v[{d}:{d+3}]"
            e(f"v_mfma_f32_16x16x32_bf16 v[{d}:{d+3}], v[{AW+4*gq}:{AW+4*gq+3}], v[{b}:{b+3}], {c}")
    a.nop(8)
    for j in range(3): e(f"v_cvt_pk_bf16_f32 v{t4+j}, v{WD+4*j}, v{WD+4*j}")
    for j in range(3): e(f"ds_write_b16 v{QA+j}, v{t4+j}")
    st("weff")
    e("s_waitcnt vmcnt(0) lgkmcnt(0)")
    nsp2 = int(opts.get("nsp2", "0"))
    if nsp2:
        regs2 = list(range(24, 40))
        for i in range(nsp2):
            r = regs2[i]
            e(f"s_lshl_b32 s{r}, s{r}, 5")
            e(f"s_load_dword s{r}, s[6:7], s{r}")
    e("s_barrier")
    st("b2")
    a.c("S2")
    Q0, Q1 = 140, 144
    lg.l = []
    e(f"ds_read_b128 v[{Q0}:{Q0+3}], v{QAD[0]}"); e(f"ds_read_b128 v[{Q1}:{Q1+3}], v{QAD[1]}"); lg.add("q", 2)
    PS = [48, 56, 64]
    cvt = lambda k, j: f"v_cvt_pk_bf16_f32 v{CV[k&1]+j}, v{DS[k&1]+2*j}, v{DS[k&1]+2*j+1}"
    wr = lambda SA, k, j: f"ds_write_b32 v{SA+j}, v{CV[k&1]+j} offset:{k*64}"
    def p_reads(k):
        P = PS[k % 3]
        return [f"ds_read_b64_tr_b16 v[{P}:{P+1}], v{TA1} offset:{k*208}",
                f"ds_read_b64_tr_b16 v[{P+2}:{P+3}], v{TA2} offset:{k*208}",
                f"ds_read_b64_tr_b16 v[{P+4}:{P+5}], v{TA1} offset:{k*208+32}",
                f"ds_read_b64_tr_b16 v[{P+6}:{P+7}], v{TA2} offset:{k*208+32}"]
    for k in (0, 1):
        for x in p_reads(k): e(x)
        lg.add(f"p{k}", 4)
    def masks(k): return [f"v_and_b32 v{PS[k%3]+4+j}, v{vM}, v{PS[k%3]+4+j}" for j in range(4)]
    lg.wait("p0")
    for x in masks(0): e(x)
    a.nop(1)
    for k in range(9):
        M = mf6(DS[k & 1], PS[k % 3], PS[k % 3]+4, Q0, Q1) if k < 7 else [None]*6
        R = p_reads(k+2) if k + 2 < 7 else []
        if k == 7: a.nop(4)
        if k == 8:
            e(f"s_cmp_lt_u32 s{sC}, 2"); e("s_cbranch_scc1 L_s2v")
            for j in range(6): e(f"v_mov_b32 v{SA2+j}, v{vDum}")
            a.label("L_s2v")
        for j in range(6):
            if j == 4 and k + 1 < 7:
                lg.wait(f"p{k+1}")
                for x in masks(k+1): e(x)
            if M[j]: e(M[j])
            if k >= 2: e(wr(SA2, k-2, j)); lg.add("w")
            if 1 <= k <= 7: e(cvt(k-1, j))
            if j < len(R): e(R[j]); lg.add(f"p{k+2}")
    st("s2")
    e("s_waitcnt lgkmcnt(0)")
    e("s_barrier")
    e("s_barrier")
    st("b3")
    if dbg == "lds":
        e("s_cmp_eq_u32 s2, 0"); e("s_cbranch_scc0 L_nodump")
        e(f"v_lshlrev_b32 v{t4}, 4, v0")
        for k in range(40):
            e(f"v_add_u32 v{t5}, {k*4096}, v{t4}")
            e(f"ds_read_b128 v[{t0}:{t3}], v{t5}")
            e("s_waitcnt lgkmcnt(0)")
            e(f"global_store_dwordx4 v{t5}, v[{t0}:{t3}], s[98:99]")
            e("s_waitcnt vmcnt(0)")
        a.label("L_nodump")
    a.c("C main")
    XA, YA, XB, YB = 8, 34, 47, 73
    D1A, D2A, D1B, D2B = 96, 112, 128, 144
    ZB = [[160, 164], [168, 172]]
    AB = [176, 184, 192]
    TM = [200, 201, 202, 203, 204, 205, 206, 207]
    WI = 208; vXb = 224; PK = 176
    e(f"v_and_b32 v{TM[4]}, 1, v{vG}")
    e(f"s_lshl_b32 s63, s{sC}, 2")
    e(f"v_add_u32 v{TM[4]}, s63, v{TM[4]}")
    e(f"v_mul_u32_u24 v{TM[4]}, 832, v{TM[4]}")
    e(f"v_lshrrev_b32 v{TM[5]}, 2, v{vL15}")
    e(f"v_lshl_add_u32 v{TM[4]}, v{TM[5]}, 5, v{TM[4]}")
    e(f"v_and_b32 v{TM[5]}, 3, v{vL15}")
    e(f"v_lshl_add_u32 v{TM[4]}, v{TM[5]}, 3, v{TM[4]}")
    e(f"v_add_u32 v{vXb}, {X0}, v{TM[4]}")
    safe = int(opts.get("safe", "0"))
    for T in range(2):
        for fb in range(7):
            e(f"ds_read_b64_tr_b16 v[{PK+14*T+2*fb}:{PK+14*T+2*fb+1}], v{vXb} offset:{T*1664 + fb*128}")
    e(f"v_lshrrev_b32 v{TM[5]}, 5, v{vLane}")
    e(f"v_lshlrev_b32 v{TM[6]}, 4, v{TM[5]}")
    e(f"v_add_u32 v{TM[6]}, {W1F}, v{TM[6]}")
    if safe: e("s_waitcnt lgkmcnt(0)")
    for m in range(4): e(f"ds_read_b128 v[{WI+4*m}:{WI+4*m+3}], v{TM[6]} offset:{m*32}")
    e(f"v_cmp_eq_u32 s[72:73], 1, v{TM[5]}")
    for T, (X, Y) in enumerate(((XA, YA), (XB, YB))):
        e(f"s_waitcnt lgkmcnt({11 if T == 0 else 4})")
        for g in range(13):
            p = PK + 14*T + g
            e(f"v_lshlrev_b32 v{X+2*g}, 16, v{p}")
            e(f"v_and_b32 v{X+2*g+1}, 0xffff0000, v{p}")
        for g in range(13): e(f"v_cndmask_b32 v{Y+g}, v{X+2*g}, v{X+2*g+1}, s[72:73]")
    def a_read(t):
        b = AB[t % 3]
        if t <= 22: e(f"ds_read_b128 v[{b}:{b+3}], v{vFa} offset:{F1 + t*FS}")
        if t <= 25: e(f"ds_read_b128 v[{b+4}:{b+7}], v{vFa} offset:{F2 + t*FS}")
    blocks = [(g, gp) for g in range(14) for gp in range(min(g, 12)+1)]
    def zgen(t, T):
        X, Y = ((XA, YA), (XB, YB))[T]
        z = ZB[t & 1][T]; mul = []; cv = []
        for j in range(4):
            g, gp = blocks[4*t + j]
            ta, tb, th = TM[2*j], TM[2*j+1], 228 + T
            if g == 13: cv.append(f"v_cvt_pk_bf16_f32 v{z+j}, v{Y+gp}, 0")
            else:
                y = Y + gp
                if g == gp and int(opts.get("omod", "0")):
                    mul.append(f"v_mul_f32_e64 v{ta}, v{X+2*g}, v{y} div:2")
                    mul.append(f"v_mul_f32_e64 v{tb}, v{X+2*g+1}, v{y} div:2")
                else:
                    if g == gp:
                        mul.append(f"v_mul_f32 v{th}, 0.5, v{Y+gp}"); y = th
                    mul.append(f"v_mul_f32 v{ta}, v{X+2*g}, v{y}")
                    mul.append(f"v_mul_f32 v{tb}, v{X+2*g+1}, v{y}")
                cv.append(f"v_cvt_pk_bf16_f32 v{z+j}, v{ta}, v{tb}")
        return mul + cv
    st("xld")
    a_read(0); a_read(1)
    for T in range(2):
        for s in zgen(0, T): e(s)
    cnt = {t: (1 if t > 22 else 2) for t in range(26)}
    for t in range(26):
        younger = cnt[t+1] if t+1 <= 25 else 0
        e(f"s_waitcnt lgkmcnt({younger})")
        b = AB[t % 3]; mf = []; rds = []
        if t + 2 <= 25:
            b2 = AB[(t+2) % 3]
            if t + 2 <= 22: rds.append(f"ds_read_b128 v[{b2}:{b2+3}], v{vFa} offset:{F1 + (t+2)*FS}")
            rds.append(f"ds_read_b128 v[{b2+4}:{b2+7}], v{vFa} offset:{F2 + (t+2)*FS}")
        for T, (D1, D2) in enumerate(((D1A, D2A), (D1B, D2B))):
            z = ZB[t & 1][T]
            if t <= 22:
                c = "0" if t == 0 else f"v[{D1}:{D1+15}]"
                mf.append(f"v_mfma_f32_32x32x16_bf16 v[{D1}:{D1+15}], v[{b}:{b+3}], v[{z}:{z+3}], {c}")
            c = f"v[{WI}:{WI+15}]" if t == 0 else f"v[{D2}:{D2+15}]"
            mf.append(f"v_mfma_f32_32x32x16_bf16 v[{D2}:{D2+15}], v[{b+4}:{b+7}], v[{z}:{z+3}], {c}")
        va = (zgen(t+1, 0) + zgen(t+1, 1)) if t < 25 else []
        n = len(mf); per = (len(va) + n - 1)//n if va else 0
        if t == 0: a.nop(2)
        vi = 0
        for mi, m in enumerate(mf):
            e(m)
            if mi < len(rds): e(rds[mi])
            for s in va[vi:vi+per]: e(s)
            vi += per
    a.nop(16)
    st("main")
    for T, (D1, D2) in enumerate(((D1A, D2A), (D1B, D2B))): e(f"v_mul_f32 v{TM[T]}, v{D1}, v{D2}")
    for r in range(1, 14):
        for T, (D1, D2) in enumerate(((D1A, D2A), (D1B, D2B))): e(f"v_fmac_f32 v{TM[T]}, v{D1+r}, v{D2+r}")
    if opts.get("chk"):
        for T in range(2):
            for fb in range(7):
                e(f"ds_read_b64_tr_b16 v[{96+14*T+2*fb}:{96+14*T+2*fb+1}], v{vXb} offset:{T*1664 + fb*128}")
            e("s_waitcnt lgkmcnt(0)")
        e("v_mov_b32 v230, 0x41200000")
        for T, (X, Y) in enumerate(((XA, YA), (XB, YB))):
            for g in range(13):
                p = 96 + 14*T + g
                e(f"v_lshlrev_b32 v228, 16, v{p}")
                e(f"v_cmp_ne_u32 vcc, v228, v{X+2*g}")
                e("s_nop 1")
                e(f"v_cndmask_b32 v229, 0, v230, vcc")
                e(f"v_add_f32 v{TM[T]}, v{TM[T]}, v229")
                e(f"v_and_b32 v228, 0xffff0000, v{p}")
                e(f"v_cmp_ne_u32 vcc, v228, v{X+2*g+1}")
                e("s_nop 1")
                e(f"v_cndmask_b32 v229, 0, v230, vcc")
                e(f"v_add_f32 v{TM[T]}, v{TM[T]}, v229")
    for sh in (8, 4, 2, 1):
        a.nop(2)
        for T in range(2): e(f"v_add_f32_dpp v{TM[T]}, v{TM[T]}, v{TM[T]} row_ror:{sh} row_mask:0xf bank_mask:0xf")
    e(f"v_bfe_u32 v{TM[2]}, v{vLane}, 4, 1")
    e(f"v_lshlrev_b32 v{TM[2]}, 3, v{TM[2]}")
    e(f"v_lshrrev_b32 v{TM[3]}, 5, v{vLane}")
    e(f"v_lshl_add_u32 v{TM[2]}, v{TM[3]}, 2, v{TM[2]}")
    e(f"s_lshl_b32 s63, s{sC}, 5"); e(f"s_add_u32 s63, s63, {RED}")
    e(f"v_add_u32 v{TM[2]}, s63, v{TM[2]}")
    e(f"ds_write_b32 v{TM[2]}, v{TM[0]}")
    e(f"ds_write_b32 v{TM[2]}, v{TM[1]} offset:16")
    e("s_branch L_final")

    a.label("L_D")
    sD, sDB, sK, sNI = 66, 67, 80, 79
    srd(SRD_TAB, 6, 3200000)
    srd(SRD_WD, 12, 346112)
    srd(SRD_WS, 8, 105456)
    P = 16; ACC = 32; BB = [64, 96]; AF = [128, 132]; TRA = 136; W2R = 144; BIAS = 152; OUT = 160; GT = 164; vC0 = 184; vA = 185
    W1R = 64; I0, I1 = 120, 124
    SA1 = 192; DSd = [198, 210]; CVd = [222, 164]
    vW1 = 27
    e(f"s_mul_i32 s81, s{sD}, 224")
    e(f"s_mul_i32 s63, s{sD}, 192"); e("s_add_u32 s63, s63, 64")
    e(f"s_mul_i32 s{sDB}, s{sD}, 7168")
    e(f"s_mul_i32 s64, s{sD}, 6144"); e("s_add_u32 s64, s64, 2048")
    e(f"s_cmp_lt_u32 s{sD}, 2")
    e("s_cselect_b32 s81, s81, s63"); e(f"s_cselect_b32 s{sDB}, s{sDB}, s64")
    e(f"s_cselect_b32 s{sNI}, 7, 6")
    e("s_movk_i32 s74, 5462"); e("s_cselect_b32 s74, 4682, s74")
    e("s_cselect_b32 s75, 14, 12")
    e("s_movk_i32 s78, 192"); e("s_cselect_b32 s78, 224, s78")
    e("s_cselect_b32 s76, -1, 0")
    e(f"s_add_u32 s{sDB}, s{sDB}, {RING}")
    e("s_mov_b64 exec, 0xffff")
    for ptr, off in ((14, 0), (16, 256)):
        e(f"s_mov_b32 s68, s{ptr}"); e(f"s_mov_b32 s69, s{ptr+1}"); e("s_mov_b32 s70, 832"); e("s_mov_b32 s71, 0x20000")
        e(f"s_add_u32 m0, s{sDB}, {off}"); e("s_nop 0")
        e(f"buffer_load_dwordx4 v{vL16}, s[68:71], s81 offen lds")
    e("s_mov_b64 exec, -1")
    sLS, sLD = 72, 73
    def lin_start(src, dst):
        e(f"s_lshl_b32 s{sLD}, s{sD}, 10")
        e(f"s_add_u32 s{sLS}, s{sLD}, {src}"); e(f"s_add_u32 s{sLD}, s{sLD}, {dst}")
    uid = [0]
    def lin_one(k):
        if k < 8:
            e(f"s_mov_b32 m0, s{sLD}"); e(f"s_add_u32 s{sLD}, s{sLD}, 4096")
            e(f"buffer_load_dwordx4 v{vL16}, s[{SRD_WS}:{SRD_WS+3}], s{sLS} offen lds")
            e(f"s_add_u32 s{sLS}, s{sLS}, 4096")
        else:
            uid[0] += 1; lab = f"L_lin{uid[0]}"
            e(f"s_cmp_lt_u32 s{sD}, 2"); e(f"s_cbranch_scc1 {lab}")
            e("s_mov_b64 exec, 0x1fffff")
            e(f"s_cmp_eq_u32 s{sD}, 2"); e(f"s_cbranch_scc1 {lab}")
            e(f"s_mov_b32 s{sLS}, {BIG}"); e(f"s_mov_b32 s{sLD}, {DUM}")
            a.label(lab)
            e(f"s_mov_b32 m0, s{sLD}"); e("s_nop 0")
            e(f"buffer_load_dwordx4 v{vL16}, s[{SRD_WS}:{SRD_WS+3}], s{sLS} offen lds")
            e("s_mov_b64 exec, -1")
    lin_start(2*35152, W3L)
    for k in range(n3first): lin_one(k)
    e(f"v_and_b32 v{t0}, 1, v{vLane}"); e(f"v_lshlrev_b32 v{t0}, 4, v{t0}")
    e(f"v_mul_u32_u24 v{t7}, 52, v{vL15}")
    e(f"v_lshl_add_u32 v{vW1}, v{vG}, 4, v{t7}")
    def patterns():
        for j in range(7):
            m, row, cp, p_, b3 = t1, t2, t3, t4, t5
            e(f"v_add_u32 v{m}, {64*j}, v{vLane}")
            e(f"v_mul_u32_u24 v{row}, s74, v{m}"); e(f"v_lshrrev_b32 v{row}, 16, v{row}")
            e(f"v_mul_u32_u24 v{cp}, s75, v{row}"); e(f"v_sub_u32 v{cp}, v{m}, v{cp}")
            e(f"v_lshrrev_b32 v{p_}, 1, v{cp}")
            e(f"v_bfe_u32 v{b3}, v{row}, 3, 1")
            e(f"v_xor_b32 v{t6}, v{p_}, v{b3}")
            e(f"v_add_u32 v{t7}, 3, v{p_}")
            e(f"v_cmp_lt_u32 vcc, 6, v{t7}")
            e(f"v_subrev_u32 v{m}, 7, v{t7}")
            e(f"v_and_b32 v{cp}, 1, v{cp}")
            e(f"v_cndmask_b32 v{t7}, v{t7}, v{m}, vcc")
            e(f"v_cmp_eq_u32 vcc, 1, v{b3}")
            e(f"v_mul_u32_u24 v{row}, 832, v{row}")
            e(f"v_add_u32 v{row}, s81, v{row}")
            e(f"v_cndmask_b32 v{t7}, v{p_}, v{t7}, vcc")
            e(f"v_and_b32 v{t7}, s76, v{t7}")
            e(f"v_not_b32 v{m}, s76"); e(f"v_and_b32 v{t6}, v{m}, v{t6}")
            e(f"v_or_b32 v{t7}, v{t7}, v{t6}")
            e(f"v_lshl_add_u32 v{cp}, v{t7}, 1, v{cp}")
            e(f"v_lshl_add_u32 v{cp}, v{cp}, 4, v{row}")
            if j & 3: e(f"v_subrev_u32 v{P+j}, {(j & 3)*1024}, v{cp}")
            else: e(f"v_mov_b32 v{P+j}, v{cp}")
        e(f"v_lshrrev_b32 v{t2}, 2, v{vL15}")
        e(f"v_lshl_add_u32 v{t3}, v{vG}, 3, v{t2}")
        e(f"v_mul_u32_u24 v{t3}, s78, v{t3}")
        e(f"v_and_b32 v{t4}, 3, v{vL15}")
        e(f"v_lshl_add_u32 v{t3}, v{t4}, 3, v{t3}")
        e(f"v_add_u32 v{t3}, s{sDB}, v{t3}")
        e(f"v_and_b32 v{t4}, 1, v{vG}")
        e(f"v_cmp_eq_u32 vcc, 1, v{t4}")
        e(f"v_not_b32 v{t6}, s76")
        for tau in range(7):
            e(f"v_mov_b32 v{t5}, {tau}")
            e(f"v_mov_b32 v{t7}, {(tau+4) % 7}")
            e(f"v_xor_b32 v{t2}, {tau}, v{t4}")
            e(f"v_cndmask_b32 v{t5}, v{t5}, v{t7}, vcc")
            e(f"v_and_b32 v{t5}, s76, v{t5}")
            e(f"v_and_b32 v{t2}, v{t6}, v{t2}")
            e(f"v_or_b32 v{t5}, v{t5}, v{t2}")
            e(f"v_lshl_add_u32 v{TRA+tau}, v{t5}, 5, v{t3}")
        e(f"v_mul_u32_u24 v{vA}, 832, v{vL15}")
        e(f"v_lshl_add_u32 v{vA}, v{vG}, 4, v{vA}")
        e(f"v_add_u32 v{vA}, {X0}, v{vA}")
    patearly = int(opts.get("pate", "1"))
    if patearly: patterns()
    st("w1")
    def w1_loads():
        e(f"s_mul_i32 s63, s{sD}, 1352")
        for k in range(7):
            if k == 6:
                e(f"s_cmp_lt_u32 s{sD}, 2"); e(f"s_cselect_b32 s63, s63, {BIG}")
            e(f"buffer_load_dwordx4 v[{W1R+8*k}:{W1R+8*k+3}], v{vW1}, s[{SRD_WS}:{SRD_WS+3}], s63 offen")
            e(f"buffer_load_dwordx4 v[{W1R+8*k+4}:{W1R+8*k+7}], v{vW1}, s[{SRD_WS}:{SRD_WS+3}], s63 offen offset:832")
            if k < 6: e(f"s_add_u32 s63, s63, {4*1352}")
    def gathers():
        for k in range(4): e(f"v_lshl_add_u32 v{vIdx+k}, v{vIdx+k}, 5, v{t0}")
        e(f"s_mul_i32 s63, s{sD}, {4*832}"); e(f"s_add_u32 s63, s63, {X0}")
        e("s_mov_b32 exec_lo, -1"); e("s_mov_b32 exec_hi, 0xfffff")
        for k in range(4):
            e(f"s_add_u32 m0, s63, {832*k}"); e("s_nop 0")
            e(f"buffer_load_dwordx4 v{vIdx+k}, s[{SRD_TAB}:{SRD_TAB+3}], 0 offen lds")
        e("s_mov_b64 exec, -1")
    def bias_read():
        e(f"v_lshlrev_b32 v{t1}, 1, v{vL15}"); e(f"v_add_u32 v{t1}, s{sDB}, v{t1}")
        for tau in range(7):
            e(f"v_mov_b32 v{BIAS+tau}, 0"); e(f"v_mov_b32 v{W2R+tau}, 0")
        for tau in range(7):
            e(f"ds_read_u16_d16_hi v{BIAS+tau}, v{t1} offset:{tau*32}")
            e(f"ds_read_u16_d16_hi v{W2R+tau}, v{t1} offset:{256+tau*32}")
        e("s_waitcnt lgkmcnt(0)")
        for tau in range(7):
            for r in range(4): e(f"v_mov_b32 v{ACC+4*tau+r}, v{BIAS+tau}")
    def kdma(slot):
        uid[0] += 1; lab = f"L_k{uid[0]}"
        for j in range(7):
            if j == 6:
                e(f"s_cmp_eq_u32 s{sNI}, 6"); e(f"s_cbranch_scc1 {lab}")
            if (j & 3) == 0:
                e(f"s_add_u32 m0, s{sDB}, {slot*SLOT + (j >> 2)*4096}"); e("s_nop 0")
            off = f" offset:{(j & 3)*1024}" if j & 3 else ""
            e(f"buffer_load_dwordx4 v{P+j}, s[{SRD_WD}:{SRD_WD+3}], s{sK} offen{off} lds")
        a.label(lab)
        e(f"s_add_u32 s{sK}, s{sK}, {SLOT}")
    def s1_setup():
        e(f"v_lshlrev_b32 v{t4}, 3, v{vG}")
        e(f"v_sub_u32 v{t4}, v{vL15}, v{t4}")
        e(f"v_and_b32 v{t5}, 1, v{t4}")
        e(f"v_lshlrev_b32 v{t5}, 4, v{t5}")
        e(f"v_mov_b32 v{t6}, 0x3f80")
        e(f"v_lshlrev_b32 v{t5}, v{t5}, v{t6}")
        e(f"v_ashrrev_i32 v{t4}, 1, v{t4}")
        e(f"v_add_u32 v{t6}, 8, v{t4}")
        for j in range(4): e(f"v_cmp_eq_u32 s[{88+2*j}:{89+2*j}], {j}, v{t4}")
        for j in range(4): e(f"v_cndmask_b32 v{I0+j}, 0, v{t5}, s[{88+2*j}:{89+2*j}]")
        for j in range(4): e(f"v_cmp_eq_u32 s[{88+2*j}:{89+2*j}], {j}, v{t6}")
        for j in range(4): e(f"v_cndmask_b32 v{I1+j}, 0, v{t5}, s[{88+2*j}:{89+2*j}]")
        scatter_addr(SA1, F1, False, 12, 198)
    def S1():
        cvt = lambda k, j: f"v_cvt_pk_bf16_f32 v{CVd[k&1]+j}, v{DSd[k&1]+2*j}, v{DSd[k&1]+2*j+1}"
        wr = lambda k, j: f"ds_write_b32 v{SA1+j}, v{CVd[k&1]+j} offset:{k*64}"
        for k in range(9):
            M = mf6(DSd[k & 1], W1R+8*k, W1R+8*k+4, I0, I1) if k < 7 else [None]*6
            if k == 7: a.nop(4)
            if k == 1: a.nop(5)
            if k == 2: a.nop(1)
            for j in range(6):
                if M[j]: e(M[j])
                if k >= 2: e(wr(k-2, j))
                if 1 <= k <= 7: e(cvt(k-1, j))
    e(f"s_mov_b32 s{sK}, 0")
    for k in range(n3first, 9): lin_one(k)
    lin_start(35152, W2L)
    for k in range(9): lin_one(k)
    e("s_waitcnt vmcnt(9)")
    e("s_barrier")
    st("bi")
    gfirst = int(opts.get("gfirst", "0"))
    w1_loads()
    if gfirst:
        gathers()
        st("sb1")
        e("s_waitcnt vmcnt(18)")
        e("s_barrier")
        st("b2")
    else:
        e("s_waitcnt vmcnt(14)")
        e("s_barrier")
        st("b2")
        gathers()
        st("sb1")
    bias_read()
    if not patearly: patterns()
    s1_setup()
    e("s_waitcnt vmcnt(4)")
    S1()
    k01late = int(opts.get("k01late", "0"))
    if not k01late: kdma(0); kdma(1)
    st("s1")
    e("s_waitcnt lgkmcnt(0)")
    e("s_barrier")
    if k01late: kdma(0); kdma(1)
    kdma(2)
    st("issued")
    e(f"s_cmp_lt_u32 s{sD}, 2"); e("s_cbranch_scc0 L_D6")
    def emit_D(NT):
        tag = f"T{NT}"; nI = NT; nt = NT; RS = 32*NT
        e(f"s_waitcnt vmcnt({3*nI})")
        st("s2")
        e("s_barrier")
        st("b3")
        if prio: e(f"s_setprio {prio}")
        def reads(b, slot, astep):
            r = [f"ds_read_b128 v[{AF[b]}:{AF[b]+3}], v{vA} offset:{64*astep}"]
            for tau in range(nt):
                r.append(f"ds_read_b64_tr_b16 v[{BB[b]+4*tau}:{BB[b]+4*tau+1}], v{TRA+tau} offset:{slot*SLOT}")
                r.append(f"ds_read_b64_tr_b16 v[{BB[b]+4*tau+2}:{BB[b]+4*tau+3}], v{TRA+tau} offset:{slot*SLOT+4*RS}")
            return r
        def mfmas(b):
            return [f"v_mfma_f32_16x16x32_bf16 v[{ACC+4*tau}:{ACC+4*tau+3}], v[{AF[b]}:{AF[b]+3}], v[{BB[b]+4*tau}:{BB[b]+4*tau+3}], v[{ACC+4*tau}:{ACC+4*tau+3}]" for tau in range(nt)]
        e(f"s_waitcnt vmcnt({2*nI})")
        for x in reads(0, 0, 0): e(x)
        e("s_waitcnt lgkmcnt(0)")
        e("s_mov_b32 s82, 0")
        st("xld")
        a.label(f"L_dl{tag}")
        for i in range(6):
            e(f"s_waitcnt vmcnt({nI})")
            R = reads((i+1) & 1, (i+1) % 3, i+1)
            Ms = mfmas(i & 1)
            e(f"s_add_u32 m0, s{sDB}, {(i % 3)*SLOT}")
            e(R[0]); ri = 1
            for j in range(nI):
                if j == 4:
                    e(f"s_add_u32 m0, s{sDB}, {(i % 3)*SLOT + 4096}")
                    e(R[ri]); ri += 1
                off = f" offset:{(j & 3)*1024}" if j & 3 else ""
                e(f"buffer_load_dwordx4 v{P+j}, s[{SRD_WD}:{SRD_WD+3}], s{sK} offen{off} lds")
                e(R[ri]); ri += 1
                if ri < len(R) and (len(R) - ri) > (nI - 1 - j) - (1 if j < 4 else 0): e(R[ri]); ri += 1
                e(Ms[j])
            while ri < len(R): e(R[ri]); ri += 1
            e(f"s_add_u32 s{sK}, s{sK}, {SLOT}")
            e("s_waitcnt lgkmcnt(0)")
        e(f"v_add_u32 v{vA}, {6*64}, v{vA}")
        e("s_add_u32 s82, s82, 1")
        e("s_cmp_lt_u32 s82, 2"); e(f"s_cbranch_scc1 L_dl{tag}")
        C0 = -2.0*0.7978845608028654*1.4426950408889634; C1 = C0*0.044715
        ML = mfmas(0)
        def gelu_ops(tau):
            x = ACC + 4*tau; Uu, E, Yv = GT, GT+4, GT+8
            r4 = range(4)
            return ([f"v_mul_f32 v{Uu+r}, v{x+r}, v{x+r}" for r in r4] +
                    [f"v_fmamk_f32 v{Uu+r}, v{Uu+r}, 0x{f32bits(C1):08x}, v{vC0}" for r in r4] +
                    [f"v_mul_f32 v{Uu+r}, v{x+r}, v{Uu+r}" for r in r4] +
                    [f"v_exp_f32 v{E+r}, v{Uu+r}" for r in r4] +
                    [f"v_mul_f32 v{Yv+r}, v{x+r}, v{W2R+tau}" for r in r4] +
                    [f"v_add_f32 v{E+r}, 1.0, v{E+r}" for r in r4] +
                    [f"v_rcp_f32 v{E+r}, v{E+r}" for r in r4] + ["s_nop 0"] +
                    [f"v_fmac_f32 v{OUT+r}, v{Yv+r}, v{E+r}" for r in r4])
        if int(opts.get("tailov", "1")):
            e(ML[0]); e(ML[1]); e(ML[2])
            for r in range(4): e(f"v_mov_b32 v{OUT+r}, 0")
            e(f"v_mov_b32 v{vC0}, 0x{f32bits(C0):08x}")
            a.nop(2)
            G0 = gelu_ops(0); gi = 0
            for m in ML[3:]:
                for x in G0[gi:gi+6]: e(x)
                gi += 6
                e(m)
            for x in G0[gi:]: e(x)
            st("main")
            for tau in range(1, nt):
                for x in gelu_ops(tau): e(x)
        else:
            for x in ML: e(x)
            st("main")
            for r in range(4): e(f"v_mov_b32 v{OUT+r}, 0")
            e(f"v_mov_b32 v{vC0}, 0x{f32bits(C0):08x}")
            a.nop(8)
            for tau in range(nt):
                for x in gelu_ops(tau): e(x)
        st("gelu")
        for sh in (8, 4, 2, 1):
            a.nop(2)
            for r in range(4): e(f"v_add_f32_dpp v{OUT+r}, v{OUT+r}, v{OUT+r} row_ror:{sh} row_mask:0xf bank_mask:0xf")
        e(f"s_lshl_b32 s63, s{sD}, 6"); e(f"s_add_u32 s63, s63, {RED2}")
        e(f"v_lshlrev_b32 v{GT}, 4, v{vG}"); e(f"v_add_u32 v{GT}, s63, v{GT}")
        e(f"ds_write_b128 v{GT}, v[{OUT}:{OUT+3}]")
    emit_D(7)
    e("s_branch L_final")
    a.label("L_D6")
    emit_D(6)

    a.label("L_final")
    e(f"v_lshlrev_b32 v8, 3, v{vL15}"); e(f"v_add_u32 v8, {RED}, v8")
    e(f"v_lshlrev_b32 v9, 2, v{vL15}"); e(f"v_add_u32 v9, {RED2}, v9")
    e("s_mov_b32 s68, s20"); e("s_mov_b32 s69, s21"); e("s_mov_b32 s70, 8192"); e("s_mov_b32 s71, 0x20000")
    e("s_lshl_b32 s63, s2, 5")
    e(f"v_lshlrev_b32 v16, 1, v{vL15}")
    e("s_waitcnt lgkmcnt(0)")
    e("s_barrier")
    st("fin")
    if stamp is not None:
        wg, wv = [int(x) for x in stamp.split("_")]
        e(f"s_cmp_eq_u32 s2, {wg}"); e("s_cbranch_scc0 L_nost")
        e(f"s_cmp_eq_u32 s{sW}, {wv}"); e("s_cbranch_scc0 L_nost")
        e(f"v_lshlrev_b32 v30, 2, v{vLane}")
        e("s_mov_b64 exec, 0xffff")
        e(f"global_store_dword v30, v{vSt}, s[96:97]")
        e("s_mov_b64 exec, -1")
        a.label("L_nost")
    e(f"s_cmp_eq_u32 s{sW}, 0"); e("s_cbranch_scc0 L_end")
    e("ds_read_b64 v[10:11], v8")
    for d in range(4): e(f"ds_read_b32 v{12+d}, v9 offset:{d*64}")
    e("s_lshl_b32 s47, s47, 16")
    e("s_mov_b64 exec, 0xffff")
    e("s_waitcnt lgkmcnt(0)")
    e("v_add_f32 v10, v10, v11"); e("v_add_f32 v12, v12, v13"); e("v_add_f32 v14, v14, v15")
    e("v_add_f32 v10, s47, v10"); e("v_add_f32 v12, v12, v14"); e("v_add_f32 v10, v10, v12")
    e("v_cvt_pk_bf16_f32 v10, v10, v10")
    e("buffer_store_short v10, v16, s[68:71], s63 offen")
    if tot:
        e("s_memtime s[84:85]"); e("s_memrealtime s[86:87]"); e("s_waitcnt lgkmcnt(0)")
        e("s_sub_u32 s84, s84, s100")
        e("s_lshl_b32 s63, s2, 2")
        e("v_mov_b32 v20, s84"); e("v_mov_b32 v21, s63"); e("v_mov_b32 v22, s86")
        e("s_mov_b64 exec, 1")
        e("global_store_dword v21, v20, s[96:97]")
        e("global_store_dword v21, v22, s[96:97] offset:1024")
    a.label("L_end")
    e("s_endpgm")
    a.label("CODE_END")
    return a

HEADER = """; xDeepFM (CIN + DNN) fused kernel for gfx950 -- generated by my own script
; @launch grid=(256,1,1) block=(512,1,1) lds=163840
.amdgcn_target "amdgcn-amd-amdhsa--gfx950"
.text
.globl {k}
.p2align 8
.type {k},@function
"""
FOOTER = """
.section .rodata,"a"
.p2align 6
.amdhsa_kernel {k}
  .amdhsa_next_free_vgpr {nv}
  .amdhsa_next_free_sgpr 102
  .amdhsa_accum_offset {nv}
  .amdhsa_group_segment_fixed_size 0
  .amdhsa_kernarg_size 88
  .amdhsa_user_sgpr_count 2
  .amdhsa_user_sgpr_kernarg_segment_ptr 1
  .amdhsa_system_sgpr_workgroup_id_x 1
.end_amdhsa_kernel
"""
if __name__ == "__main__":
    opts = dict(x.split("=") for x in sys.argv[2:])
    a = gen(opts)
    body = a.text()
    probs = check_hazards(body)
    for p in probs: print("HAZARD:", p, file=sys.stderr)
    foot = FOOTER.format(k=KNAME, nv=232)
    if int(opts.get("omod", "0")): foot = foot.replace("  .amdhsa_kernarg_size 88", "  .amdhsa_ieee_mode 0\n  .amdhsa_kernarg_size 88")
    open(sys.argv[1], "w").write(HEADER.format(k=KNAME) + body + foot)
    print("written", sys.argv[1], "hazards:", len(probs), file=sys.stderr)
```

```python
import sys, struct
from asmlib import Asm, check_hazards

KNAME = "standalone__deep_cross_xdeepfm__recsys_kernel"
FS, HS = 1040, 528
F1 = 0; F2 = 23920
W3L = F2
RING = 59072; SLOT = 26624
W2L = 112816
QB = 147968
X0 = 150016
W1F = 163328; RED = W1F + 128; RED2 = RED + 128
DUM = 0x30000
BIG = 0x10000000
def f32bits(x): return struct.unpack("<I", struct.pack("<f", x))[0]

class Track:
    def __init__(self, a, name, cap): self.a, self.name, self.cap, self.l = a, name, cap, []
    def add(self, tag, n=1): self.l.extend([tag]*n)
    def count(self, tag):
        idx = [i for i, t in enumerate(self.l) if t == tag]
        assert idx, tag
        return min(len(self.l) - 1 - idx[-1], self.cap)
    def wait(self, tag): self.a.e(f"s_waitcnt {self.name}({self.count(tag)})")

def gen(opts):
    a = Asm(); e = a.e
    dbg = opts.get("dbg"); stamp = opts.get("stamp"); pf = opts.get("pf", "184")
    prio = int(opts.get("prio", "2")); pk = int(opts.get("pk", "0"))
    n3first = int(opts.get("n3", "9"))
    mode = "B"
    kin = int(opts.get("kin", "4"))
    sM = 23
    sW = 22; sC = 66
    SRD_IDX, SRD_TAB, SRD_WS, SRD_WD, SRD_T = 24, 28, 32, 36, 40
    def srd(base, ptr, nbytes):
        e(f"s_mov_b32 s{base}, s{ptr}"); e(f"s_mov_b32 s{base+1}, s{ptr+1}")
        e(f"s_mov_b32 s{base+2}, {nbytes}"); e(f"s_mov_b32 s{base+3}, 0x20000")
    vLane, vL15, vG = 1, 2, 3
    t0, t1, t2, t3, t4, t5, t6, t7 = 8, 9, 10, 11, 12, 13, 14, 15
    vL16 = 26; vDum = 24
    vSt = 231
    STI = dict(karg=0, issued=1, bi=2, idx=3, w1=4, s1=5, weff=6, b2=7, s2=8, b3=9, xld=10, main=11, gelu=12, fin=13, sb1=14)
    def st(name):
        if stamp is None: return
        e("s_memtime s[84:85]"); e("s_waitcnt lgkmcnt(0)")
        if name == "entry":
            e("s_mov_b32 s86, s84"); e(f"v_mov_b32 v{vSt}, 0")
        else:
            e("s_sub_u32 s84, s84, s86"); e(f"v_writelane_b32 v{vSt}, s84, {STI[name]}")
    combos = [(0,0,0),(0,0,1),(1,0,0),(1,0,1),(1,1,0),(1,1,1)]
    sSh = 62
    def scatter_addr(SA, Fb, shifted, gmax, tb=16):
        g0, gp0, hb, gpv = tb, tb+1, tb+2, tb+3
        q, off, lim, gq = tb+4, tb+5, tb+6, tb+7
        e(f"v_lshlrev_b32 v{g0}, 1, v{vG}")
        e(f"v_lshrrev_b32 v{gp0}, 1, v{vL15}")
        if shifted:
            e(f"v_subrev_u32 v{g0}, s{sSh}, v{g0}"); e(f"v_subrev_u32 v{gp0}, s{sSh}, v{gp0}")
        e(f"v_and_b32 v{hb}, 1, v{vL15}")
        e(f"v_mul_u32_u24 v{hb}, {HS}, v{hb}")
        e(f"s_lshl_b32 s65, s{sC}, 4")
        if Fb: e(f"s_add_u32 s65, s65, {Fb}")
        e(f"v_add_u32 v{hb}, s65, v{hb}")
        for ci, (aa, bb, pp) in enumerate(combos):
            cg = 8*aa + pp; m0_, m1_ = 88 + 4*(ci % 2), 90 + 4*(ci % 2)
            e(f"v_add_u32 v{gq}, {cg}, v{g0}")
            e(f"v_mad_i32_i24 v{q}, v{gq}, v{gq}, v{gq}")
            e(f"v_lshrrev_b32 v{q}, 1, v{q}")
            e(f"v_add3_u32 v{q}, v{q}, v{gp0}, {8*bb}")
            e(f"v_min_u32 v{lim}, 12, v{gq}")
            e(f"v_cmp_ge_u32 s[{m0_}:{m0_+1}], {gmax}, v{gq}")
            e(f"v_add_u32 v{gpv}, {8*bb}, v{gp0}")
            e(f"v_and_b32 v{off}, 0x7c, v{q}")
            e(f"v_cmp_le_u32 s[{m1_}:{m1_+1}], v{gpv}, v{lim}")
            e(f"v_lshlrev_b32 v{off}, 8, v{off}")
            e(f"v_lshl_add_u32 v{off}, v{q}, 2, v{off}")
            e(f"s_and_b64 s[{m0_}:{m0_+1}], s[{m0_}:{m0_+1}], s[{m1_}:{m1_+1}]")
            e(f"v_add_u32 v{off}, v{off}, v{hb}")
            e(f"v_cndmask_b32 v{SA+ci}, v{vDum}, v{off}, s[{m0_}:{m0_+1}]")
    def mf6(D, A0, A1, B0, B1):
        return [
         f"v_mfma_f32_16x16x32_bf16 v[{D}:{D+3}], v[{A0}:{A0+3}], v[{B0}:{B0+3}], 0",
         f"v_mfma_f32_16x16x32_bf16 v[{D+4}:{D+7}], v[{A1}:{A1+3}], v[{B0}:{B0+3}], 0",
         f"v_mfma_f32_16x16x32_bf16 v[{D+8}:{D+11}], v[{A1}:{A1+3}], v[{B1}:{B1+3}], 0",
         f"v_mfma_f32_16x16x32_bf16 v[{D}:{D+3}], v[{B0}:{B0+3}], v[{A0}:{A0+3}], v[{D}:{D+3}]",
         f"v_mfma_f32_16x16x32_bf16 v[{D+4}:{D+7}], v[{B1}:{B1+3}], v[{A0}:{A0+3}], v[{D+4}:{D+7}]",
         f"v_mfma_f32_16x16x32_bf16 v[{D+8}:{D+11}], v[{B1}:{B1+3}], v[{A1}:{A1+3}], v[{D+8}:{D+11}]"]

    tot = opts.get("tot")
    a.label(KNAME)
    if tot:
        e("s_memtime s[100:101]"); e("s_memrealtime s[94:95]") if False else None
    st("entry")
    e("s_cmp_ge_u32 s2, 256")
    e("s_cbranch_scc1 L_end")
    e("s_load_dwordx16 s[4:19], s[0:1], 0")
    e("s_load_dwordx2 s[20:21], s[0:1], 64")
    if dbg or stamp or tot: e("s_load_dwordx4 s[96:99], s[0:1], 72")
    pfd = int(opts.get("pfd", "10"))
    if pf != "0" and not pfd:
        e("s_getpc_b64 s[88:89]")
        e("v_lshlrev_b32 v28, 7, v0")
        e(f"v_min_u32 v28, CODE_END-{KNAME}-256, v28")
        e("v_mov_b32 v29, s89")
        e("v_add_co_u32 v28, vcc, s88, v28")
        e("s_nop 1")
        e("v_addc_co_u32 v29, vcc, 0, v29, vcc")
        e(f"s_movk_i32 s90, {int(pf)}")
        e("v_cmp_gt_u32 vcc, s90, v0")
        e("s_nop 0")
        e("s_and_saveexec_b64 s[92:93], vcc")
        e("s_cbranch_execz L_nopf")
        e("global_load_dword v30, v[28:29], off")
        a.label("L_nopf")
        e("s_mov_b64 exec, -1")
    elif pf != "0":
        e("s_getpc_b64 s[88:89]")
        e("s_lshr_b32 s90, s2, 3"); e("s_and_b32 s90, s90, 31"); e(f"s_mul_i32 s90, s90, {pfd}")
        e("v_add_u32 v28, s90, v0")
        e("v_lshlrev_b32 v28, 7, v28")
        e(f"v_min_u32 v28, CODE_END-{KNAME}-256, v28")
        e("v_mov_b32 v29, s89")
        e("v_add_co_u32 v28, vcc, s88, v28")
        e("s_nop 1")
        e("v_addc_co_u32 v29, vcc, 0, v29, vcc")
        e(f"v_cmp_gt_u32 vcc, {pfd}, v0")
        e("s_nop 0")
        e("s_and_saveexec_b64 s[92:93], vcc")
        e("s_cbranch_execz L_nopf")
        e("global_load_dword v30, v[28:29], off")
        a.label("L_nopf")
        e("s_mov_b64 exec, -1")
    e(f"v_lshrrev_b32 v{t4}, 6, v0")
    e(f"v_and_b32 v{vLane}, 63, v0")
    e(f"v_and_b32 v{vL15}, 15, v0")
    e(f"v_readfirstlane_b32 s{sW}, v{t4}")
    e(f"v_bfe_u32 v{vG}, v0, 4, 2")
    e(f"v_lshrrev_b32 v{t6}, 1, v{vLane}")
    e(f"v_lshlrev_b32 v{t6}, 2, v{t6}")
    e("s_lshl_b32 s61, s2, 4")
    e(f"s_and_b32 s{sC}, s{sW}, 3")
    e(f"s_lshl_b32 s62, s{sC}, 2")
    e("s_add_u32 s61, s61, s62")
    e("s_mul_i32 s61, s61, 104")
    e(f"s_bfe_u32 s{sM}, s2, 0x10003")
    for r in (t0, t1, t2, t3): e(f"v_mov_b32 v{r}, 0")
    e(f"v_lshlrev_b32 v{t4}, 4, v0")
    for k in range(3): e(f"ds_write_b128 v{t4}, v[{t0}:{t3}] offset:{k*8192}")
    e(f"v_and_b32 v{t5}, 127, v0")
    e(f"v_lshlrev_b32 v{t5}, 4, v{t5}")
    e(f"v_add_u32 v{t5}, {QB}, v{t5}")
    e(f"ds_write_b128 v{t5}, v[{t0}:{t3}]")
    e(f"v_lshlrev_b32 v{vL16}, 4, v{vLane}")
    e(f"v_mov_b32 v{vDum}, {DUM}")
    e("s_waitcnt lgkmcnt(0)")
    eidx = int(opts.get("eidx", "1"))
    if not eidx: e("s_barrier")
    st("karg")
    e(f"s_cmp_lt_u32 s{sW}, 4"); e("s_cbranch_scc1 L_touch0")
    vIdx = 4
    srd(SRD_IDX, 4, 4096*26*4)
    for k in range(4):
        e(f"buffer_load_dword v{vIdx+k}, v{t6}, s[{SRD_IDX}:{SRD_IDX+3}], s61 offen offset:{104*k}")
    a.label("L_touch0")
    stouch = int(opts.get("stouch", "0"))
    tmap = opts.get("tmap", "rr"); tlbs = int(opts.get("tlbs", "20"))
    if tmap == "rr": e("s_lshr_b32 s62, s2, 3"); e("s_and_b32 s62, s62, 31")
    elif tmap == "ch": e("s_and_b32 s62, s2, 31")
    elif tmap == "hw":
        e("s_getreg_b32 s62, hwreg(HW_REG_HW_ID)")
        e("s_bfe_u32 s63, s62, 0x40008")
        e("s_bfe_u32 s64, s62, 0x3000d")
        e("s_lshl_b32 s64, s64, 3"); e("s_add_u32 s62, s63, s64"); e("s_and_b32 s62, s62, 31")
    elif tmap == "none": e("s_mov_b32 s62, 0x4000")
    e(f"v_lshlrev_b32 v{t5}, 7, v{vLane}")
    e(f"s_mov_b32 s{SRD_T}, s12"); e(f"s_mov_b32 s{SRD_T+1}, s13"); e(f"s_mov_b32 s{SRD_T+3}, 0x20000")
    e("s_mul_i32 s63, s62, 10880"); e("s_add_u32 s64, s63, 10880"); e("s_min_u32 s64, s64, 346112")
    e(f"s_mov_b32 s{SRD_T+2}, s64")
    if stouch:
        e(f"s_mov_b32 s{SRD_T+2}, 0")
    e(f"s_cmp_eq_u32 s{sW}, 4"); e("s_cbranch_scc1 L_touch")
    e("s_add_u32 s63, s63, 8192")
    e(f"s_cmp_eq_u32 s{sW}, 5"); e("s_cbranch_scc1 L_touch")
    e(f"s_mov_b32 s{SRD_T}, s8"); e(f"s_mov_b32 s{SRD_T+1}, s9")
    e("s_mul_i32 s63, s62, 3328"); e("s_add_u32 s64, s63, 3328"); e("s_min_u32 s64, s64, 105456")
    e(f"s_mov_b32 s{SRD_T+2}, s64")
    if stouch: e(f"s_mov_b32 s{SRD_T+2}, 0")
    e(f"s_cmp_eq_u32 s{sW}, 6"); e("s_cbranch_scc1 L_touch")
    e(f"s_mov_b32 s{SRD_T}, s6"); e(f"s_mov_b32 s{SRD_T+1}, s7"); e(f"s_mov_b32 s{SRD_T+2}, 3200000")
    e("s_mov_b32 s63, 0")
    e(f"v_lshlrev_b32 v{t5}, {tlbs}, v{vLane}")
    e(f"s_cmp_eq_u32 s{sW}, 7"); e("s_cbranch_scc1 L_touch")
    if eidx: e("s_barrier")
    e("s_branch L_C")
    a.label("L_touch")
    e(f"buffer_load_dword v31, v{t5}, s[{SRD_T}:{SRD_T+3}], s63 offen")
    if eidx: e("s_barrier")
    e("s_branch L_D")

    a.label("L_C")
    tw = int(opts.get("tw", "0"))
    if tw:
        srd(SRD_TAB, 6, 3200000)
        e("s_mul_i32 s63, s2, 98"); e("v_add_u32 v28, s63, v0"); e("v_lshlrev_b32 v28, 7, v28")
        e(f"s_movk_i32 s90, 98")
        e("v_cmp_gt_u32 vcc, s90, v0")
        e("s_nop 0")
        e("s_and_saveexec_b64 s[92:93], vcc")
        e("s_cbranch_execz L_notw")
        e(f"buffer_load_dword v29, v28, s[{SRD_TAB}:{SRD_TAB+3}], 0 offen")
        a.label("L_notw")
        e("s_mov_b64 exec, -1")
    pf2 = int(opts.get("pf2", "0"))
    if pf2:
        e("s_getpc_b64 s[88:89]")
        a.label("L_pc2")
        e(f"v_add_u32 v28, {int(pf)}, v0")
        e("v_lshlrev_b32 v28, 7, v28")
        e(f"v_min_u32 v28, CODE_END-{KNAME}-256, v28")
        e(f"s_sub_u32 s88, s88, L_pc2-{KNAME}"); e("s_subb_u32 s89, s89, 0")
        e("v_mov_b32 v29, s89")
        e("v_add_co_u32 v28, vcc, s88, v28")
        e("s_nop 1")
        e("v_addc_co_u32 v29, vcc, 0, v29, vcc")
        e(f"s_movk_i32 s90, {pf2}")
        e("v_cmp_gt_u32 vcc, s90, v0")
        e("s_nop 0")
        e("s_and_saveexec_b64 s[92:93], vcc")
        e("s_cbranch_execz L_nopf2")
        e("global_load_dword v30, v[28:29], off")
        a.label("L_nopf2")
        e("s_mov_b64 exec, -1")
    vm = Track(a, "vmcnt", 63); lg = Track(a, "lgkmcnt", 15)
    SA2 = 154
    DS = [160, 172]; CV = [184, 190]
    vWs = 25; W3F = 32
    e("s_mov_b32 s68, s10"); e("s_mov_b32 s69, s11"); e("s_mov_b32 s70, 156"); e("s_mov_b32 s71, 0x20000")
    e(f"v_lshlrev_b32 v{t6}, 1, v{vLane}")
    e(f"buffer_load_ushort v{vWs}, v{t6}, s[68:71], 0 offen"); vm.add("ws")
    e(f"v_lshlrev_b32 v{t6}, 4, v{vG}")
    e(f"buffer_load_dwordx4 v[{W3F}:{W3F+3}], v{t6}, s[68:71], 0 offen offset:104"); vm.add("w3f")
    e("s_load_dword s47, s[18:19], 0")
    if stouch:
        e("s_lshr_b32 s48, s2, 3"); e("s_and_b32 s48, s48, 31")
        e("s_mul_i32 s49, s48, 18"); e(f"s_add_u32 s49, s49, s{sC}"); e("s_lshl_b32 s49, s49, 7")
        e("s_mul_i32 s50, s48, 85"); e(f"s_add_u32 s50, s50, s{sC}"); e("s_lshl_b32 s50, s50, 7")
        for m in range(5):
            e(f"s_min_u32 s51, s49, {105456-4}")
            e("s_load_dword s52, s[8:9], s51")
            e("s_add_u32 s49, s49, 512")
        for m in range(stouch):
            e(f"s_min_u32 s51, s50, {346112-4}")
            e("s_load_dword s53, s[12:13], s51")
            e("s_add_u32 s50, s50, 512")
    nsp = int(opts.get("nsp", "0"))
    if nsp:
        e(f"s_mul_i32 s63, s2, 1664"); e(f"s_mul_i32 s64, s{sC}, 416"); e("s_add_u32 s63, s63, s64")
        e("s_add_u32 s74, s4, s63"); e("s_addc_u32 s75, s5, 0")
        e("s_load_dwordx16 s[48:63], s[74:75], 0") if False else e("s_load_dwordx8 s[48:55], s[74:75], 0")
        e("s_load_dwordx8 s[76:83], s[74:75], 32")
        if int(opts.get("nsp2", "0")): e("s_load_dwordx16 s[24:39], s[74:75], 312")
    e(f"s_and_b32 s{sSh}, s{sC}, 1")
    scatter_addr(SA2, F2, True, 13)
    vH1, vH2 = 72, 73
    e(f"v_lshrrev_b32 v{t5}, 2, v{vL15}")
    e(f"v_lshl_add_u32 v{t5}, v{vG}, 3, v{t5}")
    e(f"v_add_u32 v{t6}, 4, v{t5}")
    e(f"v_min_u32 v{t5}, 25, v{t5}"); e(f"v_min_u32 v{t6}, 25, v{t6}")
    e(f"v_and_b32 v{t7}, 3, v{vL15}"); e(f"v_lshlrev_b32 v{t7}, 3, v{t7}")
    e("s_movk_i32 s64, 1352")
    e(f"v_mad_u32_u24 v{vH1}, v{t5}, s64, v{t7}"); e(f"v_mad_u32_u24 v{vH2}, v{t6}, s64, v{t7}")
    QA = 76
    for j in range(3):
        ee, h, k_, ad = t4, t5, t6, QA + j
        e(f"s_lshl_b32 s63, s{sC}, 6"); e(f"s_add_u32 s63, s63, {256*j}")
        e(f"v_add_u32 v{ee}, s63, v{vLane}")
        e(f"v_mul_u32_u24 v{h}, 2521, v{ee}"); e(f"v_lshrrev_b32 v{h}, 16, v{h}")
        e(f"v_mul_u32_u24 v{k_}, 26, v{h}"); e(f"v_sub_u32 v{k_}, v{ee}, v{k_}")
        e(f"v_cmp_gt_u32 vcc, 676, v{ee}")
        e(f"v_lshrrev_b32 v{ad}, 4, v{k_}"); e(f"v_lshlrev_b32 v{ad}, 10, v{ad}")
        e(f"v_and_b32 v{k_}, 15, v{k_}"); e(f"v_lshl_add_u32 v{ad}, v{k_}, 4, v{ad}")
        e(f"v_lshrrev_b32 v{k_}, 3, v{h}"); e(f"v_lshl_add_u32 v{ad}, v{k_}, 8, v{ad}")
        e(f"v_and_b32 v{h}, 7, v{h}"); e(f"v_lshl_add_u32 v{ad}, v{h}, 1, v{ad}")
        e(f"v_add_u32 v{ad}, {QB}, v{ad}")
        e(f"v_cndmask_b32 v{ad}, v{vDum}, v{ad}, vcc")
    vT1, vT2 = 37, 38
    e(f"s_lshl_b32 s63, s{sC}, 7"); e(f"s_add_u32 s63, s63, {W3L}")
    e(f"v_add_u32 v{vT1}, s63, v{vH1}"); e(f"v_add_u32 v{vT2}, s63, v{vH2}")
    TA1, TA2, vM = 39, 75, 74
    e(f"s_mul_i32 s63, s{sC}, 52"); e(f"s_lshl_b32 s64, s{sSh}, 2"); e("s_sub_u32 s63, s63, s64"); e(f"s_add_u32 s63, s63, {W2L}")
    e(f"v_add_u32 v{TA1}, s63, v{vH1}"); e(f"v_add_u32 v{TA2}, s63, v{vH2}")
    e(f"s_lshl_b32 s64, s{sSh}, 1"); e("s_add_u32 s64, s64, 10")
    e(f"v_cmp_gt_u32 vcc, s64, v{vL15}")
    QAD = [44, 45]
    e(f"s_lshl_b32 s63, s{sSh}, 1")
    e("s_nop 0")
    e(f"v_cndmask_b32 v{vM}, 0, -1, vcc")
    for aa in range(2):
        e(f"v_subrev_u32 v{t4}, s63, v{vL15}")
        if aa: e(f"v_add_u32 v{t4}, 16, v{t4}")
        e(f"v_min_u32 v{t4}, 31, v{t4}")
        e(f"v_lshrrev_b32 v{t5}, 4, v{t4}"); e(f"v_lshlrev_b32 v{t5}, 10, v{t5}")
        e(f"v_and_b32 v{t4}, 15, v{t4}"); e(f"v_lshl_add_u32 v{t5}, v{t4}, 4, v{t5}")
        e(f"v_lshl_add_u32 v{t5}, v{vG}, 8, v{t5}")
        e(f"v_add_u32 v{QAD[aa]}, {QB}, v{t5}")
    vFa = 226
    e(f"v_lshrrev_b32 v{t5}, 5, v{vLane}")
    e(f"v_mul_u32_u24 v{t6}, {HS}, v{t5}")
    e(f"v_and_b32 v{t7}, 31, v{vLane}")
    e(f"v_lshl_add_u32 v{vFa}, v{t7}, 4, v{t6}")
    if nsp:
        e("s_waitcnt lgkmcnt(0)")
        regs = list(range(48, 56)) + list(range(76, 84))
        for i in range(nsp):
            r = regs[i]
            e(f"s_lshl_b32 s{r}, s{r}, 5")
            e(f"s_load_dword s{r}, s[6:7], s{r}")
    st("w1")
    vm.wait("w3f")
    e(f"v_lshlrev_b32 v{t5}, 16, v{vWs}")
    e(f"v_cmp_gt_u32 s[88:89], 26, v{vLane}")
    e(f"v_cmp_gt_u32 s[90:91], 32, v{vLane}")
    e(f"v_lshlrev_b32 v{t6}, 2, v{vLane}")
    e(f"v_add_u32 v{t6}, {W1F}, v{t6}")
    e(f"v_cndmask_b32 v{t5}, 0, v{t5}, s[88:89]")
    e(f"v_cndmask_b32 v{t6}, v{vDum}, v{t6}, s[90:91]")
    e(f"ds_write_b32 v{t6}, v{t5}")
    e(f"v_subrev_u32 v{t5}, 26, v{vLane}")
    e(f"v_cmp_gt_u32 s[88:89], 26, v{t5}")
    e(f"v_lshrrev_b32 v{t6}, 3, v{t5}")
    e(f"v_lshlrev_b32 v{t6}, 8, v{t6}")
    e(f"v_and_b32 v{t7}, 7, v{t5}")
    e(f"v_lshl_add_u32 v{t6}, v{t7}, 1, v{t6}")
    e(f"v_add_u32 v{t6}, {QB+1024+160}, v{t6}")
    e(f"v_cndmask_b32 v{t6}, v{vDum}, v{t6}, s[88:89]")
    e(f"ds_write_b16 v{t6}, v{vWs}")
    AW = 56
    for gq in range(4): e(f"v_cmp_eq_u32 s[{88+2*gq}:{89+2*gq}], {4*gq}, v{vL15}")
    for gq in range(4):
        for j in range(4): e(f"v_cndmask_b32 v{AW+4*gq+j}, 0, v{W3F+j}, s[{88+2*gq}:{89+2*gq}]")
    e("s_waitcnt lgkmcnt(0)")
    e("s_barrier")
    st("bi")
    a.c("Weff")
    WB = 80; WD = 128
    for j in range(3):
        for gq in range(4):
            b = WB + 16*j + 4*gq
            e(f"ds_read_b64_tr_b16 v[{b}:{b+1}], v{vT1} offset:{j*512+32*gq}")
            e(f"ds_read_b64_tr_b16 v[{b+2}:{b+3}], v{vT2} offset:{j*512+32*gq}")
    for j in range(3):
        e(f"s_waitcnt lgkmcnt({min(15, 8*(2-j))})")
        for gq in range(4):
            b = WB + 16*j + 4*gq; d = WD + 4*j
            c = "0" if gq == 0 else f"v[{d}:{d+3}]"
            e(f"v_mfma_f32_16x16x32_bf16 v[{d}:{d+3}], v[{AW+4*gq}:{AW+4*gq+3}], v[{b}:{b+3}], {c}")
    a.nop(8)
    for j in range(3): e(f"v_cvt_pk_bf16_f32 v{t4+j}, v{WD+4*j}, v{WD+4*j}")
    for j in range(3): e(f"ds_write_b16 v{QA+j}, v{t4+j}")
    st("weff")
    e("s_waitcnt vmcnt(0) lgkmcnt(0)")
    if stouch:
        for m in range(22 - stouch):
            e(f"s_min_u32 s51, s50, {346112-4}")
            e("s_load_dword s53, s[12:13], s51")
            e("s_add_u32 s50, s50, 512")
    nsp2 = int(opts.get("nsp2", "0"))
    if nsp2:
        regs2 = list(range(24, 40))
        for i in range(nsp2):
            r = regs2[i]
            e(f"s_lshl_b32 s{r}, s{r}, 5")
            e(f"s_load_dword s{r}, s[6:7], s{r}")
    e("s_barrier")
    st("b2")
    a.c("S2")
    Q0, Q1 = 140, 144
    lg.l = []
    e(f"ds_read_b128 v[{Q0}:{Q0+3}], v{QAD[0]}"); e(f"ds_read_b128 v[{Q1}:{Q1+3}], v{QAD[1]}"); lg.add("q", 2)
    PS = [48, 56, 64]
    cvt = lambda k, j: f"v_cvt_pk_bf16_f32 v{CV[k&1]+j}, v{DS[k&1]+2*j}, v{DS[k&1]+2*j+1}"
    wr = lambda SA, k, j: f"ds_write_b32 v{SA+j}, v{CV[k&1]+j} offset:{k*64}"
    def p_reads(k):
        P = PS[k % 3]
        return [f"ds_read_b64_tr_b16 v[{P}:{P+1}], v{TA1} offset:{k*208}",
                f"ds_read_b64_tr_b16 v[{P+2}:{P+3}], v{TA2} offset:{k*208}",
                f"ds_read_b64_tr_b16 v[{P+4}:{P+5}], v{TA1} offset:{k*208+32}",
                f"ds_read_b64_tr_b16 v[{P+6}:{P+7}], v{TA2} offset:{k*208+32}"]
    for k in (0, 1):
        for x in p_reads(k): e(x)
        lg.add(f"p{k}", 4)
    def masks(k): return [f"v_and_b32 v{PS[k%3]+4+j}, v{vM}, v{PS[k%3]+4+j}" for j in range(4)]
    lg.wait("p0")
    for x in masks(0): e(x)
    a.nop(1)
    for k in range(9):
        M = mf6(DS[k & 1], PS[k % 3], PS[k % 3]+4, Q0, Q1) if k < 7 else [None]*6
        R = p_reads(k+2) if k + 2 < 7 else []
        if k == 7: a.nop(4)
        if k == 8:
            e(f"s_cmp_lt_u32 s{sC}, 2"); e("s_cbranch_scc1 L_s2v")
            for j in range(6): e(f"v_mov_b32 v{SA2+j}, v{vDum}")
            a.label("L_s2v")
        for j in range(6):
            if j == 4 and k + 1 < 7:
                lg.wait(f"p{k+1}")
                for x in masks(k+1): e(x)
            if M[j]: e(M[j])
            if k >= 2: e(wr(SA2, k-2, j)); lg.add("w")
            if 1 <= k <= 7: e(cvt(k-1, j))
            if j < len(R): e(R[j]); lg.add(f"p{k+2}")
    st("s2")
    e("s_waitcnt lgkmcnt(0)")
    e("s_barrier")
    e("s_barrier")
    st("b3")
    if dbg == "lds":
        e("s_cmp_eq_u32 s2, 0"); e("s_cbranch_scc0 L_nodump")
        e(f"v_lshlrev_b32 v{t4}, 4, v0")
        for k in range(40):
            e(f"v_add_u32 v{t5}, {k*4096}, v{t4}")
            e(f"ds_read_b128 v[{t0}:{t3}], v{t5}")
            e("s_waitcnt lgkmcnt(0)")
            e(f"global_store_dwordx4 v{t5}, v[{t0}:{t3}], s[98:99]")
            e("s_waitcnt vmcnt(0)")
        a.label("L_nodump")
    a.c("C main")
    XA, YA, XB, YB = 8, 34, 47, 73
    D1A, D2A, D1B, D2B = 96, 112, 128, 144
    ZB = [[160, 164], [168, 172]]
    AB = [176, 184, 192]
    TM = [200, 201, 202, 203, 204, 205, 206, 207]
    WI = 208; vXb = 224; PK = 176
    e(f"v_and_b32 v{TM[4]}, 1, v{vG}")
    e(f"s_lshl_b32 s63, s{sC}, 2")
    e(f"v_add_u32 v{TM[4]}, s63, v{TM[4]}")
    e(f"v_mul_u32_u24 v{TM[4]}, 832, v{TM[4]}")
    e(f"v_lshrrev_b32 v{TM[5]}, 2, v{vL15}")
    e(f"v_lshl_add_u32 v{TM[4]}, v{TM[5]}, 5, v{TM[4]}")
    e(f"v_and_b32 v{TM[5]}, 3, v{vL15}")
    e(f"v_lshl_add_u32 v{TM[4]}, v{TM[5]}, 3, v{TM[4]}")
    e(f"v_add_u32 v{vXb}, {X0}, v{TM[4]}")
    safe = int(opts.get("safe", "0"))
    for T in range(2):
        for fb in range(7):
            e(f"ds_read_b64_tr_b16 v[{PK+14*T+2*fb}:{PK+14*T+2*fb+1}], v{vXb} offset:{T*1664 + fb*128}")
    e(f"v_lshrrev_b32 v{TM[5]}, 5, v{vLane}")
    e(f"v_lshlrev_b32 v{TM[6]}, 4, v{TM[5]}")
    e(f"v_add_u32 v{TM[6]}, {W1F}, v{TM[6]}")
    if safe: e("s_waitcnt lgkmcnt(0)")
    for m in range(4): e(f"ds_read_b128 v[{WI+4*m}:{WI+4*m+3}], v{TM[6]} offset:{m*32}")
    e(f"v_cmp_eq_u32 s[72:73], 1, v{TM[5]}")
    for T, (X, Y) in enumerate(((XA, YA), (XB, YB))):
        e(f"s_waitcnt lgkmcnt({11 if T == 0 else 4})")
        for g in range(13):
            p = PK + 14*T + g
            e(f"v_lshlrev_b32 v{X+2*g}, 16, v{p}")
            e(f"v_and_b32 v{X+2*g+1}, 0xffff0000, v{p}")
        for g in range(13): e(f"v_cndmask_b32 v{Y+g}, v{X+2*g}, v{X+2*g+1}, s[72:73]")
    def a_read(t):
        b = AB[t % 3]
        if t <= 22: e(f"ds_read_b128 v[{b}:{b+3}], v{vFa} offset:{F1 + t*FS}")
        if t <= 25: e(f"ds_read_b128 v[{b+4}:{b+7}], v{vFa} offset:{F2 + t*FS}")
    blocks = [(g, gp) for g in range(14) for gp in range(min(g, 12)+1)]
    def zgen(t, T):
        X, Y = ((XA, YA), (XB, YB))[T]
        z = ZB[t & 1][T]; mul = []; cv = []
        for j in range(4):
            g, gp = blocks[4*t + j]
            ta, tb, th = TM[2*j], TM[2*j+1], 228 + T
            if g == 13: cv.append(f"v_cvt_pk_bf16_f32 v{z+j}, v{Y+gp}, 0")
            else:
                y = Y + gp
                if g == gp and int(opts.get("omod", "0")):
                    mul.append(f"v_mul_f32_e64 v{ta}, v{X+2*g}, v{y} div:2")
                    mul.append(f"v_mul_f32_e64 v{tb}, v{X+2*g+1}, v{y} div:2")
                else:
                    if g == gp:
                        mul.append(f"v_mul_f32 v{th}, 0.5, v{Y+gp}"); y = th
                    mul.append(f"v_mul_f32 v{ta}, v{X+2*g}, v{y}")
                    mul.append(f"v_mul_f32 v{tb}, v{X+2*g+1}, v{y}")
                cv.append(f"v_cvt_pk_bf16_f32 v{z+j}, v{ta}, v{tb}")
        return mul + cv
    st("xld")
    a_read(0); a_read(1)
    for T in range(2):
        for s in zgen(0, T): e(s)
    cnt = {t: (1 if t > 22 else 2) for t in range(26)}
    for t in range(26):
        younger = cnt[t+1] if t+1 <= 25 else 0
        e(f"s_waitcnt lgkmcnt({younger})")
        b = AB[t % 3]; mf = []; rds = []
        if t + 2 <= 25:
            b2 = AB[(t+2) % 3]
            if t + 2 <= 22: rds.append(f"ds_read_b128 v[{b2}:{b2+3}], v{vFa} offset:{F1 + (t+2)*FS}")
            rds.append(f"ds_read_b128 v[{b2+4}:{b2+7}], v{vFa} offset:{F2 + (t+2)*FS}")
        for T, (D1, D2) in enumerate(((D1A, D2A), (D1B, D2B))):
            z = ZB[t & 1][T]
            if t <= 22:
                c = "0" if t == 0 else f"v[{D1}:{D1+15}]"
                mf.append(f"v_mfma_f32_32x32x16_bf16 v[{D1}:{D1+15}], v[{b}:{b+3}], v[{z}:{z+3}], {c}")
            c = f"v[{WI}:{WI+15}]" if t == 0 else f"v[{D2}:{D2+15}]"
            mf.append(f"v_mfma_f32_32x32x16_bf16 v[{D2}:{D2+15}], v[{b+4}:{b+7}], v[{z}:{z+3}], {c}")
        va = (zgen(t+1, 0) + zgen(t+1, 1)) if t < 25 else []
        n = len(mf); per = (len(va) + n - 1)//n if va else 0
        if t == 0: a.nop(2)
        vi = 0
        for mi, m in enumerate(mf):
            e(m)
            if mi < len(rds): e(rds[mi])
            for s in va[vi:vi+per]: e(s)
            vi += per
    a.nop(16)
    st("main")
    for T, (D1, D2) in enumerate(((D1A, D2A), (D1B, D2B))): e(f"v_mul_f32 v{TM[T]}, v{D1}, v{D2}")
    for r in range(1, 14):
        for T, (D1, D2) in enumerate(((D1A, D2A), (D1B, D2B))): e(f"v_fmac_f32 v{TM[T]}, v{D1+r}, v{D2+r}")
    if opts.get("chk"):
        for T in range(2):
            for fb in range(7):
                e(f"ds_read_b64_tr_b16 v[{96+14*T+2*fb}:{96+14*T+2*fb+1}], v{vXb} offset:{T*1664 + fb*128}")
            e("s_waitcnt lgkmcnt(0)")
        e("v_mov_b32 v230, 0x41200000")
        for T, (X, Y) in enumerate(((XA, YA), (XB, YB))):
            for g in range(13):
                p = 96 + 14*T + g
                e(f"v_lshlrev_b32 v228, 16, v{p}")
                e(f"v_cmp_ne_u32 vcc, v228, v{X+2*g}")
                e("s_nop 1")
                e(f"v_cndmask_b32 v229, 0, v230, vcc")
                e(f"v_add_f32 v{TM[T]}, v{TM[T]}, v229")
                e(f"v_and_b32 v228, 0xffff0000, v{p}")
                e(f"v_cmp_ne_u32 vcc, v228, v{X+2*g+1}")
                e("s_nop 1")
                e(f"v_cndmask_b32 v229, 0, v230, vcc")
                e(f"v_add_f32 v{TM[T]}, v{TM[T]}, v229")
    for sh in (8, 4, 2, 1):
        a.nop(2)
        for T in range(2): e(f"v_add_f32_dpp v{TM[T]}, v{TM[T]}, v{TM[T]} row_ror:{sh} row_mask:0xf bank_mask:0xf")
    e(f"v_bfe_u32 v{TM[2]}, v{vLane}, 4, 1")
    e(f"v_lshlrev_b32 v{TM[2]}, 3, v{TM[2]}")
    e(f"v_lshrrev_b32 v{TM[3]}, 5, v{vLane}")
    e(f"v_lshl_add_u32 v{TM[2]}, v{TM[3]}, 2, v{TM[2]}")
    e(f"s_lshl_b32 s63, s{sC}, 5"); e(f"s_add_u32 s63, s63, {RED}")
    e(f"v_add_u32 v{TM[2]}, s63, v{TM[2]}")
    e(f"ds_write_b32 v{TM[2]}, v{TM[0]}")
    e(f"ds_write_b32 v{TM[2]}, v{TM[1]} offset:16")
    e("s_branch L_final")

    a.label("L_D")
    sD, sDB, sK, sNI = 66, 67, 80, 79
    srd(SRD_TAB, 6, 3200000)
    srd(SRD_WD, 12, 346112)
    srd(SRD_WS, 8, 105456)
    P = 16; ACC = 32; BB = [64, 96]; AF = [128, 132]; TRA = 136; W2R = 144; BIAS = 152; OUT = 160; GT = 164; vC0 = 184; vA = 185
    W1R = 64; I0, I1 = 120, 124
    SA1 = 192; DSd = [198, 210]; CVd = [222, 164]
    vW1 = 27
    e(f"s_mul_i32 s81, s{sD}, 224")
    e(f"s_mul_i32 s63, s{sD}, 192"); e("s_add_u32 s63, s63, 64")
    e(f"s_mul_i32 s{sDB}, s{sD}, 7168")
    e(f"s_mul_i32 s64, s{sD}, 6144"); e("s_add_u32 s64, s64, 2048")
    e(f"s_cmp_lt_u32 s{sD}, 2")
    e("s_cselect_b32 s81, s81, s63"); e(f"s_cselect_b32 s{sDB}, s{sDB}, s64")
    e(f"s_cselect_b32 s{sNI}, 7, 6")
    e("s_movk_i32 s74, 5462"); e("s_cselect_b32 s74, 4682, s74")
    e("s_cselect_b32 s75, 14, 12")
    e("s_movk_i32 s78, 192"); e("s_cselect_b32 s78, 224, s78")
    e("s_cselect_b32 s76, -1, 0")
    e(f"s_add_u32 s{sDB}, s{sDB}, {RING}")
    e("s_mov_b64 exec, 0xffff")
    for ptr, off in ((14, 0), (16, 256)):
        e(f"s_mov_b32 s68, s{ptr}"); e(f"s_mov_b32 s69, s{ptr+1}"); e("s_mov_b32 s70, 832"); e("s_mov_b32 s71, 0x20000")
        e(f"s_add_u32 m0, s{sDB}, {off}"); e("s_nop 0")
        e(f"buffer_load_dwordx4 v{vL16}, s[68:71], s81 offen lds")
    e("s_mov_b64 exec, -1")
    sLS, sLD = 72, 73
    def lin_start(src, dst):
        e(f"s_lshl_b32 s{sLD}, s{sD}, 10")
        e(f"s_add_u32 s{sLS}, s{sLD}, {src}"); e(f"s_add_u32 s{sLD}, s{sLD}, {dst}")
    uid = [0]
    def lin_one(k):
        if k < 8:
            e(f"s_mov_b32 m0, s{sLD}"); e(f"s_add_u32 s{sLD}, s{sLD}, 4096")
            e(f"buffer_load_dwordx4 v{vL16}, s[{SRD_WS}:{SRD_WS+3}], s{sLS} offen lds")
            e(f"s_add_u32 s{sLS}, s{sLS}, 4096")
        else:
            uid[0] += 1; lab = f"L_lin{uid[0]}"
            e(f"s_cmp_lt_u32 s{sD}, 2"); e(f"s_cbranch_scc1 {lab}")
            e("s_mov_b64 exec, 0x1fffff")
            e(f"s_cmp_eq_u32 s{sD}, 2"); e(f"s_cbranch_scc1 {lab}")
            e(f"s_mov_b32 s{sLS}, {BIG}"); e(f"s_mov_b32 s{sLD}, {DUM}")
            a.label(lab)
            e(f"s_mov_b32 m0, s{sLD}"); e("s_nop 0")
            e(f"buffer_load_dwordx4 v{vL16}, s[{SRD_WS}:{SRD_WS+3}], s{sLS} offen lds")
            e("s_mov_b64 exec, -1")
    lin_start(2*35152, W3L)
    for k in range(n3first): lin_one(k)
    e(f"v_and_b32 v{t0}, 1, v{vLane}"); e(f"v_lshlrev_b32 v{t0}, 4, v{t0}")
    e(f"v_mul_u32_u24 v{t7}, 52, v{vL15}")
    e(f"v_lshl_add_u32 v{vW1}, v{vG}, 4, v{t7}")
    def patterns():
        for j in range(7):
            m, row, cp, p_, b3 = t1, t2, t3, t4, t5
            e(f"v_add_u32 v{m}, {64*j}, v{vLane}")
            e(f"v_mul_u32_u24 v{row}, s74, v{m}"); e(f"v_lshrrev_b32 v{row}, 16, v{row}")
            e(f"v_mul_u32_u24 v{cp}, s75, v{row}"); e(f"v_sub_u32 v{cp}, v{m}, v{cp}")
            e(f"v_lshrrev_b32 v{p_}, 1, v{cp}")
            e(f"v_bfe_u32 v{b3}, v{row}, 3, 1")
            e(f"v_xor_b32 v{t6}, v{p_}, v{b3}")
            e(f"v_add_u32 v{t7}, 3, v{p_}")
            e(f"v_cmp_lt_u32 vcc, 6, v{t7}")
            e(f"v_subrev_u32 v{m}, 7, v{t7}")
            e(f"v_and_b32 v{cp}, 1, v{cp}")
            e(f"v_cndmask_b32 v{t7}, v{t7}, v{m}, vcc")
            e(f"v_cmp_eq_u32 vcc, 1, v{b3}")
            e(f"v_mul_u32_u24 v{row}, 832, v{row}")
            e(f"v_add_u32 v{row}, s81, v{row}")
            e(f"v_cndmask_b32 v{t7}, v{p_}, v{t7}, vcc")
            e(f"v_and_b32 v{t7}, s76, v{t7}")
            e(f"v_not_b32 v{m}, s76"); e(f"v_and_b32 v{t6}, v{m}, v{t6}")
            e(f"v_or_b32 v{t7}, v{t7}, v{t6}")
            e(f"v_lshl_add_u32 v{cp}, v{t7}, 1, v{cp}")
            e(f"v_lshl_add_u32 v{cp}, v{cp}, 4, v{row}")
            if j & 3: e(f"v_subrev_u32 v{P+j}, {(j & 3)*1024}, v{cp}")
            else: e(f"v_mov_b32 v{P+j}, v{cp}")
        e(f"v_lshrrev_b32 v{t2}, 2, v{vL15}")
        e(f"v_lshl_add_u32 v{t3}, v{vG}, 3, v{t2}")
        e(f"v_mul_u32_u24 v{t3}, s78, v{t3}")
        e(f"v_and_b32 v{t4}, 3, v{vL15}")
        e(f"v_lshl_add_u32 v{t3}, v{t4}, 3, v{t3}")
        e(f"v_add_u32 v{t3}, s{sDB}, v{t3}")
        e(f"v_and_b32 v{t4}, 1, v{vG}")
        e(f"v_cmp_eq_u32 vcc, 1, v{t4}")
        e(f"v_not_b32 v{t6}, s76")
        for tau in range(7):
            e(f"v_mov_b32 v{t5}, {tau}")
            e(f"v_mov_b32 v{t7}, {(tau+4) % 7}")
            e(f"v_xor_b32 v{t2}, {tau}, v{t4}")
            e(f"v_cndmask_b32 v{t5}, v{t5}, v{t7}, vcc")
            e(f"v_and_b32 v{t5}, s76, v{t5}")
            e(f"v_and_b32 v{t2}, v{t6}, v{t2}")
            e(f"v_or_b32 v{t5}, v{t5}, v{t2}")
            e(f"v_lshl_add_u32 v{TRA+tau}, v{t5}, 5, v{t3}")
        e(f"v_mul_u32_u24 v{vA}, 832, v{vL15}")
        e(f"v_lshl_add_u32 v{vA}, v{vG}, 4, v{vA}")
        e(f"v_add_u32 v{vA}, {X0}, v{vA}")
    patearly = int(opts.get("pate", "1"))
    if patearly: patterns()
    st("w1")
    def w1_loads():
        e(f"s_mul_i32 s63, s{sD}, 1352")
        for k in range(7):
            if k == 6:
                e(f"s_cmp_lt_u32 s{sD}, 2"); e(f"s_cselect_b32 s63, s63, {BIG}")
            e(f"buffer_load_dwordx4 v[{W1R+8*k}:{W1R+8*k+3}], v{vW1}, s[{SRD_WS}:{SRD_WS+3}], s63 offen")
            e(f"buffer_load_dwordx4 v[{W1R+8*k+4}:{W1R+8*k+7}], v{vW1}, s[{SRD_WS}:{SRD_WS+3}], s63 offen offset:832")
            if k < 6: e(f"s_add_u32 s63, s63, {4*1352}")
    def gathers():
        for k in range(4): e(f"v_lshl_add_u32 v{vIdx+k}, v{vIdx+k}, 5, v{t0}")
        e(f"s_mul_i32 s63, s{sD}, {4*832}"); e(f"s_add_u32 s63, s63, {X0}")
        e("s_mov_b32 exec_lo, -1"); e("s_mov_b32 exec_hi, 0xfffff")
        for k in range(4):
            e(f"s_add_u32 m0, s63, {832*k}"); e("s_nop 0")
            e(f"buffer_load_dwordx4 v{vIdx+k}, s[{SRD_TAB}:{SRD_TAB+3}], 0 offen lds")
        e("s_mov_b64 exec, -1")
    def bias_read():
        e(f"v_lshlrev_b32 v{t1}, 1, v{vL15}"); e(f"v_add_u32 v{t1}, s{sDB}, v{t1}")
        for tau in range(7):
            e(f"v_mov_b32 v{BIAS+tau}, 0"); e(f"v_mov_b32 v{W2R+tau}, 0")
        for tau in range(7):
            e(f"ds_read_u16_d16_hi v{BIAS+tau}, v{t1} offset:{tau*32}")
            e(f"ds_read_u16_d16_hi v{W2R+tau}, v{t1} offset:{256+tau*32}")
        e("s_waitcnt lgkmcnt(0)")
        for tau in range(7):
            for r in range(4): e(f"v_mov_b32 v{ACC+4*tau+r}, v{BIAS+tau}")
    def kdma(slot):
        uid[0] += 1; lab = f"L_k{uid[0]}"
        for j in range(7):
            if j == 6:
                e(f"s_cmp_eq_u32 s{sNI}, 6"); e(f"s_cbranch_scc1 {lab}")
            if (j & 3) == 0:
                e(f"s_add_u32 m0, s{sDB}, {slot*SLOT + (j >> 2)*4096}"); e("s_nop 0")
            off = f" offset:{(j & 3)*1024}" if j & 3 else ""
            e(f"buffer_load_dwordx4 v{P+j}, s[{SRD_WD}:{SRD_WD+3}], s{sK} offen{off} lds")
        a.label(lab)
        e(f"s_add_u32 s{sK}, s{sK}, {SLOT}")
    def s1_setup():
        e(f"v_lshlrev_b32 v{t4}, 3, v{vG}")
        e(f"v_sub_u32 v{t4}, v{vL15}, v{t4}")
        e(f"v_and_b32 v{t5}, 1, v{t4}")
        e(f"v_lshlrev_b32 v{t5}, 4, v{t5}")
        e(f"v_mov_b32 v{t6}, 0x3f80")
        e(f"v_lshlrev_b32 v{t5}, v{t5}, v{t6}")
        e(f"v_ashrrev_i32 v{t4}, 1, v{t4}")
        e(f"v_add_u32 v{t6}, 8, v{t4}")
        for j in range(4): e(f"v_cmp_eq_u32 s[{88+2*j}:{89+2*j}], {j}, v{t4}")
        for j in range(4): e(f"v_cndmask_b32 v{I0+j}, 0, v{t5}, s[{88+2*j}:{89+2*j}]")
        for j in range(4): e(f"v_cmp_eq_u32 s[{88+2*j}:{89+2*j}], {j}, v{t6}")
        for j in range(4): e(f"v_cndmask_b32 v{I1+j}, 0, v{t5}, s[{88+2*j}:{89+2*j}]")
        scatter_addr(SA1, F1, False, 12, 198)
    def S1():
        cvt = lambda k, j: f"v_cvt_pk_bf16_f32 v{CVd[k&1]+j}, v{DSd[k&1]+2*j}, v{DSd[k&1]+2*j+1}"
        wr = lambda k, j: f"ds_write_b32 v{SA1+j}, v{CVd[k&1]+j} offset:{k*64}"
        for k in range(9):
            M = mf6(DSd[k & 1], W1R+8*k, W1R+8*k+4, I0, I1) if k < 7 else [None]*6
            if k == 7: a.nop(4)
            if k == 1: a.nop(5)
            if k == 2: a.nop(1)
            for j in range(6):
                if M[j]: e(M[j])
                if k >= 2: e(wr(k-2, j))
                if 1 <= k <= 7: e(cvt(k-1, j))
    e(f"s_mov_b32 s{sK}, 0")
    for k in range(n3first, 9): lin_one(k)
    lin_start(35152, W2L)
    for k in range(9): lin_one(k)
    e("s_waitcnt vmcnt(9)")
    e("s_barrier")
    st("bi")
    gfirst = int(opts.get("gfirst", "0"))
    w1_loads()
    if gfirst:
        gathers()
        st("sb1")
        e("s_waitcnt vmcnt(18)")
        e("s_barrier")
        st("b2")
    else:
        e("s_waitcnt vmcnt(14)")
        e("s_barrier")
        st("b2")
        gathers()
        st("sb1")
    bias_read()
    if not patearly: patterns()
    s1_setup()
    e("s_waitcnt vmcnt(4)")
    S1()
    k01late = int(opts.get("k01late", "0"))
    if not k01late: kdma(0); kdma(1)
    st("s1")
    e("s_waitcnt lgkmcnt(0)")
    e("s_barrier")
    if k01late: kdma(0); kdma(1)
    kdma(2)
    st("issued")
    e(f"s_cmp_lt_u32 s{sD}, 2"); e("s_cbranch_scc0 L_D6")
    def emit_D(NT):
        tag = f"T{NT}"; nI = NT; nt = NT; RS = 32*NT
        e(f"s_waitcnt vmcnt({3*nI})")
        st("s2")
        e("s_barrier")
        st("b3")
        if prio: e(f"s_setprio {prio}")
        def reads(b, slot, astep):
            r = [f"ds_read_b128 v[{AF[b]}:{AF[b]+3}], v{vA} offset:{64*astep}"]
            for tau in range(nt):
                r.append(f"ds_read_b64_tr_b16 v[{BB[b]+4*tau}:{BB[b]+4*tau+1}], v{TRA+tau} offset:{slot*SLOT}")
                r.append(f"ds_read_b64_tr_b16 v[{BB[b]+4*tau+2}:{BB[b]+4*tau+3}], v{TRA+tau} offset:{slot*SLOT+4*RS}")
            return r
        def mfmas(b):
            return [f"v_mfma_f32_16x16x32_bf16 v[{ACC+4*tau}:{ACC+4*tau+3}], v[{AF[b]}:{AF[b]+3}], v[{BB[b]+4*tau}:{BB[b]+4*tau+3}], v[{ACC+4*tau}:{ACC+4*tau+3}]" for tau in range(nt)]
        e(f"s_waitcnt vmcnt({2*nI})")
        for x in reads(0, 0, 0): e(x)
        e("s_waitcnt lgkmcnt(0)")
        e("s_mov_b32 s82, 0")
        st("xld")
        a.label(f"L_dl{tag}")
        for i in range(6):
            e(f"s_waitcnt vmcnt({nI})")
            R = reads((i+1) & 1, (i+1) % 3, i+1)
            Ms = mfmas(i & 1)
            e(f"s_add_u32 m0, s{sDB}, {(i % 3)*SLOT}")
            e(R[0]); ri = 1
            for j in range(nI):
                if j == 4:
                    e(f"s_add_u32 m0, s{sDB}, {(i % 3)*SLOT + 4096}")
                    e(R[ri]); ri += 1
                off = f" offset:{(j & 3)*1024}" if j & 3 else ""
                e(f"buffer_load_dwordx4 v{P+j}, s[{SRD_WD}:{SRD_WD+3}], s{sK} offen{off} lds")
                e(R[ri]); ri += 1
                if ri < len(R) and (len(R) - ri) > (nI - 1 - j) - (1 if j < 4 else 0): e(R[ri]); ri += 1
                e(Ms[j])
            while ri < len(R): e(R[ri]); ri += 1
            e(f"s_add_u32 s{sK}, s{sK}, {SLOT}")
            e("s_waitcnt lgkmcnt(0)")
        e(f"v_add_u32 v{vA}, {6*64}, v{vA}")
        e("s_add_u32 s82, s82, 1")
        e("s_cmp_lt_u32 s82, 2"); e(f"s_cbranch_scc1 L_dl{tag}")
        C0 = -2.0*0.7978845608028654*1.4426950408889634; C1 = C0*0.044715
        ML = mfmas(0)
        def gelu_ops(tau):
            x = ACC + 4*tau; Uu, E, Yv = GT, GT+4, GT+8
            r4 = range(4)
            return ([f"v_mul_f32 v{Uu+r}, v{x+r}, v{x+r}" for r in r4] +
                    [f"v_fmamk_f32 v{Uu+r}, v{Uu+r}, 0x{f32bits(C1):08x}, v{vC0}" for r in r4] +
                    [f"v_mul_f32 v{Uu+r}, v{x+r}, v{Uu+r}" for r in r4] +
                    [f"v_exp_f32 v{E+r}, v{Uu+r}" for r in r4] +
                    [f"v_mul_f32 v{Yv+r}, v{x+r}, v{W2R+tau}" for r in r4] +
                    [f"v_add_f32 v{E+r}, 1.0, v{E+r}" for r in r4] +
                    [f"v_rcp_f32 v{E+r}, v{E+r}" for r in r4] + ["s_nop 0"] +
                    [f"v_fmac_f32 v{OUT+r}, v{Yv+r}, v{E+r}" for r in r4])
        if int(opts.get("tailov", "1")):
            e(ML[0]); e(ML[1]); e(ML[2])
            for r in range(4): e(f"v_mov_b32 v{OUT+r}, 0")
            e(f"v_mov_b32 v{vC0}, 0x{f32bits(C0):08x}")
            a.nop(2)
            G0 = gelu_ops(0); gi = 0
            for m in ML[3:]:
                for x in G0[gi:gi+6]: e(x)
                gi += 6
                e(m)
            for x in G0[gi:]: e(x)
            st("main")
            for tau in range(1, nt):
                for x in gelu_ops(tau): e(x)
        else:
            for x in ML: e(x)
            st("main")
            for r in range(4): e(f"v_mov_b32 v{OUT+r}, 0")
            e(f"v_mov_b32 v{vC0}, 0x{f32bits(C0):08x}")
            a.nop(8)
            for tau in range(nt):
                for x in gelu_ops(tau): e(x)
        st("gelu")
        for sh in (8, 4, 2, 1):
            a.nop(2)
            for r in range(4): e(f"v_add_f32_dpp v{OUT+r}, v{OUT+r}, v{OUT+r} row_ror:{sh} row_mask:0xf bank_mask:0xf")
        e(f"s_lshl_b32 s63, s{sD}, 6"); e(f"s_add_u32 s63, s63, {RED2}")
        e(f"v_lshlrev_b32 v{GT}, 4, v{vG}"); e(f"v_add_u32 v{GT}, s63, v{GT}")
        e(f"ds_write_b128 v{GT}, v[{OUT}:{OUT+3}]")
    emit_D(7)
    e("s_branch L_final")
    a.label("L_D6")
    emit_D(6)

    a.label("L_final")
    e(f"v_lshlrev_b32 v8, 3, v{vL15}"); e(f"v_add_u32 v8, {RED}, v8")
    e(f"v_lshlrev_b32 v9, 2, v{vL15}"); e(f"v_add_u32 v9, {RED2}, v9")
    e("s_mov_b32 s68, s20"); e("s_mov_b32 s69, s21"); e("s_mov_b32 s70, 8192"); e("s_mov_b32 s71, 0x20000")
    e("s_lshl_b32 s63, s2, 5")
    e(f"v_lshlrev_b32 v16, 1, v{vL15}")
    e("s_waitcnt lgkmcnt(0)")
    e("s_barrier")
    st("fin")
    if stamp is not None:
        wg, wv = [int(x) for x in stamp.split("_")]
        e(f"s_cmp_eq_u32 s2, {wg}"); e("s_cbranch_scc0 L_nost")
        e(f"s_cmp_eq_u32 s{sW}, {wv}"); e("s_cbranch_scc0 L_nost")
        e(f"v_lshlrev_b32 v30, 2, v{vLane}")
        e("s_mov_b64 exec, 0xffff")
        e(f"global_store_dword v30, v{vSt}, s[96:97]")
        e("s_mov_b64 exec, -1")
        a.label("L_nost")
    e(f"s_cmp_eq_u32 s{sW}, 0"); e("s_cbranch_scc0 L_end")
    e("ds_read_b64 v[10:11], v8")
    for d in range(4): e(f"ds_read_b32 v{12+d}, v9 offset:{d*64}")
    e("s_lshl_b32 s47, s47, 16")
    e("s_mov_b64 exec, 0xffff")
    e("s_waitcnt lgkmcnt(0)")
    e("v_add_f32 v10, v10, v11"); e("v_add_f32 v12, v12, v13"); e("v_add_f32 v14, v14, v15")
    e("v_add_f32 v10, s47, v10"); e("v_add_f32 v12, v12, v14"); e("v_add_f32 v10, v10, v12")
    e("v_cvt_pk_bf16_f32 v10, v10, v10")
    e("buffer_store_short v10, v16, s[68:71], s63 offen")
    if tot:
        e("s_memtime s[84:85]"); e("s_memrealtime s[86:87]"); e("s_waitcnt lgkmcnt(0)")
        e("s_sub_u32 s84, s84, s100")
        e("s_lshl_b32 s63, s2, 2")
        e("v_mov_b32 v20, s84"); e("v_mov_b32 v21, s63"); e("v_mov_b32 v22, s86")
        e("s_mov_b64 exec, 1")
        e("global_store_dword v21, v20, s[96:97]")
        e("global_store_dword v21, v22, s[96:97] offset:1024")
    a.label("L_end")
    e("s_endpgm")
    a.label("CODE_END")
    return a

HEADER = """; xDeepFM (CIN + DNN) fused kernel for gfx950, hand-written (emitted by my own generator script).
; @launch grid=(256,1,1) block=(512,1,1) lds=163840
.amdgcn_target "amdgcn-amd-amdhsa--gfx950"
.text
.globl {k}
.p2align 8
.type {k},@function
"""
FOOTER = """
.section .rodata,"a"
.p2align 6
.amdhsa_kernel {k}
  .amdhsa_next_free_vgpr {nv}
  .amdhsa_next_free_sgpr 102
  .amdhsa_accum_offset {nv}
  .amdhsa_group_segment_fixed_size 0
  .amdhsa_kernarg_size 88
  .amdhsa_user_sgpr_count 2
  .amdhsa_user_sgpr_kernarg_segment_ptr 1
  .amdhsa_system_sgpr_workgroup_id_x 1
.end_amdhsa_kernel
"""
if __name__ == "__main__":
    opts = dict(x.split("=") for x in sys.argv[2:])
    a = gen(opts)
    body = a.text()
    probs = check_hazards(body)
    for p in probs: print("HAZARD:", p, file=sys.stderr)
    foot = FOOTER.format(k=KNAME, nv=232)
    if int(opts.get("omod", "0")): foot = foot.replace("  .amdhsa_kernarg_size 88", "  .amdhsa_ieee_mode 0\n  .amdhsa_kernarg_size 88")
    open(sys.argv[1], "w").write(HEADER.format(k=KNAME) + body + foot)
    print("written", sys.argv[1], "hazards:", len(probs), file=sys.stderr)
```
